```python
import torch

def _softmax(x, axis=-1):
    return torch.softmax(x, dim=axis)
def _gelu(x):
    return torch.nn.functional.gelu(x, approximate="tanh")
def _silu(x):
    return torch.nn.functional.silu(x)
def _sigmoid(x):
    return torch.sigmoid(x)
def _layernorm(x, axis=-1, eps=1e-5):
    m = x.mean(dim=axis, keepdim=True)
    v = x.var(dim=axis, keepdim=True, unbiased=False)
    return (x - m) / torch.sqrt(v + eps)
def _scatter_add(tgt, idx, src, axis=0):
    return tgt.clone().index_add_(axis, idx, src)
def _segment_sum(src, seg, n):
    out = torch.zeros((n,) + src.shape[1:], dtype=src.dtype)
    return out.index_add_(0, seg, src)
def _pad(x, pw):
    flat = tuple(v for pair in reversed(pw) for v in pair)
    return torch.nn.functional.pad(x, flat)

kernel_name = 'recurrent_scan__gqa_block_cached__mixer_token_mlp__decode'

def setup_inputs():

    _w = (lambda a: (lambda t: t.to(torch.bfloat16) if t.is_floating_point() else t)(torch.as_tensor(a)))
    def _A_setup():
        B, Sq, D = 2, 1, 576
        Hq, Hkv, Sk, Dh = 32, 16, 8192, 128
        assert Hq % Hkv == 0, (Hq, Hkv)
        return {
            "x": _w((lambda *s: torch.randn(*s, dtype=torch.bfloat16) * 0.1)(B, Sq, D)),
            "k_cache": _w((lambda *s: torch.randn(*s, dtype=torch.bfloat16) * 0.8)(B, Hkv, Sk, Dh)),
            "v_cache": _w((lambda *s: torch.randn(*s, dtype=torch.bfloat16) * 3.2)(B, Hkv, Sk, Dh)),
            "wq": _w((lambda *s: torch.randn(*s, dtype=torch.bfloat16) * 0.8)(D, Hq * Dh) * (D ** -0.5)),
            "wo": _w((lambda *s: torch.randn(*s, dtype=torch.bfloat16) * 3.2)(Hq * Dh, D) * ((Hq * Dh) ** -0.5)),
        }
    _A_in = _A_setup()

    def _B_setup():
        B, S, D, F = 2, 1, 576, 4608
        return {
            "x": _w((lambda *s: torch.randn(*s, dtype=torch.bfloat16) * 0.1)(B, S, D)),
            "w1": _w((lambda *s: torch.randn(*s, dtype=torch.bfloat16) * 3.2)(S, F) * (S ** -0.5)),
            "b1": _w((lambda *s: torch.randn(*s, dtype=torch.bfloat16) * 3.2)(F) * 0.02),
            "w2": _w((lambda *s: torch.randn(*s, dtype=torch.bfloat16) * 3.2)(F, S) * (F ** -0.5)),
            "b2": _w((lambda *s: torch.randn(*s, dtype=torch.bfloat16) * 3.2)(S) * 0.02),
        }
    _B_in = _B_setup()

    return {
        "A_x": _A_in["x"],
        "A_k_cache": _A_in["k_cache"],
        "A_v_cache": _A_in["v_cache"],
        "A_wq": _A_in["wq"],
        "A_wo": _A_in["wo"],
        "B_x": _B_in["x"],
        "B_w1": _B_in["w1"],
        "B_b1": _B_in["b1"],
        "B_w2": _B_in["w2"],
        "B_b2": _B_in["b2"],
    }

def reference(A_x, A_k_cache, A_v_cache, A_wq, A_wo, B_x, B_w1, B_b1, B_w2, B_b2):
    def _A_ref(x, k_cache, v_cache, wq, wo):
        B, Sq, D = x.shape
        Hq, Dh = 32, 128
        Hkv = k_cache.shape[1]
        rep = Hq // Hkv
        q = (lambda x, *d: x.permute(*d))((x @ wq).reshape(B, Sq, Hq, Dh), 0, 2, 1, 3)
        k = (lambda x, n, axis: torch.repeat_interleave(x, n, dim=axis))(k_cache, rep, axis=1)
        v = (lambda x, n, axis: torch.repeat_interleave(x, n, dim=axis))(v_cache, rep, axis=1)
        scores = torch.einsum("bhqd,bhkd->bhqk", q, k) * (Dh ** -0.5)
        p = _softmax(scores, axis=-1)
        o = torch.einsum("bhqk,bhkd->bhqd", p, v)
        return (lambda x, *d: x.permute(*d))(o, 0, 2, 1, 3).reshape(B, Sq, Hq * Dh) @ wo

    def _B_ref(x, w1, b1, w2, b2):
        B, S, D = x.shape
        h = _layernorm(x, axis=-1)
        u = torch.einsum("bsd,sf->bdf", h, w1) + b1
        u = _gelu(u)
        y = torch.einsum("bdf,fs->bds", u, w2) + b2
        return (lambda x, *d: x.permute(*d))(y, 0, 2, 1)

    x = A_x
    xn = _layernorm(x, axis=-1)
    s = _A_ref(xn, A_k_cache, A_v_cache, A_wq, A_wo)
    g = _silu(_B_ref(xn, B_w1, B_b1, B_w2, B_b2))
    return x + s * g
```

```python
import re
TRANS = ("v_exp_f32", "v_log_f32", "v_rcp_f32", "v_rsq_f32", "v_sqrt_f32", "v_sin_f32", "v_cos_f32")
_reg = re.compile(r"\b([vas])(\d+)\b|\b([vas])\[(\d+):(\d+)\]|\b(vcc|exec|m0|scc)\b")
def regs_of(op):
    out = set()
    for m in _reg.finditer(op):
        if m.group(1): out.add((m.group(1), int(m.group(2))))
        elif m.group(3):
            for i in range(int(m.group(4)), int(m.group(5)) + 1): out.add((m.group(3), i))
        else: out.add((m.group(6), 0))
    return out
def split_ops(s):
    ops = []; depth = 0; cur = ""
    for ch in s:
        if ch == "[": depth += 1
        if ch == "]": depth -= 1
        if ch == "," and depth == 0: ops.append(cur.strip()); cur = ""
        else: cur += ch
    if cur.strip(): ops.append(cur.strip())
    return ops
class Ins:
    pass
class Asm:
    def __init__(self):
        self.lines = []; self.hist = []; self.nops = 0
    def raw(self, s): self.lines.append(s)
    def comment(self, s): self.lines.append("    ; " + s)
    def classify(self, text):
        t = text.split(";")[0].strip()
        parts = t.split(None, 1)
        op = parts[0]; rest = parts[1] if len(parts) > 1 else ""
        ops = split_ops(rest)
        I = Ins(); I.op = op; I.text = t
        I.w = set(); I.r = set(); I.kind = "other"; I.ws = 1
        I.dpp = ("_dpp" in op) or ("quad_perm" in t) or ("row_" in t)
        base = op.replace("_dpp", "").replace("_e32", "").replace("_e64", "")
        I.base = base
        if op == "s_nop":
            I.kind = "nop"; I.ws = int(ops[0], 0) + 1; return I
        def first_tok(x): return x.split()[0] if x.split() else x
        if op.startswith("v_mfma"):
            I.kind = "mfma"; I.w = regs_of(ops[0]); I.a = regs_of(ops[1]) | regs_of(ops[2]); I.c = regs_of(first_tok(ops[3])); I.r = I.a | I.c
            I.passes = 4 if "16x16x32" in op else (8 if "32x32x16" in op else None)
            assert I.passes, op
            return I
        if op.startswith("v_"):
            I.kind = "valu"
            o = [first_tok(x) for x in ops]
            if "permlane" in op:
                I.w = regs_of(o[0]) | regs_of(o[1]); I.r = set(I.w); I.perm = True; return I
            nd = 1
            if "_co_" in op: nd = 2
            for x in o[:nd]: I.w |= regs_of(x)
            for x in o[nd:]: I.r |= regs_of(x)
            if base in ("v_fmac_f32", "v_dot2c_f32_bf16", "v_writelane_b32") or I.dpp: I.r |= regs_of(o[0])
            if base == "v_cndmask_b32" and len(o) == 3: I.r.add(("vcc", 0))
            return I
        if op.startswith("ds_"):
            I.kind = "ds"; o = [first_tok(x) for x in ops]
            if "read" in op or "rtn" in op or "permute" in op or "swizzle" in op:
                I.w = regs_of(o[0]);
                for x in o[1:]: I.r |= regs_of(x)
            else:
                for x in o: I.r |= regs_of(x)
            return I
        if op.startswith("buffer_") or op.startswith("global_"):
            I.kind = "vmem"; o = [first_tok(x) for x in ops]
            I.store = ("store" in op) or ("atomic" in op)
            if op.startswith("buffer_"):
                data = regs_of(o[0]); addr = set()
                for x in o[1:]: addr |= regs_of(x)
                if I.store: I.r = data | addr; I.data = data
                else: I.w = data; I.r = addr
                if "atomic" in op and " sc0" in t: I.w = data
            else:
                if "store" in op or ("atomic" in op and " sc0" not in t):
                    I.data = regs_of(o[1]); I.r = regs_of(o[0]) | I.data | regs_of(o[2])
                elif "atomic" in op:
                    I.w = regs_of(o[0]); I.data = regs_of(o[2]); I.r = regs_of(o[1]) | I.data | regs_of(o[3])
                else:
                    I.w = regs_of(o[0]); I.r = regs_of(o[1]) | regs_of(o[2])
            I.wide = I.store and ("x3" in op or "x4" in op)
            return I
        if op.startswith("s_"):
            I.kind = "salu"
            o = [first_tok(x) for x in ops]
            if op.startswith("s_cmp") or op.startswith("s_cbranch") or op in ("s_branch", "s_waitcnt", "s_barrier", "s_sleep", "s_setprio", "s_endpgm"):
                for x in o: I.r |= regs_of(x)
            elif o:
                I.w = regs_of(o[0])
                for x in o[1:]: I.r |= regs_of(x)
            return I
        return I
    def need(self, P, C):
        n = 0
        vw = {x for x in P.w if x[0] in "va"}
        sw = {x for x in P.w if x[0] in ("s", "vcc")}
        if P.kind == "valu":
            if C.kind == "valu":
                if vw & C.r:
                    if C.dpp: n = max(n, 2)
                    if getattr(C, "perm", False): n = max(n, 2)
                    if C.base in ("v_readlane_b32", "v_readfirstlane_b32"): n = max(n, 1)
                    if P.base in TRANS: n = max(n, 1)
                if sw & C.r:
                    n = max(n, 4 if C.base in ("v_readlane_b32", "v_writelane_b32") else 2)
            if C.kind == "mfma" and vw & C.r: n = max(n, 2)
            if C.kind == "vmem" and sw & C.r: n = max(n, 5)
            if C.kind == "salu" and sw & C.r: n = max(n, 1)
            if P.base.startswith("v_dot2"):
                if C.kind == "valu" and C.base == P.base:
                    srcab = C.r - C.w if P.base == "v_dot2c_f32_bf16" else C.r
                    o = split_ops(C.text.split(None, 1)[1])
                    ab = regs_of(o[1].split()[0]) | regs_of(o[2].split()[0])
                    if vw & ab: n = max(n, 3)
                elif vw & (C.r | C.w): n = max(n, 3)
        if P.kind == "mfma":
            big = {4: 8, 8: 12}[P.passes]
            if C.kind == "mfma":
                if P.w & C.a: n = max(n, big)
                if P.w & C.c:
                    if C.c == P.w and C.passes == P.passes: pass
                    else: n = max(n, {4: 6, 8: 10}[P.passes])
            elif C.kind == "valu":
                if P.w & (C.r | C.w): n = max(n, big)
                if P.c & C.w: n = max(n, {4: 3, 8: 7}[P.passes])
            elif C.kind in ("vmem", "ds"):
                if P.w & (C.r | C.w): n = max(n, big)
        if P.kind == "vmem" and getattr(P, "wide", False):
            if C.kind in ("valu", "mfma") and (P.data & C.w): n = max(n, 2)
            elif P.data & C.w: n = max(n, 1)
        return n
    def worst(self, P):
        if P.kind == "valu":
            n = 2
            if {x for x in P.w if x[0] in ("s", "vcc")}: n = 5
            if P.base.startswith("v_dot2"): n = 3
            return n
        if P.kind == "mfma": return {4: 8, 8: 12}[P.passes]
        if P.kind == "vmem" and getattr(P, "wide", False): return 2
        return 0
    def _pad(self, k):
        while k > 0:
            c = min(k, 16)
            self.lines.append(f"    s_nop {c-1}"); I = self.classify(f"s_nop {c-1}"); self.hist.append(I); k -= c; self.nops += 1
    def settle(self, minus=0):
        d = minus; k = 0
        for P in reversed(self.hist[-14:]):
            k = max(k, self.worst(P) - d); d += P.ws
        self._pad(k)
    def __call__(self, text):
        C = self.classify(text)
        if C.op.startswith("s_cbranch") or C.op in ("s_branch",):
            self.settle(minus=1)
        d = 0; k = 0
        for P in reversed(self.hist[-14:]):
            k = max(k, self.need(P, C) - d); d += P.ws
        self._pad(k)
        self.lines.append("    " + text); self.hist.append(C)
    def label(self, name):
        self.settle()
        self.lines.append(name + ":")
    def text(self): return "\n".join(self.lines) + "\n"
```

```python
import sys, struct, math
sys.path.insert(0, __file__.rsplit("/", 1)[0] if "/" in __file__ else ".")
from asmlib import Asm
KN = "recurrent_scan__gqa_block_cached__mixer_token_mlp__decode"
def f2u(x): return struct.unpack("<I", struct.pack("<f", x))[0]
def hx(x): return f"0x{x & 0xffffffff:08x}"
LOG2E = 1.4426950408889634
SCALE = 128 ** -0.5
L_MISC = 0
L_QFLAG = L_MISC; L_CNTB = L_MISC + 4; L_CNTQK = L_MISC + 8; L_CNTO = L_MISC + 12; L_CNTW = L_MISC + 16
L_MLW = 64; L_FW = 192; L_Q = 256; L_OW = 768; L_XL = L_OW + 8192; L_WO = L_XL + 4 * 2304; L_END = L_WO + 128 * 144 + 64
W_QP = 0; W_OP = 0x40000; W_ML = 0x60000; W_SP = 0x70000; W_YP = 0xA0000; W_FL = 0xD0000; W_ST = 128 << 20
LIMIT = 1 << 18

def gen(MAP="kvh", NT=True, ROUND=True, NPRE=36, ROT=1, STAMP=False, ATOM="scalar", SCH_QK=(2,)*8, SCH_SM=(1,)*8, SCH_PV={3:1,7:1,11:1,15:1}, H1SLEEP=0, NSIG=8, H2DELAY=16, EARLYBAR=True, LAYOUT='JJWW', WONT=True, WQNT=True, SKIP='', ISTAMP=False):
    A = Asm()
    nt = " nt" if NT else ""
    NST = 18 if ISTAMP else 12
    SB = 60 if ISTAMP else 76
    if ISTAMP: STAMP = True
    A.raw(f"; @launch grid=(256,1,1) block=(512,1,1) lds={(L_END + 255) // 256 * 256}")
    if STAMP: A.raw(f"; STAMPS nrec=2048 n={NST}")
    A.raw('.amdgcn_target "amdgcn-amd-amdhsa--gfx950"')
    A.raw(".text"); A.raw(f".globl {KN}_kernel"); A.raw(".p2align 8"); A.raw(f".type {KN}_kernel,@function"); A.raw(f"{KN}_kernel:")
    def stamp(k, force=False):
        if ISTAMP and not force:
            if k == 10: k = 17
            elif k != 0: return
        if ISTAMP and k == 0 and not force:
            A("s_memrealtime s[96:97]"); return
        if STAMP: A(f"s_memrealtime s[{SB+2*k}:{SB+1+2*k}]")
    sX, sK, sV, sWQ, sWO, sW1, sB1, sW2, sB2, sOUT, sDBG, sWS = 4, 6, 8, 10, 12, 16, 18, 20, 22, 24, 26, 28
    KS, VS = 32, 36
    sW, sG, sB, sSP, sJ, sHH, sCG, sP, sBASE, sT, sT2, sT3, sCNT, sPASS, sC1, sHAVE = 40, 41, 42, 43, 44, 45, 46, 47, 48, 49, 50, 51, 52, 53, 54, 55
    sFL = 58
    sA = 56
    sR = 60
    vL, vOFF = 1, 2
    D = 4; QA = 8; QB = 12; MK = 16; B0 = 20; B1 = 24; T = 28; vM = 36; vLs = 37; vG = 38; vXo = 39
    KB = 40
    def ks(i): return KB + 4 * i
    def rng(r, n=4): return f"v[{r}:{r+n-1}]"
    if STAMP and not ISTAMP:
        for k in range(1, NST): A(f"s_mov_b64 s[{76+2*k}:{77+2*k}], 0")
    stamp(0)
    A("s_cmp_ge_u32 s2, 256"); A("s_cbranch_scc1 L_END")
    A("s_load_dwordx16 s[4:19], s[0:1], 0")
    A("s_load_dwordx8 s[20:27], s[0:1], 64")
    A("s_load_dwordx2 s[28:29], s[0:1], 96")
    A("v_lshrrev_b32 v3, 6, v0"); A(f"v_and_b32 v{vL}, 63, v0")
    A(f"v_readfirstlane_b32 s{sW}, v3")
    if MAP == "kvh":
        A(f"s_and_b32 s{sG}, s2, 7"); A(f"s_lshr_b32 s{sT}, s2, 7"); A(f"s_lshl_b32 s{sT}, s{sT}, 3"); A(f"s_or_b32 s{sG}, s{sG}, s{sT}")
        A(f"s_bfe_u32 s{sJ}, s2, 0x40003")
    else:
        A(f"s_lshr_b32 s{sG}, s2, 4"); A(f"s_and_b32 s{sJ}, s2, 15")
    A(f"s_and_b32 s{sSP}, s{sJ}, 7"); A(f"s_lshr_b32 s{sB}, s{sJ}, 3")
    A(f"s_and_b32 s{sHH}, s{sJ}, 1"); A(f"s_lshr_b32 s{sCG}, s{sJ}, 1")
    A(f"s_lshl_b32 s{sP}, s{sG}, 1"); A(f"s_or_b32 s{sP}, s{sP}, s{sHH}")
    A(f"s_and_b32 s{sT}, s{sW}, 3"); A(f"s_lshl_b32 s{sBASE}, s{sT}, {12 if LAYOUT == 'JJWW' else 10}")
    A(f"s_add_u32 s{sT}, s{sW}, 7"); A(f"s_and_b32 s{sT}, s{sT}, 4"); A(f"s_lshl_b32 s{sT}, s{sT}, 15"); A(f"s_or_b32 s{sBASE}, s{sBASE}, s{sT}")
    A(f"s_lshl_b32 s{sT}, s{sSP}, 18"); A(f"s_or_b32 s{sBASE}, s{sBASE}, s{sT}")
    if ROT:
        if LAYOUT == 'JJWW':
            A(f"s_mul_i32 s{sT}, s2, 0x9E3779B1"); A(f"s_lshr_b32 s{sT}, s{sT}, 29"); A(f"s_lshl_b32 s{sT}, s{sT}, 14"); A(f"s_or_b32 s{sBASE}, s{sBASE}, s{sT}")
        else:
            A(f"s_mul_i32 s{sT}, s2, 0x9E3779B1"); A(f"s_lshr_b32 s{sT}, s{sT}, 27"); A(f"s_lshl_b32 s{sT}, s{sT}, 12"); A(f"s_or_b32 s{sBASE}, s{sBASE}, s{sT}")
    A(f"v_lshlrev_b32 v{vOFF}, 4, v{vL}")
    A(f"v_and_b32 v3, 1, v{vL}"); A("v_lshlrev_b32 v3, 4, v3"); A(f"v_mov_b32 v{T}, 0xffff"); A(f"v_lshlrev_b32 v3, v3, v{T}")
    A(f"v_bfe_u32 v{T}, v{vL}, 1, 2")
    for k in range(4):
        A(f"v_cmp_eq_u32 vcc, {k}, v{T}"); A(f"v_cndmask_b32 v{MK+k}, 0, v3, vcc")
    A(f"s_mov_b32 s{sC1}, {hx(f2u(LOG2E if ROUND else LOG2E * SCALE))}")
    A(f"s_lshl_b32 s{sT}, s{sB}, 4"); A(f"s_or_b32 s{sT}, s{sT}, s{sG}"); A(f"s_lshl_b32 s{sT}, s{sT}, 21")
    A("s_waitcnt lgkmcnt(0)")
    stamp(1)
    A(f"s_add_u32 s{KS}, s{sK}, s{sT}"); A(f"s_addc_u32 s{KS+1}, s{sK+1}, 0"); A(f"s_mov_b32 s{KS+2}, 0x200000"); A(f"s_mov_b32 s{KS+3}, 0x20000")
    A(f"s_add_u32 s{VS}, s{sV}, s{sT}"); A(f"s_addc_u32 s{VS+1}, s{sV+1}, 0"); A(f"s_mov_b32 s{VS+2}, 0x200000"); A(f"s_mov_b32 s{VS+3}, 0x20000")
    A(f"s_cmp_eq_u32 s{sW}, 0"); A("s_cbranch_scc1 L_W0_PRE")
    A(f"s_cmp_ge_u32 s{sW}, 5"); A("s_cbranch_scc1 L_Y_PRE")
    A(f"s_cmp_lg_u32 s{sW}, 1"); A("s_cbranch_scc1 L_NOINIT")
    A(f"v_lshlrev_b32 v3, 2, v{vL}"); A(f"v_mov_b32 v{T}, 0")
    A("s_mov_b64 exec, 0xffff")
    A(f"ds_write_b32 v3, v{T} offset:{L_MISC}")
    A("s_mov_b64 exec, -1")
    A("s_waitcnt lgkmcnt(0)")
    A.label("L_NOINIT")
    A(f"s_cmp_eq_u32 s{sW}, 4"); A("s_cbranch_scc1 L_NOWO")
    A(f"s_mov_b32 s{sR}, s{sWO}"); A(f"s_mov_b32 s{sR+1}, s{sWO+1}"); A(f"s_mov_b32 s{sR+2}, {4096*1152}"); A(f"s_mov_b32 s{sR+3}, 0x20000")
    A(f"s_sub_u32 s{sT}, s{sW}, 1"); A(f"s_mul_i32 s{sT}, s{sT}, 384"); A(f"v_add_u32 v{vG}, s{sT}, v{vL}")
    A(f"s_mul_i32 s{sT}, s{sP}, {128*1152}"); A(f"s_mul_i32 s{sT2}, s{sCG}, 144"); A(f"s_add_u32 s{sT}, s{sT}, s{sT2}")
    A(f"s_mov_b32 s{sT2}, 7282")
    for k in range(6):
        A(f"v_add_u32 v{T}, {64*k}, v{vG}"); A(f"v_mul_u32_u24 v{T+1}, s{sT2}, v{T}"); A(f"v_lshrrev_b32 v{T+1}, 16, v{T+1}")
        A(f"v_mul_u32_u24 v{T+1}, {1152-144}, v{T+1}"); A(f"v_lshl_add_u32 v{T+2+k}, v{T}, 4, v{T+1}")
    A(f"v_lshlrev_b32 v{vG}, 4, v{vG}")
    A("s_barrier")
    for k in range(6):
        if 'o' in SKIP: A(f"buffer_load_dwordx4 a[{64+4*k}:{67+4*k}], v{vOFF}, s[{sR}:{sR+3}], 0 offen")
        else: A(f"buffer_load_dwordx4 a[{64+4*k}:{67+4*k}], v{T+2+k}, s[{sR}:{sR+3}], s{sT} offen{nt if WONT else ''}")
    A("s_branch L_STREAM")
    A.label("L_NOWO")
    A("s_barrier")
    A("s_branch L_STREAM")

    X = 40
    E = 50
    vXO = 3
    def xloads():
        A(f"v_lshrrev_b32 v{T}, 5, v{vL}"); A(f"v_mul_u32_u24 v{T}, 1152, v{T}")
        A(f"v_and_b32 v{vXO}, 31, v{vL}"); A(f"v_lshl_add_u32 v{vXO}, v{vXO}, 2, v{T}")
        for k in range(9): A(f"global_load_dword v{X+k}, v{vXO}, s[{sX}:{sX+1}] offset:{128*k}")
    WQ = 96
    A.label("L_W0_PRE")
    xloads()
    A(f"s_lshl_b32 s{sT}, s{sG}, 4"); A(f"s_add_u32 s{sT}, s{sT}, s{sJ}"); A(f"s_lshl_b32 s{sT}, s{sT}, 7"); A(f"s_add_u32 s{sFL}, s{sT}, {W_FL}")
    A(f"v_mov_b32 v{T+2}, s{sFL}"); A(f"v_mov_b32 v{T+3}, 0")
    A("s_mov_b64 exec, 1")
    A(f"global_store_dword v{T+2}, v{T+3}, s[{sWS}:{sWS+1}] sc1")
    A("s_mov_b64 exec, -1")
    A(f"s_mov_b32 s{sR}, s{sWQ}"); A(f"s_mov_b32 s{sR+1}, s{sWQ+1}"); A(f"s_mov_b32 s{sR+2}, {576*8192}"); A(f"s_mov_b32 s{sR+3}, 0x20000")
    A(f"v_lshrrev_b32 v{T}, 4, v{vL}"); A(f"v_lshlrev_b32 v{T}, 13, v{T}"); A(f"v_and_b32 v{T+1}, 15, v{vL}"); A(f"v_lshl_add_u32 v{T}, v{T+1}, 4, v{T}")
    A(f"s_mul_i32 s{sT}, s{sCG}, {72*8192}"); A(f"s_lshl_b32 s{sT2}, s{sP}, 8"); A(f"s_add_u32 s{sT}, s{sT}, s{sT2}")
    for i in range(18):
        if 'q' in SKIP: A(f"buffer_load_dwordx4 {rng(WQ+4*i)}, v{vOFF}, s[{sR}:{sR+3}], 0 offen")
        else: A(f"buffer_load_dwordx4 {rng(WQ+4*i)}, v{T}, s[{sR}:{sR+3}], s{sT} offen{nt if WQNT else ''}")
        if i < 17: A(f"s_add_u32 s{sT}, s{sT}, 32768")
    A("s_barrier")
    A(f"s_mov_b32 s{sPASS}, 1"); A(f"s_mov_b32 s{sT3}, {L_XL}")
    A("s_waitcnt vmcnt(19)")
    A("s_branch L_LN0")

    WR = 70
    A.label("L_Y_PRE")
    A("s_setprio 2")
    if EARLYBAR: A("s_barrier")
    xloads()
    A(f"v_and_b32 v{T}, 7, v{vL}"); A(f"v_mul_u32_u24 v{T}, 36, v{T}"); A(f"s_mul_i32 s{sT}, s{sP}, 288"); A(f"v_add_u32 v{T}, s{sT}, v{T}")
    for a, sp_ in enumerate((sW1, sB1, sW2)):
        R = WR + 10 * a
        A(f"global_load_dwordx4 {rng(R)}, v{T}, s[{sp_}:{sp_+1}]")
        A(f"global_load_dwordx4 {rng(R+4)}, v{T}, s[{sp_}:{sp_+1}] offset:16")
        A(f"global_load_dword v{R+8}, v{T}, s[{sp_}:{sp_+1}] offset:32")
    A(f"s_cmp_lg_u32 s{sW}, 5"); A("s_cbranch_scc1 L_NORESET")
    for k in range(4): A(f"v_mov_b32 v{T+4+k}, -1")
    def op_addr(v, t):
        A(f"v_bfe_u32 v{v}, v{vL}, 3, 1"); A(f"v_lshlrev_b32 v{v}, 12, v{v}")
        A(f"v_lshrrev_b32 v{t}, 4, v{vL}"); A(f"v_lshl_add_u32 v{v}, v{t}, 6, v{v}")
        A(f"v_and_b32 v{t}, 7, v{vL}"); A(f"v_lshl_add_u32 v{v}, v{t}, 3, v{v}")
        A(f"s_lshl_b32 s{sT}, s{sG}, 13"); A(f"s_lshl_b32 s{sT2}, s{sJ}, 8"); A(f"s_add_u32 s{sT}, s{sT}, s{sT2}"); A(f"s_add_u32 s{sT}, s{sT}, {W_OP}")
        A(f"v_add_u32 v{v}, s{sT}, v{v}")
    def ml_addr(v):
        A(f"v_bfe_u32 v{v}, v{vL}, 3, 1"); A(f"v_lshlrev_b32 v{v}, 7, v{v}")
        A(f"s_lshl_b32 s{sT}, s{sG}, 8"); A(f"s_lshl_b32 s{sT2}, s{sJ}, 3"); A(f"s_add_u32 s{sT}, s{sT}, s{sT2}"); A(f"s_add_u32 s{sT}, s{sT}, {W_ML}")
        A(f"v_add_u32 v{v}, s{sT}, v{v}")
    op_addr(T, T+1)
    A(f"global_store_dwordx2 v{T}, v[{T+4}:{T+5}], s[{sWS}:{sWS+1}] sc1")
    ml_addr(T+2)
    A("s_mov_b64 exec, 0x101")
    A(f"global_store_dwordx2 v{T+2}, v[{T+4}:{T+5}], s[{sWS}:{sWS+1}] sc1")
    A("s_mov_b64 exec, -1")
    A(f"v_lshrrev_b32 v{T}, 1, v{vL}"); A(f"v_cmp_le_u32 vcc, 9, v{T}"); A(f"v_cndmask_b32 v{T+1}, 0, 63, vcc")
    A(f"v_add_u32 v{T}, v{T}, v{T+1}"); A(f"v_lshlrev_b32 v{T}, 10, v{T}")
    A(f"v_and_b32 v{T+1}, 1, v{vL}"); A(f"v_lshl_add_u32 v{T}, v{T+1}, 4, v{T}")
    A(f"s_mul_i32 s{sT}, s{sCG}, 9216"); A(f"s_lshl_b32 s{sT2}, s{sP}, 5"); A(f"s_add_u32 s{sT}, s{sT}, s{sT2}"); A(f"s_add_u32 s{sT}, s{sT}, {W_SP}")
    A(f"v_add_u32 v{T}, s{sT}, v{T}")
    A(f"s_mov_b32 exec_lo, -1"); A(f"s_mov_b32 exec_hi, 0xf")
    A(f"global_store_dwordx4 v{T}, {rng(T+4)}, s[{sWS}:{sWS+1}] sc1")
    A("s_mov_b64 exec, -1")
    A.label("L_NORESET")
    if not EARLYBAR: A("s_barrier")
    A(f"s_mov_b32 s{sPASS}, 2"); A(f"s_sub_u32 s{sT3}, s{sW}, 4"); A(f"s_mul_i32 s{sT3}, s{sT3}, 2304"); A(f"s_add_u32 s{sT3}, s{sT3}, {L_XL}")
    A("s_waitcnt vmcnt(0)")

    def allred32(v, t, op):
        for pat in ("quad_perm:[1,0,3,2]", "quad_perm:[2,3,0,1]", "row_half_mirror", "row_mirror"):
            A(f"{op}_dpp v{v}, v{v}, v{v} {pat} row_mask:0xf bank_mask:0xf")
        A(f"v_mov_b32 v{t}, v{v}"); A(f"v_permlane16_swap_b32 v{t}, v{v}"); A(f"{op} v{v}, v{t}, v{v}")
    def rnd1(v):
        A(f"v_cvt_pk_bf16_f32 v{v}, v{v}, v{v}"); A(f"v_lshlrev_b32 v{v}, 16, v{v}")
    A.label("L_LN0")
    stamp(2)
    A.label("L_LN")
    for k in range(9):
        A(f"v_lshlrev_b32 v{E+2*k}, 16, v{X+k}"); A(f"v_and_b32 v{E+2*k+1}, 0xffff0000, v{X+k}")
    A(f"v_add_f32 v{T}, v{E}, v{E+1}"); A(f"v_add_f32 v{T+1}, v{E+2}, v{E+3}")
    for k in range(4, 18, 2):
        A(f"v_add_f32 v{T}, v{T}, v{E+k}"); A(f"v_add_f32 v{T+1}, v{T+1}, v{E+k+1}")
    A(f"v_add_f32 v{T}, v{T}, v{T+1}")
    allred32(T, T+1, "v_add_f32")
    A(f"v_mul_f32 v{T}, {hx(f2u(1/576))}, v{T}")
    A(f"v_mov_b32 v{T+2}, 0"); A(f"v_mov_b32 v{T+3}, 0")
    for k in range(0, 18, 2):
        A(f"v_sub_f32 v{T+4}, v{E+k}, v{T}"); A(f"v_sub_f32 v{T+5}, v{E+k+1}, v{T}")
        A(f"v_fmac_f32 v{T+2}, v{T+4}, v{T+4}"); A(f"v_fmac_f32 v{T+3}, v{T+5}, v{T+5}")
    A(f"v_add_f32 v{T+2}, v{T+2}, v{T+3}")
    allred32(T+2, T+3, "v_add_f32")
    A(f"v_mul_f32 v{T+2}, {hx(f2u(1/576))}, v{T+2}")
    rnd1(T); rnd1(T+2)
    A(f"v_add_f32 v{T+2}, {hx(f2u(1e-5))}, v{T+2}"); rnd1(T+2)
    A(f"v_sqrt_f32 v{T+2}, v{T+2}"); rnd1(T+2)
    A(f"v_rcp_f32 v{T+2}, v{T+2}")
    for k in range(9):
        a, b = E+2*k, E+2*k+1
        A(f"v_sub_f32 v{a}, v{a}, v{T}"); A(f"v_sub_f32 v{b}, v{b}, v{T}")
        A(f"v_cvt_pk_bf16_f32 v{X+k}, v{a}, v{b}")
        A(f"v_lshlrev_b32 v{a}, 16, v{X+k}"); A(f"v_and_b32 v{b}, 0xffff0000, v{X+k}")
        A(f"v_mul_f32 v{a}, v{a}, v{T+2}"); A(f"v_mul_f32 v{b}, v{b}, v{T+2}")
        A(f"v_cvt_pk_bf16_f32 v{X+k}, v{a}, v{b}")
    A(f"s_sub_u32 s{sPASS}, s{sPASS}, 1"); A(f"s_cmp_lg_u32 s{sPASS}, 0"); A("s_cbranch_scc1 L_LN")
    A(f"v_add_u32 v{vXO}, s{sT3}, v{vXO}")
    for k in range(9): A(f"ds_write_b32 v{vXO}, v{X+k} offset:{128*k}")
    A(f"s_cmp_lg_u32 s{sW}, 0"); A("s_cbranch_scc1 L_BBR")

    XV = 50
    A(f"v_bfe_u32 v{T}, v{vL}, 3, 1"); A(f"v_mul_u32_u24 v{T}, 1152, v{T}")
    A(f"v_lshrrev_b32 v{T+1}, 4, v{vL}"); A(f"v_lshl_add_u32 v{T}, v{T+1}, 1, v{T}")
    A(f"s_mul_i32 s{sT}, s{sCG}, 144"); A(f"s_add_u32 s{sT}, s{sT}, {L_XL}"); A(f"v_add_u32 v{T}, s{sT}, v{T}")
    A("s_waitcnt lgkmcnt(0)")
    for i in range(18): A(f"ds_read_u16 v{XV+i}, v{T} offset:{8*i}")
    A("s_waitcnt lgkmcnt(0)")
    for i in range(18): A(f"v_lshl_or_b32 v{XV+i}, v{XV+i}, 16, v{XV+i}")
    for i in range(18):
        Bx = B0 if i % 2 == 0 else B1
        for k in range(4): A(f"v_and_b32 v{Bx+k}, v{XV+i}, v{MK+k}")
        if i > 0:
            Bp = B1 if i % 2 == 0 else B0
            A(f"s_waitcnt vmcnt({17-(i-1)})")
            A(f"v_mfma_f32_16x16x32_bf16 {rng(D)}, {rng(WQ+4*(i-1))}, {rng(Bp)}, {'0' if i == 1 else rng(D)}")
    A("s_waitcnt vmcnt(0)")
    A(f"v_mfma_f32_16x16x32_bf16 {rng(D)}, {rng(WQ+4*17)}, {rng(B1)}, {rng(D)}")
    A(f"v_bfe_u32 v{T}, v{vL}, 3, 1"); A(f"v_lshlrev_b32 v{T}, 13, v{T}")
    A(f"v_lshrrev_b32 v{T+1}, 4, v{vL}"); A(f"v_lshl_add_u32 v{T}, v{T+1}, 7, v{T}")
    A(f"v_and_b32 v{T+1}, 7, v{vL}"); A(f"v_lshl_add_u32 v{T}, v{T+1}, 4, v{T}")
    A(f"s_lshl_b32 s{sT}, s{sG}, 14"); A(f"s_lshl_b32 s{sT2}, s{sJ}, 9"); A(f"s_add_u32 s{sT}, s{sT}, s{sT2}")
    A(f"v_add_u32 v{T}, s{sT}, v{T}")
    A(f"global_store_dwordx4 v{T}, {rng(D)}, s[{sWS}:{sWS+1}] sc1")
    stamp(3)
    A(f"s_lshl_b32 s{sT}, s{sG}, 4")
    if ATOM == "scalar":
        A(f"s_mov_b32 s{sT2}, 1")
        A("s_waitcnt vmcnt(0)")
        stamp(4)
        A(f"s_atomic_add s{sT2}, s[{sDBG}:{sDBG+1}], s{sT} glc"); A("s_waitcnt lgkmcnt(0)")
    else:
        A(f"v_mov_b32 v{T+2}, 1"); A(f"v_mov_b32 v{T+3}, s{sT}")
        A("s_waitcnt vmcnt(0)")
        stamp(4)
        A("s_mov_b64 exec, 1")
        A(f"global_atomic_add v{T+4}, v{T+3}, v{T+2}, s[{sDBG}:{sDBG+1}] sc0")
        A("s_mov_b64 exec, -1")
        A("s_waitcnt vmcnt(0)"); A(f"v_readfirstlane_b32 s{sT2}, v{T+4}")
    A(f"s_cmp_lg_u32 s{sT2}, 15"); A("s_cbranch_scc1 L_NOTMASTER")
    if ATOM == "scalar":
        A(f"s_lshl_b32 s{sT}, s{sG}, 11"); A(f"s_add_u32 s{sT}, s{sT}, {W_FL}"); A(f"s_add_u32 s{sA}, s{sWS}, s{sT}"); A(f"s_addc_u32 s{sA+1}, s{sWS+1}, 0")
        A(f"s_mov_b32 s{sT2}, 1")
        for j in range(16): A(f"s_atomic_or s{sT2}, s[{sA}:{sA+1}], {128*j}")
    else:
        A(f"s_lshl_b32 s{sT}, s{sG}, 11"); A(f"s_add_u32 s{sT}, s{sT}, {W_FL}")
        A(f"v_lshlrev_b32 v{T+3}, 7, v{vL}"); A(f"v_add_u32 v{T+3}, s{sT}, v{T+3}")
        A("s_mov_b64 exec, 0xffff")
        A(f"global_store_dword v{T+3}, v{T+2}, s[{sWS}:{sWS+1}] sc1")
        A("s_mov_b64 exec, -1")
    A("s_branch L_POLLA_OK")
    A.label("L_NOTMASTER")
    A(f"s_mov_b32 s{sCNT}, {LIMIT}")
    A.label("L_POLLA")
    A(f"s_load_dword s{sT2}, s[{sWS}:{sWS+1}], s{sFL} glc"); A("s_waitcnt lgkmcnt(0)")
    A(f"s_cmp_eq_u32 s{sT2}, 1"); A("s_cbranch_scc1 L_POLLA_OK")
    A("s_sleep 2"); A(f"s_sub_u32 s{sCNT}, s{sCNT}, 1"); A(f"s_cmp_lg_u32 s{sCNT}, 0"); A("s_cbranch_scc1 L_POLLA")
    A.label("L_POLLA_OK")
    stamp(2)
    A(f"s_lshl_b32 s{sT}, s{sG}, 14"); A(f"s_lshl_b32 s{sT2}, s{sB}, 13"); A(f"s_add_u32 s{sT}, s{sT}, s{sT2}")
    A(f"v_add_u32 v{T}, s{sT}, v{vOFF}"); A(f"v_add_u32 v{T+1}, 4096, v{T}")
    for r in range(8):
        A(f"global_load_dwordx4 {rng(40+4*r)}, v{T + r//4}, s[{sWS}:{sWS+1}] offset:{1024*(r%4)} sc1")
    A(f"v_lshrrev_b32 v{T+2}, 3, v{vL}"); A(f"v_lshlrev_b32 v{T+2}, 6, v{T+2}"); A(f"v_and_b32 v{T+3}, 7, v{vL}"); A(f"v_lshl_add_u32 v{T+2}, v{T+3}, 1, v{T+2}")
    for r in range(1, 8):
        A(f"s_waitcnt vmcnt({7-r})")
        for k in range(4): A(f"v_add_f32 v{40+k}, v{40+k}, v{40+4*r+k}")
    A(f"v_cvt_pk_bf16_f32 v40, v40, v41"); A(f"v_cvt_pk_bf16_f32 v41, v42, v43")
    A(f"ds_write_b16 v{T+2}, v40 offset:{L_Q}"); A(f"ds_write_b16_d16_hi v{T+2}, v40 offset:{L_Q+16}")
    A(f"ds_write_b16 v{T+2}, v41 offset:{L_Q+32}"); A(f"ds_write_b16_d16_hi v{T+2}, v41 offset:{L_Q+48}")
    A(f"v_mov_b32 v{T+2}, 1"); A(f"v_mov_b32 v{T+3}, {L_QFLAG}")
    A("s_waitcnt lgkmcnt(0)")
    A(f"ds_write_b32 v{T+3}, v{T+2}")
    A("s_branch L_STREAM")

    A.label("L_BBR")
    W1 = 100; BB = 118; W2 = WR + 20; U = 136; PK = 40; ZZ = 50; RES = 154; vC1 = 156; vC0 = 158; vONE = 160; vH = 162; vHA = 164; ACC = 165; vFL = 166
    def pr(r): return f"v[{r}:{r+1}]"
    for k in range(9):
        A(f"v_lshlrev_b32 v{W1+2*k}, 16, v{WR+k}"); A(f"v_and_b32 v{W1+2*k+1}, 0xffff0000, v{WR+k}")
        A(f"v_lshlrev_b32 v{BB+2*k}, 16, v{WR+10+k}"); A(f"v_and_b32 v{BB+2*k+1}, 0xffff0000, v{WR+10+k}")
    c0 = -2 * math.sqrt(2 / math.pi) * LOG2E; c1 = c0 * 0.044715
    for k in range(2):
        A(f"v_mov_b32 v{vC1+k}, {hx(f2u(c1))}"); A(f"v_mov_b32 v{vC0+k}, {hx(f2u(c0))}"); A(f"v_mov_b32 v{vONE+k}, 1.0")
    A(f"v_and_b32 v{vFL}, 7, v{vL}")
    A(f"s_sub_u32 s{sT}, s{sW}, 5"); A(f"s_mul_i32 s{sT}, s{sT}, 6")
    A(f"s_mul_i32 s{sT2}, s{sCG}, 144"); A(f"s_add_u32 s{sT3}, s{sT3}, s{sT2}")
    A(f"v_lshrrev_b32 v{vHA}, 3, v{vL}"); A(f"v_lshlrev_b32 v{vHA}, 1, v{vHA}"); A(f"v_add_u32 v{vHA}, s{sT3}, v{vHA}")
    A(f"s_mov_b32 s{sPASS}, 0"); A(f"v_mov_b32 v{RES}, 0")
    A("s_setprio 0")
    A.label("L_BLOOP")
    A(f"s_add_u32 s{sT2}, s{sT}, s{sPASS}"); A(f"s_cmp_ge_u32 s{sT2}, 9"); A(f"s_cselect_b32 s{sT3}, 63, 0"); A(f"s_add_u32 s{sT2}, s{sT2}, s{sT3}"); A(f"s_lshl_b32 s{sT2}, s{sT2}, 4")
    A(f"v_add_u32 v{vH+1}, s{sT2}, v{vHA}")
    A(f"ds_read_u16 v{vH}, v{vH+1}")
    A("s_waitcnt lgkmcnt(0)")
    A(f"v_lshlrev_b32 v{vH}, 16, v{vH}"); A(f"v_mov_b32 v{vH+1}, v{vH}")
    def round9():
        for k in range(9): A(f"v_cvt_pk_bf16_f32 v{PK+k}, v{U+2*k}, v{U+2*k+1}")
        for k in range(9):
            A(f"v_lshlrev_b32 v{U+2*k}, 16, v{PK+k}"); A(f"v_and_b32 v{U+2*k+1}, 0xffff0000, v{PK+k}")
    for k in range(9): A(f"v_pk_mul_f32 {pr(U+2*k)}, {pr(vH)}, {pr(W1+2*k)}")
    round9()
    for k in range(9): A(f"v_pk_add_f32 {pr(U+2*k)}, {pr(U+2*k)}, {pr(BB+2*k)}")
    round9()
    for k in range(9): A(f"v_pk_mul_f32 {pr(ZZ+2*k)}, {pr(U+2*k)}, {pr(U+2*k)}")
    for k in range(9): A(f"v_pk_fma_f32 {pr(ZZ+2*k)}, {pr(ZZ+2*k)}, {pr(vC1)}, {pr(vC0)}")
    for k in range(9): A(f"v_pk_mul_f32 {pr(ZZ+2*k)}, {pr(ZZ+2*k)}, {pr(U+2*k)}")
    for k in range(18): A(f"v_exp_f32 v{ZZ+k}, v{ZZ+k}")
    for k in range(9): A(f"v_pk_add_f32 {pr(ZZ+2*k)}, {pr(ZZ+2*k)}, {pr(vONE)}")
    for k in range(18): A(f"v_rcp_f32 v{ZZ+k}, v{ZZ+k}")
    for k in range(9): A(f"v_pk_mul_f32 {pr(U+2*k)}, {pr(U+2*k)}, {pr(ZZ+2*k)}")
    for k in range(9): A(f"v_cvt_pk_bf16_f32 v{PK+k}, v{U+2*k}, v{U+2*k+1}")
    A(f"v_mov_b32 v{ACC}, 0")
    for k in range(9): A(f"v_dot2c_f32_bf16 v{ACC}, v{PK+k}, v{W2+k}")
    for pat in ("quad_perm:[1,0,3,2]", "quad_perm:[2,3,0,1]", "row_half_mirror"):
        A(f"v_add_f32_dpp v{ACC}, v{ACC}, v{ACC} {pat} row_mask:0xf bank_mask:0xf")
    A(f"v_cmp_eq_u32 vcc, s{sPASS}, v{vFL}"); A(f"v_cndmask_b32 v{RES}, v{RES}, v{ACC}, vcc")
    A(f"s_add_u32 s{sPASS}, s{sPASS}, 1"); A(f"s_cmp_lt_u32 s{sPASS}, {1 if 'b' in SKIP else 6}"); A("s_cbranch_scc1 L_BLOOP")
    A("s_setprio 2")
    A(f"v_add_u32 v{T}, s{sT}, v{vFL}"); A(f"v_cmp_le_u32 vcc, 9, v{T}"); A(f"v_cndmask_b32 v{T+1}, 0, 63, vcc"); A(f"v_add_u32 v{T}, v{T}, v{T+1}")
    A(f"v_lshlrev_b32 v{T}, 10, v{T}"); A(f"v_lshrrev_b32 v{T+1}, 3, v{vL}"); A(f"v_lshl_add_u32 v{T}, v{T+1}, 2, v{T}")
    A(f"s_mul_i32 s{sT2}, s{sCG}, 9216"); A(f"s_lshl_b32 s{sT3}, s{sP}, 5"); A(f"s_add_u32 s{sT2}, s{sT2}, s{sT3}"); A(f"s_add_u32 s{sT2}, s{sT2}, {W_YP}")
    A(f"v_add_u32 v{T}, s{sT2}, v{T}")
    A(f"s_mov_b32 exec_lo, 0x3f3f3f3f"); A(f"s_mov_b32 exec_hi, 0x3f3f3f3f")
    A(f"global_store_dword v{T}, v{RES}, s[{sWS}:{sWS+1}] sc1")
    stamp(3)
    A("s_mov_b64 exec, -1")

    A.label("L_STREAM")
    stamp(6)
    free = [0, 1, 2, 4, 5, 6, 8, 9, 10, 12]
    def vreg(i): return f"a[{4*i}:{4*i+3}]" if i < 22 else rng(ks(free[i-22]))
    cur = [None]
    def issue(n):
        i = n % 32
        if LAYOUT != 'JJWW':
            A(f"s_xor_b32 s{sT}, s{sBASE}, {i << 12}")
            if n < 32: A(f"buffer_load_dwordx4 {rng(ks(i))}, v{vOFF}, s[{KS}:{KS+3}], s{sT} offen{nt}")
            else: A(f"buffer_load_dwordx4 {vreg(i)}, v{vOFF}, s[{VS}:{VS+3}], s{sT} offen{nt}")
            if ISTAMP and n % 4 == 3: stamp(1 + n // 4, True)
            return
        if cur[0] != (n >> 2):
            A(f"s_xor_b32 s{sT}, s{sBASE}, {(i >> 2) << 14}"); cur[0] = n >> 2
        if n < 32: A(f"buffer_load_dwordx4 {rng(ks(i))}, v{vOFF}, s[{KS}:{KS+3}], s{sT} offen offset:{(i&3)<<10}{nt}")
        else: A(f"buffer_load_dwordx4 {vreg(i)}, v{vOFF}, s[{VS}:{VS+3}], s{sT} offen offset:{(i&3)<<10}{nt}")
    issued = 0
    while issued < NSIG: issue(issued); issued += 1
    A(f"s_cmp_lt_u32 s{sW}, 5"); A("s_cbranch_scc1 L_BDONE")
    A("s_mov_b64 exec, 1")
    A(f"v_mov_b32 v{T+2}, 1"); A(f"v_mov_b32 v{T+3}, {L_CNTB}")
    A(f"s_waitcnt vmcnt({NSIG})")
    A(f"ds_add_rtn_u32 v{T+4}, v{T+3}, v{T+2}")
    A(f"s_lshl_b32 s{sT2}, s{sG}, 4"); A(f"s_add_u32 s{sT2}, s{sT2}, 4"); A(f"s_mov_b32 s{sT3}, 1")
    A("s_waitcnt lgkmcnt(0)")
    A(f"v_readfirstlane_b32 s{sCNT}, v{T+4}")
    A("s_mov_b64 exec, -1")
    A("s_setprio 0")
    stamp(4)
    A(f"s_cmp_lg_u32 s{sCNT}, 2"); A("s_cbranch_scc1 L_BDONE")
    A(f"s_atomic_add s{sT3}, s[{sDBG}:{sDBG+1}], s{sT2}")
    A.label("L_BDONE")
    while issued < NPRE: issue(issued); issued += 1
    stamp(7)
    A(f"s_sub_u32 s{sT2}, s{sW}, 1"); A(f"s_cmp_gt_u32 s{sT2}, 2"); A("s_cbranch_scc1 L_NOWO2")
    A(f"s_waitcnt vmcnt({NPRE})")
    for k in range(6): A(f"ds_write_b128 v{vG}, a[{64+4*k}:{67+4*k}] offset:{L_WO+1024*k}")
    A(f"v_mov_b32 v{T+2}, 1"); A(f"v_mov_b32 v{T+3}, {L_CNTW}")
    A("s_mov_b64 exec, 1")
    A(f"ds_add_u32 v{T+3}, v{T+2}")
    A("s_mov_b64 exec, -1")
    A.label("L_NOWO2")
    A(f"v_mov_b32 v{T+3}, {L_QFLAG}"); A(f"s_mov_b32 s{sCNT}, {LIMIT*4}")
    A.label("L_QW")
    A(f"ds_read_b32 v{T}, v{T+3}"); A("s_waitcnt lgkmcnt(0)"); A(f"v_readfirstlane_b32 s{sT2}, v{T}")
    A(f"s_cmp_lg_u32 s{sT2}, 0"); A("s_cbranch_scc1 L_QW_OK")
    A("s_sleep 2"); A(f"s_sub_u32 s{sCNT}, s{sCNT}, 1"); A(f"s_cmp_lg_u32 s{sCNT}, 0"); A("s_cbranch_scc1 L_QW")
    A.label("L_QW_OK")
    A(f"v_bfe_u32 v{T}, v{vL}, 3, 1"); A(f"v_lshlrev_b32 v{T}, 8, v{T}"); A(f"v_and_b32 v{T+1}, 15, v{vL}"); A(f"v_lshl_add_u32 v{T}, v{T+1}, 4, v{T}")
    A(f"v_xor_b32 v{T+1}, 128, v{T}")
    A(f"ds_read_b128 {rng(QA)}, v{T} offset:{L_Q}"); A(f"ds_read_b128 {rng(QB)}, v{T+1} offset:{L_Q}")
    A("s_waitcnt lgkmcnt(0)")
    stamp(8)
    cur[0] = None
    dm = " row_mask:0xf bank_mask:0xf"
    def sreg(i): return ks(4 * (i >> 2) + 3) + (i & 3)
    def more(n, kdone=32):
        nonlocal issued
        for _ in range(n):
            if issued >= 64: return
            i = issued - 32
            assert not (i >= 22 and free[i-22] >= kdone), (i, kdone)
            issue(issued); issued += 1
    for gq in range(8):
        A(f"s_waitcnt vmcnt({issued - (4*gq+4)})")
        Kr = [ks(4*gq+a) for a in range(4)]
        for a in range(4): A(f"v_dot2_f32_bf16 v{T+a}, v{Kr[a]}, v{QA}, 0")
        for c in range(1, 4):
            for a in range(4): A(f"v_dot2c_f32_bf16 v{T+a}, v{Kr[a]+c}, v{QA+c}")
        for c in range(4):
            for a in range(4): A(f"v_dot2c_f32_bf16_dpp v{T+a}, v{Kr[a]+c}, v{QB+c} row_ror:8{dm}")
        more(SCH_QK[gq], 4*gq + 4)
        for a in range(4): A(f"v_add_f32_dpp v{T+a}, v{T+a}, v{T+a} quad_perm:[1,0,3,2]{dm}")
        for a in range(4): A(f"v_add_f32_dpp v{T+a}, v{T+a}, v{T+a} quad_perm:[2,3,0,1]{dm}")
        S = Kr[3]
        for a in range(4): A(f"v_add_f32_dpp v{S+a}, v{T+a}, v{T+a} row_half_mirror{dm}")
        if ROUND:
            A(f"v_cvt_pk_bf16_f32 v{T+4}, v{S}, v{S+1}"); A(f"v_cvt_pk_bf16_f32 v{T+5}, v{S+2}, v{S+3}")
            A(f"v_lshlrev_b32 v{S}, 16, v{T+4}"); A(f"v_and_b32 v{S+1}, 0xffff0000, v{T+4}")
            A(f"v_lshlrev_b32 v{S+2}, 16, v{T+5}"); A(f"v_and_b32 v{S+3}, 0xffff0000, v{T+5}")
            for a in range(4): A(f"v_mul_f32 v{S+a}, {hx(f2u(SCALE))}, v{S+a}")
            A(f"v_cvt_pk_bf16_f32 v{T+4}, v{S}, v{S+1}"); A(f"v_cvt_pk_bf16_f32 v{T+5}, v{S+2}, v{S+3}")
            A(f"v_lshlrev_b32 v{S}, 16, v{T+4}"); A(f"v_and_b32 v{S+1}, 0xffff0000, v{T+4}")
            A(f"v_lshlrev_b32 v{S+2}, 16, v{T+5}"); A(f"v_and_b32 v{S+3}, 0xffff0000, v{T+5}")
        if gq == 0:
            A(f"v_max3_f32 v{vM}, v{S}, v{S+1}, v{S+2}"); A(f"v_max_f32 v{vM}, v{vM}, v{S+3}")
        else:
            A(f"v_max3_f32 v{vM}, v{vM}, v{S}, v{S+1}"); A(f"v_max3_f32 v{vM}, v{vM}, v{S+2}, v{S+3}")
    def xrow(v, t, op):
        A(f"v_mov_b32 v{t}, v{v}"); A(f"v_permlane16_swap_b32 v{t}, v{v}"); A(f"{op} v{v}, v{t}, v{v}")
        A(f"v_mov_b32 v{t}, v{v}"); A(f"v_permlane32_swap_b32 v{t}, v{v}"); A(f"{op} v{v}, v{t}, v{v}")
    xrow(vM, T, "v_max_f32")
    A(f"v_mul_f32 v{vM}, s{sC1}, v{vM}")
    stamp(9)
    A(f"v_mov_b32 v{vLs}, 0")
    for q in range(8):
        for a in range(4): A(f"v_fma_f32 v{sreg(4*q+a)}, v{sreg(4*q+a)}, s{sC1}, -v{vM}")
        for a in range(4): A(f"v_exp_f32 v{sreg(4*q+a)}, v{sreg(4*q+a)}")
        for a in range(4): A(f"v_add_f32 v{vLs}, v{vLs}, v{sreg(4*q+a)}")
        for a in range(4): A(f"v_cvt_pk_bf16_f32 v{sreg(4*q+a)}, v{sreg(4*q+a)}, v{sreg(4*q+a)}")
        more(SCH_SM[q])
    xrow(vLs, T, "v_add_f32")
    assert vLs == vM + 1 and vM % 2 == 0
    vH6 = T + 6
    A(f"v_bfe_u32 v{vH6}, v{vL}, 3, 1"); A(f"v_lshlrev_b32 v{vH6}, 6, v{vH6}")
    A(f"s_lshl_b32 s{sT2}, s{sW}, 3"); A(f"v_add_u32 v{T}, s{sT2}, v{vH6}")
    A(f"v_mov_b32 v{T+2}, 1"); A(f"v_mov_b32 v{T+3}, {L_CNTQK}")
    A("s_mov_b64 exec, 0x101")
    A(f"ds_write_b64 v{T}, v[{vM}:{vM+1}] offset:{L_MLW}")
    A("s_mov_b64 exec, 1")
    A(f"ds_add_rtn_u32 v{T+4}, v{T+3}, v{T+2}")
    A("s_mov_b64 exec, -1")
    A("s_waitcnt lgkmcnt(0)")
    A(f"v_readfirstlane_b32 s{sT2}, v{T+4}")
    A(f"s_cmp_lg_u32 s{sT2}, 7"); A("s_cbranch_scc1 L_NOF")
    MQ = [104, 108, 112, 120]; FF = 124
    for k in range(4): A(f"ds_read_b128 {rng(MQ[k])}, v{vH6} offset:{L_MLW+16*k}")
    mm = [MQ[k // 2] + 2 * (k % 2) for k in range(8)]
    ml_addr(T+2)
    A("s_waitcnt lgkmcnt(0)")
    A(f"v_max3_f32 v{T}, v{mm[0]}, v{mm[1]}, v{mm[2]}"); A(f"v_max3_f32 v{T}, v{T}, v{mm[3]}, v{mm[4]}"); A(f"v_max3_f32 v{T}, v{T}, v{mm[5]}, v{mm[6]}"); A(f"v_max_f32 v{T}, v{T}, v{mm[7]}")
    for k in range(8): A(f"v_sub_f32 v{FF+k}, v{mm[k]}, v{T}")
    for k in range(8): A(f"v_exp_f32 v{FF+k}, v{FF+k}")
    A(f"v_mul_f32 v{T+1}, v{FF}, v{mm[0]+1}")
    for k in range(1, 8): A(f"v_fmac_f32 v{T+1}, v{FF+k}, v{mm[k]+1}")
    A(f"v_lshrrev_b32 v{T+3}, 1, v{vH6}")
    A(f"v_min_u32 v{T}, -2, v{T}"); A(f"v_min_u32 v{T+1}, -2, v{T+1}")
    A("s_mov_b64 exec, 0x101")
    A(f"ds_write_b128 v{T+3}, {rng(FF)} offset:{L_FW}"); A(f"ds_write_b128 v{T+3}, {rng(FF+4)} offset:{L_FW+16}")
    A(f"global_store_dwordx2 v{T+2}, v[{T}:{T+1}], s[{sWS}:{sWS+1}] sc1")
    A("s_mov_b64 exec, -1")
    A.label("L_NOF")
    op_addr(vXo, T)
    A(f"s_lshl_b32 s{sT2}, s{sW}, 10"); A(f"v_add_u32 v{vG}, s{sT2}, v{vOFF}")
    A(f"v_mov_b32 v{T+2}, 1"); A(f"v_mov_b32 v{T+3}, {L_CNTO}"); A(f"v_lshrrev_b32 v{T+4}, 1, v{vH6}")
    cur[0] = None
    for i in range(33):
        if i < 32:
            Bx = B0 if i % 2 == 0 else B1
            for k in range(4): A(f"v_and_b32 v{Bx+k}, v{sreg(i)}, v{MK+k}")
        if i > 0:
            Bp = B0 if (i-1) % 2 == 0 else B1
            assert issued > 32 + i - 1
            A(f"s_waitcnt vmcnt({issued - (32 + i)})")
            A(f"v_mfma_f32_16x16x32_bf16 {rng(D)}, {vreg(i-1)}, {rng(Bp)}, {'0' if i == 1 else rng(D)}")
            more(SCH_PV.get(i-1, 0))
    assert issued == 64, issued
    stamp(10)
    A(f"ds_write_b128 v{vG}, {rng(D)} offset:{L_OW}")
    A("s_mov_b64 exec, 1")
    A(f"ds_add_rtn_u32 v{T+5}, v{T+3}, v{T+2}")
    A("s_mov_b64 exec, -1")
    A("s_waitcnt lgkmcnt(0)")
    A(f"v_readfirstlane_b32 s{sT2}, v{T+5}")
    A(f"s_cmp_lg_u32 s{sT2}, 7"); A("s_cbranch_scc1 L_NOPUB")
    OO = 40; FR = 72
    A(f"ds_read_b128 {rng(FR)}, v{T+4} offset:{L_FW}"); A(f"ds_read_b128 {rng(FR+4)}, v{T+4} offset:{L_FW+16}")
    for k in range(8): A(f"ds_read_b128 {rng(OO+4*k)}, v{vOFF} offset:{L_OW+1024*k}")
    for k in range(8):
        A(f"s_waitcnt lgkmcnt({7-k})")
        for c in range(4):
            if k == 0: A(f"v_mul_f32 v{D+c}, v{FR}, v{OO+c}")
            else: A(f"v_fmac_f32 v{D+c}, v{FR+k}, v{OO+4*k+c}")
    A(f"v_cvt_pk_bf16_f32 v{D}, v{D}, v{D+1}"); A(f"v_cvt_pk_bf16_f32 v{D+1}, v{D+2}, v{D+3}")
    A(f"v_min_u32 v{D}, -2, v{D}"); A(f"v_min_u32 v{D+1}, -2, v{D+1}")
    A(f"global_store_dwordx2 v{vXo}, v[{D}:{D+1}], s[{sWS}:{sWS+1}] sc1")
    stamp(6)
    A.label("L_NOPUB")
    A(f"s_cmp_eq_u32 s{sW}, 2"); A("s_cbranch_scc1 L_HOP2")
    A(f"s_cmp_lg_u32 s{sW}, 1"); A("s_cbranch_scc1 L_EXIT")
    def checkB(tag, va, vd):
        A(f"s_mov_b32 s{sCNT}, {LIMIT}")
        A(f"v_and_b32 v{va}, 15, v{vL}"); A(f"v_lshlrev_b32 v{va}, 4, v{va}")
        A.label(f"L_CB{tag}")
        A(f"global_load_dword v{vd}, v{va}, s[{sDBG}:{sDBG+1}] offset:4 sc1"); A("s_waitcnt vmcnt(0)")
        A(f"v_cmp_ne_u32 vcc, 16, v{vd}"); A(f"s_cbranch_vccz L_CB{tag}_OK")
        A("s_sleep 8"); A(f"s_sub_u32 s{sCNT}, s{sCNT}, 1"); A(f"s_cmp_lg_u32 s{sCNT}, 0"); A(f"s_cbranch_scc1 L_CB{tag}")
        A.label(f"L_CB{tag}_OK")
    def ldswait(tag, addr, val, sleep=2):
        A(f"v_mov_b32 v{T+3}, {addr}"); A(f"s_mov_b32 s{sCNT}, {LIMIT*4}")
        A.label(f"L_{tag}")
        A(f"ds_read_b32 v{T}, v{T+3}"); A("s_waitcnt lgkmcnt(0)"); A(f"v_readfirstlane_b32 s{sT2}, v{T}")
        A(f"s_cmp_eq_u32 s{sT2}, {val}"); A(f"s_cbranch_scc1 L_{tag}_OK")
        A(f"s_sleep {sleep}"); A(f"s_sub_u32 s{sCNT}, s{sCNT}, 1"); A(f"s_cmp_lg_u32 s{sCNT}, 0"); A(f"s_cbranch_scc1 L_{tag}")
        A.label(f"L_{tag}_OK")
    def maxchain(dst, regs):
        A(f"v_max3_u32 v{dst}, v{regs[0]}, v{regs[1]}, v{regs[2]}")
        k = 3
        while k < len(regs):
            if k + 1 < len(regs): A(f"v_max3_u32 v{dst}, v{dst}, v{regs[k]}, v{regs[k+1]}"); k += 2
            else: A(f"v_max_u32 v{dst}, v{dst}, v{regs[k]}"); k += 1
    def pollmask(tag, loads, regs):
        A(f"s_mov_b32 s{sCNT}, {LIMIT}")
        A.label(f"L_{tag}")
        loads()
        A("s_waitcnt vmcnt(0)")
        if len(regs) > 8:
            h = len(regs) // 2
            maxchain(T, regs[:h]); maxchain(T+1, regs[h:]); A(f"v_max_u32 v{T}, v{T}, v{T+1}")
        else: maxchain(T, regs)
        A(f"v_cmp_eq_u32 vcc, -1, v{T}"); A(f"s_cbranch_vccz L_{tag}_OK")
        A("s_mov_b64 exec, vcc")
        if H1SLEEP: A(f"s_sleep {H1SLEEP}")
        A(f"s_sub_u32 s{sCNT}, s{sCNT}, 1"); A(f"s_cmp_lg_u32 s{sCNT}, 0"); A(f"s_cbranch_scc1 L_{tag}")
        A.label(f"L_{tag}_OK")
        A("s_mov_b64 exec, -1")

    WB = 40; RAW = 120; AA = 136; ML = 152; vA = 160; vMLa = 161; vSP = 162; WN = 24
    ldswait("WW", L_CNTW, 3)
    A(f"v_lshrrev_b32 v{T}, 4, v{vL}"); A(f"v_mul_u32_u24 v{T}, 288, v{T}"); A(f"v_and_b32 v{T+1}, 15, v{vL}"); A(f"v_lshl_add_u32 v{T}, v{T+1}, 1, v{T}")
    for n in range(5):
        for half in range(2):
            for t in range(2*half, 2*half+2):
                for e in range(8):
                    A(f"ds_read_u16 v{RAW+8*(t&1)+e}, v{T} offset:{L_WO + 32*n + (32*t + 8*(e&3) + (e>>2))*144}")
            A("s_waitcnt lgkmcnt(0)")
            for t in range(2*half, 2*half+2):
                for k in range(4): A(f"v_lshl_or_b32 v{WB+16*n+4*t+k}, v{RAW+8*(t&1)+2*k+1}, 16, v{RAW+8*(t&1)+2*k}")
    A(f"v_lshlrev_b32 v{vA}, 8, v{T+1}"); A(f"v_lshrrev_b32 v{T}, 4, v{vL}"); A(f"v_lshl_add_u32 v{vA}, v{T}, 4, v{vA}")
    A(f"s_lshl_b32 s{sT}, s{sP}, 12"); A(f"s_add_u32 s{sT}, s{sT}, {W_OP}"); A(f"v_add_u32 v{vA}, s{sT}, v{vA}")
    A(f"s_lshl_b32 s{sT}, s{sP}, 7"); A(f"s_add_u32 s{sT}, s{sT}, {W_ML}"); A(f"v_lshlrev_b32 v{vMLa}, 5, v{T}"); A(f"v_add_u32 v{vMLa}, s{sT}, v{vMLa}")
    A(f"v_lshrrev_b32 v{vSP}, 5, v{vL}"); A(f"v_mul_u32_u24 v{vSP}, 73728, v{vSP}")
    A(f"v_bfe_u32 v{T}, v{vL}, 3, 2"); A(f"v_lshl_add_u32 v{vSP}, v{T}, 10, v{vSP}"); A(f"v_and_b32 v{T}, 7, v{vL}"); A(f"v_lshl_add_u32 v{vSP}, v{T}, 2, v{vSP}")
    A(f"s_mul_i32 s{sT}, s{sCG}, 9216"); A(f"s_lshl_b32 s{sT2}, s{sP}, 5"); A(f"s_add_u32 s{sT}, s{sT}, s{sT2}"); A(f"s_add_u32 s{sT}, s{sT}, {W_SP}"); A(f"v_add_u32 v{vSP}, s{sT}, v{vSP}")
    A(f"v_add_u32 v{vSP+1}, 4096, v{vSP}"); A(f"v_add_u32 v{vSP+2}, 8192, v{vSP}")
    checkB("T", T, T+1)
    stamp(2)
    ldswait("OW", L_CNTO, 8, 1)
    stamp(4)
    pollmask("HM", lambda: [A(f"global_load_dwordx4 {rng(ML+4*t)}, v{vMLa}, s[{sWS}:{sWS+1}] offset:{16*t} sc1") for t in range(2)], list(range(ML, ML+8)))
    def aloads():
        for t in range(4): A(f"global_load_dwordx4 {rng(AA+4*t)}, v{vA}, s[{sWS}:{sWS+1}] offset:{64*t} sc1")
    m = [ML, ML+2, ML+4, ML+6]; l = [ML+1, ML+3, ML+5, ML+7]
    A(f"v_max3_f32 v{T}, v{m[0]}, v{m[1]}, v{m[2]}"); A(f"v_max_f32 v{T}, v{T}, v{m[3]}")
    A(f"v_mov_b32 v{T+1}, v{T}"); A(f"v_permlane16_swap_b32 v{T+1}, v{T}"); A(f"v_max_f32 v{T}, v{T+1}, v{T}")
    for i in range(4): A(f"v_sub_f32 v{m[i]}, v{m[i]}, v{T}")
    for i in range(4): A(f"v_exp_f32 v{m[i]}, v{m[i]}")
    A(f"v_mul_f32 v{T+2}, v{m[0]}, v{l[0]}")
    for i in range(1, 4): A(f"v_fmac_f32 v{T+2}, v{m[i]}, v{l[i]}")
    A(f"v_mov_b32 v{T+1}, v{T+2}"); A(f"v_permlane16_swap_b32 v{T+1}, v{T+2}"); A(f"v_add_f32 v{T+2}, v{T+1}, v{T+2}")
    A(f"v_rcp_f32 v{T+2}, v{T+2}")
    for i in range(4): A(f"v_mul_f32 v{WN+i}, v{m[i]}, v{T+2}")
    stamp(3)
    pollmask("H1", aloads, list(range(AA, AA+16)))
    stamp(7)
    for t in range(4):
        for n in range(5):
            A(f"v_mfma_f32_16x16x32_bf16 {rng(4+4*n)}, {rng(AA+4*t)}, {rng(WB+16*n+4*t)}, {'0' if t == 0 else rng(4+4*n)}")
    for n in range(5):
        A(f"v_mul_f32 v{T+n}, v{WN}, v{4+4*n}")
        for i in range(1, 4): A(f"v_fmac_f32 v{T+n}, v{WN+i}, v{4+4*n+i}")
        if n in (1, 3):
            A(f"v_permlane16_swap_b32 v{T+n-1}, v{T+n}"); A(f"v_add_f32 v{T+n}, v{T+n-1}, v{T+n}"); A(f"v_min_u32 v{T+n}, -2, v{T+n}")
            A(f"global_store_dword v{vSP+n//2}, v{T+n}, s[{sWS}:{sWS+1}] sc1")
    A(f"v_mov_b32 v{T+5}, v{T+4}"); A(f"v_permlane16_swap_b32 v{T+5}, v{T+4}"); A(f"v_add_f32 v{T+4}, v{T+5}, v{T+4}"); A(f"v_min_u32 v{T+4}, -2, v{T+4}")
    A("s_mov_b32 exec_lo, 0xff"); A("s_mov_b32 exec_hi, 0xff")
    A(f"global_store_dword v{vSP+2}, v{T+4}, s[{sWS}:{sWS+1}] sc1")
    A("s_mov_b64 exec, -1")
    stamp(5)
    A("s_branch L_EXIT")

    A.label("L_HOP2")
    A(f"s_cmp_ge_u32 s2, 144"); A("s_cbranch_scc1 L_EXIT")
    YY = 40; SS = 48; vH2 = 56; vOA = 57
    def red32(v, t):
        A(f"v_add_f32 v{v}, v{v}, v{v+1}"); A(f"v_add_f32 v{v+2}, v{v+2}, v{v+3}"); A(f"v_add_f32 v{v}, v{v}, v{v+2}")
        A(f"v_add_f32_dpp v{v}, v{v}, v{v} row_ror:8{dm}")
        xrow(v, t, "v_add_f32")
    checkB("G", T, T+1)
    A(f"v_lshrrev_b32 v{vH2}, 3, v{vL}"); A(f"v_lshlrev_b32 v{vH2}, 7, v{vH2}"); A(f"v_and_b32 v{vOA}, 7, v{vL}"); A(f"v_lshl_add_u32 v{vH2}, v{vOA}, 2, v{vH2}")
    A(f"s_lshl_b32 s{sT}, s2, 10"); A(f"s_add_u32 s{sT}, s{sT}, {W_SP}"); A(f"v_add_u32 v{vH2}, s{sT}, v{vH2}")
    A(f"v_add_u32 v{T}, {W_YP - W_SP}, v{vH2}")
    for k in range(4): A(f"global_load_dword v{YY+k}, v{T}, s[{sWS}:{sWS+1}] offset:{32*k} sc1")
    A(f"v_lshlrev_b32 v{vOA}, 1, v{vOA}"); A(f"s_lshl_b32 s{sT}, s2, 4"); A(f"v_add_u32 v{vOA}, s{sT}, v{vOA}")
    A(f"global_load_ushort v{vXo}, v{vOA}, s[{sX}:{sX+1}]")
    A(f"v_mov_b32 v{T+1}, 0")
    A(f"global_load_ushort v{YY+4}, v{T+1}, s[{sB2}:{sB2+1}]")
    A("s_waitcnt vmcnt(0)")
    red32(YY, YY+5)
    rnd1(YY); A(f"v_lshlrev_b32 v{YY+4}, 16, v{YY+4}"); A(f"v_add_f32 v{YY}, v{YY}, v{YY+4}"); rnd1(YY)
    A(f"v_mul_f32 v{YY+1}, {hx(f2u(-LOG2E))}, v{YY}"); A(f"v_exp_f32 v{YY+1}, v{YY+1}"); A(f"v_add_f32 v{YY+1}, 1.0, v{YY+1}"); A(f"v_rcp_f32 v{YY+1}, v{YY+1}")
    A(f"v_mul_f32 v{vG}, v{YY}, v{YY+1}"); rnd1(vG)
    A(f"v_lshlrev_b32 v{vXo}, 16, v{vXo}")
    stamp(2)
    ldswait("OW2", L_CNTO, 8, 1)
    if H2DELAY: A(f"s_sleep {H2DELAY}")
    pollmask("H2", lambda: [A(f"global_load_dword v{SS+k}, v{vH2}, s[{sWS}:{sWS+1}] offset:{32*k} sc1") for k in range(4)], list(range(SS, SS+4)))
    stamp(7)
    red32(SS, T)
    rnd1(SS); A(f"v_mul_f32 v{SS}, v{SS}, v{vG}"); rnd1(SS); A(f"v_add_f32 v{SS}, v{SS}, v{vXo}")
    A(f"v_cvt_pk_bf16_f32 v{SS}, v{SS}, v{SS}")
    A("s_mov_b64 exec, 0xff")
    A(f"global_store_short v{vOA}, v{SS}, s[{sOUT}:{sOUT+1}]")
    A("s_mov_b64 exec, -1")
    A.label("L_EXIT")
    if STAMP:
        stamp(11)
        A("s_waitcnt lgkmcnt(0)")
        A(f"s_lshl_b32 s{sT}, s2, 3"); A(f"s_add_u32 s{sT}, s{sT}, s{sW}"); A(f"s_mul_i32 s{sT}, s{sT}, {NST*8}"); A(f"s_add_u32 s{sT}, s{sT}, {W_ST}")
        A(f"v_mov_b32 v3, s{sT}")
        if ISTAMP: A("s_mov_b64 s[60:61], s[96:97]")
        for k in range(2*NST): A(f"v_mov_b32 v{40+k}, s{SB+k}")
        A("s_mov_b64 exec, 1")
        for q in range(NST // 2): A(f"global_store_dwordx4 v3, {rng(40+4*q)}, s[{sWS}:{sWS+1}] offset:{16*q}")
    A.label("L_END")
    A("s_endpgm")
    A.raw('.section .rodata,"a"'); A.raw(".p2align 6"); A.raw(f".amdhsa_kernel {KN}_kernel")
    A.raw("  .amdhsa_next_free_vgpr 256"); A.raw("  .amdhsa_next_free_sgpr 102"); A.raw("  .amdhsa_accum_offset 168")
    A.raw("  .amdhsa_group_segment_fixed_size 0"); A.raw("  .amdhsa_kernarg_size 104"); A.raw("  .amdhsa_user_sgpr_count 2")
    A.raw("  .amdhsa_user_sgpr_kernarg_segment_ptr 1"); A.raw("  .amdhsa_system_sgpr_workgroup_id_x 1")
    A.raw("  .amdhsa_float_denorm_mode_32 3")
    A.raw(".end_amdhsa_kernel")
    return A.text()

if __name__ == "__main__":
    out = sys.argv[1]
    kw = eval("dict(" + (sys.argv[2] if len(sys.argv) > 2 else "") + ")")
    open(out, "w").write(gen(**kw))
```

```python
import sys, struct, math
sys.path.insert(0, __file__.rsplit("/", 1)[0] if "/" in __file__ else ".")
from asmlib import Asm
KN = "recurrent_scan__gqa_block_cached__mixer_token_mlp__decode"
def f2u(x): return struct.unpack("<I", struct.pack("<f", x))[0]
def hx(x): return f"0x{x & 0xffffffff:08x}"
LOG2E = 1.4426950408889634
SCALE = 128 ** -0.5
L_MISC = 0
L_QFLAG = L_MISC; L_CNTB = L_MISC + 4; L_CNTQK = L_MISC + 8; L_CNTO = L_MISC + 12; L_CNTW = L_MISC + 16
L_MLW = 64; L_FW = 192; L_Q = 256; L_OW = 768; L_XL = L_OW + 8192; L_WO = L_XL + 4 * 2304; L_END = L_WO + 128 * 144 + 64
W_QP = 0; W_OP = 0x40000; W_ML = 0x60000; W_SP = 0x70000; W_YP = 0xA0000; W_FL = 0xD0000; W_ST = 128 << 20
LIMIT = 1 << 18

def gen(MAP="kvh", NT=True, ROUND=True, NPRE=36, ROT=1, STAMP=False, ATOM="scalar", SCH_QK=(2,)*8, SCH_SM=(1,)*8, SCH_PV={3:1,7:1,11:1,15:1}, H1SLEEP=0, NSIG=8, H2DELAY=16, EARLYBAR=True, LAYOUT='JJWW', WONT=True, WQNT=True, SKIP='', ISTAMP=False, DBG=False):
    A = Asm()
    nt = " nt" if NT else ""
    NST = 18 if ISTAMP else 12
    SB = 60 if ISTAMP else 76
    if ISTAMP or DBG: STAMP = True
    A.raw(f"; @launch grid=(256,1,1) block=(512,1,1) lds={(L_END + 255) // 256 * 256}")
    if STAMP and not DBG: A.raw(f"; STAMPS nrec=2048 n={NST}")
    A.raw('.amdgcn_target "amdgcn-amd-amdhsa--gfx950"')
    A.raw(".text"); A.raw(f".globl {KN}_kernel"); A.raw(".p2align 8"); A.raw(f".type {KN}_kernel,@function"); A.raw(f"{KN}_kernel:")
    def stamp(k, force=False):
        if ISTAMP and not force:
            if k == 10: k = 17
            elif k != 0: return
        if ISTAMP and k == 0 and not force:
            A("s_memrealtime s[96:97]"); return
        if STAMP: A(f"s_memrealtime s[{SB+2*k}:{SB+1+2*k}]")
    sX, sK, sV, sWQ, sWO, sW1, sB1, sW2, sB2, sOUT, sDBG, sWS = 4, 6, 8, 10, 12, 16, 18, 20, 22, 24, 26, 28
    KS, VS = 32, 36
    sW, sG, sB, sSP, sJ, sHH, sCG, sP, sBASE, sT, sT2, sT3, sCNT, sPASS, sC1, sHAVE = 40, 41, 42, 43, 44, 45, 46, 47, 48, 49, 50, 51, 52, 53, 54, 55
    sFL = 58
    sA = 56
    sR = 60
    vL, vOFF = 1, 2
    D = 4; QA = 8; QB = 12; MK = 16; B0 = 20; B1 = 24; T = 28; vM = 36; vLs = 37; vG = 38; vXo = 39
    KB = 40
    def ks(i): return KB + 4 * i
    def rng(r, n=4): return f"v[{r}:{r+n-1}]"
    if STAMP and not ISTAMP:
        for k in range(1, NST): A(f"s_mov_b64 s[{76+2*k}:{77+2*k}], 0")
    stamp(0)
    A("s_cmp_ge_u32 s2, 256"); A("s_cbranch_scc1 L_END")
    A("s_load_dwordx16 s[4:19], s[0:1], 0")
    A("s_load_dwordx8 s[20:27], s[0:1], 64")
    A("s_load_dwordx2 s[28:29], s[0:1], 96")
    A("v_lshrrev_b32 v3, 6, v0"); A(f"v_and_b32 v{vL}, 63, v0")
    A(f"v_readfirstlane_b32 s{sW}, v3")
    if MAP == "kvh":
        A(f"s_and_b32 s{sG}, s2, 7"); A(f"s_lshr_b32 s{sT}, s2, 7"); A(f"s_lshl_b32 s{sT}, s{sT}, 3"); A(f"s_or_b32 s{sG}, s{sG}, s{sT}")
        A(f"s_bfe_u32 s{sJ}, s2, 0x40003")
    else:
        A(f"s_lshr_b32 s{sG}, s2, 4"); A(f"s_and_b32 s{sJ}, s2, 15")
    A(f"s_and_b32 s{sSP}, s{sJ}, 7"); A(f"s_lshr_b32 s{sB}, s{sJ}, 3")
    A(f"s_and_b32 s{sHH}, s{sJ}, 1"); A(f"s_lshr_b32 s{sCG}, s{sJ}, 1")
    A(f"s_lshl_b32 s{sP}, s{sG}, 1"); A(f"s_or_b32 s{sP}, s{sP}, s{sHH}")
    A(f"s_and_b32 s{sT}, s{sW}, 3"); A(f"s_lshl_b32 s{sBASE}, s{sT}, {12 if LAYOUT == 'JJWW' else 10}")
    A(f"s_add_u32 s{sT}, s{sW}, 7"); A(f"s_and_b32 s{sT}, s{sT}, 4"); A(f"s_lshl_b32 s{sT}, s{sT}, 15"); A(f"s_or_b32 s{sBASE}, s{sBASE}, s{sT}")
    A(f"s_lshl_b32 s{sT}, s{sSP}, 18"); A(f"s_or_b32 s{sBASE}, s{sBASE}, s{sT}")
    if ROT:
        if LAYOUT == 'JJWW':
            A(f"s_mul_i32 s{sT}, s2, 0x9E3779B1"); A(f"s_lshr_b32 s{sT}, s{sT}, 29"); A(f"s_lshl_b32 s{sT}, s{sT}, 14"); A(f"s_or_b32 s{sBASE}, s{sBASE}, s{sT}")
        else:
            A(f"s_mul_i32 s{sT}, s2, 0x9E3779B1"); A(f"s_lshr_b32 s{sT}, s{sT}, 27"); A(f"s_lshl_b32 s{sT}, s{sT}, 12"); A(f"s_or_b32 s{sBASE}, s{sBASE}, s{sT}")
    A(f"v_lshlrev_b32 v{vOFF}, 4, v{vL}")
    A(f"v_and_b32 v3, 1, v{vL}"); A("v_lshlrev_b32 v3, 4, v3"); A(f"v_mov_b32 v{T}, 0xffff"); A(f"v_lshlrev_b32 v3, v3, v{T}")
    A(f"v_bfe_u32 v{T}, v{vL}, 1, 2")
    for k in range(4):
        A(f"v_cmp_eq_u32 vcc, {k}, v{T}"); A(f"v_cndmask_b32 v{MK+k}, 0, v3, vcc")
    A(f"s_mov_b32 s{sC1}, {hx(f2u(LOG2E if ROUND else LOG2E * SCALE))}")
    A(f"s_lshl_b32 s{sT}, s{sB}, 4"); A(f"s_or_b32 s{sT}, s{sT}, s{sG}"); A(f"s_lshl_b32 s{sT}, s{sT}, 21")
    A("s_waitcnt lgkmcnt(0)")
    stamp(1)
    A(f"s_add_u32 s{KS}, s{sK}, s{sT}"); A(f"s_addc_u32 s{KS+1}, s{sK+1}, 0"); A(f"s_mov_b32 s{KS+2}, 0x200000"); A(f"s_mov_b32 s{KS+3}, 0x20000")
    A(f"s_add_u32 s{VS}, s{sV}, s{sT}"); A(f"s_addc_u32 s{VS+1}, s{sV+1}, 0"); A(f"s_mov_b32 s{VS+2}, 0x200000"); A(f"s_mov_b32 s{VS+3}, 0x20000")
    A(f"s_cmp_eq_u32 s{sW}, 0"); A("s_cbranch_scc1 L_W0_PRE")
    A(f"s_cmp_ge_u32 s{sW}, 5"); A("s_cbranch_scc1 L_Y_PRE")
    A(f"s_cmp_lg_u32 s{sW}, 1"); A("s_cbranch_scc1 L_NOINIT")
    A(f"v_lshlrev_b32 v3, 2, v{vL}"); A(f"v_mov_b32 v{T}, 0")
    A("s_mov_b64 exec, 0xffff")
    A(f"ds_write_b32 v3, v{T} offset:{L_MISC}")
    A("s_mov_b64 exec, -1")
    A("s_waitcnt lgkmcnt(0)")
    A.label("L_NOINIT")
    A(f"s_cmp_eq_u32 s{sW}, 4"); A("s_cbranch_scc1 L_NOWO")
    A(f"s_mov_b32 s{sR}, s{sWO}"); A(f"s_mov_b32 s{sR+1}, s{sWO+1}"); A(f"s_mov_b32 s{sR+2}, {4096*1152}"); A(f"s_mov_b32 s{sR+3}, 0x20000")
    A(f"s_sub_u32 s{sT}, s{sW}, 1"); A(f"s_mul_i32 s{sT}, s{sT}, 384"); A(f"v_add_u32 v{vG}, s{sT}, v{vL}")
    A(f"s_mul_i32 s{sT}, s{sP}, {128*1152}"); A(f"s_mul_i32 s{sT2}, s{sCG}, 144"); A(f"s_add_u32 s{sT}, s{sT}, s{sT2}")
    A(f"s_mov_b32 s{sT2}, 7282")
    for k in range(6):
        A(f"v_add_u32 v{T}, {64*k}, v{vG}"); A(f"v_mul_u32_u24 v{T+1}, s{sT2}, v{T}"); A(f"v_lshrrev_b32 v{T+1}, 16, v{T+1}")
        A(f"v_mul_u32_u24 v{T+1}, {1152-144}, v{T+1}"); A(f"v_lshl_add_u32 v{T+2+k}, v{T}, 4, v{T+1}")
    A(f"v_lshlrev_b32 v{vG}, 4, v{vG}")
    A("s_barrier")
    for k in range(6):
        if 'o' in SKIP: A(f"buffer_load_dwordx4 a[{64+4*k}:{67+4*k}], v{vOFF}, s[{sR}:{sR+3}], 0 offen")
        else: A(f"buffer_load_dwordx4 a[{64+4*k}:{67+4*k}], v{T+2+k}, s[{sR}:{sR+3}], s{sT} offen{nt if WONT else ''}")
    A("s_branch L_STREAM")
    A.label("L_NOWO")
    A("s_barrier")
    A("s_branch L_STREAM")

    X = 40
    E = 50
    vXO = 3
    def xloads():
        A(f"v_lshrrev_b32 v{T}, 5, v{vL}"); A(f"v_mul_u32_u24 v{T}, 1152, v{T}")
        A(f"v_and_b32 v{vXO}, 31, v{vL}"); A(f"v_lshl_add_u32 v{vXO}, v{vXO}, 2, v{T}")
        for k in range(9): A(f"global_load_dword v{X+k}, v{vXO}, s[{sX}:{sX+1}] offset:{128*k}")
    WQ = 96
    A.label("L_W0_PRE")
    xloads()
    A(f"s_lshl_b32 s{sT}, s{sG}, 4"); A(f"s_add_u32 s{sT}, s{sT}, s{sJ}"); A(f"s_lshl_b32 s{sT}, s{sT}, 7"); A(f"s_add_u32 s{sFL}, s{sT}, {W_FL}")
    A(f"v_mov_b32 v{T+2}, s{sFL}"); A(f"v_mov_b32 v{T+3}, 0")
    A("s_mov_b64 exec, 1")
    A(f"global_store_dword v{T+2}, v{T+3}, s[{sWS}:{sWS+1}] sc1")
    A("s_mov_b64 exec, -1")
    A(f"s_mov_b32 s{sR}, s{sWQ}"); A(f"s_mov_b32 s{sR+1}, s{sWQ+1}"); A(f"s_mov_b32 s{sR+2}, {576*8192}"); A(f"s_mov_b32 s{sR+3}, 0x20000")
    A(f"v_lshrrev_b32 v{T}, 4, v{vL}"); A(f"v_lshlrev_b32 v{T}, 13, v{T}"); A(f"v_and_b32 v{T+1}, 15, v{vL}"); A(f"v_lshl_add_u32 v{T}, v{T+1}, 4, v{T}")
    A(f"s_mul_i32 s{sT}, s{sCG}, {72*8192}"); A(f"s_lshl_b32 s{sT2}, s{sP}, 8"); A(f"s_add_u32 s{sT}, s{sT}, s{sT2}")
    for i in range(18):
        if 'q' in SKIP: A(f"buffer_load_dwordx4 {rng(WQ+4*i)}, v{vOFF}, s[{sR}:{sR+3}], 0 offen")
        else: A(f"buffer_load_dwordx4 {rng(WQ+4*i)}, v{T}, s[{sR}:{sR+3}], s{sT} offen{nt if WQNT else ''}")
        if i < 17: A(f"s_add_u32 s{sT}, s{sT}, 32768")
    A("s_barrier")
    A(f"s_mov_b32 s{sPASS}, 1"); A(f"s_mov_b32 s{sT3}, {L_XL}")
    A("s_waitcnt vmcnt(19)")
    A("s_branch L_LN0")

    WR = 70
    A.label("L_Y_PRE")
    A("s_setprio 2")
    if EARLYBAR: A("s_barrier")
    xloads()
    A(f"v_and_b32 v{T}, 7, v{vL}"); A(f"v_mul_u32_u24 v{T}, 36, v{T}"); A(f"s_mul_i32 s{sT}, s{sP}, 288"); A(f"v_add_u32 v{T}, s{sT}, v{T}")
    for a, sp_ in enumerate((sW1, sB1, sW2)):
        R = WR + 10 * a
        A(f"global_load_dwordx4 {rng(R)}, v{T}, s[{sp_}:{sp_+1}]")
        A(f"global_load_dwordx4 {rng(R+4)}, v{T}, s[{sp_}:{sp_+1}] offset:16")
        A(f"global_load_dword v{R+8}, v{T}, s[{sp_}:{sp_+1}] offset:32")
    A(f"s_cmp_lg_u32 s{sW}, 5"); A("s_cbranch_scc1 L_NORESET")
    for k in range(4): A(f"v_mov_b32 v{T+4+k}, -1")
    def op_addr(v, t):
        A(f"v_bfe_u32 v{v}, v{vL}, 3, 1"); A(f"v_lshlrev_b32 v{v}, 12, v{v}")
        A(f"v_lshrrev_b32 v{t}, 4, v{vL}"); A(f"v_lshl_add_u32 v{v}, v{t}, 6, v{v}")
        A(f"v_and_b32 v{t}, 7, v{vL}"); A(f"v_lshl_add_u32 v{v}, v{t}, 3, v{v}")
        A(f"s_lshl_b32 s{sT}, s{sG}, 13"); A(f"s_lshl_b32 s{sT2}, s{sJ}, 8"); A(f"s_add_u32 s{sT}, s{sT}, s{sT2}"); A(f"s_add_u32 s{sT}, s{sT}, {W_OP}")
        A(f"v_add_u32 v{v}, s{sT}, v{v}")
    def ml_addr(v):
        A(f"v_bfe_u32 v{v}, v{vL}, 3, 1"); A(f"v_lshlrev_b32 v{v}, 7, v{v}")
        A(f"s_lshl_b32 s{sT}, s{sG}, 8"); A(f"s_lshl_b32 s{sT2}, s{sJ}, 3"); A(f"s_add_u32 s{sT}, s{sT}, s{sT2}"); A(f"s_add_u32 s{sT}, s{sT}, {W_ML}")
        A(f"v_add_u32 v{v}, s{sT}, v{v}")
    op_addr(T, T+1)
    A(f"global_store_dwordx2 v{T}, v[{T+4}:{T+5}], s[{sWS}:{sWS+1}] sc1")
    ml_addr(T+2)
    A("s_mov_b64 exec, 0x101")
    A(f"global_store_dwordx2 v{T+2}, v[{T+4}:{T+5}], s[{sWS}:{sWS+1}] sc1")
    A("s_mov_b64 exec, -1")
    A(f"v_lshrrev_b32 v{T}, 1, v{vL}"); A(f"v_cmp_le_u32 vcc, 9, v{T}"); A(f"v_cndmask_b32 v{T+1}, 0, 63, vcc")
    A(f"v_add_u32 v{T}, v{T}, v{T+1}"); A(f"v_lshlrev_b32 v{T}, 10, v{T}")
    A(f"v_and_b32 v{T+1}, 1, v{vL}"); A(f"v_lshl_add_u32 v{T}, v{T+1}, 4, v{T}")
    A(f"s_mul_i32 s{sT}, s{sCG}, 9216"); A(f"s_lshl_b32 s{sT2}, s{sP}, 5"); A(f"s_add_u32 s{sT}, s{sT}, s{sT2}"); A(f"s_add_u32 s{sT}, s{sT}, {W_SP}")
    A(f"v_add_u32 v{T}, s{sT}, v{T}")
    A(f"s_mov_b32 exec_lo, -1"); A(f"s_mov_b32 exec_hi, 0xf")
    A(f"global_store_dwordx4 v{T}, {rng(T+4)}, s[{sWS}:{sWS+1}] sc1")
    A("s_mov_b64 exec, -1")
    A.label("L_NORESET")
    if not EARLYBAR: A("s_barrier")
    A(f"s_mov_b32 s{sPASS}, 2"); A(f"s_sub_u32 s{sT3}, s{sW}, 4"); A(f"s_mul_i32 s{sT3}, s{sT3}, 2304"); A(f"s_add_u32 s{sT3}, s{sT3}, {L_XL}")
    A("s_waitcnt vmcnt(0)")

    def allred32(v, t, op):
        for pat in ("quad_perm:[1,0,3,2]", "quad_perm:[2,3,0,1]", "row_half_mirror", "row_mirror"):
            A(f"{op}_dpp v{v}, v{v}, v{v} {pat} row_mask:0xf bank_mask:0xf")
        A(f"v_mov_b32 v{t}, v{v}"); A(f"v_permlane16_swap_b32 v{t}, v{v}"); A(f"{op} v{v}, v{t}, v{v}")
    def rnd1(v):
        A(f"v_cvt_pk_bf16_f32 v{v}, v{v}, v{v}"); A(f"v_lshlrev_b32 v{v}, 16, v{v}")
    A.label("L_LN0")
    stamp(2)
    A.label("L_LN")
    for k in range(9):
        A(f"v_lshlrev_b32 v{E+2*k}, 16, v{X+k}"); A(f"v_and_b32 v{E+2*k+1}, 0xffff0000, v{X+k}")
    A(f"v_add_f32 v{T}, v{E}, v{E+1}"); A(f"v_add_f32 v{T+1}, v{E+2}, v{E+3}")
    for k in range(4, 18, 2):
        A(f"v_add_f32 v{T}, v{T}, v{E+k}"); A(f"v_add_f32 v{T+1}, v{T+1}, v{E+k+1}")
    A(f"v_add_f32 v{T}, v{T}, v{T+1}")
    allred32(T, T+1, "v_add_f32")
    A(f"v_mul_f32 v{T}, {hx(f2u(1/576))}, v{T}")
    A(f"v_mov_b32 v{T+2}, 0"); A(f"v_mov_b32 v{T+3}, 0")
    for k in range(0, 18, 2):
        A(f"v_sub_f32 v{T+4}, v{E+k}, v{T}"); A(f"v_sub_f32 v{T+5}, v{E+k+1}, v{T}")
        A(f"v_fmac_f32 v{T+2}, v{T+4}, v{T+4}"); A(f"v_fmac_f32 v{T+3}, v{T+5}, v{T+5}")
    A(f"v_add_f32 v{T+2}, v{T+2}, v{T+3}")
    allred32(T+2, T+3, "v_add_f32")
    A(f"v_mul_f32 v{T+2}, {hx(f2u(1/576))}, v{T+2}")
    rnd1(T); rnd1(T+2)
    A(f"v_add_f32 v{T+2}, {hx(f2u(1e-5))}, v{T+2}"); rnd1(T+2)
    A(f"v_sqrt_f32 v{T+2}, v{T+2}"); rnd1(T+2)
    A(f"v_rcp_f32 v{T+2}, v{T+2}")
    for k in range(9):
        a, b = E+2*k, E+2*k+1
        A(f"v_sub_f32 v{a}, v{a}, v{T}"); A(f"v_sub_f32 v{b}, v{b}, v{T}")
        A(f"v_cvt_pk_bf16_f32 v{X+k}, v{a}, v{b}")
        A(f"v_lshlrev_b32 v{a}, 16, v{X+k}"); A(f"v_and_b32 v{b}, 0xffff0000, v{X+k}")
        A(f"v_mul_f32 v{a}, v{a}, v{T+2}"); A(f"v_mul_f32 v{b}, v{b}, v{T+2}")
        A(f"v_cvt_pk_bf16_f32 v{X+k}, v{a}, v{b}")
    A(f"s_sub_u32 s{sPASS}, s{sPASS}, 1"); A(f"s_cmp_lg_u32 s{sPASS}, 0"); A("s_cbranch_scc1 L_LN")
    A(f"v_add_u32 v{vXO}, s{sT3}, v{vXO}")
    for k in range(9): A(f"ds_write_b32 v{vXO}, v{X+k} offset:{128*k}")
    A(f"s_cmp_lg_u32 s{sW}, 0"); A("s_cbranch_scc1 L_BBR")

    XV = 50
    A(f"v_bfe_u32 v{T}, v{vL}, 3, 1"); A(f"v_mul_u32_u24 v{T}, 1152, v{T}")
    A(f"v_lshrrev_b32 v{T+1}, 4, v{vL}"); A(f"v_lshl_add_u32 v{T}, v{T+1}, 1, v{T}")
    A(f"s_mul_i32 s{sT}, s{sCG}, 144"); A(f"s_add_u32 s{sT}, s{sT}, {L_XL}"); A(f"v_add_u32 v{T}, s{sT}, v{T}")
    A("s_waitcnt lgkmcnt(0)")
    for i in range(18): A(f"ds_read_u16 v{XV+i}, v{T} offset:{8*i}")
    A("s_waitcnt lgkmcnt(0)")
    for i in range(18): A(f"v_lshl_or_b32 v{XV+i}, v{XV+i}, 16, v{XV+i}")
    for i in range(18):
        Bx = B0 if i % 2 == 0 else B1
        for k in range(4): A(f"v_and_b32 v{Bx+k}, v{XV+i}, v{MK+k}")
        if i > 0:
            Bp = B1 if i % 2 == 0 else B0
            A(f"s_waitcnt vmcnt({17-(i-1)})")
            A(f"v_mfma_f32_16x16x32_bf16 {rng(D)}, {rng(WQ+4*(i-1))}, {rng(Bp)}, {'0' if i == 1 else rng(D)}")
    A("s_waitcnt vmcnt(0)")
    A(f"v_mfma_f32_16x16x32_bf16 {rng(D)}, {rng(WQ+4*17)}, {rng(B1)}, {rng(D)}")
    A(f"v_bfe_u32 v{T}, v{vL}, 3, 1"); A(f"v_lshlrev_b32 v{T}, 13, v{T}")
    A(f"v_lshrrev_b32 v{T+1}, 4, v{vL}"); A(f"v_lshl_add_u32 v{T}, v{T+1}, 7, v{T}")
    A(f"v_and_b32 v{T+1}, 7, v{vL}"); A(f"v_lshl_add_u32 v{T}, v{T+1}, 4, v{T}")
    A(f"s_lshl_b32 s{sT}, s{sG}, 14"); A(f"s_lshl_b32 s{sT2}, s{sJ}, 9"); A(f"s_add_u32 s{sT}, s{sT}, s{sT2}")
    A(f"v_add_u32 v{T}, s{sT}, v{T}")
    A(f"global_store_dwordx4 v{T}, {rng(D)}, s[{sWS}:{sWS+1}] sc1")
    stamp(3)
    A(f"s_lshl_b32 s{sT}, s{sG}, 4")
    if ATOM == "scalar":
        A(f"s_mov_b32 s{sT2}, 1")
        A("s_waitcnt vmcnt(0)")
        stamp(4)
        A(f"s_atomic_add s{sT2}, s[{sDBG}:{sDBG+1}], s{sT} glc"); A("s_waitcnt lgkmcnt(0)")
    else:
        A(f"v_mov_b32 v{T+2}, 1"); A(f"v_mov_b32 v{T+3}, s{sT}")
        A("s_waitcnt vmcnt(0)")
        stamp(4)
        A("s_mov_b64 exec, 1")
        A(f"global_atomic_add v{T+4}, v{T+3}, v{T+2}, s[{sDBG}:{sDBG+1}] sc0")
        A("s_mov_b64 exec, -1")
        A("s_waitcnt vmcnt(0)"); A(f"v_readfirstlane_b32 s{sT2}, v{T+4}")
    A(f"s_cmp_lg_u32 s{sT2}, 15"); A("s_cbranch_scc1 L_NOTMASTER")
    if ATOM == "scalar":
        A(f"s_lshl_b32 s{sT}, s{sG}, 11"); A(f"s_add_u32 s{sT}, s{sT}, {W_FL}"); A(f"s_add_u32 s{sA}, s{sWS}, s{sT}"); A(f"s_addc_u32 s{sA+1}, s{sWS+1}, 0")
        A(f"s_mov_b32 s{sT2}, 1")
        for j in range(16): A(f"s_atomic_or s{sT2}, s[{sA}:{sA+1}], {128*j}")
    else:
        A(f"s_lshl_b32 s{sT}, s{sG}, 11"); A(f"s_add_u32 s{sT}, s{sT}, {W_FL}")
        A(f"v_lshlrev_b32 v{T+3}, 7, v{vL}"); A(f"v_add_u32 v{T+3}, s{sT}, v{T+3}")
        A("s_mov_b64 exec, 0xffff")
        A(f"global_store_dword v{T+3}, v{T+2}, s[{sWS}:{sWS+1}] sc1")
        A("s_mov_b64 exec, -1")
    A("s_branch L_POLLA_OK")
    A.label("L_NOTMASTER")
    A(f"s_mov_b32 s{sCNT}, {LIMIT}")
    A.label("L_POLLA")
    A(f"s_load_dword s{sT2}, s[{sWS}:{sWS+1}], s{sFL} glc"); A("s_waitcnt lgkmcnt(0)")
    A(f"s_cmp_eq_u32 s{sT2}, 1"); A("s_cbranch_scc1 L_POLLA_OK")
    A("s_sleep 2"); A(f"s_sub_u32 s{sCNT}, s{sCNT}, 1"); A(f"s_cmp_lg_u32 s{sCNT}, 0"); A("s_cbranch_scc1 L_POLLA")
    A.label("L_POLLA_OK")
    stamp(2)
    A(f"s_lshl_b32 s{sT}, s{sG}, 14"); A(f"s_lshl_b32 s{sT2}, s{sB}, 13"); A(f"s_add_u32 s{sT}, s{sT}, s{sT2}")
    A(f"v_add_u32 v{T}, s{sT}, v{vOFF}"); A(f"v_add_u32 v{T+1}, 4096, v{T}")
    for r in range(8):
        A(f"global_load_dwordx4 {rng(40+4*r)}, v{T + r//4}, s[{sWS}:{sWS+1}] offset:{1024*(r%4)} sc1")
    A(f"v_lshrrev_b32 v{T+2}, 3, v{vL}"); A(f"v_lshlrev_b32 v{T+2}, 6, v{T+2}"); A(f"v_and_b32 v{T+3}, 7, v{vL}"); A(f"v_lshl_add_u32 v{T+2}, v{T+3}, 1, v{T+2}")
    for r in range(1, 8):
        A(f"s_waitcnt vmcnt({7-r})")
        for k in range(4): A(f"v_add_f32 v{40+k}, v{40+k}, v{40+4*r+k}")
    A(f"v_cvt_pk_bf16_f32 v40, v40, v41"); A(f"v_cvt_pk_bf16_f32 v41, v42, v43")
    A(f"ds_write_b16 v{T+2}, v40 offset:{L_Q}"); A(f"ds_write_b16_d16_hi v{T+2}, v40 offset:{L_Q+16}")
    A(f"ds_write_b16 v{T+2}, v41 offset:{L_Q+32}"); A(f"ds_write_b16_d16_hi v{T+2}, v41 offset:{L_Q+48}")
    A(f"v_mov_b32 v{T+2}, 1"); A(f"v_mov_b32 v{T+3}, {L_QFLAG}")
    A("s_waitcnt lgkmcnt(0)")
    A(f"ds_write_b32 v{T+3}, v{T+2}")
    A("s_branch L_STREAM")

    A.label("L_BBR")
    W1 = 100; BB = 118; W2 = WR + 20; U = 136; PK = 40; ZZ = 50; RES = 154; vC1 = 156; vC0 = 158; vONE = 160; vH = 162; vHA = 164; ACC = 165; vFL = 166
    def pr(r): return f"v[{r}:{r+1}]"
    for k in range(9):
        A(f"v_lshlrev_b32 v{W1+2*k}, 16, v{WR+k}"); A(f"v_and_b32 v{W1+2*k+1}, 0xffff0000, v{WR+k}")
        A(f"v_lshlrev_b32 v{BB+2*k}, 16, v{WR+10+k}"); A(f"v_and_b32 v{BB+2*k+1}, 0xffff0000, v{WR+10+k}")
    c0 = -2 * math.sqrt(2 / math.pi) * LOG2E; c1 = c0 * 0.044715
    for k in range(2):
        A(f"v_mov_b32 v{vC1+k}, {hx(f2u(c1))}"); A(f"v_mov_b32 v{vC0+k}, {hx(f2u(c0))}"); A(f"v_mov_b32 v{vONE+k}, 1.0")
    A(f"v_and_b32 v{vFL}, 7, v{vL}")
    A(f"s_sub_u32 s{sT}, s{sW}, 5"); A(f"s_mul_i32 s{sT}, s{sT}, 6")
    A(f"s_mul_i32 s{sT2}, s{sCG}, 144"); A(f"s_add_u32 s{sT3}, s{sT3}, s{sT2}")
    A(f"v_lshrrev_b32 v{vHA}, 3, v{vL}"); A(f"v_lshlrev_b32 v{vHA}, 1, v{vHA}"); A(f"v_add_u32 v{vHA}, s{sT3}, v{vHA}")
    A(f"s_mov_b32 s{sPASS}, 0"); A(f"v_mov_b32 v{RES}, 0")
    A("s_setprio 0")
    A.label("L_BLOOP")
    A(f"s_add_u32 s{sT2}, s{sT}, s{sPASS}"); A(f"s_cmp_ge_u32 s{sT2}, 9"); A(f"s_cselect_b32 s{sT3}, 63, 0"); A(f"s_add_u32 s{sT2}, s{sT2}, s{sT3}"); A(f"s_lshl_b32 s{sT2}, s{sT2}, 4")
    A(f"v_add_u32 v{vH+1}, s{sT2}, v{vHA}")
    A(f"ds_read_u16 v{vH}, v{vH+1}")
    A("s_waitcnt lgkmcnt(0)")
    A(f"v_lshlrev_b32 v{vH}, 16, v{vH}"); A(f"v_mov_b32 v{vH+1}, v{vH}")
    def round9():
        for k in range(9): A(f"v_cvt_pk_bf16_f32 v{PK+k}, v{U+2*k}, v{U+2*k+1}")
        for k in range(9):
            A(f"v_lshlrev_b32 v{U+2*k}, 16, v{PK+k}"); A(f"v_and_b32 v{U+2*k+1}, 0xffff0000, v{PK+k}")
    for k in range(9): A(f"v_pk_mul_f32 {pr(U+2*k)}, {pr(vH)}, {pr(W1+2*k)}")
    round9()
    for k in range(9): A(f"v_pk_add_f32 {pr(U+2*k)}, {pr(U+2*k)}, {pr(BB+2*k)}")
    round9()
    for k in range(9): A(f"v_pk_mul_f32 {pr(ZZ+2*k)}, {pr(U+2*k)}, {pr(U+2*k)}")
    for k in range(9): A(f"v_pk_fma_f32 {pr(ZZ+2*k)}, {pr(ZZ+2*k)}, {pr(vC1)}, {pr(vC0)}")
    for k in range(9): A(f"v_pk_mul_f32 {pr(ZZ+2*k)}, {pr(ZZ+2*k)}, {pr(U+2*k)}")
    for k in range(18): A(f"v_exp_f32 v{ZZ+k}, v{ZZ+k}")
    for k in range(9): A(f"v_pk_add_f32 {pr(ZZ+2*k)}, {pr(ZZ+2*k)}, {pr(vONE)}")
    for k in range(18): A(f"v_rcp_f32 v{ZZ+k}, v{ZZ+k}")
    for k in range(9): A(f"v_pk_mul_f32 {pr(U+2*k)}, {pr(U+2*k)}, {pr(ZZ+2*k)}")
    for k in range(9): A(f"v_cvt_pk_bf16_f32 v{PK+k}, v{U+2*k}, v{U+2*k+1}")
    A(f"v_mov_b32 v{ACC}, 0")
    for k in range(9): A(f"v_dot2c_f32_bf16 v{ACC}, v{PK+k}, v{W2+k}")
    for pat in ("quad_perm:[1,0,3,2]", "quad_perm:[2,3,0,1]", "row_half_mirror"):
        A(f"v_add_f32_dpp v{ACC}, v{ACC}, v{ACC} {pat} row_mask:0xf bank_mask:0xf")
    A(f"v_cmp_eq_u32 vcc, s{sPASS}, v{vFL}"); A(f"v_cndmask_b32 v{RES}, v{RES}, v{ACC}, vcc")
    A(f"s_add_u32 s{sPASS}, s{sPASS}, 1"); A(f"s_cmp_lt_u32 s{sPASS}, {1 if 'b' in SKIP else 6}"); A("s_cbranch_scc1 L_BLOOP")
    A("s_setprio 2")
    A(f"v_add_u32 v{T}, s{sT}, v{vFL}"); A(f"v_cmp_le_u32 vcc, 9, v{T}"); A(f"v_cndmask_b32 v{T+1}, 0, 63, vcc"); A(f"v_add_u32 v{T}, v{T}, v{T+1}")
    A(f"v_lshlrev_b32 v{T}, 10, v{T}"); A(f"v_lshrrev_b32 v{T+1}, 3, v{vL}"); A(f"v_lshl_add_u32 v{T}, v{T+1}, 2, v{T}")
    A(f"s_mul_i32 s{sT2}, s{sCG}, 9216"); A(f"s_lshl_b32 s{sT3}, s{sP}, 5"); A(f"s_add_u32 s{sT2}, s{sT2}, s{sT3}"); A(f"s_add_u32 s{sT2}, s{sT2}, {W_YP}")
    A(f"v_add_u32 v{T}, s{sT2}, v{T}")
    A(f"s_mov_b32 exec_lo, 0x3f3f3f3f"); A(f"s_mov_b32 exec_hi, 0x3f3f3f3f")
    A(f"global_store_dword v{T}, v{RES}, s[{sWS}:{sWS+1}] sc1")
    stamp(3)
    A("s_mov_b64 exec, -1")

    A.label("L_STREAM")
    stamp(6)
    free = [0, 1, 2, 4, 5, 6, 8, 9, 10, 12]
    def vreg(i): return f"a[{4*i}:{4*i+3}]" if i < 22 else rng(ks(free[i-22]))
    cur = [None]
    def issue(n):
        i = n % 32
        if LAYOUT != 'JJWW':
            A(f"s_xor_b32 s{sT}, s{sBASE}, {i << 12}")
            if n < 32: A(f"buffer_load_dwordx4 {rng(ks(i))}, v{vOFF}, s[{KS}:{KS+3}], s{sT} offen{nt}")
            else: A(f"buffer_load_dwordx4 {vreg(i)}, v{vOFF}, s[{VS}:{VS+3}], s{sT} offen{nt}")
            if ISTAMP and n % 4 == 3: stamp(1 + n // 4, True)
            return
        if cur[0] != (n >> 2):
            A(f"s_xor_b32 s{sT}, s{sBASE}, {(i >> 2) << 14}"); cur[0] = n >> 2
        if n < 32: A(f"buffer_load_dwordx4 {rng(ks(i))}, v{vOFF}, s[{KS}:{KS+3}], s{sT} offen offset:{(i&3)<<10}{nt}")
        else: A(f"buffer_load_dwordx4 {vreg(i)}, v{vOFF}, s[{VS}:{VS+3}], s{sT} offen offset:{(i&3)<<10}{nt}")
    issued = 0
    while issued < NSIG: issue(issued); issued += 1
    A(f"s_cmp_lt_u32 s{sW}, 5"); A("s_cbranch_scc1 L_BDONE")
    A("s_mov_b64 exec, 1")
    A(f"v_mov_b32 v{T+2}, 1"); A(f"v_mov_b32 v{T+3}, {L_CNTB}")
    A(f"s_waitcnt vmcnt({NSIG})")
    A(f"ds_add_rtn_u32 v{T+4}, v{T+3}, v{T+2}")
    A(f"s_lshl_b32 s{sT2}, s{sG}, 4"); A(f"s_add_u32 s{sT2}, s{sT2}, 4"); A(f"s_mov_b32 s{sT3}, 1")
    A("s_waitcnt lgkmcnt(0)")
    A(f"v_readfirstlane_b32 s{sCNT}, v{T+4}")
    A("s_mov_b64 exec, -1")
    A("s_setprio 0")
    stamp(4)
    A(f"s_cmp_lg_u32 s{sCNT}, 2"); A("s_cbranch_scc1 L_BDONE")
    A(f"s_atomic_add s{sT3}, s[{sDBG}:{sDBG+1}], s{sT2}")
    A.label("L_BDONE")
    while issued < NPRE: issue(issued); issued += 1
    stamp(7)
    A(f"s_sub_u32 s{sT2}, s{sW}, 1"); A(f"s_cmp_gt_u32 s{sT2}, 2"); A("s_cbranch_scc1 L_NOWO2")
    A(f"s_waitcnt vmcnt({NPRE})")
    for k in range(6): A(f"ds_write_b128 v{vG}, a[{64+4*k}:{67+4*k}] offset:{L_WO+1024*k}")
    A(f"v_mov_b32 v{T+2}, 1"); A(f"v_mov_b32 v{T+3}, {L_CNTW}")
    A("s_mov_b64 exec, 1")
    A(f"ds_add_u32 v{T+3}, v{T+2}")
    A("s_mov_b64 exec, -1")
    A.label("L_NOWO2")
    A(f"v_mov_b32 v{T+3}, {L_QFLAG}"); A(f"s_mov_b32 s{sCNT}, {LIMIT*4}")
    A.label("L_QW")
    A(f"ds_read_b32 v{T}, v{T+3}"); A("s_waitcnt lgkmcnt(0)"); A(f"v_readfirstlane_b32 s{sT2}, v{T}")
    A(f"s_cmp_lg_u32 s{sT2}, 0"); A("s_cbranch_scc1 L_QW_OK")
    A("s_sleep 2"); A(f"s_sub_u32 s{sCNT}, s{sCNT}, 1"); A(f"s_cmp_lg_u32 s{sCNT}, 0"); A("s_cbranch_scc1 L_QW")
    A.label("L_QW_OK")
    A(f"v_bfe_u32 v{T}, v{vL}, 3, 1"); A(f"v_lshlrev_b32 v{T}, 8, v{T}"); A(f"v_and_b32 v{T+1}, 15, v{vL}"); A(f"v_lshl_add_u32 v{T}, v{T+1}, 4, v{T}")
    A(f"v_xor_b32 v{T+1}, 128, v{T}")
    A(f"ds_read_b128 {rng(QA)}, v{T} offset:{L_Q}"); A(f"ds_read_b128 {rng(QB)}, v{T+1} offset:{L_Q}")
    A("s_waitcnt lgkmcnt(0)")
    stamp(8)
    cur[0] = None
    dm = " row_mask:0xf bank_mask:0xf"
    def sreg(i): return ks(4 * (i >> 2) + 3) + (i & 3)
    def more(n, kdone=32):
        nonlocal issued
        for _ in range(n):
            if issued >= 64: return
            i = issued - 32
            assert not (i >= 22 and free[i-22] >= kdone), (i, kdone)
            issue(issued); issued += 1
    for gq in range(8):
        A(f"s_waitcnt vmcnt({issued - (4*gq+4)})")
        Kr = [ks(4*gq+a) for a in range(4)]
        for a in range(4): A(f"v_dot2_f32_bf16 v{T+a}, v{Kr[a]}, v{QA}, 0")
        for c in range(1, 4):
            for a in range(4): A(f"v_dot2c_f32_bf16 v{T+a}, v{Kr[a]+c}, v{QA+c}")
        for c in range(4):
            for a in range(4): A(f"v_dot2c_f32_bf16_dpp v{T+a}, v{Kr[a]+c}, v{QB+c} row_ror:8{dm}")
        more(SCH_QK[gq], 4*gq + 4)
        for a in range(4): A(f"v_add_f32_dpp v{T+a}, v{T+a}, v{T+a} quad_perm:[1,0,3,2]{dm}")
        for a in range(4): A(f"v_add_f32_dpp v{T+a}, v{T+a}, v{T+a} quad_perm:[2,3,0,1]{dm}")
        S = Kr[3]
        for a in range(4): A(f"v_add_f32_dpp v{S+a}, v{T+a}, v{T+a} row_half_mirror{dm}")
        if ROUND:
            A(f"v_cvt_pk_bf16_f32 v{T+4}, v{S}, v{S+1}"); A(f"v_cvt_pk_bf16_f32 v{T+5}, v{S+2}, v{S+3}")
            A(f"v_lshlrev_b32 v{S}, 16, v{T+4}"); A(f"v_and_b32 v{S+1}, 0xffff0000, v{T+4}")
            A(f"v_lshlrev_b32 v{S+2}, 16, v{T+5}"); A(f"v_and_b32 v{S+3}, 0xffff0000, v{T+5}")
            for a in range(4): A(f"v_mul_f32 v{S+a}, {hx(f2u(SCALE))}, v{S+a}")
            A(f"v_cvt_pk_bf16_f32 v{T+4}, v{S}, v{S+1}"); A(f"v_cvt_pk_bf16_f32 v{T+5}, v{S+2}, v{S+3}")
            A(f"v_lshlrev_b32 v{S}, 16, v{T+4}"); A(f"v_and_b32 v{S+1}, 0xffff0000, v{T+4}")
            A(f"v_lshlrev_b32 v{S+2}, 16, v{T+5}"); A(f"v_and_b32 v{S+3}, 0xffff0000, v{T+5}")
        if gq == 0:
            A(f"v_max3_f32 v{vM}, v{S}, v{S+1}, v{S+2}"); A(f"v_max_f32 v{vM}, v{vM}, v{S+3}")
        else:
            A(f"v_max3_f32 v{vM}, v{vM}, v{S}, v{S+1}"); A(f"v_max3_f32 v{vM}, v{vM}, v{S+2}, v{S+3}")
    def xrow(v, t, op):
        A(f"v_mov_b32 v{t}, v{v}"); A(f"v_permlane16_swap_b32 v{t}, v{v}"); A(f"{op} v{v}, v{t}, v{v}")
        A(f"v_mov_b32 v{t}, v{v}"); A(f"v_permlane32_swap_b32 v{t}, v{v}"); A(f"{op} v{v}, v{t}, v{v}")
    xrow(vM, T, "v_max_f32")
    A(f"v_mul_f32 v{vM}, s{sC1}, v{vM}")
    stamp(9)
    A(f"v_mov_b32 v{vLs}, 0")
    for q in range(8):
        for a in range(4): A(f"v_fma_f32 v{sreg(4*q+a)}, v{sreg(4*q+a)}, s{sC1}, -v{vM}")
        for a in range(4): A(f"v_exp_f32 v{sreg(4*q+a)}, v{sreg(4*q+a)}")
        for a in range(4): A(f"v_add_f32 v{vLs}, v{vLs}, v{sreg(4*q+a)}")
        for a in range(4): A(f"v_cvt_pk_bf16_f32 v{sreg(4*q+a)}, v{sreg(4*q+a)}, v{sreg(4*q+a)}")
        more(SCH_SM[q])
    xrow(vLs, T, "v_add_f32")
    assert vLs == vM + 1 and vM % 2 == 0
    vH6 = T + 6
    A(f"v_bfe_u32 v{vH6}, v{vL}, 3, 1"); A(f"v_lshlrev_b32 v{vH6}, 6, v{vH6}")
    A(f"s_lshl_b32 s{sT2}, s{sW}, 3"); A(f"v_add_u32 v{T}, s{sT2}, v{vH6}")
    A(f"v_mov_b32 v{T+2}, 1"); A(f"v_mov_b32 v{T+3}, {L_CNTQK}")
    A("s_mov_b64 exec, 0x101")
    A(f"ds_write_b64 v{T}, v[{vM}:{vM+1}] offset:{L_MLW}")
    A("s_mov_b64 exec, 1")
    A(f"ds_add_rtn_u32 v{T+4}, v{T+3}, v{T+2}")
    A("s_mov_b64 exec, -1")
    A("s_waitcnt lgkmcnt(0)")
    A(f"v_readfirstlane_b32 s{sT2}, v{T+4}")
    A(f"s_cmp_lg_u32 s{sT2}, 7"); A("s_cbranch_scc1 L_NOF")
    MQ = [104, 108, 112, 120]; FF = 124
    for k in range(4): A(f"ds_read_b128 {rng(MQ[k])}, v{vH6} offset:{L_MLW+16*k}")
    mm = [MQ[k // 2] + 2 * (k % 2) for k in range(8)]
    ml_addr(T+2)
    A("s_waitcnt lgkmcnt(0)")
    A(f"v_max3_f32 v{T}, v{mm[0]}, v{mm[1]}, v{mm[2]}"); A(f"v_max3_f32 v{T}, v{T}, v{mm[3]}, v{mm[4]}"); A(f"v_max3_f32 v{T}, v{T}, v{mm[5]}, v{mm[6]}"); A(f"v_max_f32 v{T}, v{T}, v{mm[7]}")
    for k in range(8): A(f"v_sub_f32 v{FF+k}, v{mm[k]}, v{T}")
    for k in range(8): A(f"v_exp_f32 v{FF+k}, v{FF+k}")
    A(f"v_mul_f32 v{T+1}, v{FF}, v{mm[0]+1}")
    for k in range(1, 8): A(f"v_fmac_f32 v{T+1}, v{FF+k}, v{mm[k]+1}")
    A(f"v_lshrrev_b32 v{T+3}, 1, v{vH6}")
    A(f"v_min_u32 v{T}, -2, v{T}"); A(f"v_min_u32 v{T+1}, -2, v{T+1}")
    A("s_mov_b64 exec, 0x101")
    A(f"ds_write_b128 v{T+3}, {rng(FF)} offset:{L_FW}"); A(f"ds_write_b128 v{T+3}, {rng(FF+4)} offset:{L_FW+16}")
    A(f"global_store_dwordx2 v{T+2}, v[{T}:{T+1}], s[{sWS}:{sWS+1}] sc1")
    A("s_mov_b64 exec, -1")
    A.label("L_NOF")
    op_addr(vXo, T)
    A(f"s_lshl_b32 s{sT2}, s{sW}, 10"); A(f"v_add_u32 v{vG}, s{sT2}, v{vOFF}")
    A(f"v_mov_b32 v{T+2}, 1"); A(f"v_mov_b32 v{T+3}, {L_CNTO}"); A(f"v_lshrrev_b32 v{T+4}, 1, v{vH6}")
    cur[0] = None
    for i in range(33):
        if i < 32:
            Bx = B0 if i % 2 == 0 else B1
            for k in range(4): A(f"v_and_b32 v{Bx+k}, v{sreg(i)}, v{MK+k}")
        if i > 0:
            Bp = B0 if (i-1) % 2 == 0 else B1
            assert issued > 32 + i - 1
            A(f"s_waitcnt vmcnt({issued - (32 + i)})")
            A(f"v_mfma_f32_16x16x32_bf16 {rng(D)}, {vreg(i-1)}, {rng(Bp)}, {'0' if i == 1 else rng(D)}")
            more(SCH_PV.get(i-1, 0))
    assert issued == 64, issued
    stamp(10)
    A(f"ds_write_b128 v{vG}, {rng(D)} offset:{L_OW}")
    A("s_mov_b64 exec, 1")
    A(f"ds_add_rtn_u32 v{T+5}, v{T+3}, v{T+2}")
    A("s_mov_b64 exec, -1")
    A("s_waitcnt lgkmcnt(0)")
    A(f"v_readfirstlane_b32 s{sT2}, v{T+5}")
    A(f"s_cmp_lg_u32 s{sT2}, 7"); A("s_cbranch_scc1 L_NOPUB")
    OO = 40; FR = 72
    A(f"ds_read_b128 {rng(FR)}, v{T+4} offset:{L_FW}"); A(f"ds_read_b128 {rng(FR+4)}, v{T+4} offset:{L_FW+16}")
    for k in range(8): A(f"ds_read_b128 {rng(OO+4*k)}, v{vOFF} offset:{L_OW+1024*k}")
    for k in range(8):
        A(f"s_waitcnt lgkmcnt({7-k})")
        for c in range(4):
            if k == 0: A(f"v_mul_f32 v{D+c}, v{FR}, v{OO+c}")
            else: A(f"v_fmac_f32 v{D+c}, v{FR+k}, v{OO+4*k+c}")
    A(f"v_cvt_pk_bf16_f32 v{D}, v{D}, v{D+1}"); A(f"v_cvt_pk_bf16_f32 v{D+1}, v{D+2}, v{D+3}")
    A(f"v_min_u32 v{D}, -2, v{D}"); A(f"v_min_u32 v{D+1}, -2, v{D+1}")
    A(f"global_store_dwordx2 v{vXo}, v[{D}:{D+1}], s[{sWS}:{sWS+1}] sc1")
    stamp(6)
    A.label("L_NOPUB")
    A(f"s_cmp_eq_u32 s{sW}, 2"); A("s_cbranch_scc1 L_HOP2")
    A(f"s_cmp_lg_u32 s{sW}, 1"); A("s_cbranch_scc1 L_EXIT")
    def checkB(tag, va, vd):
        A(f"s_mov_b32 s{sCNT}, {LIMIT}")
        A(f"v_and_b32 v{va}, 15, v{vL}"); A(f"v_lshlrev_b32 v{va}, 4, v{va}")
        A.label(f"L_CB{tag}")
        A(f"global_load_dword v{vd}, v{va}, s[{sDBG}:{sDBG+1}] offset:4 sc1"); A("s_waitcnt vmcnt(0)")
        A(f"v_cmp_ne_u32 vcc, 16, v{vd}"); A(f"s_cbranch_vccz L_CB{tag}_OK")
        A("s_sleep 8"); A(f"s_sub_u32 s{sCNT}, s{sCNT}, 1"); A(f"s_cmp_lg_u32 s{sCNT}, 0"); A(f"s_cbranch_scc1 L_CB{tag}")
        A.label(f"L_CB{tag}_OK")
    def ldswait(tag, addr, val, sleep=2):
        A(f"v_mov_b32 v{T+3}, {addr}"); A(f"s_mov_b32 s{sCNT}, {LIMIT*4}")
        A.label(f"L_{tag}")
        A(f"ds_read_b32 v{T}, v{T+3}"); A("s_waitcnt lgkmcnt(0)"); A(f"v_readfirstlane_b32 s{sT2}, v{T}")
        A(f"s_cmp_eq_u32 s{sT2}, {val}"); A(f"s_cbranch_scc1 L_{tag}_OK")
        A(f"s_sleep {sleep}"); A(f"s_sub_u32 s{sCNT}, s{sCNT}, 1"); A(f"s_cmp_lg_u32 s{sCNT}, 0"); A(f"s_cbranch_scc1 L_{tag}")
        A.label(f"L_{tag}_OK")
    def maxchain(dst, regs):
        A(f"v_max3_u32 v{dst}, v{regs[0]}, v{regs[1]}, v{regs[2]}")
        k = 3
        while k < len(regs):
            if k + 1 < len(regs): A(f"v_max3_u32 v{dst}, v{dst}, v{regs[k]}, v{regs[k+1]}"); k += 2
            else: A(f"v_max_u32 v{dst}, v{dst}, v{regs[k]}"); k += 1
    def pollmask(tag, loads, regs):
        A(f"s_mov_b32 s{sCNT}, {LIMIT}")
        A.label(f"L_{tag}")
        loads()
        A("s_waitcnt vmcnt(0)")
        if len(regs) > 8:
            h = len(regs) // 2
            maxchain(T, regs[:h]); maxchain(T+1, regs[h:]); A(f"v_max_u32 v{T}, v{T}, v{T+1}")
        else: maxchain(T, regs)
        A(f"v_cmp_eq_u32 vcc, -1, v{T}"); A(f"s_cbranch_vccz L_{tag}_OK")
        A("s_mov_b64 exec, vcc")
        if H1SLEEP: A(f"s_sleep {H1SLEEP}")
        A(f"s_sub_u32 s{sCNT}, s{sCNT}, 1"); A(f"s_cmp_lg_u32 s{sCNT}, 0"); A(f"s_cbranch_scc1 L_{tag}")
        A.label(f"L_{tag}_OK")
        A("s_mov_b64 exec, -1")

    WB = 40; RAW = 120; AA = 136; ML = 152; vA = 160; vMLa = 161; vSP = 162; WN = 24
    ldswait("WW", L_CNTW, 3)
    A(f"v_lshrrev_b32 v{T}, 4, v{vL}"); A(f"v_mul_u32_u24 v{T}, 288, v{T}"); A(f"v_and_b32 v{T+1}, 15, v{vL}"); A(f"v_lshl_add_u32 v{T}, v{T+1}, 1, v{T}")
    for n in range(5):
        for half in range(2):
            for t in range(2*half, 2*half+2):
                for e in range(8):
                    A(f"ds_read_u16 v{RAW+8*(t&1)+e}, v{T} offset:{L_WO + 32*n + (32*t + 8*(e&3) + (e>>2))*144}")
            A("s_waitcnt lgkmcnt(0)")
            for t in range(2*half, 2*half+2):
                for k in range(4): A(f"v_lshl_or_b32 v{WB+16*n+4*t+k}, v{RAW+8*(t&1)+2*k+1}, 16, v{RAW+8*(t&1)+2*k}")
    A(f"v_lshlrev_b32 v{vA}, 8, v{T+1}"); A(f"v_lshrrev_b32 v{T}, 4, v{vL}"); A(f"v_lshl_add_u32 v{vA}, v{T}, 4, v{vA}")
    A(f"s_lshl_b32 s{sT}, s{sP}, 12"); A(f"s_add_u32 s{sT}, s{sT}, {W_OP}"); A(f"v_add_u32 v{vA}, s{sT}, v{vA}")
    A(f"s_lshl_b32 s{sT}, s{sP}, 7"); A(f"s_add_u32 s{sT}, s{sT}, {W_ML}"); A(f"v_lshlrev_b32 v{vMLa}, 5, v{T}"); A(f"v_add_u32 v{vMLa}, s{sT}, v{vMLa}")
    A(f"v_lshrrev_b32 v{vSP}, 5, v{vL}"); A(f"v_mul_u32_u24 v{vSP}, 73728, v{vSP}")
    A(f"v_bfe_u32 v{T}, v{vL}, 3, 2"); A(f"v_lshl_add_u32 v{vSP}, v{T}, 10, v{vSP}"); A(f"v_and_b32 v{T}, 7, v{vL}"); A(f"v_lshl_add_u32 v{vSP}, v{T}, 2, v{vSP}")
    A(f"s_mul_i32 s{sT}, s{sCG}, 9216"); A(f"s_lshl_b32 s{sT2}, s{sP}, 5"); A(f"s_add_u32 s{sT}, s{sT}, s{sT2}"); A(f"s_add_u32 s{sT}, s{sT}, {W_SP}"); A(f"v_add_u32 v{vSP}, s{sT}, v{vSP}")
    A(f"v_add_u32 v{vSP+1}, 4096, v{vSP}"); A(f"v_add_u32 v{vSP+2}, 8192, v{vSP}")
    checkB("T", T, T+1)
    stamp(2)
    ldswait("OW", L_CNTO, 8, 1)
    stamp(4)
    pollmask("HM", lambda: [A(f"global_load_dwordx4 {rng(ML+4*t)}, v{vMLa}, s[{sWS}:{sWS+1}] offset:{16*t} sc1") for t in range(2)], list(range(ML, ML+8)))
    def aloads():
        for t in range(4): A(f"global_load_dwordx4 {rng(AA+4*t)}, v{vA}, s[{sWS}:{sWS+1}] offset:{64*t} sc1")
    m = [ML, ML+2, ML+4, ML+6]; l = [ML+1, ML+3, ML+5, ML+7]
    A(f"v_max3_f32 v{T}, v{m[0]}, v{m[1]}, v{m[2]}"); A(f"v_max_f32 v{T}, v{T}, v{m[3]}")
    A(f"v_mov_b32 v{T+1}, v{T}"); A(f"v_permlane16_swap_b32 v{T+1}, v{T}"); A(f"v_max_f32 v{T}, v{T+1}, v{T}")
    for i in range(4): A(f"v_sub_f32 v{m[i]}, v{m[i]}, v{T}")
    for i in range(4): A(f"v_exp_f32 v{m[i]}, v{m[i]}")
    A(f"v_mul_f32 v{T+2}, v{m[0]}, v{l[0]}")
    for i in range(1, 4): A(f"v_fmac_f32 v{T+2}, v{m[i]}, v{l[i]}")
    A(f"v_mov_b32 v{T+1}, v{T+2}"); A(f"v_permlane16_swap_b32 v{T+1}, v{T+2}"); A(f"v_add_f32 v{T+2}, v{T+1}, v{T+2}")
    A(f"v_rcp_f32 v{T+2}, v{T+2}")
    for i in range(4): A(f"v_mul_f32 v{WN+i}, v{m[i]}, v{T+2}")
    stamp(3)
    pollmask("H1", aloads, list(range(AA, AA+16)))
    stamp(7)
    for t in range(4):
        for n in range(5):
            A(f"v_mfma_f32_16x16x32_bf16 {rng(4+4*n)}, {rng(AA+4*t)}, {rng(WB+16*n+4*t)}, {'0' if t == 0 else rng(4+4*n)}")
    for n in range(5):
        A(f"v_mul_f32 v{T+n}, v{WN}, v{4+4*n}")
        for i in range(1, 4): A(f"v_fmac_f32 v{T+n}, v{WN+i}, v{4+4*n+i}")
        if n in (1, 3):
            A(f"v_permlane16_swap_b32 v{T+n-1}, v{T+n}"); A(f"v_add_f32 v{T+n}, v{T+n-1}, v{T+n}"); A(f"v_min_u32 v{T+n}, -2, v{T+n}")
            A(f"global_store_dword v{vSP+n//2}, v{T+n}, s[{sWS}:{sWS+1}] sc1")
    A(f"v_mov_b32 v{T+5}, v{T+4}"); A(f"v_permlane16_swap_b32 v{T+5}, v{T+4}"); A(f"v_add_f32 v{T+4}, v{T+5}, v{T+4}"); A(f"v_min_u32 v{T+4}, -2, v{T+4}")
    A("s_mov_b32 exec_lo, 0xff"); A("s_mov_b32 exec_hi, 0xff")
    A(f"global_store_dword v{vSP+2}, v{T+4}, s[{sWS}:{sWS+1}] sc1")
    A("s_mov_b64 exec, -1")
    stamp(5)
    A("s_branch L_EXIT")

    A.label("L_HOP2")
    A(f"s_cmp_ge_u32 s2, 144"); A("s_cbranch_scc1 L_EXIT")
    YY = 40; SS = 48; vH2 = 56; vOA = 57
    def red32(v, t):
        A(f"v_add_f32 v{v}, v{v}, v{v+1}"); A(f"v_add_f32 v{v+2}, v{v+2}, v{v+3}"); A(f"v_add_f32 v{v}, v{v}, v{v+2}")
        A(f"v_add_f32_dpp v{v}, v{v}, v{v} row_ror:8{dm}")
        xrow(v, t, "v_add_f32")
    checkB("G", T, T+1)
    A(f"v_lshrrev_b32 v{vH2}, 3, v{vL}"); A(f"v_lshlrev_b32 v{vH2}, 7, v{vH2}"); A(f"v_and_b32 v{vOA}, 7, v{vL}"); A(f"v_lshl_add_u32 v{vH2}, v{vOA}, 2, v{vH2}")
    A(f"s_lshl_b32 s{sT}, s2, 10"); A(f"s_add_u32 s{sT}, s{sT}, {W_SP}"); A(f"v_add_u32 v{vH2}, s{sT}, v{vH2}")
    A(f"v_add_u32 v{T}, {W_YP - W_SP}, v{vH2}")
    for k in range(4): A(f"global_load_dword v{YY+k}, v{T}, s[{sWS}:{sWS+1}] offset:{32*k} sc1")
    A(f"v_lshlrev_b32 v{vOA}, 1, v{vOA}"); A(f"s_lshl_b32 s{sT}, s2, 4"); A(f"v_add_u32 v{vOA}, s{sT}, v{vOA}")
    A(f"global_load_ushort v{vXo}, v{vOA}, s[{sX}:{sX+1}]")
    A(f"v_mov_b32 v{T+1}, 0")
    A(f"global_load_ushort v{YY+4}, v{T+1}, s[{sB2}:{sB2+1}]")
    A("s_waitcnt vmcnt(0)")
    red32(YY, YY+5)
    rnd1(YY); A(f"v_lshlrev_b32 v{YY+4}, 16, v{YY+4}"); A(f"v_add_f32 v{YY}, v{YY}, v{YY+4}"); rnd1(YY)
    A(f"v_mul_f32 v{YY+1}, {hx(f2u(-LOG2E))}, v{YY}"); A(f"v_exp_f32 v{YY+1}, v{YY+1}"); A(f"v_add_f32 v{YY+1}, 1.0, v{YY+1}"); A(f"v_rcp_f32 v{YY+1}, v{YY+1}")
    A(f"v_mul_f32 v{vG}, v{YY}, v{YY+1}"); rnd1(vG)
    A(f"v_lshlrev_b32 v{vXo}, 16, v{vXo}")
    stamp(2)
    ldswait("OW2", L_CNTO, 8, 1)
    if H2DELAY: A(f"s_sleep {H2DELAY}")
    pollmask("H2", lambda: [A(f"global_load_dword v{SS+k}, v{vH2}, s[{sWS}:{sWS+1}] offset:{32*k} sc1") for k in range(4)], list(range(SS, SS+4)))
    stamp(7)
    red32(SS, T)
    rnd1(SS); A(f"v_mul_f32 v{SS}, v{SS}, v{vG}"); rnd1(SS); A(f"v_add_f32 v{SS}, v{SS}, v{vXo}")
    A(f"v_cvt_pk_bf16_f32 v{SS}, v{SS}, v{SS}")
    A("s_mov_b64 exec, 0xff")
    A(f"global_store_short v{vOA}, v{SS}, s[{sOUT}:{sOUT+1}]")
    A("s_mov_b64 exec, -1")
    A.label("L_EXIT")
    if DBG:
        stamp(11)
        A("s_waitcnt lgkmcnt(0)")
        A(f"s_cmp_lg_u32 s2, {DBG-1}"); A("s_cbranch_scc1 L_END")
        A("s_mov_b64 exec, 1")
        for (w, k, slot) in ((2, 7, 2), (5, 10, 3), (0, 6, 6), (1, 5, 7), (5, 3, 10), (0, 1, 11), (1, 9, 14), (6, 9, 15)):
            A(f"s_cmp_lg_u32 s{sW}, {w}"); A(f"s_cbranch_scc1 L_DB{slot}")
            A(f"s_sub_u32 s{sT}, s{SB+2*k}, s{SB}"); A(f"v_mov_b32 v3, {4*slot}"); A(f"v_mov_b32 v4, s{sT}")
            A(f"global_store_dword v3, v4, s[{sDBG}:{sDBG+1}]")
            A.label(f"L_DB{slot}")
    elif STAMP:
        stamp(11)
        A("s_waitcnt lgkmcnt(0)")
        A(f"s_lshl_b32 s{sT}, s2, 3"); A(f"s_add_u32 s{sT}, s{sT}, s{sW}"); A(f"s_mul_i32 s{sT}, s{sT}, {NST*8}"); A(f"s_add_u32 s{sT}, s{sT}, {W_ST}")
        A(f"v_mov_b32 v3, s{sT}")
        if ISTAMP: A("s_mov_b64 s[60:61], s[96:97]")
        for k in range(2*NST): A(f"v_mov_b32 v{40+k}, s{SB+k}")
        A("s_mov_b64 exec, 1")
        for q in range(NST // 2): A(f"global_store_dwordx4 v3, {rng(40+4*q)}, s[{sWS}:{sWS+1}] offset:{16*q}")
    A.label("L_END")
    A("s_endpgm")
    A.raw('.section .rodata,"a"'); A.raw(".p2align 6"); A.raw(f".amdhsa_kernel {KN}_kernel")
    A.raw("  .amdhsa_next_free_vgpr 256"); A.raw("  .amdhsa_next_free_sgpr 102"); A.raw("  .amdhsa_accum_offset 168")
    A.raw("  .amdhsa_group_segment_fixed_size 0"); A.raw("  .amdhsa_kernarg_size 104"); A.raw("  .amdhsa_user_sgpr_count 2")
    A.raw("  .amdhsa_user_sgpr_kernarg_segment_ptr 1"); A.raw("  .amdhsa_system_sgpr_workgroup_id_x 1")
    A.raw("  .amdhsa_float_denorm_mode_32 3")
    A.raw(".end_amdhsa_kernel")
    return A.text()

if __name__ == "__main__":
    out = sys.argv[1]
    kw = eval("dict(" + (sys.argv[2] if len(sys.argv) > 2 else "") + ")")
    open(out, "w").write(gen(**kw))
```

```python
import sys, struct, math
sys.path.insert(0, __file__.rsplit("/", 1)[0] if "/" in __file__ else ".")
from asmlib import Asm
KN = "recurrent_scan__gqa_block_cached__mixer_token_mlp__decode"
def f2u(x): return struct.unpack("<I", struct.pack("<f", x))[0]
def hx(x): return f"0x{x & 0xffffffff:08x}"
LOG2E = 1.4426950408889634
SCALE = 128 ** -0.5
L_MISC = 0
L_QFLAG = L_MISC; L_CNTB = L_MISC + 4; L_CNTQK = L_MISC + 8; L_CNTO = L_MISC + 12; L_CNTW = L_MISC + 16
L_MLW = 64; L_FW = 192; L_Q = 256; L_OW = 768; L_XL = L_OW + 8192; L_WO = L_XL + 4 * 2304; L_END = L_WO + 128 * 144 + 64
W_QP = 0; W_OP = 0x40000; W_ML = 0x60000; W_SP = 0x70000; W_YP = 0xA0000; W_FL = 0xD0000; W_ST = 128 << 20
LIMIT = 1 << 18

def gen(MAP="kvh", NT=True, ROUND=True, NPRE=36, ROT=1, STAMP=False, ATOM="scalar", SCH_QK=(2,)*8, SCH_SM=(1,)*8, SCH_PV={3:1,7:1,11:1,15:1}, H1SLEEP=0, NSIG=8, H2DELAY=16, EARLYBAR=True, LAYOUT='JJWW', WONT=True, WQNT=True, SKIP='', ISTAMP=False, DBG=False, ECHO=None):
    A = Asm()
    nt = " nt" if NT else ""
    NST = 18 if ISTAMP else 12
    SB = 60 if ISTAMP else 76
    if ECHO: DBG = 1
    if ISTAMP or DBG: STAMP = True
    A.raw(f"; @launch grid=(256,1,1) block=(512,1,1) lds={(L_END + 255) // 256 * 256}")
    if STAMP and not DBG: A.raw(f"; STAMPS nrec=2048 n={NST}")
    A.raw('.amdgcn_target "amdgcn-amd-amdhsa--gfx950"')
    A.raw(".text"); A.raw(f".globl {KN}_kernel"); A.raw(".p2align 8"); A.raw(f".type {KN}_kernel,@function"); A.raw(f"{KN}_kernel:")
    def stamp(k, force=False):
        if ISTAMP and not force:
            if k == 10: k = 17
            elif k != 0: return
        if ISTAMP and k == 0 and not force:
            A("s_memrealtime s[96:97]"); return
        if STAMP: A(f"s_memrealtime s[{SB+2*k}:{SB+1+2*k}]")
    sX, sK, sV, sWQ, sWO, sW1, sB1, sW2, sB2, sOUT, sDBG, sWS = 4, 6, 8, 10, 12, 16, 18, 20, 22, 24, 26, 28
    KS, VS = 32, 36
    sW, sG, sB, sSP, sJ, sHH, sCG, sP, sBASE, sT, sT2, sT3, sCNT, sPASS, sC1, sHAVE = 40, 41, 42, 43, 44, 45, 46, 47, 48, 49, 50, 51, 52, 53, 54, 55
    sFL = 58
    sA = 56
    sR = 60
    vL, vOFF = 1, 2
    D = 4; QA = 8; QB = 12; MK = 16; B0 = 20; B1 = 24; T = 28; vM = 36; vLs = 37; vG = 38; vXo = 39
    KB = 40
    def ks(i): return KB + 4 * i
    def rng(r, n=4): return f"v[{r}:{r+n-1}]"
    if STAMP and not ISTAMP:
        for k in range(1, NST): A(f"s_mov_b64 s[{76+2*k}:{77+2*k}], 0")
    stamp(0)
    A("s_cmp_ge_u32 s2, 256"); A("s_cbranch_scc1 L_END")
    A("s_load_dwordx16 s[4:19], s[0:1], 0")
    A("s_load_dwordx8 s[20:27], s[0:1], 64")
    A("s_load_dwordx2 s[28:29], s[0:1], 96")
    A("v_lshrrev_b32 v3, 6, v0"); A(f"v_and_b32 v{vL}, 63, v0")
    A(f"v_readfirstlane_b32 s{sW}, v3")
    if MAP == "kvh":
        A(f"s_and_b32 s{sG}, s2, 7"); A(f"s_lshr_b32 s{sT}, s2, 7"); A(f"s_lshl_b32 s{sT}, s{sT}, 3"); A(f"s_or_b32 s{sG}, s{sG}, s{sT}")
        A(f"s_bfe_u32 s{sJ}, s2, 0x40003")
    else:
        A(f"s_lshr_b32 s{sG}, s2, 4"); A(f"s_and_b32 s{sJ}, s2, 15")
    A(f"s_and_b32 s{sSP}, s{sJ}, 7"); A(f"s_lshr_b32 s{sB}, s{sJ}, 3")
    A(f"s_and_b32 s{sHH}, s{sJ}, 1"); A(f"s_lshr_b32 s{sCG}, s{sJ}, 1")
    A(f"s_lshl_b32 s{sP}, s{sG}, 1"); A(f"s_or_b32 s{sP}, s{sP}, s{sHH}")
    A(f"s_and_b32 s{sT}, s{sW}, 3"); A(f"s_lshl_b32 s{sBASE}, s{sT}, {12 if LAYOUT == 'JJWW' else 10}")
    A(f"s_add_u32 s{sT}, s{sW}, 7"); A(f"s_and_b32 s{sT}, s{sT}, 4"); A(f"s_lshl_b32 s{sT}, s{sT}, 15"); A(f"s_or_b32 s{sBASE}, s{sBASE}, s{sT}")
    A(f"s_lshl_b32 s{sT}, s{sSP}, 18"); A(f"s_or_b32 s{sBASE}, s{sBASE}, s{sT}")
    if ROT:
        if LAYOUT == 'JJWW':
            A(f"s_mul_i32 s{sT}, s2, 0x9E3779B1"); A(f"s_lshr_b32 s{sT}, s{sT}, 29"); A(f"s_lshl_b32 s{sT}, s{sT}, 14"); A(f"s_or_b32 s{sBASE}, s{sBASE}, s{sT}")
        else:
            A(f"s_mul_i32 s{sT}, s2, 0x9E3779B1"); A(f"s_lshr_b32 s{sT}, s{sT}, 27"); A(f"s_lshl_b32 s{sT}, s{sT}, 12"); A(f"s_or_b32 s{sBASE}, s{sBASE}, s{sT}")
    A(f"v_lshlrev_b32 v{vOFF}, 4, v{vL}")
    A(f"v_and_b32 v3, 1, v{vL}"); A("v_lshlrev_b32 v3, 4, v3"); A(f"v_mov_b32 v{T}, 0xffff"); A(f"v_lshlrev_b32 v3, v3, v{T}")
    A(f"v_bfe_u32 v{T}, v{vL}, 1, 2")
    for k in range(4):
        A(f"v_cmp_eq_u32 vcc, {k}, v{T}"); A(f"v_cndmask_b32 v{MK+k}, 0, v3, vcc")
    A(f"s_mov_b32 s{sC1}, {hx(f2u(LOG2E if ROUND else LOG2E * SCALE))}")
    A(f"s_lshl_b32 s{sT}, s{sB}, 4"); A(f"s_or_b32 s{sT}, s{sT}, s{sG}"); A(f"s_lshl_b32 s{sT}, s{sT}, 21")
    A("s_waitcnt lgkmcnt(0)")
    stamp(1)
    A(f"s_add_u32 s{KS}, s{sK}, s{sT}"); A(f"s_addc_u32 s{KS+1}, s{sK+1}, 0"); A(f"s_mov_b32 s{KS+2}, 0x200000"); A(f"s_mov_b32 s{KS+3}, 0x20000")
    A(f"s_add_u32 s{VS}, s{sV}, s{sT}"); A(f"s_addc_u32 s{VS+1}, s{sV+1}, 0"); A(f"s_mov_b32 s{VS+2}, 0x200000"); A(f"s_mov_b32 s{VS+3}, 0x20000")
    A(f"s_cmp_eq_u32 s{sW}, 0"); A("s_cbranch_scc1 L_W0_PRE")
    A(f"s_cmp_ge_u32 s{sW}, 5"); A("s_cbranch_scc1 L_Y_PRE")
    A(f"s_cmp_lg_u32 s{sW}, 1"); A("s_cbranch_scc1 L_NOINIT")
    A(f"v_lshlrev_b32 v3, 2, v{vL}"); A(f"v_mov_b32 v{T}, 0")
    A("s_mov_b64 exec, 0xffff")
    A(f"ds_write_b32 v3, v{T} offset:{L_MISC}")
    A("s_mov_b64 exec, -1")
    A("s_waitcnt lgkmcnt(0)")
    A.label("L_NOINIT")
    A(f"s_cmp_eq_u32 s{sW}, 4"); A("s_cbranch_scc1 L_NOWO")
    A(f"s_mov_b32 s{sR}, s{sWO}"); A(f"s_mov_b32 s{sR+1}, s{sWO+1}"); A(f"s_mov_b32 s{sR+2}, {4096*1152}"); A(f"s_mov_b32 s{sR+3}, 0x20000")
    A(f"s_sub_u32 s{sT}, s{sW}, 1"); A(f"s_mul_i32 s{sT}, s{sT}, 384"); A(f"v_add_u32 v{vG}, s{sT}, v{vL}")
    A(f"s_mul_i32 s{sT}, s{sP}, {128*1152}"); A(f"s_mul_i32 s{sT2}, s{sCG}, 144"); A(f"s_add_u32 s{sT}, s{sT}, s{sT2}")
    A(f"s_mov_b32 s{sT2}, 7282")
    for k in range(6):
        A(f"v_add_u32 v{T}, {64*k}, v{vG}"); A(f"v_mul_u32_u24 v{T+1}, s{sT2}, v{T}"); A(f"v_lshrrev_b32 v{T+1}, 16, v{T+1}")
        A(f"v_mul_u32_u24 v{T+1}, {1152-144}, v{T+1}"); A(f"v_lshl_add_u32 v{T+2+k}, v{T}, 4, v{T+1}")
    A(f"v_lshlrev_b32 v{vG}, 4, v{vG}")
    A("s_barrier")
    for k in range(6):
        if 'o' in SKIP: A(f"buffer_load_dwordx4 a[{64+4*k}:{67+4*k}], v{vOFF}, s[{sR}:{sR+3}], 0 offen")
        else: A(f"buffer_load_dwordx4 a[{64+4*k}:{67+4*k}], v{T+2+k}, s[{sR}:{sR+3}], s{sT} offen{nt if WONT else ''}")
    A("s_branch L_STREAM")
    A.label("L_NOWO")
    A("s_barrier")
    A("s_branch L_STREAM")

    X = 40
    E = 50
    vXO = 3
    def xloads():
        A(f"v_lshrrev_b32 v{T}, 5, v{vL}"); A(f"v_mul_u32_u24 v{T}, 1152, v{T}")
        A(f"v_and_b32 v{vXO}, 31, v{vL}"); A(f"v_lshl_add_u32 v{vXO}, v{vXO}, 2, v{T}")
        for k in range(9): A(f"global_load_dword v{X+k}, v{vXO}, s[{sX}:{sX+1}] offset:{128*k}")
    WQ = 96
    A.label("L_W0_PRE")
    xloads()
    A(f"s_lshl_b32 s{sT}, s{sG}, 4"); A(f"s_add_u32 s{sT}, s{sT}, s{sJ}"); A(f"s_lshl_b32 s{sT}, s{sT}, 7"); A(f"s_add_u32 s{sFL}, s{sT}, {W_FL}")
    A(f"v_mov_b32 v{T+2}, s{sFL}"); A(f"v_mov_b32 v{T+3}, 0")
    A("s_mov_b64 exec, 1")
    A(f"global_store_dword v{T+2}, v{T+3}, s[{sWS}:{sWS+1}] sc1")
    A("s_mov_b64 exec, -1")
    A(f"s_mov_b32 s{sR}, s{sWQ}"); A(f"s_mov_b32 s{sR+1}, s{sWQ+1}"); A(f"s_mov_b32 s{sR+2}, {576*8192}"); A(f"s_mov_b32 s{sR+3}, 0x20000")
    A(f"v_lshrrev_b32 v{T}, 4, v{vL}"); A(f"v_lshlrev_b32 v{T}, 13, v{T}"); A(f"v_and_b32 v{T+1}, 15, v{vL}"); A(f"v_lshl_add_u32 v{T}, v{T+1}, 4, v{T}")
    A(f"s_mul_i32 s{sT}, s{sCG}, {72*8192}"); A(f"s_lshl_b32 s{sT2}, s{sP}, 8"); A(f"s_add_u32 s{sT}, s{sT}, s{sT2}")
    for i in range(18):
        if 'q' in SKIP: A(f"buffer_load_dwordx4 {rng(WQ+4*i)}, v{vOFF}, s[{sR}:{sR+3}], 0 offen")
        else: A(f"buffer_load_dwordx4 {rng(WQ+4*i)}, v{T}, s[{sR}:{sR+3}], s{sT} offen{nt if WQNT else ''}")
        if i < 17: A(f"s_add_u32 s{sT}, s{sT}, 32768")
    A("s_barrier")
    A(f"s_mov_b32 s{sPASS}, 1"); A(f"s_mov_b32 s{sT3}, {L_XL}")
    A("s_waitcnt vmcnt(19)")
    A("s_branch L_LN0")

    WR = 70
    A.label("L_Y_PRE")
    A("s_setprio 2")
    if EARLYBAR: A("s_barrier")
    xloads()
    A(f"v_and_b32 v{T}, 7, v{vL}"); A(f"v_mul_u32_u24 v{T}, 36, v{T}"); A(f"s_mul_i32 s{sT}, s{sP}, 288"); A(f"v_add_u32 v{T}, s{sT}, v{T}")
    for a, sp_ in enumerate((sW1, sB1, sW2)):
        R = WR + 10 * a
        A(f"global_load_dwordx4 {rng(R)}, v{T}, s[{sp_}:{sp_+1}]")
        A(f"global_load_dwordx4 {rng(R+4)}, v{T}, s[{sp_}:{sp_+1}] offset:16")
        A(f"global_load_dword v{R+8}, v{T}, s[{sp_}:{sp_+1}] offset:32")
    A(f"s_cmp_lg_u32 s{sW}, 5"); A("s_cbranch_scc1 L_NORESET")
    for k in range(4): A(f"v_mov_b32 v{T+4+k}, -1")
    def op_addr(v, t):
        A(f"v_bfe_u32 v{v}, v{vL}, 3, 1"); A(f"v_lshlrev_b32 v{v}, 12, v{v}")
        A(f"v_lshrrev_b32 v{t}, 4, v{vL}"); A(f"v_lshl_add_u32 v{v}, v{t}, 6, v{v}")
        A(f"v_and_b32 v{t}, 7, v{vL}"); A(f"v_lshl_add_u32 v{v}, v{t}, 3, v{v}")
        A(f"s_lshl_b32 s{sT}, s{sG}, 13"); A(f"s_lshl_b32 s{sT2}, s{sJ}, 8"); A(f"s_add_u32 s{sT}, s{sT}, s{sT2}"); A(f"s_add_u32 s{sT}, s{sT}, {W_OP}")
        A(f"v_add_u32 v{v}, s{sT}, v{v}")
    def ml_addr(v):
        A(f"v_bfe_u32 v{v}, v{vL}, 3, 1"); A(f"v_lshlrev_b32 v{v}, 7, v{v}")
        A(f"s_lshl_b32 s{sT}, s{sG}, 8"); A(f"s_lshl_b32 s{sT2}, s{sJ}, 3"); A(f"s_add_u32 s{sT}, s{sT}, s{sT2}"); A(f"s_add_u32 s{sT}, s{sT}, {W_ML}")
        A(f"v_add_u32 v{v}, s{sT}, v{v}")
    op_addr(T, T+1)
    A(f"global_store_dwordx2 v{T}, v[{T+4}:{T+5}], s[{sWS}:{sWS+1}] sc1")
    ml_addr(T+2)
    A("s_mov_b64 exec, 0x101")
    A(f"global_store_dwordx2 v{T+2}, v[{T+4}:{T+5}], s[{sWS}:{sWS+1}] sc1")
    A("s_mov_b64 exec, -1")
    A(f"v_lshrrev_b32 v{T}, 1, v{vL}"); A(f"v_cmp_le_u32 vcc, 9, v{T}"); A(f"v_cndmask_b32 v{T+1}, 0, 63, vcc")
    A(f"v_add_u32 v{T}, v{T}, v{T+1}"); A(f"v_lshlrev_b32 v{T}, 10, v{T}")
    A(f"v_and_b32 v{T+1}, 1, v{vL}"); A(f"v_lshl_add_u32 v{T}, v{T+1}, 4, v{T}")
    A(f"s_mul_i32 s{sT}, s{sCG}, 9216"); A(f"s_lshl_b32 s{sT2}, s{sP}, 5"); A(f"s_add_u32 s{sT}, s{sT}, s{sT2}"); A(f"s_add_u32 s{sT}, s{sT}, {W_SP}")
    A(f"v_add_u32 v{T}, s{sT}, v{T}")
    A(f"s_mov_b32 exec_lo, -1"); A(f"s_mov_b32 exec_hi, 0xf")
    A(f"global_store_dwordx4 v{T}, {rng(T+4)}, s[{sWS}:{sWS+1}] sc1")
    A("s_mov_b64 exec, -1")
    A.label("L_NORESET")
    if not EARLYBAR: A("s_barrier")
    A(f"s_mov_b32 s{sPASS}, 2"); A(f"s_sub_u32 s{sT3}, s{sW}, 4"); A(f"s_mul_i32 s{sT3}, s{sT3}, 2304"); A(f"s_add_u32 s{sT3}, s{sT3}, {L_XL}")
    A("s_waitcnt vmcnt(0)")

    def allred32(v, t, op):
        for pat in ("quad_perm:[1,0,3,2]", "quad_perm:[2,3,0,1]", "row_half_mirror", "row_mirror"):
            A(f"{op}_dpp v{v}, v{v}, v{v} {pat} row_mask:0xf bank_mask:0xf")
        A(f"v_mov_b32 v{t}, v{v}"); A(f"v_permlane16_swap_b32 v{t}, v{v}"); A(f"{op} v{v}, v{t}, v{v}")
    def rnd1(v):
        A(f"v_cvt_pk_bf16_f32 v{v}, v{v}, v{v}"); A(f"v_lshlrev_b32 v{v}, 16, v{v}")
    A.label("L_LN0")
    stamp(2)
    A.label("L_LN")
    for k in range(9):
        A(f"v_lshlrev_b32 v{E+2*k}, 16, v{X+k}"); A(f"v_and_b32 v{E+2*k+1}, 0xffff0000, v{X+k}")
    A(f"v_add_f32 v{T}, v{E}, v{E+1}"); A(f"v_add_f32 v{T+1}, v{E+2}, v{E+3}")
    for k in range(4, 18, 2):
        A(f"v_add_f32 v{T}, v{T}, v{E+k}"); A(f"v_add_f32 v{T+1}, v{T+1}, v{E+k+1}")
    A(f"v_add_f32 v{T}, v{T}, v{T+1}")
    allred32(T, T+1, "v_add_f32")
    A(f"v_mul_f32 v{T}, {hx(f2u(1/576))}, v{T}")
    A(f"v_mov_b32 v{T+2}, 0"); A(f"v_mov_b32 v{T+3}, 0")
    for k in range(0, 18, 2):
        A(f"v_sub_f32 v{T+4}, v{E+k}, v{T}"); A(f"v_sub_f32 v{T+5}, v{E+k+1}, v{T}")
        A(f"v_fmac_f32 v{T+2}, v{T+4}, v{T+4}"); A(f"v_fmac_f32 v{T+3}, v{T+5}, v{T+5}")
    A(f"v_add_f32 v{T+2}, v{T+2}, v{T+3}")
    allred32(T+2, T+3, "v_add_f32")
    A(f"v_mul_f32 v{T+2}, {hx(f2u(1/576))}, v{T+2}")
    rnd1(T); rnd1(T+2)
    A(f"v_add_f32 v{T+2}, {hx(f2u(1e-5))}, v{T+2}"); rnd1(T+2)
    A(f"v_sqrt_f32 v{T+2}, v{T+2}"); rnd1(T+2)
    A(f"v_rcp_f32 v{T+2}, v{T+2}")
    for k in range(9):
        a, b = E+2*k, E+2*k+1
        A(f"v_sub_f32 v{a}, v{a}, v{T}"); A(f"v_sub_f32 v{b}, v{b}, v{T}")
        A(f"v_cvt_pk_bf16_f32 v{X+k}, v{a}, v{b}")
        A(f"v_lshlrev_b32 v{a}, 16, v{X+k}"); A(f"v_and_b32 v{b}, 0xffff0000, v{X+k}")
        A(f"v_mul_f32 v{a}, v{a}, v{T+2}"); A(f"v_mul_f32 v{b}, v{b}, v{T+2}")
        A(f"v_cvt_pk_bf16_f32 v{X+k}, v{a}, v{b}")
    A(f"s_sub_u32 s{sPASS}, s{sPASS}, 1"); A(f"s_cmp_lg_u32 s{sPASS}, 0"); A("s_cbranch_scc1 L_LN")
    A(f"v_add_u32 v{vXO}, s{sT3}, v{vXO}")
    for k in range(9): A(f"ds_write_b32 v{vXO}, v{X+k} offset:{128*k}")
    A(f"s_cmp_lg_u32 s{sW}, 0"); A("s_cbranch_scc1 L_BBR")

    XV = 50
    A(f"v_bfe_u32 v{T}, v{vL}, 3, 1"); A(f"v_mul_u32_u24 v{T}, 1152, v{T}")
    A(f"v_lshrrev_b32 v{T+1}, 4, v{vL}"); A(f"v_lshl_add_u32 v{T}, v{T+1}, 1, v{T}")
    A(f"s_mul_i32 s{sT}, s{sCG}, 144"); A(f"s_add_u32 s{sT}, s{sT}, {L_XL}"); A(f"v_add_u32 v{T}, s{sT}, v{T}")
    A("s_waitcnt lgkmcnt(0)")
    for i in range(18): A(f"ds_read_u16 v{XV+i}, v{T} offset:{8*i}")
    A("s_waitcnt lgkmcnt(0)")
    for i in range(18): A(f"v_lshl_or_b32 v{XV+i}, v{XV+i}, 16, v{XV+i}")
    for i in range(18):
        Bx = B0 if i % 2 == 0 else B1
        for k in range(4): A(f"v_and_b32 v{Bx+k}, v{XV+i}, v{MK+k}")
        if i > 0:
            Bp = B1 if i % 2 == 0 else B0
            A(f"s_waitcnt vmcnt({17-(i-1)})")
            A(f"v_mfma_f32_16x16x32_bf16 {rng(D)}, {rng(WQ+4*(i-1))}, {rng(Bp)}, {'0' if i == 1 else rng(D)}")
    A("s_waitcnt vmcnt(0)")
    A(f"v_mfma_f32_16x16x32_bf16 {rng(D)}, {rng(WQ+4*17)}, {rng(B1)}, {rng(D)}")
    A(f"v_bfe_u32 v{T}, v{vL}, 3, 1"); A(f"v_lshlrev_b32 v{T}, 13, v{T}")
    A(f"v_lshrrev_b32 v{T+1}, 4, v{vL}"); A(f"v_lshl_add_u32 v{T}, v{T+1}, 7, v{T}")
    A(f"v_and_b32 v{T+1}, 7, v{vL}"); A(f"v_lshl_add_u32 v{T}, v{T+1}, 4, v{T}")
    A(f"s_lshl_b32 s{sT}, s{sG}, 14"); A(f"s_lshl_b32 s{sT2}, s{sJ}, 9"); A(f"s_add_u32 s{sT}, s{sT}, s{sT2}")
    A(f"v_add_u32 v{T}, s{sT}, v{T}")
    A(f"global_store_dwordx4 v{T}, {rng(D)}, s[{sWS}:{sWS+1}] sc1")
    stamp(3)
    A(f"s_lshl_b32 s{sT}, s{sG}, 4")
    if ATOM == "scalar":
        A(f"s_mov_b32 s{sT2}, 1")
        A("s_waitcnt vmcnt(0)")
        stamp(4)
        A(f"s_atomic_add s{sT2}, s[{sDBG}:{sDBG+1}], s{sT} glc"); A("s_waitcnt lgkmcnt(0)")
    else:
        A(f"v_mov_b32 v{T+2}, 1"); A(f"v_mov_b32 v{T+3}, s{sT}")
        A("s_waitcnt vmcnt(0)")
        stamp(4)
        A("s_mov_b64 exec, 1")
        A(f"global_atomic_add v{T+4}, v{T+3}, v{T+2}, s[{sDBG}:{sDBG+1}] sc0")
        A("s_mov_b64 exec, -1")
        A("s_waitcnt vmcnt(0)"); A(f"v_readfirstlane_b32 s{sT2}, v{T+4}")
    A(f"s_cmp_lg_u32 s{sT2}, 15"); A("s_cbranch_scc1 L_NOTMASTER")
    if ATOM == "scalar":
        A(f"s_lshl_b32 s{sT}, s{sG}, 11"); A(f"s_add_u32 s{sT}, s{sT}, {W_FL}"); A(f"s_add_u32 s{sA}, s{sWS}, s{sT}"); A(f"s_addc_u32 s{sA+1}, s{sWS+1}, 0")
        A(f"s_mov_b32 s{sT2}, 1")
        for j in range(16): A(f"s_atomic_or s{sT2}, s[{sA}:{sA+1}], {128*j}")
    else:
        A(f"s_lshl_b32 s{sT}, s{sG}, 11"); A(f"s_add_u32 s{sT}, s{sT}, {W_FL}")
        A(f"v_lshlrev_b32 v{T+3}, 7, v{vL}"); A(f"v_add_u32 v{T+3}, s{sT}, v{T+3}")
        A("s_mov_b64 exec, 0xffff")
        A(f"global_store_dword v{T+3}, v{T+2}, s[{sWS}:{sWS+1}] sc1")
        A("s_mov_b64 exec, -1")
    A("s_branch L_POLLA_OK")
    A.label("L_NOTMASTER")
    A(f"s_mov_b32 s{sCNT}, {LIMIT}")
    A.label("L_POLLA")
    A(f"s_load_dword s{sT2}, s[{sWS}:{sWS+1}], s{sFL} glc"); A("s_waitcnt lgkmcnt(0)")
    A(f"s_cmp_eq_u32 s{sT2}, 1"); A("s_cbranch_scc1 L_POLLA_OK")
    A("s_sleep 2"); A(f"s_sub_u32 s{sCNT}, s{sCNT}, 1"); A(f"s_cmp_lg_u32 s{sCNT}, 0"); A("s_cbranch_scc1 L_POLLA")
    A.label("L_POLLA_OK")
    stamp(2)
    A(f"s_lshl_b32 s{sT}, s{sG}, 14"); A(f"s_lshl_b32 s{sT2}, s{sB}, 13"); A(f"s_add_u32 s{sT}, s{sT}, s{sT2}")
    A(f"v_add_u32 v{T}, s{sT}, v{vOFF}"); A(f"v_add_u32 v{T+1}, 4096, v{T}")
    for r in range(8):
        A(f"global_load_dwordx4 {rng(40+4*r)}, v{T + r//4}, s[{sWS}:{sWS+1}] offset:{1024*(r%4)} sc1")
    A(f"v_lshrrev_b32 v{T+2}, 3, v{vL}"); A(f"v_lshlrev_b32 v{T+2}, 6, v{T+2}"); A(f"v_and_b32 v{T+3}, 7, v{vL}"); A(f"v_lshl_add_u32 v{T+2}, v{T+3}, 1, v{T+2}")
    for r in range(1, 8):
        A(f"s_waitcnt vmcnt({7-r})")
        for k in range(4): A(f"v_add_f32 v{40+k}, v{40+k}, v{40+4*r+k}")
    A(f"v_cvt_pk_bf16_f32 v40, v40, v41"); A(f"v_cvt_pk_bf16_f32 v41, v42, v43")
    A(f"ds_write_b16 v{T+2}, v40 offset:{L_Q}"); A(f"ds_write_b16_d16_hi v{T+2}, v40 offset:{L_Q+16}")
    A(f"ds_write_b16 v{T+2}, v41 offset:{L_Q+32}"); A(f"ds_write_b16_d16_hi v{T+2}, v41 offset:{L_Q+48}")
    A(f"v_mov_b32 v{T+2}, 1"); A(f"v_mov_b32 v{T+3}, {L_QFLAG}")
    A("s_waitcnt lgkmcnt(0)")
    A(f"ds_write_b32 v{T+3}, v{T+2}")
    A("s_branch L_STREAM")

    A.label("L_BBR")
    W1 = 100; BB = 118; W2 = WR + 20; U = 136; PK = 40; ZZ = 50; RES = 154; vC1 = 156; vC0 = 158; vONE = 160; vH = 162; vHA = 164; ACC = 165; vFL = 166
    def pr(r): return f"v[{r}:{r+1}]"
    for k in range(9):
        A(f"v_lshlrev_b32 v{W1+2*k}, 16, v{WR+k}"); A(f"v_and_b32 v{W1+2*k+1}, 0xffff0000, v{WR+k}")
        A(f"v_lshlrev_b32 v{BB+2*k}, 16, v{WR+10+k}"); A(f"v_and_b32 v{BB+2*k+1}, 0xffff0000, v{WR+10+k}")
    c0 = -2 * math.sqrt(2 / math.pi) * LOG2E; c1 = c0 * 0.044715
    for k in range(2):
        A(f"v_mov_b32 v{vC1+k}, {hx(f2u(c1))}"); A(f"v_mov_b32 v{vC0+k}, {hx(f2u(c0))}"); A(f"v_mov_b32 v{vONE+k}, 1.0")
    A(f"v_and_b32 v{vFL}, 7, v{vL}")
    A(f"s_sub_u32 s{sT}, s{sW}, 5"); A(f"s_mul_i32 s{sT}, s{sT}, 6")
    A(f"s_mul_i32 s{sT2}, s{sCG}, 144"); A(f"s_add_u32 s{sT3}, s{sT3}, s{sT2}")
    A(f"v_lshrrev_b32 v{vHA}, 3, v{vL}"); A(f"v_lshlrev_b32 v{vHA}, 1, v{vHA}"); A(f"v_add_u32 v{vHA}, s{sT3}, v{vHA}")
    A(f"s_mov_b32 s{sPASS}, 0"); A(f"v_mov_b32 v{RES}, 0")
    A("s_setprio 0")
    A.label("L_BLOOP")
    A(f"s_add_u32 s{sT2}, s{sT}, s{sPASS}"); A(f"s_cmp_ge_u32 s{sT2}, 9"); A(f"s_cselect_b32 s{sT3}, 63, 0"); A(f"s_add_u32 s{sT2}, s{sT2}, s{sT3}"); A(f"s_lshl_b32 s{sT2}, s{sT2}, 4")
    A(f"v_add_u32 v{vH+1}, s{sT2}, v{vHA}")
    A(f"ds_read_u16 v{vH}, v{vH+1}")
    A("s_waitcnt lgkmcnt(0)")
    A(f"v_lshlrev_b32 v{vH}, 16, v{vH}"); A(f"v_mov_b32 v{vH+1}, v{vH}")
    def round9():
        for k in range(9): A(f"v_cvt_pk_bf16_f32 v{PK+k}, v{U+2*k}, v{U+2*k+1}")
        for k in range(9):
            A(f"v_lshlrev_b32 v{U+2*k}, 16, v{PK+k}"); A(f"v_and_b32 v{U+2*k+1}, 0xffff0000, v{PK+k}")
    for k in range(9): A(f"v_pk_mul_f32 {pr(U+2*k)}, {pr(vH)}, {pr(W1+2*k)}")
    round9()
    for k in range(9): A(f"v_pk_add_f32 {pr(U+2*k)}, {pr(U+2*k)}, {pr(BB+2*k)}")
    round9()
    for k in range(9): A(f"v_pk_mul_f32 {pr(ZZ+2*k)}, {pr(U+2*k)}, {pr(U+2*k)}")
    for k in range(9): A(f"v_pk_fma_f32 {pr(ZZ+2*k)}, {pr(ZZ+2*k)}, {pr(vC1)}, {pr(vC0)}")
    for k in range(9): A(f"v_pk_mul_f32 {pr(ZZ+2*k)}, {pr(ZZ+2*k)}, {pr(U+2*k)}")
    for k in range(18): A(f"v_exp_f32 v{ZZ+k}, v{ZZ+k}")
    for k in range(9): A(f"v_pk_add_f32 {pr(ZZ+2*k)}, {pr(ZZ+2*k)}, {pr(vONE)}")
    for k in range(18): A(f"v_rcp_f32 v{ZZ+k}, v{ZZ+k}")
    for k in range(9): A(f"v_pk_mul_f32 {pr(U+2*k)}, {pr(U+2*k)}, {pr(ZZ+2*k)}")
    for k in range(9): A(f"v_cvt_pk_bf16_f32 v{PK+k}, v{U+2*k}, v{U+2*k+1}")
    A(f"v_mov_b32 v{ACC}, 0")
    for k in range(9): A(f"v_dot2c_f32_bf16 v{ACC}, v{PK+k}, v{W2+k}")
    for pat in ("quad_perm:[1,0,3,2]", "quad_perm:[2,3,0,1]", "row_half_mirror"):
        A(f"v_add_f32_dpp v{ACC}, v{ACC}, v{ACC} {pat} row_mask:0xf bank_mask:0xf")
    A(f"v_cmp_eq_u32 vcc, s{sPASS}, v{vFL}"); A(f"v_cndmask_b32 v{RES}, v{RES}, v{ACC}, vcc")
    A(f"s_add_u32 s{sPASS}, s{sPASS}, 1"); A(f"s_cmp_lt_u32 s{sPASS}, {1 if 'b' in SKIP else 6}"); A("s_cbranch_scc1 L_BLOOP")
    A("s_setprio 2")
    A(f"v_add_u32 v{T}, s{sT}, v{vFL}"); A(f"v_cmp_le_u32 vcc, 9, v{T}"); A(f"v_cndmask_b32 v{T+1}, 0, 63, vcc"); A(f"v_add_u32 v{T}, v{T}, v{T+1}")
    A(f"v_lshlrev_b32 v{T}, 10, v{T}"); A(f"v_lshrrev_b32 v{T+1}, 3, v{vL}"); A(f"v_lshl_add_u32 v{T}, v{T+1}, 2, v{T}")
    A(f"s_mul_i32 s{sT2}, s{sCG}, 9216"); A(f"s_lshl_b32 s{sT3}, s{sP}, 5"); A(f"s_add_u32 s{sT2}, s{sT2}, s{sT3}"); A(f"s_add_u32 s{sT2}, s{sT2}, {W_YP}")
    A(f"v_add_u32 v{T}, s{sT2}, v{T}")
    A(f"s_mov_b32 exec_lo, 0x3f3f3f3f"); A(f"s_mov_b32 exec_hi, 0x3f3f3f3f")
    A(f"global_store_dword v{T}, v{RES}, s[{sWS}:{sWS+1}] sc1")
    stamp(3)
    A("s_mov_b64 exec, -1")

    A.label("L_STREAM")
    stamp(6)
    free = [0, 1, 2, 4, 5, 6, 8, 9, 10, 12]
    def vreg(i): return f"a[{4*i}:{4*i+3}]" if i < 22 else rng(ks(free[i-22]))
    cur = [None]
    def issue(n):
        i = n % 32
        if LAYOUT != 'JJWW':
            A(f"s_xor_b32 s{sT}, s{sBASE}, {i << 12}")
            if n < 32: A(f"buffer_load_dwordx4 {rng(ks(i))}, v{vOFF}, s[{KS}:{KS+3}], s{sT} offen{nt}")
            else: A(f"buffer_load_dwordx4 {vreg(i)}, v{vOFF}, s[{VS}:{VS+3}], s{sT} offen{nt}")
            if ISTAMP and n % 4 == 3: stamp(1 + n // 4, True)
            return
        if cur[0] != (n >> 2):
            A(f"s_xor_b32 s{sT}, s{sBASE}, {(i >> 2) << 14}"); cur[0] = n >> 2
        if n < 32: A(f"buffer_load_dwordx4 {rng(ks(i))}, v{vOFF}, s[{KS}:{KS+3}], s{sT} offen offset:{(i&3)<<10}{nt}")
        else: A(f"buffer_load_dwordx4 {vreg(i)}, v{vOFF}, s[{VS}:{VS+3}], s{sT} offen offset:{(i&3)<<10}{nt}")
    issued = 0
    while issued < NSIG: issue(issued); issued += 1
    A(f"s_cmp_lt_u32 s{sW}, 5"); A("s_cbranch_scc1 L_BDONE")
    A("s_mov_b64 exec, 1")
    A(f"v_mov_b32 v{T+2}, 1"); A(f"v_mov_b32 v{T+3}, {L_CNTB}")
    A(f"s_waitcnt vmcnt({NSIG})")
    A(f"ds_add_rtn_u32 v{T+4}, v{T+3}, v{T+2}")
    A(f"s_lshl_b32 s{sT2}, s{sG}, 4"); A(f"s_add_u32 s{sT2}, s{sT2}, 4"); A(f"s_mov_b32 s{sT3}, 1")
    A("s_waitcnt lgkmcnt(0)")
    A(f"v_readfirstlane_b32 s{sCNT}, v{T+4}")
    A("s_mov_b64 exec, -1")
    A("s_setprio 0")
    stamp(4)
    A(f"s_cmp_lg_u32 s{sCNT}, 2"); A("s_cbranch_scc1 L_BDONE")
    A(f"s_atomic_add s{sT3}, s[{sDBG}:{sDBG+1}], s{sT2}")
    A.label("L_BDONE")
    while issued < NPRE: issue(issued); issued += 1
    stamp(7)
    A(f"s_sub_u32 s{sT2}, s{sW}, 1"); A(f"s_cmp_gt_u32 s{sT2}, 2"); A("s_cbranch_scc1 L_NOWO2")
    A(f"s_waitcnt vmcnt({NPRE})")
    for k in range(6): A(f"ds_write_b128 v{vG}, a[{64+4*k}:{67+4*k}] offset:{L_WO+1024*k}")
    A(f"v_mov_b32 v{T+2}, 1"); A(f"v_mov_b32 v{T+3}, {L_CNTW}")
    A("s_mov_b64 exec, 1")
    A(f"ds_add_u32 v{T+3}, v{T+2}")
    A("s_mov_b64 exec, -1")
    A.label("L_NOWO2")
    A(f"v_mov_b32 v{T+3}, {L_QFLAG}"); A(f"s_mov_b32 s{sCNT}, {LIMIT*4}")
    A.label("L_QW")
    A(f"ds_read_b32 v{T}, v{T+3}"); A("s_waitcnt lgkmcnt(0)"); A(f"v_readfirstlane_b32 s{sT2}, v{T}")
    A(f"s_cmp_lg_u32 s{sT2}, 0"); A("s_cbranch_scc1 L_QW_OK")
    A("s_sleep 2"); A(f"s_sub_u32 s{sCNT}, s{sCNT}, 1"); A(f"s_cmp_lg_u32 s{sCNT}, 0"); A("s_cbranch_scc1 L_QW")
    A.label("L_QW_OK")
    A(f"v_bfe_u32 v{T}, v{vL}, 3, 1"); A(f"v_lshlrev_b32 v{T}, 8, v{T}"); A(f"v_and_b32 v{T+1}, 15, v{vL}"); A(f"v_lshl_add_u32 v{T}, v{T+1}, 4, v{T}")
    A(f"v_xor_b32 v{T+1}, 128, v{T}")
    A(f"ds_read_b128 {rng(QA)}, v{T} offset:{L_Q}"); A(f"ds_read_b128 {rng(QB)}, v{T+1} offset:{L_Q}")
    A("s_waitcnt lgkmcnt(0)")
    stamp(8)
    cur[0] = None
    dm = " row_mask:0xf bank_mask:0xf"
    def sreg(i): return ks(4 * (i >> 2) + 3) + (i & 3)
    def more(n, kdone=32):
        nonlocal issued
        for _ in range(n):
            if issued >= 64: return
            i = issued - 32
            assert not (i >= 22 and free[i-22] >= kdone), (i, kdone)
            issue(issued); issued += 1
    for gq in range(8):
        A(f"s_waitcnt vmcnt({issued - (4*gq+4)})")
        Kr = [ks(4*gq+a) for a in range(4)]
        for a in range(4): A(f"v_dot2_f32_bf16 v{T+a}, v{Kr[a]}, v{QA}, 0")
        for c in range(1, 4):
            for a in range(4): A(f"v_dot2c_f32_bf16 v{T+a}, v{Kr[a]+c}, v{QA+c}")
        for c in range(4):
            for a in range(4): A(f"v_dot2c_f32_bf16_dpp v{T+a}, v{Kr[a]+c}, v{QB+c} row_ror:8{dm}")
        more(SCH_QK[gq], 4*gq + 4)
        for a in range(4): A(f"v_add_f32_dpp v{T+a}, v{T+a}, v{T+a} quad_perm:[1,0,3,2]{dm}")
        for a in range(4): A(f"v_add_f32_dpp v{T+a}, v{T+a}, v{T+a} quad_perm:[2,3,0,1]{dm}")
        S = Kr[3]
        for a in range(4): A(f"v_add_f32_dpp v{S+a}, v{T+a}, v{T+a} row_half_mirror{dm}")
        if ROUND:
            A(f"v_cvt_pk_bf16_f32 v{T+4}, v{S}, v{S+1}"); A(f"v_cvt_pk_bf16_f32 v{T+5}, v{S+2}, v{S+3}")
            A(f"v_lshlrev_b32 v{S}, 16, v{T+4}"); A(f"v_and_b32 v{S+1}, 0xffff0000, v{T+4}")
            A(f"v_lshlrev_b32 v{S+2}, 16, v{T+5}"); A(f"v_and_b32 v{S+3}, 0xffff0000, v{T+5}")
            for a in range(4): A(f"v_mul_f32 v{S+a}, {hx(f2u(SCALE))}, v{S+a}")
            A(f"v_cvt_pk_bf16_f32 v{T+4}, v{S}, v{S+1}"); A(f"v_cvt_pk_bf16_f32 v{T+5}, v{S+2}, v{S+3}")
            A(f"v_lshlrev_b32 v{S}, 16, v{T+4}"); A(f"v_and_b32 v{S+1}, 0xffff0000, v{T+4}")
            A(f"v_lshlrev_b32 v{S+2}, 16, v{T+5}"); A(f"v_and_b32 v{S+3}, 0xffff0000, v{T+5}")
        if gq == 0:
            A(f"v_max3_f32 v{vM}, v{S}, v{S+1}, v{S+2}"); A(f"v_max_f32 v{vM}, v{vM}, v{S+3}")
        else:
            A(f"v_max3_f32 v{vM}, v{vM}, v{S}, v{S+1}"); A(f"v_max3_f32 v{vM}, v{vM}, v{S+2}, v{S+3}")
    def xrow(v, t, op):
        A(f"v_mov_b32 v{t}, v{v}"); A(f"v_permlane16_swap_b32 v{t}, v{v}"); A(f"{op} v{v}, v{t}, v{v}")
        A(f"v_mov_b32 v{t}, v{v}"); A(f"v_permlane32_swap_b32 v{t}, v{v}"); A(f"{op} v{v}, v{t}, v{v}")
    xrow(vM, T, "v_max_f32")
    A(f"v_mul_f32 v{vM}, s{sC1}, v{vM}")
    stamp(9)
    A(f"v_mov_b32 v{vLs}, 0")
    for q in range(8):
        for a in range(4): A(f"v_fma_f32 v{sreg(4*q+a)}, v{sreg(4*q+a)}, s{sC1}, -v{vM}")
        for a in range(4): A(f"v_exp_f32 v{sreg(4*q+a)}, v{sreg(4*q+a)}")
        for a in range(4): A(f"v_add_f32 v{vLs}, v{vLs}, v{sreg(4*q+a)}")
        for a in range(4): A(f"v_cvt_pk_bf16_f32 v{sreg(4*q+a)}, v{sreg(4*q+a)}, v{sreg(4*q+a)}")
        more(SCH_SM[q])
    xrow(vLs, T, "v_add_f32")
    assert vLs == vM + 1 and vM % 2 == 0
    vH6 = T + 6
    A(f"v_bfe_u32 v{vH6}, v{vL}, 3, 1"); A(f"v_lshlrev_b32 v{vH6}, 6, v{vH6}")
    A(f"s_lshl_b32 s{sT2}, s{sW}, 3"); A(f"v_add_u32 v{T}, s{sT2}, v{vH6}")
    A(f"v_mov_b32 v{T+2}, 1"); A(f"v_mov_b32 v{T+3}, {L_CNTQK}")
    A("s_mov_b64 exec, 0x101")
    A(f"ds_write_b64 v{T}, v[{vM}:{vM+1}] offset:{L_MLW}")
    A("s_mov_b64 exec, 1")
    A(f"ds_add_rtn_u32 v{T+4}, v{T+3}, v{T+2}")
    A("s_mov_b64 exec, -1")
    A("s_waitcnt lgkmcnt(0)")
    A(f"v_readfirstlane_b32 s{sT2}, v{T+4}")
    A(f"s_cmp_lg_u32 s{sT2}, 7"); A("s_cbranch_scc1 L_NOF")
    MQ = [104, 108, 112, 120]; FF = 124
    for k in range(4): A(f"ds_read_b128 {rng(MQ[k])}, v{vH6} offset:{L_MLW+16*k}")
    mm = [MQ[k // 2] + 2 * (k % 2) for k in range(8)]
    ml_addr(T+2)
    A("s_waitcnt lgkmcnt(0)")
    A(f"v_max3_f32 v{T}, v{mm[0]}, v{mm[1]}, v{mm[2]}"); A(f"v_max3_f32 v{T}, v{T}, v{mm[3]}, v{mm[4]}"); A(f"v_max3_f32 v{T}, v{T}, v{mm[5]}, v{mm[6]}"); A(f"v_max_f32 v{T}, v{T}, v{mm[7]}")
    for k in range(8): A(f"v_sub_f32 v{FF+k}, v{mm[k]}, v{T}")
    for k in range(8): A(f"v_exp_f32 v{FF+k}, v{FF+k}")
    A(f"v_mul_f32 v{T+1}, v{FF}, v{mm[0]+1}")
    for k in range(1, 8): A(f"v_fmac_f32 v{T+1}, v{FF+k}, v{mm[k]+1}")
    A(f"v_lshrrev_b32 v{T+3}, 1, v{vH6}")
    A(f"v_min_u32 v{T}, -2, v{T}"); A(f"v_min_u32 v{T+1}, -2, v{T+1}")
    A("s_mov_b64 exec, 0x101")
    A(f"ds_write_b128 v{T+3}, {rng(FF)} offset:{L_FW}"); A(f"ds_write_b128 v{T+3}, {rng(FF+4)} offset:{L_FW+16}")
    A(f"global_store_dwordx2 v{T+2}, v[{T}:{T+1}], s[{sWS}:{sWS+1}] sc1")
    A("s_mov_b64 exec, -1")
    A.label("L_NOF")
    op_addr(vXo, T)
    A(f"s_lshl_b32 s{sT2}, s{sW}, 10"); A(f"v_add_u32 v{vG}, s{sT2}, v{vOFF}")
    A(f"v_mov_b32 v{T+2}, 1"); A(f"v_mov_b32 v{T+3}, {L_CNTO}"); A(f"v_lshrrev_b32 v{T+4}, 1, v{vH6}")
    cur[0] = None
    for i in range(33):
        if i < 32:
            Bx = B0 if i % 2 == 0 else B1
            for k in range(4): A(f"v_and_b32 v{Bx+k}, v{sreg(i)}, v{MK+k}")
        if i > 0:
            Bp = B0 if (i-1) % 2 == 0 else B1
            assert issued > 32 + i - 1
            A(f"s_waitcnt vmcnt({issued - (32 + i)})")
            A(f"v_mfma_f32_16x16x32_bf16 {rng(D)}, {vreg(i-1)}, {rng(Bp)}, {'0' if i == 1 else rng(D)}")
            more(SCH_PV.get(i-1, 0))
    assert issued == 64, issued
    stamp(10)
    A(f"ds_write_b128 v{vG}, {rng(D)} offset:{L_OW}")
    A("s_mov_b64 exec, 1")
    A(f"ds_add_rtn_u32 v{T+5}, v{T+3}, v{T+2}")
    A("s_mov_b64 exec, -1")
    A("s_waitcnt lgkmcnt(0)")
    A(f"v_readfirstlane_b32 s{sT2}, v{T+5}")
    A(f"s_cmp_lg_u32 s{sT2}, 7"); A("s_cbranch_scc1 L_NOPUB")
    OO = 40; FR = 72
    A(f"ds_read_b128 {rng(FR)}, v{T+4} offset:{L_FW}"); A(f"ds_read_b128 {rng(FR+4)}, v{T+4} offset:{L_FW+16}")
    for k in range(8): A(f"ds_read_b128 {rng(OO+4*k)}, v{vOFF} offset:{L_OW+1024*k}")
    for k in range(8):
        A(f"s_waitcnt lgkmcnt({7-k})")
        for c in range(4):
            if k == 0: A(f"v_mul_f32 v{D+c}, v{FR}, v{OO+c}")
            else: A(f"v_fmac_f32 v{D+c}, v{FR+k}, v{OO+4*k+c}")
    A(f"v_cvt_pk_bf16_f32 v{D}, v{D}, v{D+1}"); A(f"v_cvt_pk_bf16_f32 v{D+1}, v{D+2}, v{D+3}")
    A(f"v_min_u32 v{D}, -2, v{D}"); A(f"v_min_u32 v{D+1}, -2, v{D+1}")
    A(f"global_store_dwordx2 v{vXo}, v[{D}:{D+1}], s[{sWS}:{sWS+1}] sc1")
    stamp(6)
    A.label("L_NOPUB")
    A(f"s_cmp_eq_u32 s{sW}, 2"); A("s_cbranch_scc1 L_HOP2")
    A(f"s_cmp_lg_u32 s{sW}, 1"); A("s_cbranch_scc1 L_EXIT")
    def checkB(tag, va, vd):
        A(f"s_mov_b32 s{sCNT}, {LIMIT}")
        A(f"v_and_b32 v{va}, 15, v{vL}"); A(f"v_lshlrev_b32 v{va}, 4, v{va}")
        A.label(f"L_CB{tag}")
        A(f"global_load_dword v{vd}, v{va}, s[{sDBG}:{sDBG+1}] offset:4 sc1"); A("s_waitcnt vmcnt(0)")
        A(f"v_cmp_ne_u32 vcc, 16, v{vd}"); A(f"s_cbranch_vccz L_CB{tag}_OK")
        A("s_sleep 8"); A(f"s_sub_u32 s{sCNT}, s{sCNT}, 1"); A(f"s_cmp_lg_u32 s{sCNT}, 0"); A(f"s_cbranch_scc1 L_CB{tag}")
        A.label(f"L_CB{tag}_OK")
    def ldswait(tag, addr, val, sleep=2):
        A(f"v_mov_b32 v{T+3}, {addr}"); A(f"s_mov_b32 s{sCNT}, {LIMIT*4}")
        A.label(f"L_{tag}")
        A(f"ds_read_b32 v{T}, v{T+3}"); A("s_waitcnt lgkmcnt(0)"); A(f"v_readfirstlane_b32 s{sT2}, v{T}")
        A(f"s_cmp_eq_u32 s{sT2}, {val}"); A(f"s_cbranch_scc1 L_{tag}_OK")
        A(f"s_sleep {sleep}"); A(f"s_sub_u32 s{sCNT}, s{sCNT}, 1"); A(f"s_cmp_lg_u32 s{sCNT}, 0"); A(f"s_cbranch_scc1 L_{tag}")
        A.label(f"L_{tag}_OK")
    def maxchain(dst, regs):
        A(f"v_max3_u32 v{dst}, v{regs[0]}, v{regs[1]}, v{regs[2]}")
        k = 3
        while k < len(regs):
            if k + 1 < len(regs): A(f"v_max3_u32 v{dst}, v{dst}, v{regs[k]}, v{regs[k+1]}"); k += 2
            else: A(f"v_max_u32 v{dst}, v{dst}, v{regs[k]}"); k += 1
    def pollmask(tag, loads, regs):
        A(f"s_mov_b32 s{sCNT}, {LIMIT}")
        A.label(f"L_{tag}")
        loads()
        A("s_waitcnt vmcnt(0)")
        if len(regs) > 8:
            h = len(regs) // 2
            maxchain(T, regs[:h]); maxchain(T+1, regs[h:]); A(f"v_max_u32 v{T}, v{T}, v{T+1}")
        else: maxchain(T, regs)
        A(f"v_cmp_eq_u32 vcc, -1, v{T}"); A(f"s_cbranch_vccz L_{tag}_OK")
        A("s_mov_b64 exec, vcc")
        if H1SLEEP: A(f"s_sleep {H1SLEEP}")
        A(f"s_sub_u32 s{sCNT}, s{sCNT}, 1"); A(f"s_cmp_lg_u32 s{sCNT}, 0"); A(f"s_cbranch_scc1 L_{tag}")
        A.label(f"L_{tag}_OK")
        A("s_mov_b64 exec, -1")

    WB = 40; RAW = 120; AA = 136; ML = 152; vA = 160; vMLa = 161; vSP = 162; WN = 24
    ldswait("WW", L_CNTW, 3)
    A(f"v_lshrrev_b32 v{T}, 4, v{vL}"); A(f"v_mul_u32_u24 v{T}, 288, v{T}"); A(f"v_and_b32 v{T+1}, 15, v{vL}"); A(f"v_lshl_add_u32 v{T}, v{T+1}, 1, v{T}")
    for n in range(5):
        for half in range(2):
            for t in range(2*half, 2*half+2):
                for e in range(8):
                    A(f"ds_read_u16 v{RAW+8*(t&1)+e}, v{T} offset:{L_WO + 32*n + (32*t + 8*(e&3) + (e>>2))*144}")
            A("s_waitcnt lgkmcnt(0)")
            for t in range(2*half, 2*half+2):
                for k in range(4): A(f"v_lshl_or_b32 v{WB+16*n+4*t+k}, v{RAW+8*(t&1)+2*k+1}, 16, v{RAW+8*(t&1)+2*k}")
    A(f"v_lshlrev_b32 v{vA}, 8, v{T+1}"); A(f"v_lshrrev_b32 v{T}, 4, v{vL}"); A(f"v_lshl_add_u32 v{vA}, v{T}, 4, v{vA}")
    A(f"s_lshl_b32 s{sT}, s{sP}, 12"); A(f"s_add_u32 s{sT}, s{sT}, {W_OP}"); A(f"v_add_u32 v{vA}, s{sT}, v{vA}")
    A(f"s_lshl_b32 s{sT}, s{sP}, 7"); A(f"s_add_u32 s{sT}, s{sT}, {W_ML}"); A(f"v_lshlrev_b32 v{vMLa}, 5, v{T}"); A(f"v_add_u32 v{vMLa}, s{sT}, v{vMLa}")
    A(f"v_lshrrev_b32 v{vSP}, 5, v{vL}"); A(f"v_mul_u32_u24 v{vSP}, 73728, v{vSP}")
    A(f"v_bfe_u32 v{T}, v{vL}, 3, 2"); A(f"v_lshl_add_u32 v{vSP}, v{T}, 10, v{vSP}"); A(f"v_and_b32 v{T}, 7, v{vL}"); A(f"v_lshl_add_u32 v{vSP}, v{T}, 2, v{vSP}")
    A(f"s_mul_i32 s{sT}, s{sCG}, 9216"); A(f"s_lshl_b32 s{sT2}, s{sP}, 5"); A(f"s_add_u32 s{sT}, s{sT}, s{sT2}"); A(f"s_add_u32 s{sT}, s{sT}, {W_SP}"); A(f"v_add_u32 v{vSP}, s{sT}, v{vSP}")
    A(f"v_add_u32 v{vSP+1}, 4096, v{vSP}"); A(f"v_add_u32 v{vSP+2}, 8192, v{vSP}")
    checkB("T", T, T+1)
    stamp(2)
    ldswait("OW", L_CNTO, 8, 1)
    stamp(4)
    pollmask("HM", lambda: [A(f"global_load_dwordx4 {rng(ML+4*t)}, v{vMLa}, s[{sWS}:{sWS+1}] offset:{16*t} sc1") for t in range(2)], list(range(ML, ML+8)))
    def aloads():
        for t in range(4): A(f"global_load_dwordx4 {rng(AA+4*t)}, v{vA}, s[{sWS}:{sWS+1}] offset:{64*t} sc1")
    m = [ML, ML+2, ML+4, ML+6]; l = [ML+1, ML+3, ML+5, ML+7]
    A(f"v_max3_f32 v{T}, v{m[0]}, v{m[1]}, v{m[2]}"); A(f"v_max_f32 v{T}, v{T}, v{m[3]}")
    A(f"v_mov_b32 v{T+1}, v{T}"); A(f"v_permlane16_swap_b32 v{T+1}, v{T}"); A(f"v_max_f32 v{T}, v{T+1}, v{T}")
    for i in range(4): A(f"v_sub_f32 v{m[i]}, v{m[i]}, v{T}")
    for i in range(4): A(f"v_exp_f32 v{m[i]}, v{m[i]}")
    A(f"v_mul_f32 v{T+2}, v{m[0]}, v{l[0]}")
    for i in range(1, 4): A(f"v_fmac_f32 v{T+2}, v{m[i]}, v{l[i]}")
    A(f"v_mov_b32 v{T+1}, v{T+2}"); A(f"v_permlane16_swap_b32 v{T+1}, v{T+2}"); A(f"v_add_f32 v{T+2}, v{T+1}, v{T+2}")
    A(f"v_rcp_f32 v{T+2}, v{T+2}")
    for i in range(4): A(f"v_mul_f32 v{WN+i}, v{m[i]}, v{T+2}")
    stamp(3)
    pollmask("H1", aloads, list(range(AA, AA+16)))
    stamp(7)
    for t in range(4):
        for n in range(5):
            A(f"v_mfma_f32_16x16x32_bf16 {rng(4+4*n)}, {rng(AA+4*t)}, {rng(WB+16*n+4*t)}, {'0' if t == 0 else rng(4+4*n)}")
    for n in range(5):
        A(f"v_mul_f32 v{T+n}, v{WN}, v{4+4*n}")
        for i in range(1, 4): A(f"v_fmac_f32 v{T+n}, v{WN+i}, v{4+4*n+i}")
        if n in (1, 3):
            A(f"v_permlane16_swap_b32 v{T+n-1}, v{T+n}"); A(f"v_add_f32 v{T+n}, v{T+n-1}, v{T+n}"); A(f"v_min_u32 v{T+n}, -2, v{T+n}")
            A(f"global_store_dword v{vSP+n//2}, v{T+n}, s[{sWS}:{sWS+1}] sc1")
    A(f"v_mov_b32 v{T+5}, v{T+4}"); A(f"v_permlane16_swap_b32 v{T+5}, v{T+4}"); A(f"v_add_f32 v{T+4}, v{T+5}, v{T+4}"); A(f"v_min_u32 v{T+4}, -2, v{T+4}")
    A("s_mov_b32 exec_lo, 0xff"); A("s_mov_b32 exec_hi, 0xff")
    A(f"global_store_dword v{vSP+2}, v{T+4}, s[{sWS}:{sWS+1}] sc1")
    A("s_mov_b64 exec, -1")
    stamp(5)
    A("s_branch L_EXIT")

    A.label("L_HOP2")
    A(f"s_cmp_ge_u32 s2, 144"); A("s_cbranch_scc1 L_EXIT")
    YY = 40; SS = 48; vH2 = 56; vOA = 57
    def red32(v, t):
        A(f"v_add_f32 v{v}, v{v}, v{v+1}"); A(f"v_add_f32 v{v+2}, v{v+2}, v{v+3}"); A(f"v_add_f32 v{v}, v{v}, v{v+2}")
        A(f"v_add_f32_dpp v{v}, v{v}, v{v} row_ror:8{dm}")
        xrow(v, t, "v_add_f32")
    checkB("G", T, T+1)
    A(f"v_lshrrev_b32 v{vH2}, 3, v{vL}"); A(f"v_lshlrev_b32 v{vH2}, 7, v{vH2}"); A(f"v_and_b32 v{vOA}, 7, v{vL}"); A(f"v_lshl_add_u32 v{vH2}, v{vOA}, 2, v{vH2}")
    A(f"s_lshl_b32 s{sT}, s2, 10"); A(f"s_add_u32 s{sT}, s{sT}, {W_SP}"); A(f"v_add_u32 v{vH2}, s{sT}, v{vH2}")
    A(f"v_add_u32 v{T}, {W_YP - W_SP}, v{vH2}")
    for k in range(4): A(f"global_load_dword v{YY+k}, v{T}, s[{sWS}:{sWS+1}] offset:{32*k} sc1")
    A(f"v_lshlrev_b32 v{vOA}, 1, v{vOA}"); A(f"s_lshl_b32 s{sT}, s2, 4"); A(f"v_add_u32 v{vOA}, s{sT}, v{vOA}")
    A(f"global_load_ushort v{vXo}, v{vOA}, s[{sX}:{sX+1}]")
    A(f"v_mov_b32 v{T+1}, 0")
    A(f"global_load_ushort v{YY+4}, v{T+1}, s[{sB2}:{sB2+1}]")
    A("s_waitcnt vmcnt(0)")
    red32(YY, YY+5)
    rnd1(YY); A(f"v_lshlrev_b32 v{YY+4}, 16, v{YY+4}"); A(f"v_add_f32 v{YY}, v{YY}, v{YY+4}"); rnd1(YY)
    A(f"v_mul_f32 v{YY+1}, {hx(f2u(-LOG2E))}, v{YY}"); A(f"v_exp_f32 v{YY+1}, v{YY+1}"); A(f"v_add_f32 v{YY+1}, 1.0, v{YY+1}"); A(f"v_rcp_f32 v{YY+1}, v{YY+1}")
    A(f"v_mul_f32 v{vG}, v{YY}, v{YY+1}"); rnd1(vG)
    A(f"v_lshlrev_b32 v{vXo}, 16, v{vXo}")
    stamp(2)
    ldswait("OW2", L_CNTO, 8, 1)
    if H2DELAY: A(f"s_sleep {H2DELAY}")
    pollmask("H2", lambda: [A(f"global_load_dword v{SS+k}, v{vH2}, s[{sWS}:{sWS+1}] offset:{32*k} sc1") for k in range(4)], list(range(SS, SS+4)))
    stamp(7)
    red32(SS, T)
    rnd1(SS); A(f"v_mul_f32 v{SS}, v{SS}, v{vG}"); rnd1(SS); A(f"v_add_f32 v{SS}, v{SS}, v{vXo}")
    A(f"v_cvt_pk_bf16_f32 v{SS}, v{SS}, v{SS}")
    A("s_mov_b64 exec, 0xff")
    A(f"global_store_short v{vOA}, v{SS}, s[{sOUT}:{sOUT+1}]")
    A("s_mov_b64 exec, -1")
    A.label("L_EXIT")
    if DBG:
        stamp(11)
        A("s_waitcnt lgkmcnt(0)")
        A(f"s_cmp_lg_u32 s2, {DBG-1}"); A("s_cbranch_scc1 L_END")
        if ECHO:
            A(f"s_cmp_lg_u32 s{sW}, {ECHO[0]}"); A("s_cbranch_scc1 L_END")
            A(f"s_sub_u32 s{sT}, s{SB+2*ECHO[1]}, s{SB}"); A(f"s_lshl_b32 s{sT}, s{sT}, 2"); A(f"s_add_u32 s{sT}, s{sT}, 4000"); A(f"s_add_u32 s{sT}, s{sT}, s{SB}")
            A.label("L_ECHO")
            A(f"s_memrealtime s[{sA}:{sA+1}]"); A("s_waitcnt lgkmcnt(0)"); A(f"s_sub_u32 s{sT2}, s{sA}, s{sT}"); A(f"s_cmp_lt_i32 s{sT2}, 0"); A("s_cbranch_scc1 L_ECHO")
            A("s_branch L_END")
        A("s_mov_b64 exec, 1")
        for (w, k, slot) in ((2, 7, 2), (5, 10, 3), (0, 6, 6), (1, 5, 7), (5, 3, 10), (0, 1, 11), (1, 9, 14), (6, 9, 15)):
            A(f"s_cmp_lg_u32 s{sW}, {w}"); A(f"s_cbranch_scc1 L_DB{slot}")
            A(f"s_sub_u32 s{sT}, s{SB+2*k}, s{SB}"); A(f"v_mov_b32 v3, {4*slot}"); A(f"v_mov_b32 v4, s{sT}")
            A(f"global_store_dword v3, v4, s[{sDBG}:{sDBG+1}]")
            A.label(f"L_DB{slot}")
    elif STAMP:
        stamp(11)
        A("s_waitcnt lgkmcnt(0)")
        A(f"s_lshl_b32 s{sT}, s2, 3"); A(f"s_add_u32 s{sT}, s{sT}, s{sW}"); A(f"s_mul_i32 s{sT}, s{sT}, {NST*8}"); A(f"s_add_u32 s{sT}, s{sT}, {W_ST}")
        A(f"v_mov_b32 v3, s{sT}")
        if ISTAMP: A("s_mov_b64 s[60:61], s[96:97]")
        for k in range(2*NST): A(f"v_mov_b32 v{40+k}, s{SB+k}")
        A("s_mov_b64 exec, 1")
        for q in range(NST // 2): A(f"global_store_dwordx4 v3, {rng(40+4*q)}, s[{sWS}:{sWS+1}] offset:{16*q}")
    A.label("L_END")
    A("s_endpgm")
    A.raw('.section .rodata,"a"'); A.raw(".p2align 6"); A.raw(f".amdhsa_kernel {KN}_kernel")
    A.raw("  .amdhsa_next_free_vgpr 256"); A.raw("  .amdhsa_next_free_sgpr 102"); A.raw("  .amdhsa_accum_offset 168")
    A.raw("  .amdhsa_group_segment_fixed_size 0"); A.raw("  .amdhsa_kernarg_size 104"); A.raw("  .amdhsa_user_sgpr_count 2")
    A.raw("  .amdhsa_user_sgpr_kernarg_segment_ptr 1"); A.raw("  .amdhsa_system_sgpr_workgroup_id_x 1")
    A.raw("  .amdhsa_float_denorm_mode_32 3")
    A.raw(".end_amdhsa_kernel")
    return A.text()

if __name__ == "__main__":
    out = sys.argv[1]
    kw = eval("dict(" + (sys.argv[2] if len(sys.argv) > 2 else "") + ")")
    open(out, "w").write(gen(**kw))
```

```python
import sys, struct, math
sys.path.insert(0, __file__.rsplit("/", 1)[0] if "/" in __file__ else ".")
from asmlib import Asm
KN = "recurrent_scan__gqa_block_cached__mixer_token_mlp__decode"
def f2u(x): return struct.unpack("<I", struct.pack("<f", x))[0]
def hx(x): return f"0x{x & 0xffffffff:08x}"
LOG2E = 1.4426950408889634
SCALE = 128 ** -0.5
L_MISC = 0
L_QFLAG = L_MISC; L_CNTB = L_MISC + 4; L_CNTQK = L_MISC + 8; L_CNTO = L_MISC + 12; L_CNTW = L_MISC + 16
L_MLW = 64; L_FW = 192; L_Q = 256; L_OW = 768; L_XL = L_OW + 8192; L_WO = L_XL + 4 * 2304; L_END = L_WO + 128 * 144 + 64
W_QP = 0; W_OP = 0x40000; W_ML = 0x60000; W_SP = 0x70000; W_YP = 0xA0000; W_FL = 0xD0000; W_ST = 128 << 20
LIMIT = 1 << 18

def gen(MAP="kvh", NT=True, ROUND=True, NPRE=36, ROT=1, STAMP=False, ATOM="scalar", SCH_QK=(2,)*8, SCH_SM=(1,)*8, SCH_PV={3:1,7:1,11:1,15:1}, H1SLEEP=0, NSIG=8, H2DELAY=16, EARLYBAR=True, LAYOUT='JJWW', WONT=True, WQNT=True, SKIP='', ISTAMP=False, DBG=False, ECHO=None, PRIO=0):
    A = Asm()
    nt = " nt" if NT else ""
    NST = 18 if ISTAMP else 12
    SB = 60 if ISTAMP else 76
    if ECHO: DBG = 1
    if ISTAMP or DBG: STAMP = True
    A.raw(f"; @launch grid=(256,1,1) block=(512,1,1) lds={(L_END + 255) // 256 * 256}")
    if STAMP and not DBG: A.raw(f"; STAMPS nrec=2048 n={NST}")
    A.raw('.amdgcn_target "amdgcn-amd-amdhsa--gfx950"')
    A.raw(".text"); A.raw(f".globl {KN}_kernel"); A.raw(".p2align 8"); A.raw(f".type {KN}_kernel,@function"); A.raw(f"{KN}_kernel:")
    def stamp(k, force=False):
        if ISTAMP and not force:
            if k == 10: k = 17
            elif k != 0: return
        if ISTAMP and k == 0 and not force:
            A("s_memrealtime s[96:97]"); return
        if STAMP: A(f"s_memrealtime s[{SB+2*k}:{SB+1+2*k}]")
    sX, sK, sV, sWQ, sWO, sW1, sB1, sW2, sB2, sOUT, sDBG, sWS = 4, 6, 8, 10, 12, 16, 18, 20, 22, 24, 26, 28
    KS, VS = 32, 36
    sW, sG, sB, sSP, sJ, sHH, sCG, sP, sBASE, sT, sT2, sT3, sCNT, sPASS, sC1, sHAVE = 40, 41, 42, 43, 44, 45, 46, 47, 48, 49, 50, 51, 52, 53, 54, 55
    sFL = 58
    sA = 56
    sR = 60
    vL, vOFF = 1, 2
    D = 4; QA = 8; QB = 12; MK = 16; B0 = 20; B1 = 24; T = 28; vM = 36; vLs = 37; vG = 38; vXo = 39
    KB = 40
    def ks(i): return KB + 4 * i
    def rng(r, n=4): return f"v[{r}:{r+n-1}]"
    if STAMP and not ISTAMP:
        for k in range(1, NST): A(f"s_mov_b64 s[{76+2*k}:{77+2*k}], 0")
    stamp(0)
    A("s_cmp_ge_u32 s2, 256"); A("s_cbranch_scc1 L_END")
    A("s_load_dwordx16 s[4:19], s[0:1], 0")
    A("s_load_dwordx8 s[20:27], s[0:1], 64")
    A("s_load_dwordx2 s[28:29], s[0:1], 96")
    A("v_lshrrev_b32 v3, 6, v0"); A(f"v_and_b32 v{vL}, 63, v0")
    A(f"v_readfirstlane_b32 s{sW}, v3")
    if MAP == "kvh":
        A(f"s_and_b32 s{sG}, s2, 7"); A(f"s_lshr_b32 s{sT}, s2, 7"); A(f"s_lshl_b32 s{sT}, s{sT}, 3"); A(f"s_or_b32 s{sG}, s{sG}, s{sT}")
        A(f"s_bfe_u32 s{sJ}, s2, 0x40003")
    else:
        A(f"s_lshr_b32 s{sG}, s2, 4"); A(f"s_and_b32 s{sJ}, s2, 15")
    A(f"s_and_b32 s{sSP}, s{sJ}, 7"); A(f"s_lshr_b32 s{sB}, s{sJ}, 3")
    A(f"s_and_b32 s{sHH}, s{sJ}, 1"); A(f"s_lshr_b32 s{sCG}, s{sJ}, 1")
    A(f"s_lshl_b32 s{sP}, s{sG}, 1"); A(f"s_or_b32 s{sP}, s{sP}, s{sHH}")
    A(f"s_and_b32 s{sT}, s{sW}, 3"); A(f"s_lshl_b32 s{sBASE}, s{sT}, {12 if LAYOUT == 'JJWW' else 10}")
    A(f"s_add_u32 s{sT}, s{sW}, 7"); A(f"s_and_b32 s{sT}, s{sT}, 4"); A(f"s_lshl_b32 s{sT}, s{sT}, 15"); A(f"s_or_b32 s{sBASE}, s{sBASE}, s{sT}")
    A(f"s_lshl_b32 s{sT}, s{sSP}, 18"); A(f"s_or_b32 s{sBASE}, s{sBASE}, s{sT}")
    if ROT:
        if LAYOUT == 'JJWW':
            A(f"s_mul_i32 s{sT}, s2, 0x9E3779B1"); A(f"s_lshr_b32 s{sT}, s{sT}, 29"); A(f"s_lshl_b32 s{sT}, s{sT}, 14"); A(f"s_or_b32 s{sBASE}, s{sBASE}, s{sT}")
        else:
            A(f"s_mul_i32 s{sT}, s2, 0x9E3779B1"); A(f"s_lshr_b32 s{sT}, s{sT}, 27"); A(f"s_lshl_b32 s{sT}, s{sT}, 12"); A(f"s_or_b32 s{sBASE}, s{sBASE}, s{sT}")
    A(f"v_lshlrev_b32 v{vOFF}, 4, v{vL}")
    A(f"v_and_b32 v3, 1, v{vL}"); A("v_lshlrev_b32 v3, 4, v3"); A(f"v_mov_b32 v{T}, 0xffff"); A(f"v_lshlrev_b32 v3, v3, v{T}")
    A(f"v_bfe_u32 v{T}, v{vL}, 1, 2")
    for k in range(4):
        A(f"v_cmp_eq_u32 vcc, {k}, v{T}"); A(f"v_cndmask_b32 v{MK+k}, 0, v3, vcc")
    A(f"s_mov_b32 s{sC1}, {hx(f2u(LOG2E if ROUND else LOG2E * SCALE))}")
    A(f"s_lshl_b32 s{sT}, s{sB}, 4"); A(f"s_or_b32 s{sT}, s{sT}, s{sG}"); A(f"s_lshl_b32 s{sT}, s{sT}, 21")
    A("s_waitcnt lgkmcnt(0)")
    stamp(1)
    A(f"s_add_u32 s{KS}, s{sK}, s{sT}"); A(f"s_addc_u32 s{KS+1}, s{sK+1}, 0"); A(f"s_mov_b32 s{KS+2}, 0x200000"); A(f"s_mov_b32 s{KS+3}, 0x20000")
    A(f"s_add_u32 s{VS}, s{sV}, s{sT}"); A(f"s_addc_u32 s{VS+1}, s{sV+1}, 0"); A(f"s_mov_b32 s{VS+2}, 0x200000"); A(f"s_mov_b32 s{VS+3}, 0x20000")
    A(f"s_cmp_eq_u32 s{sW}, 0"); A("s_cbranch_scc1 L_W0_PRE")
    A(f"s_cmp_ge_u32 s{sW}, 5"); A("s_cbranch_scc1 L_Y_PRE")
    A(f"s_cmp_lg_u32 s{sW}, 1"); A("s_cbranch_scc1 L_NOINIT")
    A(f"v_lshlrev_b32 v3, 2, v{vL}"); A(f"v_mov_b32 v{T}, 0")
    A("s_mov_b64 exec, 0xffff")
    A(f"ds_write_b32 v3, v{T} offset:{L_MISC}")
    A("s_mov_b64 exec, -1")
    A("s_waitcnt lgkmcnt(0)")
    A.label("L_NOINIT")
    if PRIO: A(f"s_setprio {PRIO}")
    A(f"s_cmp_eq_u32 s{sW}, 4"); A("s_cbranch_scc1 L_NOWO")
    A(f"s_mov_b32 s{sR}, s{sWO}"); A(f"s_mov_b32 s{sR+1}, s{sWO+1}"); A(f"s_mov_b32 s{sR+2}, {4096*1152}"); A(f"s_mov_b32 s{sR+3}, 0x20000")
    A(f"s_sub_u32 s{sT}, s{sW}, 1"); A(f"s_mul_i32 s{sT}, s{sT}, 384"); A(f"v_add_u32 v{vG}, s{sT}, v{vL}")
    A(f"s_mul_i32 s{sT}, s{sP}, {128*1152}"); A(f"s_mul_i32 s{sT2}, s{sCG}, 144"); A(f"s_add_u32 s{sT}, s{sT}, s{sT2}")
    A(f"s_mov_b32 s{sT2}, 7282")
    for k in range(6):
        A(f"v_add_u32 v{T}, {64*k}, v{vG}"); A(f"v_mul_u32_u24 v{T+1}, s{sT2}, v{T}"); A(f"v_lshrrev_b32 v{T+1}, 16, v{T+1}")
        A(f"v_mul_u32_u24 v{T+1}, {1152-144}, v{T+1}"); A(f"v_lshl_add_u32 v{T+2+k}, v{T}, 4, v{T+1}")
    A(f"v_lshlrev_b32 v{vG}, 4, v{vG}")
    A("s_barrier")
    for k in range(6):
        if 'o' in SKIP: A(f"buffer_load_dwordx4 a[{64+4*k}:{67+4*k}], v{vOFF}, s[{sR}:{sR+3}], 0 offen")
        else: A(f"buffer_load_dwordx4 a[{64+4*k}:{67+4*k}], v{T+2+k}, s[{sR}:{sR+3}], s{sT} offen{nt if WONT else ''}")
    A("s_branch L_STREAM")
    A.label("L_NOWO")
    A("s_barrier")
    A("s_branch L_STREAM")

    X = 40
    E = 50
    vXO = 3
    def xloads():
        A(f"v_lshrrev_b32 v{T}, 5, v{vL}"); A(f"v_mul_u32_u24 v{T}, 1152, v{T}")
        A(f"v_and_b32 v{vXO}, 31, v{vL}"); A(f"v_lshl_add_u32 v{vXO}, v{vXO}, 2, v{T}")
        for k in range(9): A(f"global_load_dword v{X+k}, v{vXO}, s[{sX}:{sX+1}] offset:{128*k}")
    WQ = 96
    A.label("L_W0_PRE")
    xloads()
    A(f"s_lshl_b32 s{sT}, s{sG}, 4"); A(f"s_add_u32 s{sT}, s{sT}, s{sJ}"); A(f"s_lshl_b32 s{sT}, s{sT}, 7"); A(f"s_add_u32 s{sFL}, s{sT}, {W_FL}")
    A(f"v_mov_b32 v{T+2}, s{sFL}"); A(f"v_mov_b32 v{T+3}, 0")
    A("s_mov_b64 exec, 1")
    A(f"global_store_dword v{T+2}, v{T+3}, s[{sWS}:{sWS+1}] sc1")
    A("s_mov_b64 exec, -1")
    A(f"s_mov_b32 s{sR}, s{sWQ}"); A(f"s_mov_b32 s{sR+1}, s{sWQ+1}"); A(f"s_mov_b32 s{sR+2}, {576*8192}"); A(f"s_mov_b32 s{sR+3}, 0x20000")
    A(f"v_lshrrev_b32 v{T}, 4, v{vL}"); A(f"v_lshlrev_b32 v{T}, 13, v{T}"); A(f"v_and_b32 v{T+1}, 15, v{vL}"); A(f"v_lshl_add_u32 v{T}, v{T+1}, 4, v{T}")
    A(f"s_mul_i32 s{sT}, s{sCG}, {72*8192}"); A(f"s_lshl_b32 s{sT2}, s{sP}, 8"); A(f"s_add_u32 s{sT}, s{sT}, s{sT2}")
    for i in range(18):
        if 'q' in SKIP: A(f"buffer_load_dwordx4 {rng(WQ+4*i)}, v{vOFF}, s[{sR}:{sR+3}], 0 offen")
        else: A(f"buffer_load_dwordx4 {rng(WQ+4*i)}, v{T}, s[{sR}:{sR+3}], s{sT} offen{nt if WQNT else ''}")
        if i < 17: A(f"s_add_u32 s{sT}, s{sT}, 32768")
    A("s_barrier")
    A(f"s_mov_b32 s{sPASS}, 1"); A(f"s_mov_b32 s{sT3}, {L_XL}")
    A("s_waitcnt vmcnt(19)")
    A("s_branch L_LN0")

    WR = 70
    A.label("L_Y_PRE")
    A("s_setprio 2")
    if EARLYBAR: A("s_barrier")
    xloads()
    A(f"v_and_b32 v{T}, 7, v{vL}"); A(f"v_mul_u32_u24 v{T}, 36, v{T}"); A(f"s_mul_i32 s{sT}, s{sP}, 288"); A(f"v_add_u32 v{T}, s{sT}, v{T}")
    for a, sp_ in enumerate((sW1, sB1, sW2)):
        R = WR + 10 * a
        A(f"global_load_dwordx4 {rng(R)}, v{T}, s[{sp_}:{sp_+1}]")
        A(f"global_load_dwordx4 {rng(R+4)}, v{T}, s[{sp_}:{sp_+1}] offset:16")
        A(f"global_load_dword v{R+8}, v{T}, s[{sp_}:{sp_+1}] offset:32")
    A(f"s_cmp_lg_u32 s{sW}, 5"); A("s_cbranch_scc1 L_NORESET")
    for k in range(4): A(f"v_mov_b32 v{T+4+k}, -1")
    def op_addr(v, t):
        A(f"v_bfe_u32 v{v}, v{vL}, 3, 1"); A(f"v_lshlrev_b32 v{v}, 12, v{v}")
        A(f"v_lshrrev_b32 v{t}, 4, v{vL}"); A(f"v_lshl_add_u32 v{v}, v{t}, 6, v{v}")
        A(f"v_and_b32 v{t}, 7, v{vL}"); A(f"v_lshl_add_u32 v{v}, v{t}, 3, v{v}")
        A(f"s_lshl_b32 s{sT}, s{sG}, 13"); A(f"s_lshl_b32 s{sT2}, s{sJ}, 8"); A(f"s_add_u32 s{sT}, s{sT}, s{sT2}"); A(f"s_add_u32 s{sT}, s{sT}, {W_OP}")
        A(f"v_add_u32 v{v}, s{sT}, v{v}")
    def ml_addr(v):
        A(f"v_bfe_u32 v{v}, v{vL}, 3, 1"); A(f"v_lshlrev_b32 v{v}, 7, v{v}")
        A(f"s_lshl_b32 s{sT}, s{sG}, 8"); A(f"s_lshl_b32 s{sT2}, s{sJ}, 3"); A(f"s_add_u32 s{sT}, s{sT}, s{sT2}"); A(f"s_add_u32 s{sT}, s{sT}, {W_ML}")
        A(f"v_add_u32 v{v}, s{sT}, v{v}")
    op_addr(T, T+1)
    A(f"global_store_dwordx2 v{T}, v[{T+4}:{T+5}], s[{sWS}:{sWS+1}] sc1")
    ml_addr(T+2)
    A("s_mov_b64 exec, 0x101")
    A(f"global_store_dwordx2 v{T+2}, v[{T+4}:{T+5}], s[{sWS}:{sWS+1}] sc1")
    A("s_mov_b64 exec, -1")
    A(f"v_lshrrev_b32 v{T}, 1, v{vL}"); A(f"v_cmp_le_u32 vcc, 9, v{T}"); A(f"v_cndmask_b32 v{T+1}, 0, 63, vcc")
    A(f"v_add_u32 v{T}, v{T}, v{T+1}"); A(f"v_lshlrev_b32 v{T}, 10, v{T}")
    A(f"v_and_b32 v{T+1}, 1, v{vL}"); A(f"v_lshl_add_u32 v{T}, v{T+1}, 4, v{T}")
    A(f"s_mul_i32 s{sT}, s{sCG}, 9216"); A(f"s_lshl_b32 s{sT2}, s{sP}, 5"); A(f"s_add_u32 s{sT}, s{sT}, s{sT2}"); A(f"s_add_u32 s{sT}, s{sT}, {W_SP}")
    A(f"v_add_u32 v{T}, s{sT}, v{T}")
    A(f"s_mov_b32 exec_lo, -1"); A(f"s_mov_b32 exec_hi, 0xf")
    A(f"global_store_dwordx4 v{T}, {rng(T+4)}, s[{sWS}:{sWS+1}] sc1")
    A("s_mov_b64 exec, -1")
    A.label("L_NORESET")
    if not EARLYBAR: A("s_barrier")
    A(f"s_mov_b32 s{sPASS}, 2"); A(f"s_sub_u32 s{sT3}, s{sW}, 4"); A(f"s_mul_i32 s{sT3}, s{sT3}, 2304"); A(f"s_add_u32 s{sT3}, s{sT3}, {L_XL}")
    A("s_waitcnt vmcnt(0)")

    def allred32(v, t, op):
        for pat in ("quad_perm:[1,0,3,2]", "quad_perm:[2,3,0,1]", "row_half_mirror", "row_mirror"):
            A(f"{op}_dpp v{v}, v{v}, v{v} {pat} row_mask:0xf bank_mask:0xf")
        A(f"v_mov_b32 v{t}, v{v}"); A(f"v_permlane16_swap_b32 v{t}, v{v}"); A(f"{op} v{v}, v{t}, v{v}")
    def rnd1(v):
        A(f"v_cvt_pk_bf16_f32 v{v}, v{v}, v{v}"); A(f"v_lshlrev_b32 v{v}, 16, v{v}")
    A.label("L_LN0")
    stamp(2)
    A.label("L_LN")
    for k in range(9):
        A(f"v_lshlrev_b32 v{E+2*k}, 16, v{X+k}"); A(f"v_and_b32 v{E+2*k+1}, 0xffff0000, v{X+k}")
    A(f"v_add_f32 v{T}, v{E}, v{E+1}"); A(f"v_add_f32 v{T+1}, v{E+2}, v{E+3}")
    for k in range(4, 18, 2):
        A(f"v_add_f32 v{T}, v{T}, v{E+k}"); A(f"v_add_f32 v{T+1}, v{T+1}, v{E+k+1}")
    A(f"v_add_f32 v{T}, v{T}, v{T+1}")
    allred32(T, T+1, "v_add_f32")
    A(f"v_mul_f32 v{T}, {hx(f2u(1/576))}, v{T}")
    A(f"v_mov_b32 v{T+2}, 0"); A(f"v_mov_b32 v{T+3}, 0")
    for k in range(0, 18, 2):
        A(f"v_sub_f32 v{T+4}, v{E+k}, v{T}"); A(f"v_sub_f32 v{T+5}, v{E+k+1}, v{T}")
        A(f"v_fmac_f32 v{T+2}, v{T+4}, v{T+4}"); A(f"v_fmac_f32 v{T+3}, v{T+5}, v{T+5}")
    A(f"v_add_f32 v{T+2}, v{T+2}, v{T+3}")
    allred32(T+2, T+3, "v_add_f32")
    A(f"v_mul_f32 v{T+2}, {hx(f2u(1/576))}, v{T+2}")
    rnd1(T); rnd1(T+2)
    A(f"v_add_f32 v{T+2}, {hx(f2u(1e-5))}, v{T+2}"); rnd1(T+2)
    A(f"v_sqrt_f32 v{T+2}, v{T+2}"); rnd1(T+2)
    A(f"v_rcp_f32 v{T+2}, v{T+2}")
    for k in range(9):
        a, b = E+2*k, E+2*k+1
        A(f"v_sub_f32 v{a}, v{a}, v{T}"); A(f"v_sub_f32 v{b}, v{b}, v{T}")
        A(f"v_cvt_pk_bf16_f32 v{X+k}, v{a}, v{b}")
        A(f"v_lshlrev_b32 v{a}, 16, v{X+k}"); A(f"v_and_b32 v{b}, 0xffff0000, v{X+k}")
        A(f"v_mul_f32 v{a}, v{a}, v{T+2}"); A(f"v_mul_f32 v{b}, v{b}, v{T+2}")
        A(f"v_cvt_pk_bf16_f32 v{X+k}, v{a}, v{b}")
    A(f"s_sub_u32 s{sPASS}, s{sPASS}, 1"); A(f"s_cmp_lg_u32 s{sPASS}, 0"); A("s_cbranch_scc1 L_LN")
    A(f"v_add_u32 v{vXO}, s{sT3}, v{vXO}")
    for k in range(9): A(f"ds_write_b32 v{vXO}, v{X+k} offset:{128*k}")
    A(f"s_cmp_lg_u32 s{sW}, 0"); A("s_cbranch_scc1 L_BBR")

    XV = 50
    A(f"v_bfe_u32 v{T}, v{vL}, 3, 1"); A(f"v_mul_u32_u24 v{T}, 1152, v{T}")
    A(f"v_lshrrev_b32 v{T+1}, 4, v{vL}"); A(f"v_lshl_add_u32 v{T}, v{T+1}, 1, v{T}")
    A(f"s_mul_i32 s{sT}, s{sCG}, 144"); A(f"s_add_u32 s{sT}, s{sT}, {L_XL}"); A(f"v_add_u32 v{T}, s{sT}, v{T}")
    A("s_waitcnt lgkmcnt(0)")
    for i in range(18): A(f"ds_read_u16 v{XV+i}, v{T} offset:{8*i}")
    A("s_waitcnt lgkmcnt(0)")
    for i in range(18): A(f"v_lshl_or_b32 v{XV+i}, v{XV+i}, 16, v{XV+i}")
    for i in range(18):
        Bx = B0 if i % 2 == 0 else B1
        for k in range(4): A(f"v_and_b32 v{Bx+k}, v{XV+i}, v{MK+k}")
        if i > 0:
            Bp = B1 if i % 2 == 0 else B0
            A(f"s_waitcnt vmcnt({17-(i-1)})")
            A(f"v_mfma_f32_16x16x32_bf16 {rng(D)}, {rng(WQ+4*(i-1))}, {rng(Bp)}, {'0' if i == 1 else rng(D)}")
    A("s_waitcnt vmcnt(0)")
    A(f"v_mfma_f32_16x16x32_bf16 {rng(D)}, {rng(WQ+4*17)}, {rng(B1)}, {rng(D)}")
    A(f"v_bfe_u32 v{T}, v{vL}, 3, 1"); A(f"v_lshlrev_b32 v{T}, 13, v{T}")
    A(f"v_lshrrev_b32 v{T+1}, 4, v{vL}"); A(f"v_lshl_add_u32 v{T}, v{T+1}, 7, v{T}")
    A(f"v_and_b32 v{T+1}, 7, v{vL}"); A(f"v_lshl_add_u32 v{T}, v{T+1}, 4, v{T}")
    A(f"s_lshl_b32 s{sT}, s{sG}, 14"); A(f"s_lshl_b32 s{sT2}, s{sJ}, 9"); A(f"s_add_u32 s{sT}, s{sT}, s{sT2}")
    A(f"v_add_u32 v{T}, s{sT}, v{T}")
    A(f"global_store_dwordx4 v{T}, {rng(D)}, s[{sWS}:{sWS+1}] sc1")
    stamp(3)
    A(f"s_lshl_b32 s{sT}, s{sG}, 4")
    if ATOM == "scalar":
        A(f"s_mov_b32 s{sT2}, 1")
        A("s_waitcnt vmcnt(0)")
        stamp(4)
        A(f"s_atomic_add s{sT2}, s[{sDBG}:{sDBG+1}], s{sT} glc"); A("s_waitcnt lgkmcnt(0)")
    else:
        A(f"v_mov_b32 v{T+2}, 1"); A(f"v_mov_b32 v{T+3}, s{sT}")
        A("s_waitcnt vmcnt(0)")
        stamp(4)
        A("s_mov_b64 exec, 1")
        A(f"global_atomic_add v{T+4}, v{T+3}, v{T+2}, s[{sDBG}:{sDBG+1}] sc0")
        A("s_mov_b64 exec, -1")
        A("s_waitcnt vmcnt(0)"); A(f"v_readfirstlane_b32 s{sT2}, v{T+4}")
    A(f"s_cmp_lg_u32 s{sT2}, 15"); A("s_cbranch_scc1 L_NOTMASTER")
    if ATOM == "scalar":
        A(f"s_lshl_b32 s{sT}, s{sG}, 11"); A(f"s_add_u32 s{sT}, s{sT}, {W_FL}"); A(f"s_add_u32 s{sA}, s{sWS}, s{sT}"); A(f"s_addc_u32 s{sA+1}, s{sWS+1}, 0")
        A(f"s_mov_b32 s{sT2}, 1")
        for j in range(16): A(f"s_atomic_or s{sT2}, s[{sA}:{sA+1}], {128*j}")
    else:
        A(f"s_lshl_b32 s{sT}, s{sG}, 11"); A(f"s_add_u32 s{sT}, s{sT}, {W_FL}")
        A(f"v_lshlrev_b32 v{T+3}, 7, v{vL}"); A(f"v_add_u32 v{T+3}, s{sT}, v{T+3}")
        A("s_mov_b64 exec, 0xffff")
        A(f"global_store_dword v{T+3}, v{T+2}, s[{sWS}:{sWS+1}] sc1")
        A("s_mov_b64 exec, -1")
    A("s_branch L_POLLA_OK")
    A.label("L_NOTMASTER")
    A(f"s_mov_b32 s{sCNT}, {LIMIT}")
    A.label("L_POLLA")
    A(f"s_load_dword s{sT2}, s[{sWS}:{sWS+1}], s{sFL} glc"); A("s_waitcnt lgkmcnt(0)")
    A(f"s_cmp_eq_u32 s{sT2}, 1"); A("s_cbranch_scc1 L_POLLA_OK")
    A("s_sleep 2"); A(f"s_sub_u32 s{sCNT}, s{sCNT}, 1"); A(f"s_cmp_lg_u32 s{sCNT}, 0"); A("s_cbranch_scc1 L_POLLA")
    A.label("L_POLLA_OK")
    stamp(2)
    A(f"s_lshl_b32 s{sT}, s{sG}, 14"); A(f"s_lshl_b32 s{sT2}, s{sB}, 13"); A(f"s_add_u32 s{sT}, s{sT}, s{sT2}")
    A(f"v_add_u32 v{T}, s{sT}, v{vOFF}"); A(f"v_add_u32 v{T+1}, 4096, v{T}")
    for r in range(8):
        A(f"global_load_dwordx4 {rng(40+4*r)}, v{T + r//4}, s[{sWS}:{sWS+1}] offset:{1024*(r%4)} sc1")
    A(f"v_lshrrev_b32 v{T+2}, 3, v{vL}"); A(f"v_lshlrev_b32 v{T+2}, 6, v{T+2}"); A(f"v_and_b32 v{T+3}, 7, v{vL}"); A(f"v_lshl_add_u32 v{T+2}, v{T+3}, 1, v{T+2}")
    for r in range(1, 8):
        A(f"s_waitcnt vmcnt({7-r})")
        for k in range(4): A(f"v_add_f32 v{40+k}, v{40+k}, v{40+4*r+k}")
    A(f"v_cvt_pk_bf16_f32 v40, v40, v41"); A(f"v_cvt_pk_bf16_f32 v41, v42, v43")
    A(f"ds_write_b16 v{T+2}, v40 offset:{L_Q}"); A(f"ds_write_b16_d16_hi v{T+2}, v40 offset:{L_Q+16}")
    A(f"ds_write_b16 v{T+2}, v41 offset:{L_Q+32}"); A(f"ds_write_b16_d16_hi v{T+2}, v41 offset:{L_Q+48}")
    A(f"v_mov_b32 v{T+2}, 1"); A(f"v_mov_b32 v{T+3}, {L_QFLAG}")
    A("s_waitcnt lgkmcnt(0)")
    A(f"ds_write_b32 v{T+3}, v{T+2}")
    A("s_branch L_STREAM")

    A.label("L_BBR")
    W1 = 100; BB = 118; W2 = WR + 20; U = 136; PK = 40; ZZ = 50; RES = 154; vC1 = 156; vC0 = 158; vONE = 160; vH = 162; vHA = 164; ACC = 165; vFL = 166
    def pr(r): return f"v[{r}:{r+1}]"
    for k in range(9):
        A(f"v_lshlrev_b32 v{W1+2*k}, 16, v{WR+k}"); A(f"v_and_b32 v{W1+2*k+1}, 0xffff0000, v{WR+k}")
        A(f"v_lshlrev_b32 v{BB+2*k}, 16, v{WR+10+k}"); A(f"v_and_b32 v{BB+2*k+1}, 0xffff0000, v{WR+10+k}")
    c0 = -2 * math.sqrt(2 / math.pi) * LOG2E; c1 = c0 * 0.044715
    for k in range(2):
        A(f"v_mov_b32 v{vC1+k}, {hx(f2u(c1))}"); A(f"v_mov_b32 v{vC0+k}, {hx(f2u(c0))}"); A(f"v_mov_b32 v{vONE+k}, 1.0")
    A(f"v_and_b32 v{vFL}, 7, v{vL}")
    A(f"s_sub_u32 s{sT}, s{sW}, 5"); A(f"s_mul_i32 s{sT}, s{sT}, 6")
    A(f"s_mul_i32 s{sT2}, s{sCG}, 144"); A(f"s_add_u32 s{sT3}, s{sT3}, s{sT2}")
    A(f"v_lshrrev_b32 v{vHA}, 3, v{vL}"); A(f"v_lshlrev_b32 v{vHA}, 1, v{vHA}"); A(f"v_add_u32 v{vHA}, s{sT3}, v{vHA}")
    A(f"s_mov_b32 s{sPASS}, 0"); A(f"v_mov_b32 v{RES}, 0")
    A("s_setprio 0")
    A.label("L_BLOOP")
    A(f"s_add_u32 s{sT2}, s{sT}, s{sPASS}"); A(f"s_cmp_ge_u32 s{sT2}, 9"); A(f"s_cselect_b32 s{sT3}, 63, 0"); A(f"s_add_u32 s{sT2}, s{sT2}, s{sT3}"); A(f"s_lshl_b32 s{sT2}, s{sT2}, 4")
    A(f"v_add_u32 v{vH+1}, s{sT2}, v{vHA}")
    A(f"ds_read_u16 v{vH}, v{vH+1}")
    A("s_waitcnt lgkmcnt(0)")
    A(f"v_lshlrev_b32 v{vH}, 16, v{vH}"); A(f"v_mov_b32 v{vH+1}, v{vH}")
    def round9():
        for k in range(9): A(f"v_cvt_pk_bf16_f32 v{PK+k}, v{U+2*k}, v{U+2*k+1}")
        for k in range(9):
            A(f"v_lshlrev_b32 v{U+2*k}, 16, v{PK+k}"); A(f"v_and_b32 v{U+2*k+1}, 0xffff0000, v{PK+k}")
    for k in range(9): A(f"v_pk_mul_f32 {pr(U+2*k)}, {pr(vH)}, {pr(W1+2*k)}")
    round9()
    for k in range(9): A(f"v_pk_add_f32 {pr(U+2*k)}, {pr(U+2*k)}, {pr(BB+2*k)}")
    round9()
    for k in range(9): A(f"v_pk_mul_f32 {pr(ZZ+2*k)}, {pr(U+2*k)}, {pr(U+2*k)}")
    for k in range(9): A(f"v_pk_fma_f32 {pr(ZZ+2*k)}, {pr(ZZ+2*k)}, {pr(vC1)}, {pr(vC0)}")
    for k in range(9): A(f"v_pk_mul_f32 {pr(ZZ+2*k)}, {pr(ZZ+2*k)}, {pr(U+2*k)}")
    for k in range(18): A(f"v_exp_f32 v{ZZ+k}, v{ZZ+k}")
    for k in range(9): A(f"v_pk_add_f32 {pr(ZZ+2*k)}, {pr(ZZ+2*k)}, {pr(vONE)}")
    for k in range(18): A(f"v_rcp_f32 v{ZZ+k}, v{ZZ+k}")
    for k in range(9): A(f"v_pk_mul_f32 {pr(U+2*k)}, {pr(U+2*k)}, {pr(ZZ+2*k)}")
    for k in range(9): A(f"v_cvt_pk_bf16_f32 v{PK+k}, v{U+2*k}, v{U+2*k+1}")
    A(f"v_mov_b32 v{ACC}, 0")
    for k in range(9): A(f"v_dot2c_f32_bf16 v{ACC}, v{PK+k}, v{W2+k}")
    for pat in ("quad_perm:[1,0,3,2]", "quad_perm:[2,3,0,1]", "row_half_mirror"):
        A(f"v_add_f32_dpp v{ACC}, v{ACC}, v{ACC} {pat} row_mask:0xf bank_mask:0xf")
    A(f"v_cmp_eq_u32 vcc, s{sPASS}, v{vFL}"); A(f"v_cndmask_b32 v{RES}, v{RES}, v{ACC}, vcc")
    A(f"s_add_u32 s{sPASS}, s{sPASS}, 1"); A(f"s_cmp_lt_u32 s{sPASS}, {1 if 'b' in SKIP else 6}"); A("s_cbranch_scc1 L_BLOOP")
    A("s_setprio 2")
    A(f"v_add_u32 v{T}, s{sT}, v{vFL}"); A(f"v_cmp_le_u32 vcc, 9, v{T}"); A(f"v_cndmask_b32 v{T+1}, 0, 63, vcc"); A(f"v_add_u32 v{T}, v{T}, v{T+1}")
    A(f"v_lshlrev_b32 v{T}, 10, v{T}"); A(f"v_lshrrev_b32 v{T+1}, 3, v{vL}"); A(f"v_lshl_add_u32 v{T}, v{T+1}, 2, v{T}")
    A(f"s_mul_i32 s{sT2}, s{sCG}, 9216"); A(f"s_lshl_b32 s{sT3}, s{sP}, 5"); A(f"s_add_u32 s{sT2}, s{sT2}, s{sT3}"); A(f"s_add_u32 s{sT2}, s{sT2}, {W_YP}")
    A(f"v_add_u32 v{T}, s{sT2}, v{T}")
    A(f"s_mov_b32 exec_lo, 0x3f3f3f3f"); A(f"s_mov_b32 exec_hi, 0x3f3f3f3f")
    A(f"global_store_dword v{T}, v{RES}, s[{sWS}:{sWS+1}] sc1")
    stamp(3)
    A("s_mov_b64 exec, -1")

    A.label("L_STREAM")
    stamp(6)
    free = [0, 1, 2, 4, 5, 6, 8, 9, 10, 12]
    def vreg(i): return f"a[{4*i}:{4*i+3}]" if i < 22 else rng(ks(free[i-22]))
    cur = [None]
    def issue(n):
        i = n % 32
        if LAYOUT != 'JJWW':
            A(f"s_xor_b32 s{sT}, s{sBASE}, {i << 12}")
            if n < 32: A(f"buffer_load_dwordx4 {rng(ks(i))}, v{vOFF}, s[{KS}:{KS+3}], s{sT} offen{nt}")
            else: A(f"buffer_load_dwordx4 {vreg(i)}, v{vOFF}, s[{VS}:{VS+3}], s{sT} offen{nt}")
            if ISTAMP and n % 4 == 3: stamp(1 + n // 4, True)
            return
        if cur[0] != (n >> 2):
            A(f"s_xor_b32 s{sT}, s{sBASE}, {(i >> 2) << 14}"); cur[0] = n >> 2
        if n < 32: A(f"buffer_load_dwordx4 {rng(ks(i))}, v{vOFF}, s[{KS}:{KS+3}], s{sT} offen offset:{(i&3)<<10}{nt}")
        else: A(f"buffer_load_dwordx4 {vreg(i)}, v{vOFF}, s[{VS}:{VS+3}], s{sT} offen offset:{(i&3)<<10}{nt}")
    issued = 0
    while issued < NSIG: issue(issued); issued += 1
    A(f"s_cmp_lt_u32 s{sW}, 5"); A("s_cbranch_scc1 L_BDONE")
    A("s_mov_b64 exec, 1")
    A(f"v_mov_b32 v{T+2}, 1"); A(f"v_mov_b32 v{T+3}, {L_CNTB}")
    A(f"s_waitcnt vmcnt({NSIG})")
    A(f"ds_add_rtn_u32 v{T+4}, v{T+3}, v{T+2}")
    A(f"s_lshl_b32 s{sT2}, s{sG}, 4"); A(f"s_add_u32 s{sT2}, s{sT2}, 4"); A(f"s_mov_b32 s{sT3}, 1")
    A("s_waitcnt lgkmcnt(0)")
    A(f"v_readfirstlane_b32 s{sCNT}, v{T+4}")
    A("s_mov_b64 exec, -1")
    A("s_setprio 0")
    stamp(4)
    A(f"s_cmp_lg_u32 s{sCNT}, 2"); A("s_cbranch_scc1 L_BDONE")
    A(f"s_atomic_add s{sT3}, s[{sDBG}:{sDBG+1}], s{sT2}")
    A.label("L_BDONE")
    NW_ = min(NPRE, 44)
    while issued < NW_: issue(issued); issued += 1
    A(f"s_sub_u32 s{sT2}, s{sW}, 1"); A(f"s_cmp_gt_u32 s{sT2}, 2"); A("s_cbranch_scc1 L_NOWO2")
    A(f"s_waitcnt vmcnt({NW_})")
    for k in range(6): A(f"ds_write_b128 v{vG}, a[{64+4*k}:{67+4*k}] offset:{L_WO+1024*k}")
    A(f"v_mov_b32 v{T+2}, 1"); A(f"v_mov_b32 v{T+3}, {L_CNTW}")
    A("s_mov_b64 exec, 1")
    A(f"ds_add_u32 v{T+3}, v{T+2}")
    A("s_mov_b64 exec, -1")
    A("s_waitcnt lgkmcnt(0)")
    A.label("L_NOWO2")
    while issued < NPRE: issue(issued); issued += 1
    stamp(7)
    A(f"v_mov_b32 v{T+3}, {L_QFLAG}"); A(f"s_mov_b32 s{sCNT}, {LIMIT*4}")
    A.label("L_QW")
    A(f"ds_read_b32 v{T}, v{T+3}"); A("s_waitcnt lgkmcnt(0)"); A(f"v_readfirstlane_b32 s{sT2}, v{T}")
    A(f"s_cmp_lg_u32 s{sT2}, 0"); A("s_cbranch_scc1 L_QW_OK")
    A("s_sleep 2"); A(f"s_sub_u32 s{sCNT}, s{sCNT}, 1"); A(f"s_cmp_lg_u32 s{sCNT}, 0"); A("s_cbranch_scc1 L_QW")
    A.label("L_QW_OK")
    A(f"v_bfe_u32 v{T}, v{vL}, 3, 1"); A(f"v_lshlrev_b32 v{T}, 8, v{T}"); A(f"v_and_b32 v{T+1}, 15, v{vL}"); A(f"v_lshl_add_u32 v{T}, v{T+1}, 4, v{T}")
    A(f"v_xor_b32 v{T+1}, 128, v{T}")
    A(f"ds_read_b128 {rng(QA)}, v{T} offset:{L_Q}"); A(f"ds_read_b128 {rng(QB)}, v{T+1} offset:{L_Q}")
    A("s_waitcnt lgkmcnt(0)")
    stamp(8)
    cur[0] = None
    dm = " row_mask:0xf bank_mask:0xf"
    def sreg(i): return ks(4 * (i >> 2) + 3) + (i & 3)
    def more(n, kdone=32):
        nonlocal issued
        for _ in range(n):
            if issued >= 64: return
            i = issued - 32
            assert not (i >= 22 and free[i-22] >= kdone), (i, kdone)
            issue(issued); issued += 1
    for gq in range(8):
        A(f"s_waitcnt vmcnt({issued - (4*gq+4)})")
        Kr = [ks(4*gq+a) for a in range(4)]
        for a in range(4): A(f"v_dot2_f32_bf16 v{T+a}, v{Kr[a]}, v{QA}, 0")
        for c in range(1, 4):
            for a in range(4): A(f"v_dot2c_f32_bf16 v{T+a}, v{Kr[a]+c}, v{QA+c}")
        for c in range(4):
            for a in range(4): A(f"v_dot2c_f32_bf16_dpp v{T+a}, v{Kr[a]+c}, v{QB+c} row_ror:8{dm}")
        more(SCH_QK[gq], 4*gq + 4)
        for a in range(4): A(f"v_add_f32_dpp v{T+a}, v{T+a}, v{T+a} quad_perm:[1,0,3,2]{dm}")
        for a in range(4): A(f"v_add_f32_dpp v{T+a}, v{T+a}, v{T+a} quad_perm:[2,3,0,1]{dm}")
        S = Kr[3]
        for a in range(4): A(f"v_add_f32_dpp v{S+a}, v{T+a}, v{T+a} row_half_mirror{dm}")
        if ROUND:
            A(f"v_cvt_pk_bf16_f32 v{T+4}, v{S}, v{S+1}"); A(f"v_cvt_pk_bf16_f32 v{T+5}, v{S+2}, v{S+3}")
            A(f"v_lshlrev_b32 v{S}, 16, v{T+4}"); A(f"v_and_b32 v{S+1}, 0xffff0000, v{T+4}")
            A(f"v_lshlrev_b32 v{S+2}, 16, v{T+5}"); A(f"v_and_b32 v{S+3}, 0xffff0000, v{T+5}")
            for a in range(4): A(f"v_mul_f32 v{S+a}, {hx(f2u(SCALE))}, v{S+a}")
            A(f"v_cvt_pk_bf16_f32 v{T+4}, v{S}, v{S+1}"); A(f"v_cvt_pk_bf16_f32 v{T+5}, v{S+2}, v{S+3}")
            A(f"v_lshlrev_b32 v{S}, 16, v{T+4}"); A(f"v_and_b32 v{S+1}, 0xffff0000, v{T+4}")
            A(f"v_lshlrev_b32 v{S+2}, 16, v{T+5}"); A(f"v_and_b32 v{S+3}, 0xffff0000, v{T+5}")
        if gq == 0:
            A(f"v_max3_f32 v{vM}, v{S}, v{S+1}, v{S+2}"); A(f"v_max_f32 v{vM}, v{vM}, v{S+3}")
        else:
            A(f"v_max3_f32 v{vM}, v{vM}, v{S}, v{S+1}"); A(f"v_max3_f32 v{vM}, v{vM}, v{S+2}, v{S+3}")
    def xrow(v, t, op):
        A(f"v_mov_b32 v{t}, v{v}"); A(f"v_permlane16_swap_b32 v{t}, v{v}"); A(f"{op} v{v}, v{t}, v{v}")
        A(f"v_mov_b32 v{t}, v{v}"); A(f"v_permlane32_swap_b32 v{t}, v{v}"); A(f"{op} v{v}, v{t}, v{v}")
    xrow(vM, T, "v_max_f32")
    A(f"v_mul_f32 v{vM}, s{sC1}, v{vM}")
    stamp(9)
    A(f"v_mov_b32 v{vLs}, 0")
    for q in range(8):
        for a in range(4): A(f"v_fma_f32 v{sreg(4*q+a)}, v{sreg(4*q+a)}, s{sC1}, -v{vM}")
        for a in range(4): A(f"v_exp_f32 v{sreg(4*q+a)}, v{sreg(4*q+a)}")
        for a in range(4): A(f"v_add_f32 v{vLs}, v{vLs}, v{sreg(4*q+a)}")
        for a in range(4): A(f"v_cvt_pk_bf16_f32 v{sreg(4*q+a)}, v{sreg(4*q+a)}, v{sreg(4*q+a)}")
        more(SCH_SM[q])
    xrow(vLs, T, "v_add_f32")
    assert vLs == vM + 1 and vM % 2 == 0
    vH6 = T + 6
    A(f"v_bfe_u32 v{vH6}, v{vL}, 3, 1"); A(f"v_lshlrev_b32 v{vH6}, 6, v{vH6}")
    A(f"s_lshl_b32 s{sT2}, s{sW}, 3"); A(f"v_add_u32 v{T}, s{sT2}, v{vH6}")
    A(f"v_mov_b32 v{T+2}, 1"); A(f"v_mov_b32 v{T+3}, {L_CNTQK}")
    A("s_mov_b64 exec, 0x101")
    A(f"ds_write_b64 v{T}, v[{vM}:{vM+1}] offset:{L_MLW}")
    A("s_mov_b64 exec, 1")
    A(f"ds_add_rtn_u32 v{T+4}, v{T+3}, v{T+2}")
    A("s_mov_b64 exec, -1")
    A("s_waitcnt lgkmcnt(0)")
    A(f"v_readfirstlane_b32 s{sT2}, v{T+4}")
    A(f"s_cmp_lg_u32 s{sT2}, 7"); A("s_cbranch_scc1 L_NOF")
    MQ = [104, 108, 112, 120]; FF = 124
    for k in range(4): A(f"ds_read_b128 {rng(MQ[k])}, v{vH6} offset:{L_MLW+16*k}")
    mm = [MQ[k // 2] + 2 * (k % 2) for k in range(8)]
    ml_addr(T+2)
    A("s_waitcnt lgkmcnt(0)")
    A(f"v_max3_f32 v{T}, v{mm[0]}, v{mm[1]}, v{mm[2]}"); A(f"v_max3_f32 v{T}, v{T}, v{mm[3]}, v{mm[4]}"); A(f"v_max3_f32 v{T}, v{T}, v{mm[5]}, v{mm[6]}"); A(f"v_max_f32 v{T}, v{T}, v{mm[7]}")
    for k in range(8): A(f"v_sub_f32 v{FF+k}, v{mm[k]}, v{T}")
    for k in range(8): A(f"v_exp_f32 v{FF+k}, v{FF+k}")
    A(f"v_mul_f32 v{T+1}, v{FF}, v{mm[0]+1}")
    for k in range(1, 8): A(f"v_fmac_f32 v{T+1}, v{FF+k}, v{mm[k]+1}")
    A(f"v_lshrrev_b32 v{T+3}, 1, v{vH6}")
    A(f"v_min_u32 v{T}, -2, v{T}"); A(f"v_min_u32 v{T+1}, -2, v{T+1}")
    A("s_mov_b64 exec, 0x101")
    A(f"ds_write_b128 v{T+3}, {rng(FF)} offset:{L_FW}"); A(f"ds_write_b128 v{T+3}, {rng(FF+4)} offset:{L_FW+16}")
    A(f"global_store_dwordx2 v{T+2}, v[{T}:{T+1}], s[{sWS}:{sWS+1}] sc1")
    A("s_mov_b64 exec, -1")
    A.label("L_NOF")
    op_addr(vXo, T)
    A(f"s_lshl_b32 s{sT2}, s{sW}, 10"); A(f"v_add_u32 v{vG}, s{sT2}, v{vOFF}")
    A(f"v_mov_b32 v{T+2}, 1"); A(f"v_mov_b32 v{T+3}, {L_CNTO}"); A(f"v_lshrrev_b32 v{T+4}, 1, v{vH6}")
    cur[0] = None
    for i in range(33):
        if i < 32:
            Bx = B0 if i % 2 == 0 else B1
            for k in range(4): A(f"v_and_b32 v{Bx+k}, v{sreg(i)}, v{MK+k}")
        if i > 0:
            Bp = B0 if (i-1) % 2 == 0 else B1
            assert issued > 32 + i - 1
            A(f"s_waitcnt vmcnt({issued - (32 + i)})")
            A(f"v_mfma_f32_16x16x32_bf16 {rng(D)}, {vreg(i-1)}, {rng(Bp)}, {'0' if i == 1 else rng(D)}")
            more(SCH_PV.get(i-1, 0))
    assert issued == 64, issued
    stamp(10)
    A(f"ds_write_b128 v{vG}, {rng(D)} offset:{L_OW}")
    A("s_mov_b64 exec, 1")
    A(f"ds_add_rtn_u32 v{T+5}, v{T+3}, v{T+2}")
    A("s_mov_b64 exec, -1")
    A("s_waitcnt lgkmcnt(0)")
    A(f"v_readfirstlane_b32 s{sT2}, v{T+5}")
    A(f"s_cmp_lg_u32 s{sT2}, 7"); A("s_cbranch_scc1 L_NOPUB")
    OO = 40; FR = 72
    A(f"ds_read_b128 {rng(FR)}, v{T+4} offset:{L_FW}"); A(f"ds_read_b128 {rng(FR+4)}, v{T+4} offset:{L_FW+16}")
    for k in range(8): A(f"ds_read_b128 {rng(OO+4*k)}, v{vOFF} offset:{L_OW+1024*k}")
    for k in range(8):
        A(f"s_waitcnt lgkmcnt({7-k})")
        for c in range(4):
            if k == 0: A(f"v_mul_f32 v{D+c}, v{FR}, v{OO+c}")
            else: A(f"v_fmac_f32 v{D+c}, v{FR+k}, v{OO+4*k+c}")
    A(f"v_cvt_pk_bf16_f32 v{D}, v{D}, v{D+1}"); A(f"v_cvt_pk_bf16_f32 v{D+1}, v{D+2}, v{D+3}")
    A(f"v_min_u32 v{D}, -2, v{D}"); A(f"v_min_u32 v{D+1}, -2, v{D+1}")
    A(f"global_store_dwordx2 v{vXo}, v[{D}:{D+1}], s[{sWS}:{sWS+1}] sc1")
    stamp(6)
    A.label("L_NOPUB")
    A(f"s_cmp_eq_u32 s{sW}, 2"); A("s_cbranch_scc1 L_HOP2")
    A(f"s_cmp_lg_u32 s{sW}, 1"); A("s_cbranch_scc1 L_EXIT")
    def checkB(tag, va, vd):
        A(f"s_mov_b32 s{sCNT}, {LIMIT}")
        A(f"v_and_b32 v{va}, 15, v{vL}"); A(f"v_lshlrev_b32 v{va}, 4, v{va}")
        A.label(f"L_CB{tag}")
        A(f"global_load_dword v{vd}, v{va}, s[{sDBG}:{sDBG+1}] offset:4 sc1"); A("s_waitcnt vmcnt(0)")
        A(f"v_cmp_ne_u32 vcc, 16, v{vd}"); A(f"s_cbranch_vccz L_CB{tag}_OK")
        A("s_sleep 8"); A(f"s_sub_u32 s{sCNT}, s{sCNT}, 1"); A(f"s_cmp_lg_u32 s{sCNT}, 0"); A(f"s_cbranch_scc1 L_CB{tag}")
        A.label(f"L_CB{tag}_OK")
    def ldswait(tag, addr, val, sleep=2):
        A(f"v_mov_b32 v{T+3}, {addr}"); A(f"s_mov_b32 s{sCNT}, {LIMIT*4}")
        A.label(f"L_{tag}")
        A(f"ds_read_b32 v{T}, v{T+3}"); A("s_waitcnt lgkmcnt(0)"); A(f"v_readfirstlane_b32 s{sT2}, v{T}")
        A(f"s_cmp_eq_u32 s{sT2}, {val}"); A(f"s_cbranch_scc1 L_{tag}_OK")
        A(f"s_sleep {sleep}"); A(f"s_sub_u32 s{sCNT}, s{sCNT}, 1"); A(f"s_cmp_lg_u32 s{sCNT}, 0"); A(f"s_cbranch_scc1 L_{tag}")
        A.label(f"L_{tag}_OK")
    def maxchain(dst, regs):
        A(f"v_max3_u32 v{dst}, v{regs[0]}, v{regs[1]}, v{regs[2]}")
        k = 3
        while k < len(regs):
            if k + 1 < len(regs): A(f"v_max3_u32 v{dst}, v{dst}, v{regs[k]}, v{regs[k+1]}"); k += 2
            else: A(f"v_max_u32 v{dst}, v{dst}, v{regs[k]}"); k += 1
    def pollmask(tag, loads, regs):
        A(f"s_mov_b32 s{sCNT}, {LIMIT}")
        A.label(f"L_{tag}")
        loads()
        A("s_waitcnt vmcnt(0)")
        if len(regs) > 8:
            h = len(regs) // 2
            maxchain(T, regs[:h]); maxchain(T+1, regs[h:]); A(f"v_max_u32 v{T}, v{T}, v{T+1}")
        else: maxchain(T, regs)
        A(f"v_cmp_eq_u32 vcc, -1, v{T}"); A(f"s_cbranch_vccz L_{tag}_OK")
        A("s_mov_b64 exec, vcc")
        if H1SLEEP: A(f"s_sleep {H1SLEEP}")
        A(f"s_sub_u32 s{sCNT}, s{sCNT}, 1"); A(f"s_cmp_lg_u32 s{sCNT}, 0"); A(f"s_cbranch_scc1 L_{tag}")
        A.label(f"L_{tag}_OK")
        A("s_mov_b64 exec, -1")

    WB = 40; RAW = 120; AA = 136; ML = 152; vA = 160; vMLa = 161; vSP = 162; WN = 24
    ldswait("WW", L_CNTW, 3)
    A(f"v_lshrrev_b32 v{T}, 4, v{vL}"); A(f"v_mul_u32_u24 v{T}, 288, v{T}"); A(f"v_and_b32 v{T+1}, 15, v{vL}"); A(f"v_lshl_add_u32 v{T}, v{T+1}, 1, v{T}")
    for n in range(5):
        for half in range(2):
            for t in range(2*half, 2*half+2):
                for e in range(8):
                    A(f"ds_read_u16 v{RAW+8*(t&1)+e}, v{T} offset:{L_WO + 32*n + (32*t + 8*(e&3) + (e>>2))*144}")
            A("s_waitcnt lgkmcnt(0)")
            for t in range(2*half, 2*half+2):
                for k in range(4): A(f"v_lshl_or_b32 v{WB+16*n+4*t+k}, v{RAW+8*(t&1)+2*k+1}, 16, v{RAW+8*(t&1)+2*k}")
    A(f"v_lshlrev_b32 v{vA}, 8, v{T+1}"); A(f"v_lshrrev_b32 v{T}, 4, v{vL}"); A(f"v_lshl_add_u32 v{vA}, v{T}, 4, v{vA}")
    A(f"s_lshl_b32 s{sT}, s{sP}, 12"); A(f"s_add_u32 s{sT}, s{sT}, {W_OP}"); A(f"v_add_u32 v{vA}, s{sT}, v{vA}")
    A(f"s_lshl_b32 s{sT}, s{sP}, 7"); A(f"s_add_u32 s{sT}, s{sT}, {W_ML}"); A(f"v_lshlrev_b32 v{vMLa}, 5, v{T}"); A(f"v_add_u32 v{vMLa}, s{sT}, v{vMLa}")
    A(f"v_lshrrev_b32 v{vSP}, 5, v{vL}"); A(f"v_mul_u32_u24 v{vSP}, 73728, v{vSP}")
    A(f"v_bfe_u32 v{T}, v{vL}, 3, 2"); A(f"v_lshl_add_u32 v{vSP}, v{T}, 10, v{vSP}"); A(f"v_and_b32 v{T}, 7, v{vL}"); A(f"v_lshl_add_u32 v{vSP}, v{T}, 2, v{vSP}")
    A(f"s_mul_i32 s{sT}, s{sCG}, 9216"); A(f"s_lshl_b32 s{sT2}, s{sP}, 5"); A(f"s_add_u32 s{sT}, s{sT}, s{sT2}"); A(f"s_add_u32 s{sT}, s{sT}, {W_SP}"); A(f"v_add_u32 v{vSP}, s{sT}, v{vSP}")
    A(f"v_add_u32 v{vSP+1}, 4096, v{vSP}"); A(f"v_add_u32 v{vSP+2}, 8192, v{vSP}")
    checkB("T", T, T+1)
    stamp(2)
    ldswait("OW", L_CNTO, 8, 1)
    stamp(4)
    pollmask("HM", lambda: [A(f"global_load_dwordx4 {rng(ML+4*t)}, v{vMLa}, s[{sWS}:{sWS+1}] offset:{16*t} sc1") for t in range(2)], list(range(ML, ML+8)))
    def aloads():
        for t in range(4): A(f"global_load_dwordx4 {rng(AA+4*t)}, v{vA}, s[{sWS}:{sWS+1}] offset:{64*t} sc1")
    m = [ML, ML+2, ML+4, ML+6]; l = [ML+1, ML+3, ML+5, ML+7]
    A(f"v_max3_f32 v{T}, v{m[0]}, v{m[1]}, v{m[2]}"); A(f"v_max_f32 v{T}, v{T}, v{m[3]}")
    A(f"v_mov_b32 v{T+1}, v{T}"); A(f"v_permlane16_swap_b32 v{T+1}, v{T}"); A(f"v_max_f32 v{T}, v{T+1}, v{T}")
    for i in range(4): A(f"v_sub_f32 v{m[i]}, v{m[i]}, v{T}")
    for i in range(4): A(f"v_exp_f32 v{m[i]}, v{m[i]}")
    A(f"v_mul_f32 v{T+2}, v{m[0]}, v{l[0]}")
    for i in range(1, 4): A(f"v_fmac_f32 v{T+2}, v{m[i]}, v{l[i]}")
    A(f"v_mov_b32 v{T+1}, v{T+2}"); A(f"v_permlane16_swap_b32 v{T+1}, v{T+2}"); A(f"v_add_f32 v{T+2}, v{T+1}, v{T+2}")
    A(f"v_rcp_f32 v{T+2}, v{T+2}")
    for i in range(4): A(f"v_mul_f32 v{WN+i}, v{m[i]}, v{T+2}")
    stamp(3)
    pollmask("H1", aloads, list(range(AA, AA+16)))
    stamp(7)
    for t in range(4):
        for n in range(5):
            A(f"v_mfma_f32_16x16x32_bf16 {rng(4+4*n)}, {rng(AA+4*t)}, {rng(WB+16*n+4*t)}, {'0' if t == 0 else rng(4+4*n)}")
    for n in range(5):
        A(f"v_mul_f32 v{T+n}, v{WN}, v{4+4*n}")
        for i in range(1, 4): A(f"v_fmac_f32 v{T+n}, v{WN+i}, v{4+4*n+i}")
        if n in (1, 3):
            A(f"v_permlane16_swap_b32 v{T+n-1}, v{T+n}"); A(f"v_add_f32 v{T+n}, v{T+n-1}, v{T+n}"); A(f"v_min_u32 v{T+n}, -2, v{T+n}")
            A(f"global_store_dword v{vSP+n//2}, v{T+n}, s[{sWS}:{sWS+1}] sc1")
    A(f"v_mov_b32 v{T+5}, v{T+4}"); A(f"v_permlane16_swap_b32 v{T+5}, v{T+4}"); A(f"v_add_f32 v{T+4}, v{T+5}, v{T+4}"); A(f"v_min_u32 v{T+4}, -2, v{T+4}")
    A("s_mov_b32 exec_lo, 0xff"); A("s_mov_b32 exec_hi, 0xff")
    A(f"global_store_dword v{vSP+2}, v{T+4}, s[{sWS}:{sWS+1}] sc1")
    A("s_mov_b64 exec, -1")
    stamp(5)
    A("s_branch L_EXIT")

    A.label("L_HOP2")
    A(f"s_cmp_ge_u32 s2, 144"); A("s_cbranch_scc1 L_EXIT")
    YY = 40; SS = 48; vH2 = 56; vOA = 57
    def red32(v, t):
        A(f"v_add_f32 v{v}, v{v}, v{v+1}"); A(f"v_add_f32 v{v+2}, v{v+2}, v{v+3}"); A(f"v_add_f32 v{v}, v{v}, v{v+2}")
        A(f"v_add_f32_dpp v{v}, v{v}, v{v} row_ror:8{dm}")
        xrow(v, t, "v_add_f32")
    checkB("G", T, T+1)
    A(f"v_lshrrev_b32 v{vH2}, 3, v{vL}"); A(f"v_lshlrev_b32 v{vH2}, 7, v{vH2}"); A(f"v_and_b32 v{vOA}, 7, v{vL}"); A(f"v_lshl_add_u32 v{vH2}, v{vOA}, 2, v{vH2}")
    A(f"s_lshl_b32 s{sT}, s2, 10"); A(f"s_add_u32 s{sT}, s{sT}, {W_SP}"); A(f"v_add_u32 v{vH2}, s{sT}, v{vH2}")
    A(f"v_add_u32 v{T}, {W_YP - W_SP}, v{vH2}")
    for k in range(4): A(f"global_load_dword v{YY+k}, v{T}, s[{sWS}:{sWS+1}] offset:{32*k} sc1")
    A(f"v_lshlrev_b32 v{vOA}, 1, v{vOA}"); A(f"s_lshl_b32 s{sT}, s2, 4"); A(f"v_add_u32 v{vOA}, s{sT}, v{vOA}")
    A(f"global_load_ushort v{vXo}, v{vOA}, s[{sX}:{sX+1}]")
    A(f"v_mov_b32 v{T+1}, 0")
    A(f"global_load_ushort v{YY+4}, v{T+1}, s[{sB2}:{sB2+1}]")
    A("s_waitcnt vmcnt(0)")
    red32(YY, YY+5)
    rnd1(YY); A(f"v_lshlrev_b32 v{YY+4}, 16, v{YY+4}"); A(f"v_add_f32 v{YY}, v{YY}, v{YY+4}"); rnd1(YY)
    A(f"v_mul_f32 v{YY+1}, {hx(f2u(-LOG2E))}, v{YY}"); A(f"v_exp_f32 v{YY+1}, v{YY+1}"); A(f"v_add_f32 v{YY+1}, 1.0, v{YY+1}"); A(f"v_rcp_f32 v{YY+1}, v{YY+1}")
    A(f"v_mul_f32 v{vG}, v{YY}, v{YY+1}"); rnd1(vG)
    A(f"v_lshlrev_b32 v{vXo}, 16, v{vXo}")
    stamp(2)
    ldswait("OW2", L_CNTO, 8, 1)
    if H2DELAY: A(f"s_sleep {H2DELAY}")
    pollmask("H2", lambda: [A(f"global_load_dword v{SS+k}, v{vH2}, s[{sWS}:{sWS+1}] offset:{32*k} sc1") for k in range(4)], list(range(SS, SS+4)))
    stamp(7)
    red32(SS, T)
    rnd1(SS); A(f"v_mul_f32 v{SS}, v{SS}, v{vG}"); rnd1(SS); A(f"v_add_f32 v{SS}, v{SS}, v{vXo}")
    A(f"v_cvt_pk_bf16_f32 v{SS}, v{SS}, v{SS}")
    A("s_mov_b64 exec, 0xff")
    A(f"global_store_short v{vOA}, v{SS}, s[{sOUT}:{sOUT+1}]")
    A("s_mov_b64 exec, -1")
    A.label("L_EXIT")
    if DBG:
        stamp(11)
        A("s_waitcnt lgkmcnt(0)")
        A(f"s_cmp_lg_u32 s2, {DBG-1}"); A("s_cbranch_scc1 L_END")
        if ECHO:
            A(f"s_cmp_lg_u32 s{sW}, {ECHO[0]}"); A("s_cbranch_scc1 L_END")
            A(f"s_sub_u32 s{sT}, s{SB+2*ECHO[1]}, s{SB}"); A(f"s_lshl_b32 s{sT}, s{sT}, 2"); A(f"s_add_u32 s{sT}, s{sT}, 4000"); A(f"s_add_u32 s{sT}, s{sT}, s{SB}")
            A.label("L_ECHO")
            A(f"s_memrealtime s[{sA}:{sA+1}]"); A("s_waitcnt lgkmcnt(0)"); A(f"s_sub_u32 s{sT2}, s{sA}, s{sT}"); A(f"s_cmp_lt_i32 s{sT2}, 0"); A("s_cbranch_scc1 L_ECHO")
            A("s_branch L_END")
        A("s_mov_b64 exec, 1")
        for (w, k, slot) in ((2, 7, 2), (5, 10, 3), (0, 6, 6), (1, 5, 7), (5, 3, 10), (0, 1, 11), (1, 9, 14), (6, 9, 15)):
            A(f"s_cmp_lg_u32 s{sW}, {w}"); A(f"s_cbranch_scc1 L_DB{slot}")
            A(f"s_sub_u32 s{sT}, s{SB+2*k}, s{SB}"); A(f"v_mov_b32 v3, {4*slot}"); A(f"v_mov_b32 v4, s{sT}")
            A(f"global_store_dword v3, v4, s[{sDBG}:{sDBG+1}]")
            A.label(f"L_DB{slot}")
    elif STAMP:
        stamp(11)
        A("s_waitcnt lgkmcnt(0)")
        A(f"s_lshl_b32 s{sT}, s2, 3"); A(f"s_add_u32 s{sT}, s{sT}, s{sW}"); A(f"s_mul_i32 s{sT}, s{sT}, {NST*8}"); A(f"s_add_u32 s{sT}, s{sT}, {W_ST}")
        A(f"v_mov_b32 v3, s{sT}")
        if ISTAMP: A("s_mov_b64 s[60:61], s[96:97]")
        for k in range(2*NST): A(f"v_mov_b32 v{40+k}, s{SB+k}")
        A("s_mov_b64 exec, 1")
        for q in range(NST // 2): A(f"global_store_dwordx4 v3, {rng(40+4*q)}, s[{sWS}:{sWS+1}] offset:{16*q}")
    A.label("L_END")
    A("s_endpgm")
    A.raw('.section .rodata,"a"'); A.raw(".p2align 6"); A.raw(f".amdhsa_kernel {KN}_kernel")
    A.raw("  .amdhsa_next_free_vgpr 256"); A.raw("  .amdhsa_next_free_sgpr 102"); A.raw("  .amdhsa_accum_offset 168")
    A.raw("  .amdhsa_group_segment_fixed_size 0"); A.raw("  .amdhsa_kernarg_size 104"); A.raw("  .amdhsa_user_sgpr_count 2")
    A.raw("  .amdhsa_user_sgpr_kernarg_segment_ptr 1"); A.raw("  .amdhsa_system_sgpr_workgroup_id_x 1")
    A.raw("  .amdhsa_float_denorm_mode_32 3")
    A.raw(".end_amdhsa_kernel")
    return A.text()

if __name__ == "__main__":
    out = sys.argv[1]
    kw = eval("dict(" + (sys.argv[2] if len(sys.argv) > 2 else "") + ")")
    open(out, "w").write(gen(**kw))
```

```python
import sys, struct, math
sys.path.insert(0, __file__.rsplit("/", 1)[0] if "/" in __file__ else ".")
from asmlib import Asm
KN = "recurrent_scan__gqa_block_cached__mixer_token_mlp__decode"
def f2u(x): return struct.unpack("<I", struct.pack("<f", x))[0]
def hx(x): return f"0x{x & 0xffffffff:08x}"
LOG2E = 1.4426950408889634
SCALE = 128 ** -0.5
L_MISC = 0
L_QFLAG = 0; L_CNTB = 4; L_CNTI = 8; L_CNTO = 12; L_CNTW = 16; L_SPD = 20; L_EMPTY = 24
L_MLW = 64; L_FW = 192; L_Q = 256; L_OW = 768; L_XL = L_OW + 8192; L_WO = L_XL + 4 * 2304; L_END = L_WO + 128 * 144 + 64
W_QP = 0; W_REC = 0x40000; W_SP = 0x70000; W_YP = 0xA0000; W_PC = 0xE0000; W_ST = 128 << 20
LIMIT = 1 << 18
OOB = 0x200000

def gen(MAP="kvh", CMAP=False, NT=True, ROUND=True, STAMP=False, NPRE=36, NEARLY=54, SCH_QK=(2,)*8, SCH_SM=(1,)*8, SCH_PV={3:1,7:1,11:1,15:1},
        NSIG=8, ECHO=None, H2WAIT="ow", H2DELAY=0, WONT=True, EPRIO=1, PF=3, NFIRST=8, EXTRA=0, WOAT=12, JJ=True, ROT=0):
    GL = 8; BAR2 = False; GATE_AT = 99; NWORK = 4
    A = Asm()
    nt = " nt" if NT else ""
    NST = 12; SB = 76
    POOL = GL < 8
    UPW = 8 - GL if POOL else 0
    NUNIT = 32 * UPW
    if ECHO: STAMP = True
    A.raw(f"; @launch grid=(256,1,1) block=(512,1,1) lds={(L_END + 255) // 256 * 256}")
    if STAMP and not ECHO: A.raw(f"; STAMPS nrec=2048 n={NST}")
    A.raw('.amdgcn_target "amdgcn-amd-amdhsa--gfx950"')
    A.raw(".text"); A.raw(f".globl {KN}_kernel"); A.raw(".p2align 8"); A.raw(f".type {KN}_kernel,@function"); A.raw(f"{KN}_kernel:")
    def stamp(k):
        if STAMP: A(f"s_memrealtime s[{SB+2*k}:{SB+1+2*k}]")
    sX, sK, sV, sWQ, sWO, sW1, sB1, sW2, sB2, sOUT, sDBG, sWS = 4, 6, 8, 10, 12, 16, 18, 20, 22, 24, 26, 28
    KS, VS = 32, 36
    sW, sG, sB, sSP, sJ, sLATE, sCG, sP, sBASE, sT, sT2, sT3, sCNT, sPASS, sC1, sREC = range(40, 56)
    sA = 56; sPC = 58; sBASE2 = 59; sR = 60; sU = 64; sNX = 66; sBIAS = 67; sQP = 68; sRG = 69; sSPB = 70
    vL, vOFF = 1, 2
    D = 4; QA = 8; QB = 12; MK = 16; B0 = 20; B1 = 24; T = 28; vM = 36; vLs = 37; vG = 38; vXo = 39
    KB = 40
    def ks(i): return KB + 4 * i
    def rng(r, n=4): return f"v[{r}:{r+n-1}]"
    dm = " row_mask:0xf bank_mask:0xf"
    ws = f"s[{sWS}:{sWS+1}]"
    if STAMP:
        for k in range(1, NST): A(f"s_mov_b64 s[{SB+2*k}:{SB+1+2*k}], 0")
    stamp(0)
    A("s_load_dwordx16 s[4:19], s[0:1], 0"); A("s_load_dwordx8 s[20:27], s[0:1], 64"); A("s_load_dwordx2 s[28:29], s[0:1], 96")
    A("v_lshrrev_b32 v3, 6, v0"); A(f"v_and_b32 v{vL}, 63, v0")
    A("s_cmp_ge_u32 s2, 256"); A("s_cbranch_scc1 L_END")
    A(f"v_readfirstlane_b32 s{sW}, v3"); A(f"v_lshlrev_b32 v{vOFF}, 4, v{vL}")
    if MAP == "kvh":
        A(f"s_and_b32 s{sG}, s2, 7"); A(f"s_lshr_b32 s{sT}, s2, 7"); A(f"s_lshl_b32 s{sT}, s{sT}, 3"); A(f"s_or_b32 s{sG}, s{sG}, s{sT}")
        A(f"s_bfe_u32 s{sJ}, s2, 0x40003")
    else:
        A(f"s_lshr_b32 s{sG}, s2, 4"); A(f"s_and_b32 s{sJ}, s2, 15")
    A(f"s_and_b32 s{sSP}, s{sJ}, 7"); A(f"s_lshr_b32 s{sB}, s{sJ}, 3")
    A(f"s_and_b32 s{sT}, s{sW}, 3"); A(f"s_lshl_b32 s{sBASE}, s{sT}, {12 if JJ else 10}")
    A(f"s_add_u32 s{sT}, s{sW}, 7"); A(f"s_bfe_u32 s{sLATE}, s{sT}, 0x10002"); A(f"s_lshl_b32 s{sT}, s{sLATE}, 17"); A(f"s_or_b32 s{sBASE}, s{sBASE}, s{sT}")
    A(f"s_lshl_b32 s{sT}, s{sSP}, 18"); A(f"s_or_b32 s{sBASE}, s{sBASE}, s{sT}")
    if ROT:
        A(f"s_mul_i32 s{sT}, s2, 0x9E3779B1"); A(f"s_lshr_b32 s{sT}, s{sT}, {29 if JJ else 27}"); A(f"s_lshl_b32 s{sT}, s{sT}, {14 if JJ else 12}"); A(f"s_or_b32 s{sBASE}, s{sBASE}, s{sT}")
    A(f"s_lshl_b32 s{sT}, s{sB}, 4"); A(f"s_or_b32 s{sT}, s{sT}, s{sG}"); A(f"s_lshl_b32 s{sT}, s{sT}, 21")
    A(f"s_and_b32 s{sT2}, s{sJ}, 1"); A(f"s_lshr_b32 s{sRG}, s{sJ}, 1")
    A(f"s_lshl_b32 s{sQP}, s{sG}, 1"); A(f"s_or_b32 s{sQP}, s{sQP}, s{sT2}")
    A(f"s_mov_b32 s{KS+2}, {OOB}"); A(f"s_mov_b32 s{KS+3}, 0x20000"); A(f"s_mov_b32 s{VS+2}, {OOB}"); A(f"s_mov_b32 s{VS+3}, 0x20000")
    A("s_waitcnt lgkmcnt(0)")
    stamp(1)
    A(f"s_add_u32 s{KS}, s{sK}, s{sT}"); A(f"s_addc_u32 s{KS+1}, s{sK+1}, 0")
    A(f"s_add_u32 s{VS}, s{sV}, s{sT}"); A(f"s_addc_u32 s{VS+1}, s{sV+1}, 0")
    A(f"s_cmp_eq_u32 s{sLATE}, 1"); A("s_cbranch_scc1 L_SERVICE")
    free = [0, 1, 2, 4, 5, 6, 8, 9, 10, 12]
    def vreg(i): return f"a[{4*i}:{4*i+3}]" if i < 22 else rng(ks(free[i-22]))
    cur = [None]
    def issue(n):
        i = n % 32
        dst = rng(ks(i)) if n < 32 else vreg(i)
        srd = f"s[{KS}:{KS+3}]" if n < 32 else f"s[{VS}:{VS+3}]"
        if JJ:
            if i < 4: A(f"buffer_load_dwordx4 {dst}, v{vOFF}, {srd}, s{sBASE} offen offset:{(i&3)<<10}{nt}"); return
            if cur[0] != i >> 2: A(f"s_xor_b32 s{sT}, s{sBASE}, {(i >> 2) << 14}"); cur[0] = i >> 2
            A(f"buffer_load_dwordx4 {dst}, v{vOFF}, {srd}, s{sT} offen offset:{(i&3)<<10}{nt}")
        else:
            A(f"s_xor_b32 s{sT}, s{sBASE}, {i << 12}"); A(f"buffer_load_dwordx4 {dst}, v{vOFF}, {srd}, s{sT} offen{nt}")
    def common():
        if CMAP:
            A(f"s_and_b32 s{sP}, s2, 7"); A(f"s_lshr_b32 s{sT2}, s2, 6"); A(f"s_lshl_b32 s{sT2}, s{sT2}, 3"); A(f"s_or_b32 s{sP}, s{sP}, s{sT2}")
            A(f"s_bfe_u32 s{sCG}, s2, 0x30003")
        else:
            A(f"s_mov_b32 s{sP}, s{sQP}"); A(f"s_mov_b32 s{sCG}, s{sRG}")
        A(f"s_lshl_b32 s{sREC}, s{sG}, 4"); A(f"s_add_u32 s{sREC}, s{sREC}, s{sJ}"); A(f"s_mul_i32 s{sREC}, s{sREC}, 640"); A(f"s_add_u32 s{sREC}, s{sREC}, {W_REC}")
        A(f"s_lshl_b32 s{sSPB}, s{sCG}, 5"); A(f"s_add_u32 s{sSPB}, s{sSPB}, s{sP}"); A(f"s_mul_i32 s{sSPB}, s{sSPB}, 640")
        A(f"v_and_b32 v{MK+3}, 1, v{vL}"); A(f"v_lshlrev_b32 v{MK+3}, 4, v{MK+3}"); A(f"v_mov_b32 v{MK+2}, 0xffff"); A(f"v_lshlrev_b32 v{MK+3}, v{MK+3}, v{MK+2}")
        A(f"v_bfe_u32 v{QA}, v{vL}, 1, 2")
        for k in range(4):
            A(f"v_cmp_eq_u32 vcc, {k}, v{QA}"); A(f"v_cndmask_b32 v{MK+k}, 0, v{MK+3}, vcc")
        A(f"s_mov_b32 s{sC1}, {hx(f2u(LOG2E if ROUND else LOG2E * SCALE))}")
    for n in range(NFIRST): issue(n)
    if PF:
        A(f"s_cmp_lg_u32 s{sW}, 4"); A("s_cbranch_scc1 L_NOPF")
        A(f"s_getpc_b64 s[{sA}:{sA+1}]")
        A.raw("L_PC0:")
        A(f"s_lshr_b32 s{sT2}, s2, 3"); A(f"s_mul_i32 s{sT2}, s{sT2}, {PF}"); A(f"s_and_b32 s{sT2}, s{sT2}, 31")
        for k in range(PF):
            A(f"s_add_u32 s{sT3}, s{sT2}, {k}"); A(f"s_min_u32 s{sT3}, s{sT3}, CODE_KB"); A(f"s_lshl_b32 s{sT3}, s{sT3}, 10"); A(f"v_add_u32 v{T}, s{sT3}, v{vOFF}")
            A(f"global_load_dwordx4 a[84:87], v{T}, s[{sA}:{sA+1}]")
        A.label("L_NOPF")
    common()
    A(f"v_mov_b32 v{vG}, 0")
    A(f"s_cmp_lg_u32 s{sW}, 1"); A("s_cbranch_scc1 L_NOINIT")
    A(f"v_lshlrev_b32 v3, 2, v{vL}")
    A("s_mov_b64 exec, 0xffff"); A(f"ds_write_b32 v3, v{vG} offset:{L_MISC}"); A("s_mov_b64 exec, -1")
    A("s_waitcnt lgkmcnt(0)")
    A.label("L_NOINIT")
    A("s_barrier")
    cur[0] = None
    for n in range(NFIRST, WOAT): issue(n)
    A(f"s_cmp_eq_u32 s{sW}, 4"); A("s_cbranch_scc1 L_NOWO")
    A(f"s_mov_b32 s{sWO+2}, {4096*1152}"); A(f"s_mov_b32 s{sWO+3}, 0x20000")
    A(f"s_sub_u32 s{sT3}, s{sW}, 1"); A(f"s_mul_i32 s{sT3}, s{sT3}, 384"); A(f"v_add_u32 v{vG}, s{sT3}, v{vL}")
    A(f"s_mul_i32 s{sT3}, s{sP}, {128*1152}"); A(f"s_mul_i32 s{sT2}, s{sCG}, 144"); A(f"s_add_u32 s{sT3}, s{sT3}, s{sT2}")
    A(f"s_mov_b32 s{sT2}, 7282")
    for k in range(6):
        A(f"v_add_u32 v{T}, {64*k}, v{vG}"); A(f"v_mul_u32_u24 v{T+1}, s{sT2}, v{T}"); A(f"v_lshrrev_b32 v{T+1}, 16, v{T+1}")
        A(f"v_mul_u32_u24 v{T+1}, {1152-144}, v{T+1}"); A(f"v_lshl_add_u32 v{T+2}, v{T}, 4, v{T+1}")
        A(f"buffer_load_dwordx4 a[{60+4*k}:{63+4*k}], v{T+2}, s[{sWO}:{sWO+3}], s{sT3} offen{nt if WONT else ''}")
    A(f"v_lshlrev_b32 v{vG}, 4, v{vG}")
    A.label("L_NOWO")
    A("s_branch L_STREAM2")
    MARK_SERVICE = len(A.lines)

    def xrow(v, t, op):
        A(f"v_mov_b32 v{t}, v{v}"); A(f"v_permlane16_swap_b32 v{t}, v{v}"); A(f"{op} v{v}, v{t}, v{v}")
        A(f"v_mov_b32 v{t}, v{v}"); A(f"v_permlane32_swap_b32 v{t}, v{v}"); A(f"{op} v{v}, v{t}, v{v}")
    def rnd1(v):
        A(f"v_cvt_pk_bf16_f32 v{v}, v{v}, v{v}"); A(f"v_lshlrev_b32 v{v}, 16, v{v}")
    def ldswait(tag, addr, val, sleep=2, cmp="eq"):
        A(f"v_mov_b32 v{T+3}, {addr}"); A(f"s_mov_b32 s{sCNT}, {LIMIT*4}")
        A.label(f"L_{tag}")
        A(f"ds_read_b32 v{T}, v{T+3}"); A("s_waitcnt lgkmcnt(0)"); A(f"v_readfirstlane_b32 s{sT2}, v{T}")
        A(f"s_cmp_{cmp}_u32 s{sT2}, {val}"); A(f"s_cbranch_scc1 L_{tag}_OK")
        A(f"s_sleep {sleep}"); A(f"s_sub_u32 s{sCNT}, s{sCNT}, 1"); A(f"s_cmp_lg_u32 s{sCNT}, 0"); A(f"s_cbranch_scc1 L_{tag}")
        A.label(f"L_{tag}_OK")
    def ldsinc(addr):
        A(f"v_mov_b32 v{T+6}, 1"); A(f"v_mov_b32 v{T+7}, {addr}")
        A("s_mov_b64 exec, 1"); A(f"ds_add_u32 v{T+7}, v{T+6}"); A("s_mov_b64 exec, -1")

    X = 40; E = 50; vXO = 3
    def xloads():
        A(f"v_lshrrev_b32 v{T}, 5, v{vL}"); A(f"v_mul_u32_u24 v{T}, 1152, v{T}")
        A(f"v_and_b32 v{vXO}, 31, v{vL}"); A(f"v_lshl_add_u32 v{vXO}, v{vXO}, 2, v{T}")
        for k in range(9): A(f"global_load_dword v{X+k}, v{vXO}, s[{sX}:{sX+1}] offset:{128*k}")
    WQ = 96
    A.label("L_SERVICE")
    A(f"s_cmp_lg_u32 s{sW}, 0"); A("s_cbranch_scc1 L_Y_PRE")
    A("s_setprio 3")
    xloads()
    A(f"s_mov_b32 s{sR}, s{sWQ}"); A(f"s_mov_b32 s{sR+1}, s{sWQ+1}"); A(f"s_mov_b32 s{sR+2}, {576*8192}"); A(f"s_mov_b32 s{sR+3}, 0x20000")
    A(f"v_lshrrev_b32 v{T+4}, 4, v{vL}"); A(f"v_lshlrev_b32 v{T+4}, 13, v{T+4}"); A(f"v_and_b32 v{T+1}, 15, v{vL}"); A(f"v_lshl_add_u32 v{T+4}, v{T+1}, 4, v{T+4}")
    A(f"s_mul_i32 s{sT}, s{sRG}, {72*8192}"); A(f"s_lshl_b32 s{sT2}, s{sQP}, 8"); A(f"s_add_u32 s{sT}, s{sT}, s{sT2}")
    for i in range(18):
        A(f"buffer_load_dwordx4 {rng(WQ+4*i)}, v{T+4}, s[{sR}:{sR+3}], s{sT} offen{nt}")
        if i < 17: A(f"s_add_u32 s{sT}, s{sT}, 32768")
    common()
    A("s_barrier")
    for k in range(4): A(f"v_mov_b32 v{B0+k}, -1")
    A(f"v_add_u32 v{T}, s{sREC}, v{vOFF}"); A(f"s_add_u32 s{sT}, s{sSPB}, {W_SP}"); A(f"v_add_u32 v{T+1}, s{sT}, v{vOFF}")
    A("s_mov_b32 exec_hi, 3"); A(f"global_store_dwordx4 v{T}, {rng(B0)}, {ws} sc1")
    A("s_mov_b32 exec_hi, 15"); A(f"global_store_dwordx4 v{T+1}, {rng(B0)}, {ws} sc1")
    A("s_mov_b64 exec, -1")
    A(f"s_mov_b32 s{sPASS}, 1"); A(f"s_mov_b32 s{sT3}, {L_XL}")
    A("s_waitcnt vmcnt(20)")
    A("s_branch L_LN")

    WR = 70
    A.label("L_Y_PRE")
    A("s_setprio 2")
    xloads()
    common()
    A("s_barrier")
    A(f"v_and_b32 v{T}, 7, v{vL}"); A(f"v_mul_u32_u24 v{T}, 36, v{T}"); A(f"s_mul_i32 s{sT}, s{sP}, 288"); A(f"v_add_u32 v{T}, s{sT}, v{T}")
    for a, sp_ in enumerate((sW1, sB1, sW2)):
        R = WR + 10 * a
        A(f"global_load_dwordx4 {rng(R)}, v{T}, s[{sp_}:{sp_+1}]"); A(f"global_load_dwordx4 {rng(R+4)}, v{T}, s[{sp_}:{sp_+1}] offset:16")
        A(f"global_load_dword v{R+8}, v{T}, s[{sp_}:{sp_+1}] offset:32")
    A(f"s_mov_b32 s{sPASS}, 2"); A(f"s_sub_u32 s{sT3}, s{sW}, 4"); A(f"s_mul_i32 s{sT3}, s{sT3}, 2304"); A(f"s_add_u32 s{sT3}, s{sT3}, {L_XL}")
    A("s_waitcnt vmcnt(9)")

    def allred32(v, t, op):
        for pat in ("quad_perm:[1,0,3,2]", "quad_perm:[2,3,0,1]", "row_half_mirror", "row_mirror"):
            A(f"{op}_dpp v{v}, v{v}, v{v} {pat}{dm}")
        A(f"v_mov_b32 v{t}, v{v}"); A(f"v_permlane16_swap_b32 v{t}, v{v}"); A(f"{op} v{v}, v{t}, v{v}")
    A.label("L_LN")
    for k in range(9):
        A(f"v_lshlrev_b32 v{E+2*k}, 16, v{X+k}"); A(f"v_and_b32 v{E+2*k+1}, 0xffff0000, v{X+k}")
    A(f"v_add_f32 v{T}, v{E}, v{E+1}"); A(f"v_add_f32 v{T+1}, v{E+2}, v{E+3}")
    for k in range(4, 18, 2):
        A(f"v_add_f32 v{T}, v{T}, v{E+k}"); A(f"v_add_f32 v{T+1}, v{T+1}, v{E+k+1}")
    A(f"v_add_f32 v{T}, v{T}, v{T+1}")
    allred32(T, T+1, "v_add_f32")
    A(f"v_mul_f32 v{T}, {hx(f2u(1/576))}, v{T}")
    A(f"v_mov_b32 v{T+2}, 0"); A(f"v_mov_b32 v{T+3}, 0")
    for k in range(0, 18, 2):
        A(f"v_sub_f32 v{T+4}, v{E+k}, v{T}"); A(f"v_sub_f32 v{T+5}, v{E+k+1}, v{T}")
        A(f"v_fmac_f32 v{T+2}, v{T+4}, v{T+4}"); A(f"v_fmac_f32 v{T+3}, v{T+5}, v{T+5}")
    A(f"v_add_f32 v{T+2}, v{T+2}, v{T+3}")
    allred32(T+2, T+3, "v_add_f32")
    A(f"v_mul_f32 v{T+2}, {hx(f2u(1/576))}, v{T+2}")
    rnd1(T); rnd1(T+2)
    A(f"v_add_f32 v{T+2}, {hx(f2u(1e-5))}, v{T+2}"); rnd1(T+2)
    A(f"v_sqrt_f32 v{T+2}, v{T+2}"); rnd1(T+2)
    A(f"v_rcp_f32 v{T+2}, v{T+2}")
    for k in range(9):
        a, b = E+2*k, E+2*k+1
        A(f"v_sub_f32 v{a}, v{a}, v{T}"); A(f"v_sub_f32 v{b}, v{b}, v{T}")
        A(f"v_cvt_pk_bf16_f32 v{X+k}, v{a}, v{b}")
        A(f"v_lshlrev_b32 v{a}, 16, v{X+k}"); A(f"v_and_b32 v{b}, 0xffff0000, v{X+k}")
        A(f"v_mul_f32 v{a}, v{a}, v{T+2}"); A(f"v_mul_f32 v{b}, v{b}, v{T+2}")
        A(f"v_cvt_pk_bf16_f32 v{X+k}, v{a}, v{b}")
    A(f"s_sub_u32 s{sPASS}, s{sPASS}, 1"); A(f"s_cmp_lg_u32 s{sPASS}, 0"); A("s_cbranch_scc1 L_LN")
    A(f"v_add_u32 v{vXO}, s{sT3}, v{vXO}")
    for k in range(9): A(f"ds_write_b32 v{vXO}, v{X+k} offset:{128*k}")
    A(f"s_cmp_lg_u32 s{sW}, 0"); A("s_cbranch_scc1 L_BBR")

    XV = 50
    A(f"v_bfe_u32 v{T}, v{vL}, 3, 1"); A(f"v_mul_u32_u24 v{T}, 1152, v{T}")
    A(f"v_lshrrev_b32 v{T+1}, 4, v{vL}"); A(f"v_lshl_add_u32 v{T}, v{T+1}, 1, v{T}")
    A(f"s_mul_i32 s{sT}, s{sRG}, 144"); A(f"s_add_u32 s{sT}, s{sT}, {L_XL}"); A(f"v_add_u32 v{T}, s{sT}, v{T}")
    A("s_waitcnt lgkmcnt(0)")
    for i in range(18):
        A(f"ds_read_u16 v{XV+i}, v{T} offset:{8*i}")
        if i == 8: A("s_waitcnt lgkmcnt(0)")
    A("s_waitcnt lgkmcnt(0)")
    for i in range(18): A(f"v_lshl_or_b32 v{XV+i}, v{XV+i}, 16, v{XV+i}")
    for i in range(18):
        Bx = B0 if i % 2 == 0 else B1
        for k in range(4): A(f"v_and_b32 v{Bx+k}, v{XV+i}, v{MK+k}")
        if i > 0:
            Bp = B1 if i % 2 == 0 else B0
            A(f"s_waitcnt vmcnt({19-(i-1)})")
            A(f"v_mfma_f32_16x16x32_bf16 {rng(D)}, {rng(WQ+4*(i-1))}, {rng(Bp)}, {'0' if i == 1 else rng(D)}")
    A("s_waitcnt vmcnt(2)")
    A(f"v_mfma_f32_16x16x32_bf16 {rng(D)}, {rng(WQ+4*17)}, {rng(B1)}, {rng(D)}")
    A(f"v_bfe_u32 v{T}, v{vL}, 3, 1"); A(f"v_lshlrev_b32 v{T}, 13, v{T}")
    A(f"v_lshrrev_b32 v{T+1}, 4, v{vL}"); A(f"v_lshl_add_u32 v{T}, v{T+1}, 7, v{T}")
    A(f"v_and_b32 v{T+1}, 7, v{vL}"); A(f"v_lshl_add_u32 v{T}, v{T+1}, 4, v{T}")
    A(f"s_lshl_b32 s{sT}, s{sG}, 14"); A(f"s_lshl_b32 s{sT2}, s{sJ}, 9"); A(f"s_add_u32 s{sT}, s{sT}, s{sT2}")
    A(f"v_add_u32 v{T}, s{sT}, v{T}")
    A(f"global_store_dwordx4 v{T}, {rng(D)}, {ws} sc1")
    stamp(2)
    A(f"s_lshl_b32 s{sT}, s{sG}, 4"); A(f"s_mov_b32 s{sT2}, 1"); A(f"s_add_u32 s{sT3}, s{sREC}, 528")
    A("s_waitcnt vmcnt(0)")
    A(f"s_atomic_add s{sT2}, s[{sDBG}:{sDBG+1}], s{sT} glc"); A("s_waitcnt lgkmcnt(0)")
    A(f"s_cmp_lg_u32 s{sT2}, 15"); A("s_cbranch_scc1 L_NOTMASTER")
    A(f"s_mul_i32 s{sT}, s{sG}, {16*640}"); A(f"s_add_u32 s{sT}, s{sT}, {W_REC+528}"); A(f"s_add_u32 s{sA}, s{sWS}, s{sT}"); A(f"s_addc_u32 s{sA+1}, s{sWS+1}, 0")
    A(f"s_mov_b32 s{sT2}, 0")
    for j in range(16): A(f"s_atomic_and s{sT2}, s[{sA}:{sA+1}], {640*j}")
    A("s_branch L_POLLA_OK")
    A.label("L_NOTMASTER")
    A(f"s_mov_b32 s{sCNT}, {LIMIT}")
    A.label("L_POLLA")
    A(f"s_load_dword s{sT2}, {ws}, s{sT3} glc"); A("s_waitcnt lgkmcnt(0)")
    A(f"s_cmp_eq_u32 s{sT2}, 0"); A("s_cbranch_scc1 L_POLLA_OK")
    A("s_sleep 2"); A(f"s_sub_u32 s{sCNT}, s{sCNT}, 1"); A(f"s_cmp_lg_u32 s{sCNT}, 0"); A("s_cbranch_scc1 L_POLLA")
    A.label("L_POLLA_OK")
    stamp(3)
    A(f"s_lshl_b32 s{sT}, s{sG}, 14"); A(f"s_lshl_b32 s{sT2}, s{sB}, 13"); A(f"s_add_u32 s{sT}, s{sT}, s{sT2}")
    A(f"v_add_u32 v{T}, s{sT}, v{vOFF}"); A(f"v_add_u32 v{T+1}, 4096, v{T}")
    for r in range(8): A(f"global_load_dwordx4 {rng(40+4*r)}, v{T + r//4}, {ws} offset:{1024*(r%4)} sc1")
    A(f"v_lshrrev_b32 v{T+2}, 3, v{vL}"); A(f"v_lshlrev_b32 v{T+2}, 6, v{T+2}"); A(f"v_and_b32 v{T+3}, 7, v{vL}"); A(f"v_lshl_add_u32 v{T+2}, v{T+3}, 1, v{T+2}")
    for r in range(1, 8):
        A(f"s_waitcnt vmcnt({7-r})")
        for k in range(4): A(f"v_add_f32 v{40+k}, v{40+k}, v{40+4*r+k}")
    A(f"v_cvt_pk_bf16_f32 v40, v40, v41"); A(f"v_cvt_pk_bf16_f32 v41, v42, v43")
    A(f"ds_write_b16 v{T+2}, v40 offset:{L_Q}"); A(f"ds_write_b16_d16_hi v{T+2}, v40 offset:{L_Q+16}")
    A(f"ds_write_b16 v{T+2}, v41 offset:{L_Q+32}"); A(f"ds_write_b16_d16_hi v{T+2}, v41 offset:{L_Q+48}")
    A(f"v_mov_b32 v{T+2}, 1"); A(f"v_mov_b32 v{T+3}, {L_QFLAG}")
    A("s_waitcnt lgkmcnt(0)")
    A(f"ds_write_b32 v{T+3}, v{T+2}")
    A("s_setprio 0")
    A("s_branch L_STREAM")

    A.label("L_BBR")
    W1 = 100; BB = 118; W2 = WR + 20; U = 136; PK = 40; ZZ = 50; RES = 154; vC1 = 156; vC0 = 158; vONE = 160; vH = 162; vHA = 164; ACC = 165; vFL = 166
    def pr(r): return f"v[{r}:{r+1}]"
    A("s_waitcnt vmcnt(0)")
    for k in range(9):
        A(f"v_lshlrev_b32 v{W1+2*k}, 16, v{WR+k}"); A(f"v_and_b32 v{W1+2*k+1}, 0xffff0000, v{WR+k}")
        A(f"v_lshlrev_b32 v{BB+2*k}, 16, v{WR+10+k}"); A(f"v_and_b32 v{BB+2*k+1}, 0xffff0000, v{WR+10+k}")
    c0 = -2 * math.sqrt(2 / math.pi) * LOG2E; c1 = c0 * 0.044715
    for k in range(2):
        A(f"v_mov_b32 v{vC1+k}, {hx(f2u(c1))}"); A(f"v_mov_b32 v{vC0+k}, {hx(f2u(c0))}"); A(f"v_mov_b32 v{vONE+k}, 1.0")
    A(f"v_and_b32 v{vFL}, 7, v{vL}")
    A(f"s_sub_u32 s{sT}, s{sW}, 5"); A(f"s_mul_i32 s{sT}, s{sT}, 6")
    A(f"s_mul_i32 s{sT2}, s{sCG}, 144"); A(f"s_add_u32 s{sT3}, s{sT3}, s{sT2}")
    A(f"v_lshrrev_b32 v{vHA}, 3, v{vL}"); A(f"v_lshlrev_b32 v{vHA}, 1, v{vHA}"); A(f"v_add_u32 v{vHA}, s{sT3}, v{vHA}")
    A(f"s_mov_b32 s{sPASS}, 0"); A(f"v_mov_b32 v{RES}, 0")
    A("s_setprio 0")
    A.label("L_BLOOP")
    A(f"s_add_u32 s{sT2}, s{sT}, s{sPASS}"); A(f"s_cmp_ge_u32 s{sT2}, 9"); A(f"s_cselect_b32 s{sT3}, 63, 0"); A(f"s_add_u32 s{sT2}, s{sT2}, s{sT3}"); A(f"s_lshl_b32 s{sT2}, s{sT2}, 4")
    A(f"v_add_u32 v{vH+1}, s{sT2}, v{vHA}")
    A(f"ds_read_u16 v{vH}, v{vH+1}")
    A("s_waitcnt lgkmcnt(0)")
    A(f"v_lshlrev_b32 v{vH}, 16, v{vH}"); A(f"v_mov_b32 v{vH+1}, v{vH}")
    def round9():
        for k in range(9): A(f"v_cvt_pk_bf16_f32 v{PK+k}, v{U+2*k}, v{U+2*k+1}")
        for k in range(9):
            A(f"v_lshlrev_b32 v{U+2*k}, 16, v{PK+k}"); A(f"v_and_b32 v{U+2*k+1}, 0xffff0000, v{PK+k}")
    for k in range(9): A(f"v_pk_mul_f32 {pr(U+2*k)}, {pr(vH)}, {pr(W1+2*k)}")
    round9()
    for k in range(9): A(f"v_pk_add_f32 {pr(U+2*k)}, {pr(U+2*k)}, {pr(BB+2*k)}")
    round9()
    for k in range(9): A(f"v_pk_mul_f32 {pr(ZZ+2*k)}, {pr(U+2*k)}, {pr(U+2*k)}")
    for k in range(9): A(f"v_pk_fma_f32 {pr(ZZ+2*k)}, {pr(ZZ+2*k)}, {pr(vC1)}, {pr(vC0)}")
    for k in range(9): A(f"v_pk_mul_f32 {pr(ZZ+2*k)}, {pr(ZZ+2*k)}, {pr(U+2*k)}")
    for k in range(18): A(f"v_exp_f32 v{ZZ+k}, v{ZZ+k}")
    for k in range(9): A(f"v_pk_add_f32 {pr(ZZ+2*k)}, {pr(ZZ+2*k)}, {pr(vONE)}")
    for k in range(18): A(f"v_rcp_f32 v{ZZ+k}, v{ZZ+k}")
    for k in range(9): A(f"v_pk_mul_f32 {pr(U+2*k)}, {pr(U+2*k)}, {pr(ZZ+2*k)}")
    for k in range(9): A(f"v_cvt_pk_bf16_f32 v{PK+k}, v{U+2*k}, v{U+2*k+1}")
    A(f"v_mov_b32 v{ACC}, 0")
    for k in range(9): A(f"v_dot2c_f32_bf16 v{ACC}, v{PK+k}, v{W2+k}")
    for pat in ("quad_perm:[1,0,3,2]", "quad_perm:[2,3,0,1]", "row_half_mirror"):
        A(f"v_add_f32_dpp v{ACC}, v{ACC}, v{ACC} {pat}{dm}")
    A(f"v_cmp_eq_u32 vcc, s{sPASS}, v{vFL}"); A(f"v_cndmask_b32 v{RES}, v{RES}, v{ACC}, vcc")
    A(f"s_add_u32 s{sPASS}, s{sPASS}, 1"); A(f"s_cmp_lt_u32 s{sPASS}, 6"); A("s_cbranch_scc1 L_BLOOP")
    A("s_setprio 2")
    A(f"v_lshlrev_b32 v{T}, 5, v{vFL}"); A(f"v_lshrrev_b32 v{T+1}, 3, v{vL}"); A(f"v_lshl_add_u32 v{T}, v{T+1}, 2, v{T}")
    A(f"s_lshl_b32 s{sT}, s{sT}, 5"); A(f"s_add_u32 s{sT}, s{sT}, s{sSPB}"); A(f"s_add_u32 s{sT}, s{sT}, {W_YP}"); A(f"v_add_u32 v{T}, s{sT}, v{T}")
    A(f"s_mov_b32 exec_lo, 0x3f3f3f3f"); A(f"s_mov_b32 exec_hi, 0x3f3f3f3f")
    A(f"global_store_dword v{T}, v{RES}, {ws} sc1")
    A("s_mov_b64 exec, -1")
    if EXTRA:
        A(f"s_lshl_b32 s{sT}, s2, 3"); A(f"s_add_u32 s{sT}, s{sT}, s{sW}"); A(f"s_lshl_b32 s{sT}, s{sT}, 13"); A(f"s_add_u32 s{sT}, s{sT}, 0x1000000"); A(f"v_add_u32 v{T}, s{sT}, v{vOFF}")
        for k in range(EXTRA): A(f"global_store_dwordx4 v{T}, v[40:43], {ws} offset:{1024*k} sc1")
    stamp(2)

    A.label("L_STREAM")
    stamp(6)
    A(f"v_mov_b32 v{vG}, 0")
    cur[0] = None
    issued = 0
    while issued < NSIG: issue(issued); issued += 1
    A(f"s_cmp_lt_u32 s{sW}, 5"); A("s_cbranch_scc1 L_BDONE")
    A("s_mov_b64 exec, 1")
    A(f"v_mov_b32 v{T+2}, 1"); A(f"v_mov_b32 v{T+3}, {L_CNTB}")
    A(f"s_waitcnt vmcnt({NSIG})")
    A(f"ds_add_rtn_u32 v{T+4}, v{T+3}, v{T+2}")
    A(f"s_lshl_b32 s{sT2}, s{sG}, 4"); A(f"s_add_u32 s{sT2}, s{sT2}, 4"); A(f"s_mov_b32 s{sT3}, 1")
    A("s_waitcnt lgkmcnt(0)")
    A(f"v_readfirstlane_b32 s{sCNT}, v{T+4}")
    A("s_mov_b64 exec, -1")
    A("s_setprio 0")
    A(f"s_cmp_lg_u32 s{sCNT}, 2"); A("s_cbranch_scc1 L_BDONE")
    A(f"s_atomic_add s{sT3}, s[{sDBG}:{sDBG+1}], s{sT2}")
    A.label("L_BDONE")
    cur[0] = None
    while issued < WOAT: issue(issued); issued += 1
    MARK_STREAM2 = len(A.lines)
    A.label("L_STREAM2")
    cur[0] = None
    while issued < NPRE: issue(issued); issued += 1
    A(f"s_cmp_eq_u32 s{sLATE}, 1"); A("s_cbranch_scc1 L_LATE0")
    e = NPRE
    while e < min(NEARLY, 46): issue(e); e += 1
    A(f"s_cmp_eq_u32 s{sW}, 4"); A("s_cbranch_scc1 L_NOWO2")
    A(f"s_waitcnt vmcnt({e - WOAT})")
    for k in range(6): A(f"ds_write_b128 v{vG}, a[{60+4*k}:{63+4*k}] offset:{L_WO+1024*k}")
    ldsinc(L_CNTW)
    A("s_waitcnt lgkmcnt(0)")
    A.label("L_NOWO2")
    cur[0] = None
    while e < NEARLY: issue(e); e += 1
    A.label("L_LATE0")
    stamp(7)
    ldswait("QW", L_QFLAG, 0, 2, "lg")
    A(f"v_bfe_u32 v{T}, v{vL}, 3, 1"); A(f"v_lshlrev_b32 v{T}, 8, v{T}"); A(f"v_and_b32 v{T+1}, 15, v{vL}"); A(f"v_lshl_add_u32 v{T}, v{T+1}, 4, v{T}")
    A(f"v_xor_b32 v{T+1}, 128, v{T}")
    A(f"ds_read_b128 {rng(QA)}, v{T} offset:{L_Q}"); A(f"ds_read_b128 {rng(QB)}, v{T+1} offset:{L_Q}")
    A("s_waitcnt lgkmcnt(0)")
    stamp(8)
    if EPRIO:
        A(f"s_cmp_eq_u32 s{sLATE}, 1"); A("s_cbranch_scc1 L_NOEP"); A(f"s_setprio {EPRIO}"); A.label("L_NOEP")
    def sreg(i): return ks(4 * (i >> 2) + 3) + (i & 3)
    nlab = [0]
    def more(n, kdone=32):
        nonlocal issued
        todo = list(range(issued, min(issued + n, 64)))
        lateonly = [k for k in todo if k < NEARLY]; both = [k for k in todo if k >= NEARLY]
        gate = POOL and issued < GATE_AT <= issued + len(todo)
        if lateonly or gate:
            nlab[0] += 1
            A(f"s_cmp_eq_u32 s{sLATE}, 0"); A(f"s_cbranch_scc1 L_SK{nlab[0]}")
            cur[0] = None
            for k in lateonly: issue(k)
            if gate: ldsinc(L_CNTI); A("s_setprio 2")
            A.label(f"L_SK{nlab[0]}")
        cur[0] = None
        for k in both:
            i = k - 32
            assert not (i >= 22 and free[i-22] >= kdone), (i, kdone)
            issue(k)
        issued += len(todo)
    def qk(Kr, S, mid=None, bias=False):
        for a in range(4): A(f"v_dot2_f32_bf16 v{T+a}, v{Kr[a]}, v{QA}, 0")
        for c in range(1, 4):
            for a in range(4): A(f"v_dot2c_f32_bf16 v{T+a}, v{Kr[a]+c}, v{QA+c}")
        for c in range(4):
            for a in range(4): A(f"v_dot2c_f32_bf16_dpp v{T+a}, v{Kr[a]+c}, v{QB+c} row_ror:8{dm}")
        if mid: mid()
        for a in range(4): A(f"v_add_f32_dpp v{T+a}, v{T+a}, v{T+a} quad_perm:[1,0,3,2]{dm}")
        for a in range(4): A(f"v_add_f32_dpp v{T+a}, v{T+a}, v{T+a} quad_perm:[2,3,0,1]{dm}")
        for a in range(4): A(f"v_add_f32_dpp v{S+a}, v{T+a}, v{T+a} row_half_mirror{dm}")
        if ROUND:
            for rep in range(2):
                A(f"v_cvt_pk_bf16_f32 v{T+4}, v{S}, v{S+1}"); A(f"v_cvt_pk_bf16_f32 v{T+5}, v{S+2}, v{S+3}")
                A(f"v_lshlrev_b32 v{S}, 16, v{T+4}"); A(f"v_and_b32 v{S+1}, 0xffff0000, v{T+4}")
                A(f"v_lshlrev_b32 v{S+2}, 16, v{T+5}"); A(f"v_and_b32 v{S+3}, 0xffff0000, v{T+5}")
                if rep == 0:
                    for a in range(4): A(f"v_mul_f32 v{S+a}, {hx(f2u(SCALE))}, v{S+a}")
        if bias:
            for a in range(4): A(f"v_add_f32 v{S+a}, s{sBIAS}, v{S+a}")
    for gq in range(8):
        A(f"s_waitcnt vmcnt({issued - (4*gq+4)})")
        S = ks(4*gq+3)
        qk([ks(4*gq+a) for a in range(4)], S, lambda: more(SCH_QK[gq], 4*gq+4), gq >= GL)
        if gq == 0: A(f"v_max3_f32 v{vM}, v{S}, v{S+1}, v{S+2}"); A(f"v_max_f32 v{vM}, v{vM}, v{S+3}")
        else: A(f"v_max3_f32 v{vM}, v{vM}, v{S}, v{S+1}"); A(f"v_max3_f32 v{vM}, v{vM}, v{S+2}, v{S+3}")
    xrow(vM, T, "v_max_f32")
    A(f"v_mul_f32 v{vM}, s{sC1}, v{vM}")
    stamp(9)
    A(f"v_mov_b32 v{vLs}, 0")
    for q in range(8):
        S = ks(4*q+3)
        for a in range(4): A(f"v_fma_f32 v{S+a}, v{S+a}, s{sC1}, -v{vM}")
        for a in range(4): A(f"v_exp_f32 v{S+a}, v{S+a}")
        for a in range(4): A(f"v_add_f32 v{vLs}, v{vLs}, v{S+a}")
        for a in range(4): A(f"v_cvt_pk_bf16_f32 v{S+a}, v{S+a}, v{S+a}")
        more(SCH_SM[q])
    xrow(vLs, T, "v_add_f32")
    vH6 = T + 6
    A(f"v_bfe_u32 v{T+7}, v{vL}, 3, 1"); A(f"v_lshlrev_b32 v{vH6}, 6, v{T+7}")
    A(f"s_lshl_b32 s{sT2}, s{sW}, 3"); A(f"v_add_u32 v{T}, s{sT2}, v{vH6}")
    A(f"v_mov_b32 v{T+2}, 1"); A(f"v_mov_b32 v{T+3}, {L_CNTI}")
    A("s_mov_b64 exec, 0x101"); A(f"ds_write_b64 v{T}, v[{vM}:{vM+1}] offset:{L_MLW}")
    A("s_mov_b64 exec, 1"); A(f"ds_add_rtn_u32 v{T+4}, v{T+3}, v{T+2}"); A("s_mov_b64 exec, -1")
    A(f"v_lshlrev_b32 v{vM}, 8, v{T+7}"); A(f"v_lshrrev_b32 v{T+1}, 4, v{vL}"); A(f"v_lshl_add_u32 v{vM}, v{T+1}, 6, v{vM}")
    A(f"v_and_b32 v{T+1}, 7, v{vL}"); A(f"v_lshl_add_u32 v{vM}, v{T+1}, 3, v{vM}"); A(f"v_add_u32 v{vM}, s{sREC}, v{vM}")
    A(f"s_lshl_b32 s{sT2}, s{sW}, 10"); A(f"v_add_u32 v{vLs}, s{sT2}, v{vOFF}")
    A("s_waitcnt lgkmcnt(0)")
    A(f"v_readfirstlane_b32 s{sT2}, v{T+4}")
    A(f"s_cmp_lg_u32 s{sT2}, 7"); A("s_cbranch_scc1 L_NOF")
    MQ = [104, 108, 112, 120]; FF = 124
    for k in range(4): A(f"ds_read_b128 {rng(MQ[k])}, v{vH6} offset:{L_MLW+16*k}")
    mm = [MQ[k // 2] + 2 * (k % 2) for k in range(8)]
    A(f"v_lshlrev_b32 v{T+2}, 3, v{T+7}"); A(f"v_add_u32 v{T+2}, s{sREC}, v{T+2}")
    A("s_waitcnt lgkmcnt(0)")
    A(f"v_max3_f32 v{T}, v{mm[0]}, v{mm[1]}, v{mm[2]}"); A(f"v_max3_f32 v{T}, v{T}, v{mm[3]}, v{mm[4]}"); A(f"v_max3_f32 v{T}, v{T}, v{mm[5]}, v{mm[6]}"); A(f"v_max_f32 v{T}, v{T}, v{mm[7]}")
    for k in range(8): A(f"v_sub_f32 v{FF+k}, v{mm[k]}, v{T}")
    for k in range(8): A(f"v_exp_f32 v{FF+k}, v{FF+k}")
    A(f"v_mul_f32 v{T+1}, v{FF}, v{mm[0]+1}")
    for k in range(1, 8): A(f"v_fmac_f32 v{T+1}, v{FF+k}, v{mm[k]+1}")
    A(f"v_lshrrev_b32 v{T+3}, 1, v{vH6}")
    A(f"v_min_u32 v{T}, -2, v{T}"); A(f"v_min_u32 v{T+1}, -2, v{T+1}")
    A("s_mov_b64 exec, 0x101")
    A(f"ds_write_b128 v{T+3}, {rng(FF)} offset:{L_FW}"); A(f"ds_write_b128 v{T+3}, {rng(FF+4)} offset:{L_FW+16}")
    A(f"global_store_dwordx2 v{T+2}, v[{T}:{T+1}], {ws} offset:512 sc1")
    A("s_mov_b64 exec, -1")
    A.label("L_NOF")
    A(f"v_mov_b32 v{T+2}, 1"); A(f"v_mov_b32 v{T+3}, {L_CNTO}"); A(f"v_lshrrev_b32 v{T+4}, 1, v{vH6}")
    for i in range(33):
        if i < 32:
            Bx = B0 if i % 2 == 0 else B1
            for k in range(4): A(f"v_and_b32 v{Bx+k}, v{sreg(i)}, v{MK+k}")
        if i > 0:
            Bp = B0 if (i-1) % 2 == 0 else B1
            assert issued > 32 + i - 1
            A(f"s_waitcnt vmcnt({issued - (32 + i)})")
            A(f"v_mfma_f32_16x16x32_bf16 {rng(D)}, {vreg(i-1)}, {rng(Bp)}, {'0' if i == 1 else rng(D)}")
            more(SCH_PV.get(i-1, 0))
    assert issued == 64
    stamp(10)
    A(f"ds_write_b128 v{vLs}, {rng(D)} offset:{L_OW}")
    A("s_mov_b64 exec, 1"); A(f"ds_add_rtn_u32 v{T+5}, v{T+3}, v{T+2}"); A("s_mov_b64 exec, -1")
    A("s_waitcnt lgkmcnt(0)")
    A(f"v_readfirstlane_b32 s{sT2}, v{T+5}")
    A(f"s_cmp_lg_u32 s{sT2}, 7"); A("s_cbranch_scc1 L_NOPUB")
    OO = 40; FR = 72
    A(f"ds_read_b128 {rng(FR)}, v{T+4} offset:{L_FW}"); A(f"ds_read_b128 {rng(FR+4)}, v{T+4} offset:{L_FW+16}")
    for k in range(8): A(f"ds_read_b128 {rng(OO+4*k)}, v{vOFF} offset:{L_OW+1024*k}")
    for k in range(8):
        A(f"s_waitcnt lgkmcnt({7-k})")
        for c in range(4):
            if k == 0: A(f"v_mul_f32 v{D+c}, v{FR}, v{OO+c}")
            else: A(f"v_fmac_f32 v{D+c}, v{FR+k}, v{OO+4*k+c}")
    A(f"v_cvt_pk_bf16_f32 v{D}, v{D}, v{D+1}"); A(f"v_cvt_pk_bf16_f32 v{D+1}, v{D+2}, v{D+3}")
    A(f"v_min_u32 v{D}, -2, v{D}"); A(f"v_min_u32 v{D+1}, -2, v{D+1}")
    A(f"global_store_dwordx2 v{vM}, v[{D}:{D+1}], {ws} sc1")
    stamp(3)
    A.label("L_NOPUB")
    A(f"s_cmp_eq_u32 s{sW}, 2"); A("s_cbranch_scc1 L_HOP2")
    A(f"s_cmp_lg_u32 s{sW}, 1"); A("s_cbranch_scc1 L_EXIT")

    def checkAB(tag, va, vd):
        A(f"s_mov_b32 s{sCNT}, {LIMIT}")
        A(f"v_and_b32 v{va}, 15, v{vL}"); A(f"v_lshlrev_b32 v{va}, 4, v{va}"); A(f"v_bfe_u32 v{vd}, v{vL}, 4, 1"); A(f"v_lshl_add_u32 v{va}, v{vd}, 2, v{va}")
        A.label(f"L_CB{tag}")
        A(f"global_load_dword v{vd}, v{va}, s[{sDBG}:{sDBG+1}] sc1"); A("s_waitcnt vmcnt(0)")
        A(f"v_cmp_ne_u32 vcc, 16, v{vd}"); A(f"s_cbranch_vccz L_CB{tag}_OK")
        A("s_sleep 16"); A(f"s_sub_u32 s{sCNT}, s{sCNT}, 1"); A(f"s_cmp_lg_u32 s{sCNT}, 0"); A(f"s_cbranch_scc1 L_CB{tag}")
        A.label(f"L_CB{tag}_OK")
    def red32(v, t):
        A(f"v_add_f32 v{v}, v{v}, v{v+1}"); A(f"v_add_f32 v{v+2}, v{v+2}, v{v+3}"); A(f"v_add_f32 v{v}, v{v}, v{v+2}")
        A(f"v_add_f32_dpp v{v}, v{v}, v{v} row_ror:8{dm}")
        xrow(v, t, "v_add_f32")
    RAW = 120; vA = 160; vMLa = 161; vSP = 162; vH2 = 160; vOA = 161
    ldswait("WW", L_CNTW, 3, 2)
    A(f"v_lshrrev_b32 v{T}, 4, v{vL}"); A(f"v_mul_u32_u24 v{T}, 288, v{T}"); A(f"v_and_b32 v{T+1}, 15, v{vL}"); A(f"v_lshl_add_u32 v{T}, v{T+1}, 1, v{T}")
    for n in range(5):
        for t in range(4):
            for e_ in range(8): A(f"ds_read_u16 v{RAW+e_}, v{T} offset:{L_WO + 32*n + (32*t + 8*(e_&3) + (e_>>2))*144}")
            A("s_waitcnt lgkmcnt(0)")
            for k in range(4): A(f"v_lshl_or_b32 v{40+16*n+4*t+k}, v{RAW+2*k+1}, 16, v{RAW+2*k}")
    A(f"s_lshr_b32 s{sT}, s{sP}, 1"); A(f"s_mul_i32 s{sT}, s{sT}, {16*640}"); A(f"s_add_u32 s{sT}, s{sT}, {W_REC}"); A(f"s_and_b32 s{sT2}, s{sP}, 1")
    A(f"s_lshl_b32 s{sT3}, s{sT2}, 8"); A(f"s_add_u32 s{sT3}, s{sT3}, s{sT}")
    A(f"v_mul_u32_u24 v{vA}, 640, v{T+1}"); A(f"v_lshrrev_b32 v{T}, 4, v{vL}"); A(f"v_lshl_add_u32 v{vA}, v{T}, 4, v{vA}"); A(f"v_add_u32 v{vA}, s{sT3}, v{vA}")
    A(f"s_lshl_b32 s{sT3}, s{sT2}, 3"); A(f"s_add_u32 s{sT3}, s{sT3}, s{sT}"); A(f"s_add_u32 s{sT3}, s{sT3}, 512")
    A(f"v_mul_u32_u24 v{vMLa}, 2560, v{T}"); A(f"v_add_u32 v{vMLa}, s{sT3}, v{vMLa}")
    A(f"v_lshrrev_b32 v{vSP}, 5, v{vL}"); A(f"v_mul_u32_u24 v{vSP}, 288, v{vSP}"); A(f"v_and_b32 v{T}, 31, v{vL}"); A(f"v_lshl_add_u32 v{vSP}, v{T}, 2, v{vSP}")
    A(f"s_add_u32 s{sT}, s{sSPB}, {W_SP}"); A(f"v_add_u32 v{vSP}, s{sT}, v{vSP}")
    checkAB("T", T, T+1)
    def maxchain(dst, regs):
        A(f"v_max3_u32 v{dst}, v{regs[0]}, v{regs[1]}, v{regs[2]}")
        k = 3
        while k < len(regs):
            if k + 1 < len(regs): A(f"v_max3_u32 v{dst}, v{dst}, v{regs[k]}, v{regs[k+1]}"); k += 2
            else: A(f"v_max_u32 v{dst}, v{dst}, v{regs[k]}"); k += 1
    def pollmask(tag, loads, regs):
        A(f"s_mov_b32 s{sCNT}, {LIMIT}")
        A.label(f"L_{tag}")
        loads()
        A("s_waitcnt vmcnt(0)")
        if len(regs) > 8:
            h = len(regs) // 2
            maxchain(T, regs[:h]); maxchain(T+1, regs[h:]); A(f"v_max_u32 v{T}, v{T}, v{T+1}")
        else: maxchain(T, regs)
        A(f"v_cmp_eq_u32 vcc, -1, v{T}"); A(f"s_cbranch_vccz L_{tag}_OK")
        A("s_mov_b64 exec, vcc")
        A(f"s_sub_u32 s{sCNT}, s{sCNT}, 1"); A(f"s_cmp_lg_u32 s{sCNT}, 0"); A(f"s_cbranch_scc1 L_{tag}")
        A.label(f"L_{tag}_OK")
        A("s_mov_b64 exec, -1")

    AA = 136; ML = 152; WN = 24
    A(f"v_mov_b32 v{vSP+1}, 1"); A(f"v_mov_b32 v{vSP+2}, {L_SPD}")
    ldswait("OW", L_CNTO, 8, 1)
    stamp(6)
    pollmask("HM", lambda: [A(f"global_load_dwordx2 v[{ML+2*i}:{ML+2*i+1}], v{vMLa}, {ws} offset:{640*i} sc1") for i in range(4)], list(range(ML, ML+8)))
    m = [ML, ML+2, ML+4, ML+6]; l = [ML+1, ML+3, ML+5, ML+7]
    def aloads():
        for t in range(4): A(f"global_load_dwordx4 {rng(AA+4*t)}, v{vA}, {ws} offset:{64*t} sc1")
    A(f"v_max3_f32 v{T}, v{m[0]}, v{m[1]}, v{m[2]}"); A(f"v_max_f32 v{T}, v{T}, v{m[3]}")
    A(f"v_mov_b32 v{T+1}, v{T}"); A(f"v_permlane16_swap_b32 v{T+1}, v{T}"); A(f"v_max_f32 v{T}, v{T+1}, v{T}")
    for i in range(4): A(f"v_sub_f32 v{m[i]}, v{m[i]}, v{T}")
    for i in range(4): A(f"v_exp_f32 v{m[i]}, v{m[i]}")
    A(f"v_mul_f32 v{T+2}, v{m[0]}, v{l[0]}")
    for i in range(1, 4): A(f"v_fmac_f32 v{T+2}, v{m[i]}, v{l[i]}")
    A(f"v_mov_b32 v{T+1}, v{T+2}"); A(f"v_permlane16_swap_b32 v{T+1}, v{T+2}"); A(f"v_add_f32 v{T+2}, v{T+1}, v{T+2}")
    A(f"v_rcp_f32 v{T+2}, v{T+2}")
    for i in range(4): A(f"v_mul_f32 v{WN+i}, v{m[i]}, v{T+2}")
    pollmask("H1", aloads, list(range(AA, AA+16)))
    stamp(7)
    for t in range(4):
        for n in range(5):
            A(f"v_mfma_f32_16x16x32_bf16 {rng(4+4*n)}, {rng(AA+4*t)}, {rng(40+16*n+4*t)}, {'0' if t == 0 else rng(4+4*n)}")
    for n in range(5):
        A(f"v_mul_f32 v{T+n}, v{WN}, v{4+4*n}")
        for i in range(1, 4): A(f"v_fmac_f32 v{T+n}, v{WN+i}, v{4+4*n+i}")
        if n in (1, 3):
            A(f"v_permlane16_swap_b32 v{T+n-1}, v{T+n}"); A(f"v_add_f32 v{T+n}, v{T+n-1}, v{T+n}"); A(f"v_min_u32 v{T+n}, -2, v{T+n}")
            A(f"global_store_dword v{vSP}, v{T+n}, {ws} offset:{128*(n//2)} sc1")
    A(f"v_mov_b32 v{T+5}, v{T+4}"); A(f"v_permlane16_swap_b32 v{T+5}, v{T+4}"); A(f"v_add_f32 v{T+4}, v{T+5}, v{T+4}"); A(f"v_min_u32 v{T+4}, -2, v{T+4}")
    A("s_mov_b32 exec_lo, 0xff"); A("s_mov_b32 exec_hi, 0xff")
    A(f"global_store_dword v{vSP}, v{T+4}, {ws} offset:256 sc1")
    A(f"ds_write_b32 v{vSP+2}, v{vSP+1}")
    A("s_mov_b64 exec, -1")
    stamp(9)
    A("s_branch L_EXIT")

    A.label("L_HOP2")
    A(f"s_cmp_ge_u32 s2, 144"); A("s_cbranch_scc1 L_EXIT")
    YY = 120
    checkAB("G", T, T+1)
    A(f"s_cmp_ge_u32 s2, 72"); A(f"s_cselect_b32 s{sT}, 72, 0"); A(f"s_cselect_b32 s{sT3}, 288, 0"); A(f"s_sub_u32 s{sT}, s2, s{sT}")
    A(f"s_mul_i32 s{sT2}, s{sT}, 57"); A(f"s_lshr_b32 s{sT2}, s{sT2}, 9")
    A(f"s_lshl_b32 s{sT}, s{sT}, 5"); A(f"s_add_u32 s{sT3}, s{sT3}, s{sT}"); A(f"s_mul_i32 s{sT2}, s{sT2}, {20480 - 288}"); A(f"s_add_u32 s{sT3}, s{sT3}, s{sT2}")
    A(f"s_add_u32 s{sT3}, s{sT3}, {W_SP}")
    A(f"v_lshrrev_b32 v{vH2}, 3, v{vL}"); A(f"v_mul_u32_u24 v{vH2}, 2560, v{vH2}"); A(f"v_and_b32 v{vOA}, 7, v{vL}"); A(f"v_lshl_add_u32 v{vH2}, v{vOA}, 2, v{vH2}")
    A(f"v_add_u32 v{vH2}, s{sT3}, v{vH2}")
    A(f"v_add_u32 v{T}, {W_YP - W_SP}, v{vH2}")
    for k in range(4): A(f"global_load_dword v{YY+k}, v{T}, {ws} offset:{640*k} sc1")
    A(f"v_lshlrev_b32 v{vOA}, 1, v{vOA}"); A(f"s_lshl_b32 s{sT}, s2, 4"); A(f"v_add_u32 v{vOA}, s{sT}, v{vOA}")
    A(f"global_load_ushort v{vXo}, v{vOA}, s[{sX}:{sX+1}]")
    A(f"v_mov_b32 v{T+1}, 0")
    A(f"global_load_ushort v{YY+4}, v{T+1}, s[{sB2}:{sB2+1}]")
    A("s_waitcnt vmcnt(0)")
    red32(YY, YY+5)
    rnd1(YY); A(f"v_lshlrev_b32 v{YY+4}, 16, v{YY+4}"); A(f"v_add_f32 v{YY}, v{YY}, v{YY+4}"); rnd1(YY)
    A(f"v_mul_f32 v{YY+1}, {hx(f2u(-LOG2E))}, v{YY}"); A(f"v_exp_f32 v{YY+1}, v{YY+1}"); A(f"v_add_f32 v{YY+1}, 1.0, v{YY+1}"); A(f"v_rcp_f32 v{YY+1}, v{YY+1}")
    A(f"v_mul_f32 v{vG}, v{YY}, v{YY+1}"); rnd1(vG)
    A(f"v_lshlrev_b32 v{vXo}, 16, v{vXo}")
    SS = 112
    if H2WAIT == "sp": ldswait("OW2", L_SPD, 1, 1)
    else: ldswait("OW2", L_CNTO, 8, 1)
    if H2DELAY: A(f"s_sleep {H2DELAY}")
    pollmask("H2", lambda: [A(f"global_load_dword v{SS+k}, v{vH2}, {ws} offset:{640*k} sc1") for k in range(4)], list(range(SS, SS+4)))
    stamp(7)
    red32(SS, T)
    rnd1(SS); A(f"v_mul_f32 v{SS}, v{SS}, v{vG}"); rnd1(SS); A(f"v_add_f32 v{SS}, v{SS}, v{vXo}")
    A(f"v_cvt_pk_bf16_f32 v{SS}, v{SS}, v{SS}")
    A("s_mov_b64 exec, 0xff")
    A(f"global_store_short v{vOA}, v{SS}, s[{sOUT}:{sOUT+1}]")
    A("s_mov_b64 exec, -1")
    A.label("L_EXIT")
    if ECHO:
        stamp(11); A("s_waitcnt lgkmcnt(0)")
        A(f"s_cmp_lg_u32 s2, 0"); A("s_cbranch_scc1 L_END")
        A(f"s_cmp_lg_u32 s{sW}, {ECHO[0]}"); A("s_cbranch_scc1 L_END")
        A(f"s_sub_u32 s{sT}, s{SB+2*ECHO[1]}, s{SB}"); A(f"s_lshl_b32 s{sT}, s{sT}, 2"); A(f"s_add_u32 s{sT}, s{sT}, 4000"); A(f"s_add_u32 s{sT}, s{sT}, s{SB}")
        A.label("L_ECHO")
        A(f"s_memrealtime s[{sR}:{sR+1}]"); A("s_waitcnt lgkmcnt(0)"); A(f"s_sub_u32 s{sT2}, s{sR}, s{sT}"); A(f"s_cmp_lt_i32 s{sT2}, 0"); A("s_cbranch_scc1 L_ECHO")
    elif STAMP:
        stamp(11)
        A("s_waitcnt lgkmcnt(0) vmcnt(0)")
        A(f"s_lshl_b32 s{sT}, s2, 3"); A(f"s_add_u32 s{sT}, s{sT}, s{sW}"); A(f"s_mul_i32 s{sT}, s{sT}, {NST*8}"); A(f"s_add_u32 s{sT}, s{sT}, {W_ST}")
        A(f"v_mov_b32 v3, s{sT}")
        for k in range(2*NST): A(f"v_mov_b32 v{40+k}, s{SB+k}")
        A("s_mov_b64 exec, 1")
        for q in range(NST // 2): A(f"global_store_dwordx4 v3, {rng(40+4*q)}, {ws} offset:{16*q}")
    A.label("L_END")
    A("s_endpgm")
    svc = A.lines[MARK_SERVICE:MARK_STREAM2]
    assert A.lines[MARK_SERVICE-1].strip() == "s_branch L_STREAM2"
    A.lines = A.lines[:MARK_SERVICE-1] + A.lines[MARK_STREAM2:] + svc + ["    s_branch L_STREAM2", "L_CODE_END:"]
    A.raw(".set CODE_KB, (L_CODE_END - L_PC0) >> 10" if PF else "")
    A.raw("    s_endpgm"); A.raw(".fill 260, 4, 0xbf800000")
    A.raw('.section .rodata,"a"'); A.raw(".p2align 6"); A.raw(f".amdhsa_kernel {KN}_kernel")
    A.raw("  .amdhsa_next_free_vgpr 256"); A.raw("  .amdhsa_next_free_sgpr 102"); A.raw("  .amdhsa_accum_offset 168")
    A.raw("  .amdhsa_group_segment_fixed_size 0"); A.raw("  .amdhsa_kernarg_size 104"); A.raw("  .amdhsa_user_sgpr_count 2")
    A.raw("  .amdhsa_user_sgpr_kernarg_segment_ptr 1"); A.raw("  .amdhsa_system_sgpr_workgroup_id_x 1")
    A.raw("  .amdhsa_float_denorm_mode_32 3")
    A.raw(".end_amdhsa_kernel")
    return A.text()

if __name__ == "__main__":
    out = sys.argv[1]
    kw = eval("dict(" + (sys.argv[2] if len(sys.argv) > 2 else "") + ")")
    open(out, "w").write(gen(**kw))
```

```python
import sys, struct, math
sys.path.insert(0, __file__.rsplit("/", 1)[0] if "/" in __file__ else ".")
from asmlib import Asm
KN = "recurrent_scan__gqa_block_cached__mixer_token_mlp__decode"
def f2u(x): return struct.unpack("<I", struct.pack("<f", x))[0]
def hx(x): return f"0x{x & 0xffffffff:08x}"
LOG2E = 1.4426950408889634
SCALE = 128 ** -0.5
L_MISC = 0
L_QFLAG = 0; L_CNTB = 4; L_CNTI = 8; L_CNTO = 12; L_CNTW = 16; L_SPD = 20; L_PUBD = 24
L_MLW = 64; L_FW = 192; L_Q = 256; L_OW = 768; L_XL = L_OW + 8192; L_WO = L_XL + 4 * 2304; L_END = L_WO + 128 * 144 + 64
W_QP = 0; W_REC = 0x40000; W_SP = 0x70000; W_YP = 0xA8000; W_PC = 0xE0000; W_ST = 128 << 20
LIMIT = 1 << 18
OOB = 0x200000

def gen(MAP="kvh", CMAP=False, NT=True, ROUND=True, STAMP=False, NPRE=36, NEARLY=54, SCH_QK=(2,)*8, SCH_SM=(1,)*8, SCH_PV={3:1,7:1,11:1,15:1},
        NSIG=8, ECHO=None, H2WAIT="sp", H2DELAY=0, WONT=False, EPRIO=1, PF=0, NFIRST=8, EXTRA=0, WOAT=20, JJ=False, ROT=1, SKIP='', W0INL=False, NS0=True, DELAY1=False, THR=0, MLFIRST=False, H1DELAY=0, MSL=0, H1SL=0, H2SL=0, FULL=True, HS=227, PSL=2, F1='sc1', F2='sc1', FS='sc1', C2MAP=True, REORD=True, QBF=False, SKW=0, EFAST=False):
    SL = 768 if FULL else 640; BO = 384 if FULL else 288
    GL = 8; BAR2 = False; GATE_AT = 99; NWORK = 4
    A = Asm()
    nt = " nt" if NT else ""
    NST = 12; SB = 76
    POOL = GL < 8
    UPW = 8 - GL if POOL else 0
    NUNIT = 32 * UPW
    if ECHO: STAMP = True
    A.raw(f"; @launch grid=(256,1,1) block=(512,1,1) lds={(L_END + 255) // 256 * 256}")
    if STAMP and not ECHO: A.raw(f"; STAMPS nrec=2048 n={NST}")
    A.raw('.amdgcn_target "amdgcn-amd-amdhsa--gfx950"')
    A.raw(".text"); A.raw(f".globl {KN}_kernel"); A.raw(".p2align 8"); A.raw(f".type {KN}_kernel,@function"); A.raw(f"{KN}_kernel:")
    def stamp(k):
        if STAMP: A(f"s_memrealtime s[{SB+2*k}:{SB+1+2*k}]")
    sX, sK, sV, sWQ, sWO, sW1, sB1, sW2, sB2, sOUT, sDBG, sWS = 4, 6, 8, 10, 12, 16, 18, 20, 22, 24, 26, 28
    KS, VS = 32, 36
    sW, sG, sB, sSP, sJ, sLATE, sCG, sP, sBASE, sT, sT2, sT3, sCNT, sPASS, sC1, sREC = range(40, 56)
    sA = 56; sPC = 58; sBASE2 = 59; sR = 60; sU = 64; sNX = 66; sBIAS = 67; sQP = 68; sRG = 69; sSPB = 70; sX8 = 71; sB8 = 72
    vL, vOFF = 1, 2
    D = 4; QA = 8; QB = 12; MK = 16; B0 = 20; B1 = 24; T = 28; vM = 36; vLs = 37; vG = 38; vXo = 39
    KB = 40
    def ks(i): return KB + 4 * i
    def rng(r, n=4): return f"v[{r}:{r+n-1}]"
    dm = " row_mask:0xf bank_mask:0xf"
    ws = f"s[{sWS}:{sWS+1}]"
    stamp(0)
    A("s_load_dwordx16 s[4:19], s[0:1], 0"); A("s_load_dwordx8 s[20:27], s[0:1], 64"); A("s_load_dwordx2 s[28:29], s[0:1], 96")
    A("v_lshrrev_b32 v3, 6, v0"); A(f"v_and_b32 v{vL}, 63, v0")
    A("s_cmp_ge_u32 s2, 256"); A("s_cbranch_scc1 L_END")
    A(f"v_readfirstlane_b32 s{sW}, v3"); A(f"v_lshlrev_b32 v{vOFF}, 4, v{vL}")
    if MAP == "kvh":
        A(f"s_and_b32 s{sG}, s2, 7"); A(f"s_lshr_b32 s{sT}, s2, 7"); A(f"s_lshl_b32 s{sT}, s{sT}, 3"); A(f"s_or_b32 s{sG}, s{sG}, s{sT}")
        A(f"s_bfe_u32 s{sJ}, s2, 0x40003")
    elif MAP == "pair":
        A(f"s_bfe_u32 s{sG}, s2, 0x20001"); A(f"s_lshr_b32 s{sT}, s2, 6"); A(f"s_lshl_b32 s{sT}, s{sT}, 2"); A(f"s_or_b32 s{sG}, s{sG}, s{sT}")
        A(f"s_bfe_u32 s{sJ}, s2, 0x30003"); A(f"s_lshl_b32 s{sJ}, s{sJ}, 1"); A(f"s_and_b32 s{sT}, s2, 1"); A(f"s_or_b32 s{sJ}, s{sJ}, s{sT}")
    else:
        A(f"s_lshr_b32 s{sG}, s2, 4"); A(f"s_and_b32 s{sJ}, s2, 15")
    A(f"s_and_b32 s{sSP}, s{sJ}, 7"); A(f"s_lshr_b32 s{sB}, s{sJ}, 3")
    A(f"s_and_b32 s{sT}, s{sW}, 3"); A(f"s_lshl_b32 s{sBASE}, s{sT}, {12 if JJ else 10}")
    A(f"s_add_u32 s{sT}, s{sW}, 7"); A(f"s_bfe_u32 s{sLATE}, s{sT}, 0x10002"); A(f"s_lshl_b32 s{sT}, s{sLATE}, 17"); A(f"s_or_b32 s{sBASE}, s{sBASE}, s{sT}")
    A(f"s_lshl_b32 s{sT}, s{sSP}, 18"); A(f"s_or_b32 s{sBASE}, s{sBASE}, s{sT}")
    if ROT:
        A(f"s_or_b32 s{sT}, s2, 1"); A(f"s_mul_i32 s{sT}, s{sT}, 0x9E3779B1"); A(f"s_lshr_b32 s{sT}, s{sT}, {29 if JJ else 27}"); A(f"s_lshl_b32 s{sT}, s{sT}, {14 if JJ else 12}"); A(f"s_or_b32 s{sBASE}, s{sBASE}, s{sT}")
    A(f"s_lshl_b32 s{sT}, s{sB}, 4"); A(f"s_or_b32 s{sT}, s{sT}, s{sG}"); A(f"s_lshl_b32 s{sT}, s{sT}, 21")
    A(f"s_and_b32 s{sT2}, s{sJ}, 1"); A(f"s_lshr_b32 s{sRG}, s{sJ}, 1")
    A(f"s_lshl_b32 s{sQP}, s{sG}, 1"); A(f"s_or_b32 s{sQP}, s{sQP}, s{sT2}")
    A(f"s_mov_b32 s{KS+2}, {OOB}"); A(f"s_mov_b32 s{KS+3}, 0x20000"); A(f"s_mov_b32 s{VS+2}, {OOB}"); A(f"s_mov_b32 s{VS+3}, 0x20000")
    if STAMP:
        for k in range(1, NST): A(f"s_mov_b64 s[{SB+2*k}:{SB+1+2*k}], 0")
    A("s_waitcnt lgkmcnt(0)")
    stamp(1)
    A(f"s_add_u32 s{KS}, s{sK}, s{sT}"); A(f"s_addc_u32 s{KS+1}, s{sK+1}, 0")
    A(f"s_add_u32 s{VS}, s{sV}, s{sT}"); A(f"s_addc_u32 s{VS+1}, s{sV+1}, 0")
    X = 40; E = 50; vXO = 3; WQ = 96
    def xloads():
        A(f"v_lshrrev_b32 v{T}, 5, v{vL}"); A(f"v_mul_u32_u24 v{T}, 1152, v{T}")
        A(f"v_and_b32 v{vXO}, 31, v{vL}"); A(f"v_lshl_add_u32 v{vXO}, v{vXO}, 2, v{T}")
        for k in range(9): A(f"global_load_dword v{X+k}, v{vXO}, s[{sX}:{sX+1}] offset:{128*k}")
    def wqloads():
        A(f"s_mov_b32 s{sR}, s{sWQ}"); A(f"s_mov_b32 s{sR+1}, s{sWQ+1}"); A(f"s_mov_b32 s{sR+2}, {576*8192}"); A(f"s_mov_b32 s{sR+3}, 0x20000")
        A(f"v_lshrrev_b32 v{T+4}, 4, v{vL}"); A(f"v_lshlrev_b32 v{T+4}, 13, v{T+4}"); A(f"v_and_b32 v{T+1}, 15, v{vL}"); A(f"v_lshl_add_u32 v{T+4}, v{T+1}, 4, v{T+4}")
        A(f"s_mul_i32 s{sT}, s{sRG}, {72*8192}"); A(f"s_lshl_b32 s{sT2}, s{sQP}, 8"); A(f"s_add_u32 s{sT}, s{sT}, s{sT2}")
        for i in range(18):
            if 'W' in SKIP: A(f"buffer_load_dwordx4 {rng(WQ+4*i)}, v{vOFF}, s[{sR}:{sR+3}], 0 offen")
            else: A(f"buffer_load_dwordx4 {rng(WQ+4*i)}, v{T+4}, s[{sR}:{sR+3}], s{sT} offen{nt}")
            if i < 17: A(f"s_add_u32 s{sT}, s{sT}, 32768")
    if W0INL and 'h' not in SKIP:
        A(f"s_cmp_lg_u32 s{sW}, 0"); A("s_cbranch_scc1 L_NOTW0")
        A("s_setprio 3")
        xloads(); wqloads()
        A("s_branch L_W0B")
        A.label("L_NOTW0")
    A(f"s_cmp_eq_u32 s{sLATE}, 1"); A("s_cbranch_scc1 L_SERVICE")
    free = [0, 1, 2, 4, 5, 6, 8, 9, 10, 12]
    def vreg(i): return f"a[{4*i}:{4*i+3}]" if i < 22 else rng(ks(free[i-22]))
    cur = [None]
    def issue(n):
        i = n % 32
        if THR and WOAT <= n < NEARLY: A(f"s_waitcnt vmcnt({THR-1})")
        dst = rng(ks(i)) if n < 32 else vreg(i)
        srd = f"s[{KS}:{KS+3}]" if n < 32 else f"s[{VS}:{VS+3}]"
        if JJ:
            if i < 4: A(f"buffer_load_dwordx4 {dst}, v{vOFF}, {srd}, s{sBASE} offen offset:{(i&3)<<10}{nt}"); return
            if cur[0] != i >> 2: A(f"s_xor_b32 s{sT}, s{sBASE}, {(i >> 2) << 14}"); cur[0] = i >> 2
            A(f"buffer_load_dwordx4 {dst}, v{vOFF}, {srd}, s{sT} offen offset:{(i&3)<<10}{nt}")
        else:
            A(f"s_xor_b32 s{sT}, s{sBASE2 if (SKW and i >= 28) else sBASE}, {i << 12}"); A(f"buffer_load_dwordx4 {dst}, v{vOFF}, {srd}, s{sT} offen{nt}")
    def common():
        if CMAP:
            A(f"s_and_b32 s{sP}, s2, 7"); A(f"s_lshr_b32 s{sT2}, s2, 6"); A(f"s_lshl_b32 s{sT2}, s{sT2}, 3"); A(f"s_or_b32 s{sP}, s{sP}, s{sT2}")
            A(f"s_bfe_u32 s{sCG}, s2, 0x30003")
        else:
            A(f"s_mov_b32 s{sP}, s{sQP}"); A(f"s_mov_b32 s{sCG}, s{sRG}")
        A(f"s_lshl_b32 s{sREC}, s{sG}, 4"); A(f"s_add_u32 s{sREC}, s{sREC}, s{sJ}"); A(f"s_mul_i32 s{sREC}, s{sREC}, 640"); A(f"s_add_u32 s{sREC}, s{sREC}, {W_REC}")
        A(f"s_lshl_b32 s{sSPB}, s{sCG}, 5"); A(f"s_add_u32 s{sSPB}, s{sSPB}, s{sP}"); A(f"s_mul_i32 s{sSPB}, s{sSPB}, {SL}")
        A(f"v_and_b32 v{MK+3}, 1, v{vL}"); A(f"v_lshlrev_b32 v{MK+3}, 4, v{MK+3}"); A(f"v_mov_b32 v{MK+2}, 0xffff"); A(f"v_lshlrev_b32 v{MK+3}, v{MK+3}, v{MK+2}")
        A(f"v_bfe_u32 v{QA}, v{vL}, 1, 2")
        for k in range(4):
            A(f"v_cmp_eq_u32 vcc, {k}, v{QA}"); A(f"v_cndmask_b32 v{MK+k}, 0, v{MK+3}, vcc")
        A(f"s_mov_b32 s{sC1}, {hx(f2u(LOG2E if ROUND else LOG2E * SCALE))}")
        if SKW:
            A(f"s_and_b32 s{sT2}, s{sW}, 3"); A(f"s_lshr_b32 s{sT2}, {SKW}, s{sT2}"); A(f"s_and_b32 s{sT2}, s{sT2}, 1")
            A(f"s_and_b32 s{sT3}, s{sT2}, s{sSP}"); A(f"s_and_b32 s{sT3}, s{sT3}, s{sLATE}"); A(f"s_cmp_eq_u32 s{sT3}, 1")
            A(f"s_cselect_b32 s{sBASE2}, {OOB}, s{sBASE}"); A(f"s_cselect_b32 s{sBIAS}, 0xff800000, 0")
            A(f"s_or_b32 s{sT3}, s{sSP}, s{sLATE}"); A(f"s_andn2_b32 s{sX8}, s{sT2}, s{sT3}"); A(f"s_and_b32 s{sX8}, s{sX8}, 1")
            A(f"s_or_b32 s{sB8}, s{sBASE}, 0x60000")
    if DELAY1: common()
    for n in range(NFIRST):
        issue(n)
        if n == 0: stamp(4)
    stamp(5)
    if PF:
        A(f"s_cmp_lg_u32 s{sW}, 4"); A("s_cbranch_scc1 L_NOPF")
        A(f"s_getpc_b64 s[{sA}:{sA+1}]")
        A.raw("L_PC0:")
        A(f"s_lshr_b32 s{sT2}, s2, 3"); A(f"s_mul_i32 s{sT2}, s{sT2}, {PF}"); A(f"s_and_b32 s{sT2}, s{sT2}, 31")
        for k in range(PF):
            A(f"s_add_u32 s{sT3}, s{sT2}, {k}"); A(f"s_min_u32 s{sT3}, s{sT3}, CODE_KB"); A(f"s_lshl_b32 s{sT3}, s{sT3}, 10"); A(f"v_add_u32 v{T}, s{sT3}, v{vOFF}")
            A(f"global_load_dwordx4 a[84:87], v{T}, s[{sA}:{sA+1}]")
        A.label("L_NOPF")
    if not DELAY1: common()
    A(f"v_mov_b32 v{vG}, 0")
    A(f"s_cmp_lg_u32 s{sW}, 1"); A("s_cbranch_scc1 L_NOINIT")
    A(f"v_lshlrev_b32 v3, 2, v{vL}")
    A("s_mov_b64 exec, 0xffff"); A(f"ds_write_b32 v3, v{vG} offset:{L_MISC}"); A("s_mov_b64 exec, -1")
    A("s_waitcnt lgkmcnt(0)")
    A.label("L_NOINIT")
    A("s_barrier")
    cur[0] = None
    for n in range(NFIRST, WOAT): issue(n)
    A(f"s_cmp_eq_u32 s{sW}, 4"); A("s_cbranch_scc1 L_NOWO")
    if 'o' in SKIP: A("s_branch L_NOWO")
    A(f"s_mov_b32 s{sWO+2}, {4096*1152}"); A(f"s_mov_b32 s{sWO+3}, 0x20000")
    A(f"s_sub_u32 s{sT3}, s{sW}, 1"); A(f"s_mul_i32 s{sT3}, s{sT3}, 384"); A(f"v_add_u32 v{vG}, s{sT3}, v{vL}")
    A(f"s_mul_i32 s{sT3}, s{sP}, {128*1152}"); A(f"s_mul_i32 s{sT2}, s{sCG}, 144"); A(f"s_add_u32 s{sT3}, s{sT3}, s{sT2}")
    A(f"s_mov_b32 s{sT2}, 7282")
    for k in range(6):
        A(f"v_add_u32 v{T}, {64*k}, v{vG}"); A(f"v_mul_u32_u24 v{T+1}, s{sT2}, v{T}"); A(f"v_lshrrev_b32 v{T+1}, 16, v{T+1}")
        A(f"v_mul_u32_u24 v{T+1}, {1152-144}, v{T+1}"); A(f"v_lshl_add_u32 v{T+2}, v{T}, 4, v{T+1}")
        A(f"buffer_load_dwordx4 a[{60+4*k}:{63+4*k}], v{T+2}, s[{sWO}:{sWO+3}], s{sT3} offen{nt if WONT else ''}")
    A(f"v_lshlrev_b32 v{vG}, 4, v{vG}")
    A.label("L_NOWO")
    A("s_branch L_STREAM2")
    MARK_SERVICE = len(A.lines)

    def xrow(v, t, op):
        A(f"v_mov_b32 v{t}, v{v}"); A(f"v_permlane16_swap_b32 v{t}, v{v}"); A(f"{op} v{v}, v{t}, v{v}")
        A(f"v_mov_b32 v{t}, v{v}"); A(f"v_permlane32_swap_b32 v{t}, v{v}"); A(f"{op} v{v}, v{t}, v{v}")
    def rnd1(v):
        A(f"v_cvt_pk_bf16_f32 v{v}, v{v}, v{v}"); A(f"v_lshlrev_b32 v{v}, 16, v{v}")
    def ldswait(tag, addr, val, sleep=2, cmp="eq"):
        A(f"v_mov_b32 v{T+3}, {addr}"); A(f"s_mov_b32 s{sCNT}, {LIMIT*4}")
        A.label(f"L_{tag}")
        A(f"ds_read_b32 v{T}, v{T+3}"); A("s_waitcnt lgkmcnt(0)"); A(f"v_readfirstlane_b32 s{sT2}, v{T}")
        A(f"s_cmp_{cmp}_u32 s{sT2}, {val}"); A(f"s_cbranch_scc1 L_{tag}_OK")
        A(f"s_sleep {sleep}"); A(f"s_sub_u32 s{sCNT}, s{sCNT}, 1"); A(f"s_cmp_lg_u32 s{sCNT}, 0"); A(f"s_cbranch_scc1 L_{tag}")
        A.label(f"L_{tag}_OK")
    def ldsinc(addr):
        A(f"v_mov_b32 v{T+6}, 1"); A(f"v_mov_b32 v{T+7}, {addr}")
        A("s_mov_b64 exec, 1"); A(f"ds_add_u32 v{T+7}, v{T+6}"); A("s_mov_b64 exec, -1")

    A.label("L_SERVICE")
    A(f"s_cmp_lg_u32 s{sW}, 0"); A("s_cbranch_scc1 L_Y_PRE")
    if 'h' in SKIP:
        common(); A("s_barrier")
        if 'H' in SKIP:
            h = HS
            while h > 0: A(f"s_sleep {min(h,127)}"); h -= 127
        A(f"v_mov_b32 v{T+2}, 1"); A(f"v_mov_b32 v{T+3}, {L_QFLAG}"); A(f"ds_write_b32 v{T+3}, v{T+2}"); A("s_branch L_STREAM")
    A("s_setprio 3")
    xloads(); wqloads()
    A.label("L_W0B")
    common()
    A("s_barrier")
    for k in range(4): A(f"v_mov_b32 v{B0+k}, -1")
    A(f"v_add_u32 v{T}, s{sREC}, v{vOFF}"); A(f"s_add_u32 s{sT}, s{sSPB}, {W_SP}"); A(f"v_add_u32 v{T+1}, s{sT}, v{vOFF}")
    if 'R' in SKIP: A(f"global_load_dword v{T+5}, v{T}, {ws}"); A(f"global_load_dword v{T+5}, v{T}, {ws}")
    else: A(f"s_mov_b32 exec_hi, {0xff if FULL else 3}"); A(f"global_store_dwordx4 v{T}, {rng(B0)}, {ws} sc1")
    if 'R' not in SKIP: A(f"s_mov_b32 exec_hi, {0xffff if FULL else 15}"); A(f"global_store_dwordx4 v{T+1}, {rng(B0)}, {ws} sc1")
    A("s_mov_b64 exec, -1")
    A(f"s_mov_b32 s{sPASS}, 1"); A(f"s_mov_b32 s{sT3}, {L_XL}")
    A("s_waitcnt vmcnt(20)")
    A("s_branch L_LN")

    WR = 70
    A.label("L_Y_PRE")
    if 'b' in SKIP:
        common(); A("s_barrier")
        if 'B' in SKIP: A("s_sleep 127"); A("s_sleep 60")
        A("s_branch L_STREAM")
    A("s_setprio 2")
    xloads()
    common()
    A("s_barrier")
    A(f"v_and_b32 v{T}, 7, v{vL}"); A(f"v_mul_u32_u24 v{T}, 36, v{T}"); A(f"s_mul_i32 s{sT}, s{sP}, 288"); A(f"v_add_u32 v{T}, s{sT}, v{T}")
    for a, sp_ in enumerate((sW1, sB1, sW2)):
        R = WR + 10 * a
        A(f"global_load_dwordx4 {rng(R)}, v{T}, s[{sp_}:{sp_+1}]"); A(f"global_load_dwordx4 {rng(R+4)}, v{T}, s[{sp_}:{sp_+1}] offset:16")
        A(f"global_load_dword v{R+8}, v{T}, s[{sp_}:{sp_+1}] offset:32")
    A(f"s_mov_b32 s{sPASS}, 2"); A(f"s_sub_u32 s{sT3}, s{sW}, 4"); A(f"s_mul_i32 s{sT3}, s{sT3}, 2304"); A(f"s_add_u32 s{sT3}, s{sT3}, {L_XL}")
    A("s_waitcnt vmcnt(9)")

    def allred32(v, t, op):
        for pat in ("quad_perm:[1,0,3,2]", "quad_perm:[2,3,0,1]", "row_half_mirror", "row_mirror"):
            A(f"{op}_dpp v{v}, v{v}, v{v} {pat}{dm}")
        A(f"v_mov_b32 v{t}, v{v}"); A(f"v_permlane16_swap_b32 v{t}, v{v}"); A(f"{op} v{v}, v{t}, v{v}")
    A.label("L_LN")
    for k in range(9):
        A(f"v_lshlrev_b32 v{E+2*k}, 16, v{X+k}"); A(f"v_and_b32 v{E+2*k+1}, 0xffff0000, v{X+k}")
    A(f"v_add_f32 v{T}, v{E}, v{E+1}"); A(f"v_add_f32 v{T+1}, v{E+2}, v{E+3}")
    for k in range(4, 18, 2):
        A(f"v_add_f32 v{T}, v{T}, v{E+k}"); A(f"v_add_f32 v{T+1}, v{T+1}, v{E+k+1}")
    A(f"v_add_f32 v{T}, v{T}, v{T+1}")
    allred32(T, T+1, "v_add_f32")
    A(f"v_mul_f32 v{T}, {hx(f2u(1/576))}, v{T}")
    A(f"v_mov_b32 v{T+2}, 0"); A(f"v_mov_b32 v{T+3}, 0")
    for k in range(0, 18, 2):
        A(f"v_sub_f32 v{T+4}, v{E+k}, v{T}"); A(f"v_sub_f32 v{T+5}, v{E+k+1}, v{T}")
        A(f"v_fmac_f32 v{T+2}, v{T+4}, v{T+4}"); A(f"v_fmac_f32 v{T+3}, v{T+5}, v{T+5}")
    A(f"v_add_f32 v{T+2}, v{T+2}, v{T+3}")
    allred32(T+2, T+3, "v_add_f32")
    A(f"v_mul_f32 v{T+2}, {hx(f2u(1/576))}, v{T+2}")
    rnd1(T); rnd1(T+2)
    A(f"v_add_f32 v{T+2}, {hx(f2u(1e-5))}, v{T+2}"); rnd1(T+2)
    A(f"v_sqrt_f32 v{T+2}, v{T+2}"); rnd1(T+2)
    A(f"v_rcp_f32 v{T+2}, v{T+2}")
    for k in range(9):
        a, b = E+2*k, E+2*k+1
        A(f"v_sub_f32 v{a}, v{a}, v{T}"); A(f"v_sub_f32 v{b}, v{b}, v{T}")
        A(f"v_cvt_pk_bf16_f32 v{X+k}, v{a}, v{b}")
        A(f"v_lshlrev_b32 v{a}, 16, v{X+k}"); A(f"v_and_b32 v{b}, 0xffff0000, v{X+k}")
        A(f"v_mul_f32 v{a}, v{a}, v{T+2}"); A(f"v_mul_f32 v{b}, v{b}, v{T+2}")
        A(f"v_cvt_pk_bf16_f32 v{X+k}, v{a}, v{b}")
    A(f"s_sub_u32 s{sPASS}, s{sPASS}, 1"); A(f"s_cmp_lg_u32 s{sPASS}, 0"); A("s_cbranch_scc1 L_LN")
    A(f"v_add_u32 v{vXO}, s{sT3}, v{vXO}")
    for k in range(9): A(f"ds_write_b32 v{vXO}, v{X+k} offset:{128*k}")
    A(f"s_cmp_lg_u32 s{sW}, 0"); A("s_cbranch_scc1 L_BBR")

    XV = 50
    A(f"v_bfe_u32 v{T}, v{vL}, 3, 1"); A(f"v_mul_u32_u24 v{T}, 1152, v{T}")
    A(f"v_lshrrev_b32 v{T+1}, 4, v{vL}"); A(f"v_lshl_add_u32 v{T}, v{T+1}, 1, v{T}")
    A(f"s_mul_i32 s{sT}, s{sRG}, 144"); A(f"s_add_u32 s{sT}, s{sT}, {L_XL}"); A(f"v_add_u32 v{T}, s{sT}, v{T}")
    A("s_waitcnt lgkmcnt(0)")
    for i in range(18):
        A(f"ds_read_u16 v{XV+i}, v{T} offset:{8*i}")
        if i == 8: A("s_waitcnt lgkmcnt(0)")
    A("s_waitcnt lgkmcnt(0)")
    for i in range(18): A(f"v_lshl_or_b32 v{XV+i}, v{XV+i}, 16, v{XV+i}")
    for i in range(18):
        Bx = B0 if i % 2 == 0 else B1
        for k in range(4): A(f"v_and_b32 v{Bx+k}, v{XV+i}, v{MK+k}")
        if i > 0:
            Bp = B1 if i % 2 == 0 else B0
            A(f"s_waitcnt vmcnt({19-(i-1)})")
            A(f"v_mfma_f32_16x16x32_bf16 {rng(D)}, {rng(WQ+4*(i-1))}, {rng(Bp)}, {'0' if i == 1 else rng(D)}")
    A("s_waitcnt vmcnt(2)")
    A(f"v_mfma_f32_16x16x32_bf16 {rng(D)}, {rng(WQ+4*17)}, {rng(B1)}, {rng(D)}")
    qs = 1 if QBF else 0
    A(f"v_bfe_u32 v{T}, v{vL}, 3, 1"); A(f"v_lshlrev_b32 v{T}, {13-qs}, v{T}")
    A(f"v_lshrrev_b32 v{T+1}, 4, v{vL}"); A(f"v_lshl_add_u32 v{T}, v{T+1}, {7-qs}, v{T}")
    A(f"v_and_b32 v{T+1}, 7, v{vL}"); A(f"v_lshl_add_u32 v{T}, v{T+1}, {4-qs}, v{T}")
    A(f"s_lshl_b32 s{sT}, s{sG}, {14-qs}"); A(f"s_lshl_b32 s{sT2}, s{sJ}, {9-qs}"); A(f"s_add_u32 s{sT}, s{sT}, s{sT2}")
    A(f"v_add_u32 v{T}, s{sT}, v{T}")
    if QBF:
        A(f"v_cvt_pk_bf16_f32 v{D}, v{D}, v{D+1}"); A(f"v_cvt_pk_bf16_f32 v{D+1}, v{D+2}, v{D+3}")
        A(f"global_store_dwordx2 v{T}, v[{D}:{D+1}], {ws} sc1")
    elif 'S' not in SKIP: A(f"global_store_dwordx4 v{T}, {rng(D)}, {ws} sc1")
    stamp(2)
    if NS0:
        cur[0] = None
        A("s_nop 1")
        for n in range(WOAT): issue(n)
    A(f"s_lshl_b32 s{sT}, s{sG}, 4"); A(f"s_mov_b32 s{sT2}, 1"); A(f"s_add_u32 s{sT3}, s{sREC}, 528")
    A(f"s_waitcnt vmcnt({WOAT if NS0 else 0})")
    if 'A' in SKIP: A("s_sleep 60"); A("s_branch L_POLLA_OK")
    A(f"s_atomic_add s{sT2}, s[{sDBG}:{sDBG+1}], s{sT} glc"); A("s_waitcnt lgkmcnt(0)")
    A(f"s_cmp_lg_u32 s{sT2}, 15"); A("s_cbranch_scc1 L_NOTMASTER")
    A(f"s_mul_i32 s{sT}, s{sG}, {16*640}"); A(f"s_add_u32 s{sT}, s{sT}, {W_REC+528}"); A(f"s_add_u32 s{sA}, s{sWS}, s{sT}"); A(f"s_addc_u32 s{sA+1}, s{sWS+1}, 0")
    A(f"s_mov_b32 s{sT2}, 0")
    for j in range(16): A(f"s_atomic_and s{sT2}, s[{sA}:{sA+1}], {640*j}")
    A("s_branch L_POLLA_OK")
    A.label("L_NOTMASTER")
    A(f"s_mov_b32 s{sCNT}, {LIMIT}")
    A.label("L_POLLA")
    A(f"s_load_dword s{sT2}, {ws}, s{sT3} glc"); A("s_waitcnt lgkmcnt(0)")
    A(f"s_cmp_eq_u32 s{sT2}, 0"); A("s_cbranch_scc1 L_POLLA_OK")
    A(f"s_sleep {PSL}"); A(f"s_sub_u32 s{sCNT}, s{sCNT}, 1"); A(f"s_cmp_lg_u32 s{sCNT}, 0"); A("s_cbranch_scc1 L_POLLA")
    A.label("L_POLLA_OK")
    stamp(3)
    GQ = 128
    A(f"s_lshl_b32 s{sT}, s{sG}, {14-qs}"); A(f"s_lshl_b32 s{sT2}, s{sB}, {13-qs}"); A(f"s_add_u32 s{sT}, s{sT}, s{sT2}")
    if QBF:
        A(f"v_lshlrev_b32 v{T}, 3, v{vL}"); A(f"v_add_u32 v{T}, s{sT}, v{T}")
        for r in range(8): A(f"global_load_dwordx2 v[{GQ+8+2*r}:{GQ+9+2*r}], v{T}, {ws} offset:{512*r} sc1")
    else:
        A(f"v_add_u32 v{T}, s{sT}, v{vOFF}"); A(f"v_add_u32 v{T+1}, 4096, v{T}")
        for r in range(8 if 'G' not in SKIP else 0): A(f"global_load_dwordx4 {rng(GQ+4*r)}, v{T + r//4}, {ws} offset:{1024*(r%4)} sc1")
    A(f"v_lshrrev_b32 v{T+2}, 3, v{vL}"); A(f"v_lshlrev_b32 v{T+2}, 6, v{T+2}"); A(f"v_and_b32 v{T+3}, 7, v{vL}"); A(f"v_lshl_add_u32 v{T+2}, v{T+3}, 1, v{T+2}")
    if QBF:
        for r in range(8):
            A(f"s_waitcnt vmcnt({7-r})")
            o = GQ if r == 0 else GQ + 4
            for h in range(2):
                A(f"v_lshlrev_b32 v{o+2*h}, 16, v{GQ+8+2*r+h}"); A(f"v_and_b32 v{o+2*h+1}, 0xffff0000, v{GQ+8+2*r+h}")
            if r:
                for k in range(4): A(f"v_add_f32 v{GQ+k}, v{GQ+k}, v{GQ+4+k}")
    else:
        for r in range(1, 8):
            A(f"s_waitcnt vmcnt({7-r})")
            for k in range(4): A(f"v_add_f32 v{GQ+k}, v{GQ+k}, v{GQ+4*r+k}")
    A(f"v_cvt_pk_bf16_f32 v{GQ}, v{GQ}, v{GQ+1}"); A(f"v_cvt_pk_bf16_f32 v{GQ+1}, v{GQ+2}, v{GQ+3}")
    A(f"ds_write_b16 v{T+2}, v{GQ} offset:{L_Q}"); A(f"ds_write_b16_d16_hi v{T+2}, v{GQ} offset:{L_Q+16}")
    A(f"ds_write_b16 v{T+2}, v{GQ+1} offset:{L_Q+32}"); A(f"ds_write_b16_d16_hi v{T+2}, v{GQ+1} offset:{L_Q+48}")
    A(f"v_mov_b32 v{T+2}, 1"); A(f"v_mov_b32 v{T+3}, {L_QFLAG}")
    A("s_waitcnt lgkmcnt(0)")
    A(f"ds_write_b32 v{T+3}, v{T+2}")
    A("s_setprio 0")
    if NS0:
        stamp(6); A(f"v_mov_b32 v{vG}, 0"); A("s_branch L_STREAM2")
    else: A("s_branch L_STREAM")

    A.label("L_BBR")
    W1 = 100; BB = 118; W2 = WR + 20; U = 136; PK = 40; ZZ = 50; RES = 154; vC1 = 156; vC0 = 158; vONE = 160; vH = 162; vHA = 164; ACC = 165; vFL = 166
    def pr(r): return f"v[{r}:{r+1}]"
    A("s_waitcnt vmcnt(0)")
    for k in range(9):
        A(f"v_lshlrev_b32 v{W1+2*k}, 16, v{WR+k}"); A(f"v_and_b32 v{W1+2*k+1}, 0xffff0000, v{WR+k}")
        A(f"v_lshlrev_b32 v{BB+2*k}, 16, v{WR+10+k}"); A(f"v_and_b32 v{BB+2*k+1}, 0xffff0000, v{WR+10+k}")
    c0 = -2 * math.sqrt(2 / math.pi) * LOG2E; c1 = c0 * 0.044715
    for k in range(2):
        A(f"v_mov_b32 v{vC1+k}, {hx(f2u(c1))}"); A(f"v_mov_b32 v{vC0+k}, {hx(f2u(c0))}"); A(f"v_mov_b32 v{vONE+k}, 1.0")
    A(f"v_and_b32 v{vFL}, 7, v{vL}")
    A(f"s_sub_u32 s{sT}, s{sW}, 5"); A(f"s_mul_i32 s{sT}, s{sT}, 6")
    A(f"s_mul_i32 s{sT2}, s{sCG}, 144"); A(f"s_add_u32 s{sT3}, s{sT3}, s{sT2}")
    A(f"v_lshrrev_b32 v{vHA}, 3, v{vL}"); A(f"v_lshlrev_b32 v{vHA}, 1, v{vHA}"); A(f"v_add_u32 v{vHA}, s{sT3}, v{vHA}")
    A(f"s_mov_b32 s{sPASS}, 0"); A(f"v_mov_b32 v{RES}, 0")
    A("s_setprio 0")
    A.label("L_BLOOP")
    A(f"s_add_u32 s{sT2}, s{sT}, s{sPASS}"); A(f"s_cmp_ge_u32 s{sT2}, 9"); A(f"s_cselect_b32 s{sT3}, 63, 0"); A(f"s_add_u32 s{sT2}, s{sT2}, s{sT3}"); A(f"s_lshl_b32 s{sT2}, s{sT2}, 4")
    A(f"v_add_u32 v{vH+1}, s{sT2}, v{vHA}")
    A(f"ds_read_u16 v{vH}, v{vH+1}")
    A("s_waitcnt lgkmcnt(0)")
    A(f"v_lshlrev_b32 v{vH}, 16, v{vH}"); A(f"v_mov_b32 v{vH+1}, v{vH}")
    def round9():
        for k in range(9): A(f"v_cvt_pk_bf16_f32 v{PK+k}, v{U+2*k}, v{U+2*k+1}")
        for k in range(9):
            A(f"v_lshlrev_b32 v{U+2*k}, 16, v{PK+k}"); A(f"v_and_b32 v{U+2*k+1}, 0xffff0000, v{PK+k}")
    for k in range(9): A(f"v_pk_mul_f32 {pr(U+2*k)}, {pr(vH)}, {pr(W1+2*k)}")
    round9()
    for k in range(9): A(f"v_pk_add_f32 {pr(U+2*k)}, {pr(U+2*k)}, {pr(BB+2*k)}")
    round9()
    for k in range(9): A(f"v_pk_mul_f32 {pr(ZZ+2*k)}, {pr(U+2*k)}, {pr(U+2*k)}")
    for k in range(9): A(f"v_pk_fma_f32 {pr(ZZ+2*k)}, {pr(ZZ+2*k)}, {pr(vC1)}, {pr(vC0)}")
    for k in range(9): A(f"v_pk_mul_f32 {pr(ZZ+2*k)}, {pr(ZZ+2*k)}, {pr(U+2*k)}")
    for k in range(18): A(f"v_exp_f32 v{ZZ+k}, v{ZZ+k}")
    for k in range(9): A(f"v_pk_add_f32 {pr(ZZ+2*k)}, {pr(ZZ+2*k)}, {pr(vONE)}")
    for k in range(18): A(f"v_rcp_f32 v{ZZ+k}, v{ZZ+k}")
    for k in range(9): A(f"v_pk_mul_f32 {pr(U+2*k)}, {pr(U+2*k)}, {pr(ZZ+2*k)}")
    for k in range(9): A(f"v_cvt_pk_bf16_f32 v{PK+k}, v{U+2*k}, v{U+2*k+1}")
    A(f"v_mov_b32 v{ACC}, 0")
    for k in range(9): A(f"v_dot2c_f32_bf16 v{ACC}, v{PK+k}, v{W2+k}")
    for pat in ("quad_perm:[1,0,3,2]", "quad_perm:[2,3,0,1]", "row_half_mirror"):
        A(f"v_add_f32_dpp v{ACC}, v{ACC}, v{ACC} {pat}{dm}")
    A(f"v_cmp_eq_u32 vcc, s{sPASS}, v{vFL}"); A(f"v_cndmask_b32 v{RES}, v{RES}, v{ACC}, vcc")
    A(f"s_add_u32 s{sPASS}, s{sPASS}, 1"); A(f"s_cmp_lt_u32 s{sPASS}, 6"); A("s_cbranch_scc1 L_BLOOP")
    A("s_setprio 2")
    A(f"v_lshlrev_b32 v{T}, 5, v{vFL}"); A(f"v_lshrrev_b32 v{T+1}, 3, v{vL}"); A(f"v_lshl_add_u32 v{T}, v{T+1}, 2, v{T}")
    if FULL:
        A(f"v_add_u32 v{T+1}, s{sT}, v{vFL}"); A(f"v_cmp_le_u32 vcc, 9, v{T+1}"); A(f"v_cndmask_b32 v{T+1}, 0, 3, vcc"); A(f"v_lshl_add_u32 v{T}, v{T+1}, 5, v{T}")
    A(f"s_lshl_b32 s{sT}, s{sT}, 5"); A(f"s_add_u32 s{sT}, s{sT}, s{sSPB}"); A(f"s_add_u32 s{sT}, s{sT}, {W_YP}"); A(f"v_add_u32 v{T}, s{sT}, v{T}")
    A(f"s_mov_b32 exec_lo, 0x3f3f3f3f"); A(f"s_mov_b32 exec_hi, 0x3f3f3f3f")
    A(f"global_store_dword v{T}, v{RES}, {ws} sc1")
    A("s_mov_b64 exec, -1")
    if EXTRA:
        A(f"s_lshl_b32 s{sT}, s2, 3"); A(f"s_add_u32 s{sT}, s{sT}, s{sW}"); A(f"s_lshl_b32 s{sT}, s{sT}, 13"); A(f"s_add_u32 s{sT}, s{sT}, 0x1000000"); A(f"v_add_u32 v{T}, s{sT}, v{vOFF}")
        for k in range(EXTRA): A(f"global_store_dwordx4 v{T}, v[40:43], {ws} offset:{1024*k} sc1")
    stamp(2)

    A.label("L_STREAM")
    stamp(6)
    A(f"v_mov_b32 v{vG}, 0")
    cur[0] = None
    issued = 0
    while issued < NSIG: issue(issued); issued += 1
    A(f"s_cmp_lt_u32 s{sW}, 5"); A("s_cbranch_scc1 L_BDONE")
    A("s_mov_b64 exec, 1")
    A(f"v_mov_b32 v{T+2}, 1"); A(f"v_mov_b32 v{T+3}, {L_CNTB}")
    A(f"s_waitcnt vmcnt({NSIG})")
    A(f"ds_add_rtn_u32 v{T+4}, v{T+3}, v{T+2}")
    A(f"s_lshl_b32 s{sT2}, s{sG}, 4"); A(f"s_add_u32 s{sT2}, s{sT2}, 4"); A(f"s_mov_b32 s{sT3}, 1")
    A("s_waitcnt lgkmcnt(0)")
    A(f"v_readfirstlane_b32 s{sCNT}, v{T+4}")
    A("s_mov_b64 exec, -1")
    A("s_setprio 0")
    A(f"s_cmp_lg_u32 s{sCNT}, 2"); A("s_cbranch_scc1 L_BDONE")
    A(f"s_atomic_add s{sT3}, s[{sDBG}:{sDBG+1}], s{sT2}")
    A.label("L_BDONE")
    cur[0] = None
    while issued < WOAT: issue(issued); issued += 1
    MARK_STREAM2 = len(A.lines)
    A.label("L_STREAM2")
    cur[0] = None
    while issued < NPRE: issue(issued); issued += 1
    A(f"s_cmp_eq_u32 s{sLATE}, 1"); A("s_cbranch_scc1 L_LATE0")
    e = NPRE
    while e < min(NEARLY, 46): issue(e); e += 1
    A(f"s_cmp_eq_u32 s{sW}, 4"); A("s_cbranch_scc1 L_NOWO2")
    A(f"s_waitcnt vmcnt({e - WOAT})")
    for k in range(6): A(f"ds_write_b128 v{vG}, a[{60+4*k}:{63+4*k}] offset:{L_WO+1024*k}")
    ldsinc(L_CNTW)
    A("s_waitcnt lgkmcnt(0)")
    A.label("L_NOWO2")
    cur[0] = None
    while e < NEARLY: issue(e); e += 1
    A.label("L_LATE0")
    stamp(7)
    ldswait("QW", L_QFLAG, 0, 2, "lg")
    A(f"v_bfe_u32 v{T}, v{vL}, 3, 1"); A(f"v_lshlrev_b32 v{T}, 8, v{T}"); A(f"v_and_b32 v{T+1}, 15, v{vL}"); A(f"v_lshl_add_u32 v{T}, v{T+1}, 4, v{T}")
    A(f"v_xor_b32 v{T+1}, 128, v{T}")
    A(f"ds_read_b128 {rng(QA)}, v{T} offset:{L_Q}"); A(f"ds_read_b128 {rng(QB)}, v{T+1} offset:{L_Q}")
    A("s_waitcnt lgkmcnt(0)")
    stamp(8)
    if EPRIO:
        A(f"s_cmp_eq_u32 s{sLATE}, 1"); A("s_cbranch_scc1 L_NOEP"); A(f"s_setprio {EPRIO}"); A.label("L_NOEP")
    def sreg(i): return ks(4 * (i >> 2) + 3) + (i & 3)
    nlab = [0]
    K8 = [13, 14, 16, 17]; V8 = [24, 25, 26, 28]
    def x8(kind):
        srd = f"s[{KS}:{KS+3}]" if kind == "K" else f"s[{VS}:{VS+3}]"
        for a in range(4):
            A(f"s_xor_b32 s{sT}, s{sB8}, {(28+a) << 12}"); A(f"buffer_load_dwordx4 {rng(ks((K8 if kind == 'K' else V8)[a]))}, v{vOFF}, {srd}, s{sT} offen{nt}")
    EQ = {0: [54, 55, 56], 1: [57, 58, 59], 2: [60, 61, 62], 3: [63]}
    def more(n, kdone=32, gq=None):
        nonlocal issued
        todo = list(range(issued, min(issued + n, 64)))
        lim = 64 if EFAST else NEARLY
        lateonly = [k for k in todo if k < lim]; both = [k for k in todo if k >= lim]
        early = EQ.get(gq, []) if EFAST else []
        nlab[0] += 1
        if lateonly or early:
            A(f"s_cmp_eq_u32 s{sLATE}, 0"); A(f"s_cbranch_scc1 L_SK{nlab[0]}")
            cur[0] = None
            for k in lateonly:
                i = k - 32
                assert not (i >= 22 and free[i-22] >= kdone), (i, kdone)
                issue(k)
            if early: A(f"s_branch L_SJ{nlab[0]}")
            A.label(f"L_SK{nlab[0]}")
            if early:
                for k in early: issue(k)
                A.label(f"L_SJ{nlab[0]}")
        if SKW and gq in (4, 7):
            A(f"s_cmp_eq_u32 s{sX8}, 0"); A(f"s_cbranch_scc1 L_SX{nlab[0]}")
            x8("K" if gq == 4 else "V")
            A.label(f"L_SX{nlab[0]}")
        cur[0] = None
        for k in both:
            i = k - 32
            assert not (i >= 22 and free[i-22] >= kdone), (i, kdone)
            issue(k)
        issued += len(todo)
    def qk(Kr, S, mid=None, bias=False):
        for a in range(4): A(f"v_dot2_f32_bf16 v{T+a}, v{Kr[a]}, v{QA}, 0")
        for c in range(1, 4):
            for a in range(4): A(f"v_dot2c_f32_bf16 v{T+a}, v{Kr[a]+c}, v{QA+c}")
        for c in range(4):
            for a in range(4): A(f"v_dot2c_f32_bf16_dpp v{T+a}, v{Kr[a]+c}, v{QB+c} row_ror:8{dm}")
        if mid: mid()
        for a in range(4): A(f"v_add_f32_dpp v{T+a}, v{T+a}, v{T+a} quad_perm:[1,0,3,2]{dm}")
        for a in range(4): A(f"v_add_f32_dpp v{T+a}, v{T+a}, v{T+a} quad_perm:[2,3,0,1]{dm}")
        for a in range(4): A(f"v_add_f32_dpp v{S+a}, v{T+a}, v{T+a} row_half_mirror{dm}")
        if ROUND:
            for rep in range(2):
                A(f"v_cvt_pk_bf16_f32 v{T+4}, v{S}, v{S+1}"); A(f"v_cvt_pk_bf16_f32 v{T+5}, v{S+2}, v{S+3}")
                A(f"v_lshlrev_b32 v{S}, 16, v{T+4}"); A(f"v_and_b32 v{S+1}, 0xffff0000, v{T+4}")
                A(f"v_lshlrev_b32 v{S+2}, 16, v{T+5}"); A(f"v_and_b32 v{S+3}, 0xffff0000, v{T+5}")
                if rep == 0:
                    for a in range(4): A(f"v_mul_f32 v{S+a}, {hx(f2u(SCALE))}, v{S+a}")
        if bias:
            for a in range(4): A(f"v_add_f32 v{S+a}, s{sBIAS}, v{S+a}")
    for gq in range(8):
        A(f"s_waitcnt vmcnt({issued - (4*gq+4)})")
        S = ks(4*gq+3)
        qk([ks(4*gq+a) for a in range(4)], S, lambda: more(SCH_QK[gq], 4*gq+4, gq), bool(SKW) and gq == 7)
        if gq == 0: A(f"v_max3_f32 v{vM}, v{S}, v{S+1}, v{S+2}"); A(f"v_max_f32 v{vM}, v{vM}, v{S+3}")
        else: A(f"v_max3_f32 v{vM}, v{vM}, v{S}, v{S+1}"); A(f"v_max3_f32 v{vM}, v{vM}, v{S+2}, v{S+3}")
    S8 = ks(K8[3])
    if SKW:
        assert EFAST and NEARLY == 54
        A(f"s_cmp_eq_u32 s{sX8}, 0"); A("s_cbranch_scc1 L_NQ8")
        A("s_waitcnt vmcnt(4)")
        qk([ks(q) for q in K8], S8)
        A(f"v_max3_f32 v{vM}, v{vM}, v{S8}, v{S8+1}"); A(f"v_max3_f32 v{vM}, v{vM}, v{S8+2}, v{S8+3}")
        A.label("L_NQ8")
    xrow(vM, T, "v_max_f32")
    A(f"v_mul_f32 v{vM}, s{sC1}, v{vM}")
    stamp(9)
    A(f"v_mov_b32 v{vLs}, 0")
    for q in range(8):
        S = ks(4*q+3)
        for a in range(4): A(f"v_fma_f32 v{S+a}, v{S+a}, s{sC1}, -v{vM}")
        for a in range(4): A(f"v_exp_f32 v{S+a}, v{S+a}")
        for a in range(4): A(f"v_add_f32 v{vLs}, v{vLs}, v{S+a}")
        for a in range(4): A(f"v_cvt_pk_bf16_f32 v{S+a}, v{S+a}, v{S+a}")
        more(SCH_SM[q])
    if SKW:
        A(f"s_cmp_eq_u32 s{sX8}, 0"); A("s_cbranch_scc1 L_NS8")
        for a in range(4): A(f"v_fma_f32 v{S8+a}, v{S8+a}, s{sC1}, -v{vM}")
        for a in range(4): A(f"v_exp_f32 v{S8+a}, v{S8+a}")
        for a in range(4): A(f"v_add_f32 v{vLs}, v{vLs}, v{S8+a}")
        for a in range(4): A(f"v_cvt_pk_bf16_f32 v{S8+a}, v{S8+a}, v{S8+a}")
        A.label("L_NS8")
    xrow(vLs, T, "v_add_f32")
    vH6 = T + 6
    A(f"v_bfe_u32 v{T+7}, v{vL}, 3, 1"); A(f"v_lshlrev_b32 v{vH6}, 6, v{T+7}")
    A(f"s_lshl_b32 s{sT2}, s{sW}, 3"); A(f"v_add_u32 v{T}, s{sT2}, v{vH6}")
    A(f"v_mov_b32 v{T+2}, 1"); A(f"v_mov_b32 v{T+3}, {L_CNTI}")
    A("s_mov_b64 exec, 0x101"); A(f"ds_write_b64 v{T}, v[{vM}:{vM+1}] offset:{L_MLW}")
    A("s_mov_b64 exec, 1"); A(f"ds_add_rtn_u32 v{T+4}, v{T+3}, v{T+2}"); A("s_mov_b64 exec, -1")
    A(f"v_lshlrev_b32 v{vM}, 8, v{T+7}"); A(f"v_lshrrev_b32 v{T+1}, 4, v{vL}"); A(f"v_lshl_add_u32 v{vM}, v{T+1}, 6, v{vM}")
    A(f"v_and_b32 v{T+1}, 7, v{vL}"); A(f"v_lshl_add_u32 v{vM}, v{T+1}, 3, v{vM}"); A(f"v_add_u32 v{vM}, s{sREC}, v{vM}")
    A(f"s_lshl_b32 s{sT2}, s{sW}, 10"); A(f"v_add_u32 v{vLs}, s{sT2}, v{vOFF}")
    A("s_waitcnt lgkmcnt(0)")
    A(f"v_readfirstlane_b32 s{sT2}, v{T+4}")
    A(f"s_cmp_lg_u32 s{sT2}, 7"); A("s_cbranch_scc1 L_NOF")
    MQ = [ks(18), ks(20), ks(21), ks(22)]; FF = ks(29)
    for k in range(4): A(f"ds_read_b128 {rng(MQ[k])}, v{vH6} offset:{L_MLW+16*k}")
    mm = [MQ[k // 2] + 2 * (k % 2) for k in range(8)]
    A(f"v_lshlrev_b32 v{T+2}, 3, v{T+7}"); A(f"v_add_u32 v{T+2}, s{sREC}, v{T+2}")
    A("s_waitcnt lgkmcnt(0)")
    A(f"v_max3_f32 v{T}, v{mm[0]}, v{mm[1]}, v{mm[2]}"); A(f"v_max3_f32 v{T}, v{T}, v{mm[3]}, v{mm[4]}"); A(f"v_max3_f32 v{T}, v{T}, v{mm[5]}, v{mm[6]}"); A(f"v_max_f32 v{T}, v{T}, v{mm[7]}")
    for k in range(8): A(f"v_sub_f32 v{FF+k}, v{mm[k]}, v{T}")
    for k in range(8): A(f"v_exp_f32 v{FF+k}, v{FF+k}")
    A(f"v_mul_f32 v{T+1}, v{FF}, v{mm[0]+1}")
    for k in range(1, 8): A(f"v_fmac_f32 v{T+1}, v{FF+k}, v{mm[k]+1}")
    A(f"v_lshrrev_b32 v{T+3}, 1, v{vH6}")
    A(f"v_min_u32 v{T}, -2, v{T}"); A(f"v_min_u32 v{T+1}, -2, v{T+1}")
    A("s_mov_b64 exec, 0x101")
    A(f"ds_write_b128 v{T+3}, {rng(FF)} offset:{L_FW}"); A(f"ds_write_b128 v{T+3}, {rng(FF+4)} offset:{L_FW+16}")
    if 't' not in SKIP: A(f"global_store_dwordx2 v{T+2}, v[{T}:{T+1}], {ws} offset:512 sc1")
    A("s_mov_b64 exec, -1")
    A.label("L_NOF")
    A(f"v_mov_b32 v{T+2}, 1"); A(f"v_mov_b32 v{T+3}, {L_CNTO}"); A(f"v_lshrrev_b32 v{T+4}, 1, v{vH6}")
    for i in range(33):
        if i < 32:
            Bx = B0 if i % 2 == 0 else B1
            for k in range(4): A(f"v_and_b32 v{Bx+k}, v{sreg(i)}, v{MK+k}")
        if i > 0:
            Bp = B0 if (i-1) % 2 == 0 else B1
            assert issued > 32 + i - 1
            A(f"s_waitcnt vmcnt({issued - (32 + i)})")
            A(f"v_mfma_f32_16x16x32_bf16 {rng(D)}, {vreg(i-1)}, {rng(Bp)}, {'0' if i == 1 else rng(D)}")
            more(SCH_PV.get(i-1, 0))
    assert issued == 64
    if SKW:
        A(f"s_cmp_eq_u32 s{sX8}, 0"); A("s_cbranch_scc1 L_NP8")
        for a in range(4):
            Bc = B0 if a % 2 == 0 else B1
            for k in range(4): A(f"v_and_b32 v{Bc+k}, v{S8+a}, v{MK+k}")
            A(f"v_mfma_f32_16x16x32_bf16 {rng(D)}, {rng(ks(V8[a]))}, {rng(Bc)}, {rng(D)}")
        A.label("L_NP8")
    stamp(10)
    if 't' in SKIP: A("s_branch L_EXIT")
    A(f"ds_write_b128 v{vLs}, {rng(D)} offset:{L_OW}")
    A("s_mov_b64 exec, 1"); A(f"ds_add_rtn_u32 v{T+5}, v{T+3}, v{T+2}"); A("s_mov_b64 exec, -1")
    A("s_waitcnt lgkmcnt(0)")
    A(f"v_readfirstlane_b32 s{sT2}, v{T+5}")
    A(f"s_cmp_lg_u32 s{sT2}, 7"); A("s_cbranch_scc1 L_NOPUB")
    OO = 40; FR = 72
    A(f"ds_read_b128 {rng(FR)}, v{T+4} offset:{L_FW}"); A(f"ds_read_b128 {rng(FR+4)}, v{T+4} offset:{L_FW+16}")
    for k in range(8): A(f"ds_read_b128 {rng(OO+4*k)}, v{vOFF} offset:{L_OW+1024*k}")
    for k in range(8):
        A(f"s_waitcnt lgkmcnt({7-k})")
        for c in range(4):
            if k == 0: A(f"v_mul_f32 v{D+c}, v{FR}, v{OO+c}")
            else: A(f"v_fmac_f32 v{D+c}, v{FR+k}, v{OO+4*k+c}")
    A(f"v_cvt_pk_bf16_f32 v{D}, v{D}, v{D+1}"); A(f"v_cvt_pk_bf16_f32 v{D+1}, v{D+2}, v{D+3}")
    A(f"v_min_u32 v{D}, -2, v{D}"); A(f"v_min_u32 v{D+1}, -2, v{D+1}")
    A(f"global_store_dwordx2 v{vM}, v[{D}:{D+1}], {ws} {FS}")
    if MLFIRST: A(f"ds_write_b32 v{T+3}, v{T+2} offset:{L_PUBD - L_CNTO}")
    stamp(3)
    A.label("L_NOPUB")
    A(f"s_cmp_eq_u32 s{sW}, 2"); A("s_cbranch_scc1 L_HOP2")
    A(f"s_cmp_lg_u32 s{sW}, 1"); A("s_cbranch_scc1 L_EXIT")

    def checkAB(tag, va, vd):
        A(f"s_mov_b32 s{sCNT}, {LIMIT}")
        A(f"v_and_b32 v{va}, 15, v{vL}"); A(f"v_lshlrev_b32 v{va}, 4, v{va}"); A(f"v_bfe_u32 v{vd}, v{vL}, 4, 1"); A(f"v_lshl_add_u32 v{va}, v{vd}, 2, v{va}")
        A.label(f"L_CB{tag}")
        A(f"global_load_dword v{vd}, v{va}, s[{sDBG}:{sDBG+1}] sc1"); A("s_waitcnt vmcnt(0)")
        A(f"v_cmp_ne_u32 vcc, 16, v{vd}"); A(f"s_cbranch_vccz L_CB{tag}_OK")
        A("s_sleep 16"); A(f"s_sub_u32 s{sCNT}, s{sCNT}, 1"); A(f"s_cmp_lg_u32 s{sCNT}, 0"); A(f"s_cbranch_scc1 L_CB{tag}")
        A.label(f"L_CB{tag}_OK")
    def red32(v, t):
        A(f"v_add_f32 v{v}, v{v}, v{v+1}"); A(f"v_add_f32 v{v+2}, v{v+2}, v{v+3}"); A(f"v_add_f32 v{v}, v{v}, v{v+2}")
        A(f"v_add_f32_dpp v{v}, v{v}, v{v} row_ror:8{dm}")
        xrow(v, t, "v_add_f32")
    RAW = 120; vA = 160; vMLa = 161; vSP = 162; vH2 = 160; vOA = 161
    ldswait("WW", L_CNTW, 3, 2)
    A(f"v_lshrrev_b32 v{T}, 4, v{vL}"); A(f"v_mul_u32_u24 v{T}, 288, v{T}"); A(f"v_and_b32 v{T+1}, 15, v{vL}"); A(f"v_lshl_add_u32 v{T}, v{T+1}, 1, v{T}")
    for n in range(5):
        for t in range(4):
            for e_ in range(8): A(f"ds_read_u16 v{RAW+e_}, v{T} offset:{L_WO + 32*n + (32*t + 8*(e_&3) + (e_>>2))*144}")
            A("s_waitcnt lgkmcnt(0)")
            for k in range(4): A(f"v_lshl_or_b32 v{40+16*n+4*t+k}, v{RAW+2*k+1}, 16, v{RAW+2*k}")
    A(f"s_lshr_b32 s{sT}, s{sP}, 1"); A(f"s_mul_i32 s{sT}, s{sT}, {16*640}"); A(f"s_add_u32 s{sT}, s{sT}, {W_REC}"); A(f"s_and_b32 s{sT2}, s{sP}, 1")
    A(f"s_lshl_b32 s{sT3}, s{sT2}, 8"); A(f"s_add_u32 s{sT3}, s{sT3}, s{sT}")
    A(f"v_mul_u32_u24 v{vA}, 640, v{T+1}"); A(f"v_lshrrev_b32 v{T}, 4, v{vL}"); A(f"v_lshl_add_u32 v{vA}, v{T}, 4, v{vA}"); A(f"v_add_u32 v{vA}, s{sT3}, v{vA}")
    A(f"s_lshl_b32 s{sT3}, s{sT2}, 3"); A(f"s_add_u32 s{sT3}, s{sT3}, s{sT}"); A(f"s_add_u32 s{sT3}, s{sT3}, 512")
    A(f"v_mul_u32_u24 v{vMLa}, 2560, v{T}"); A(f"v_add_u32 v{vMLa}, s{sT3}, v{vMLa}")
    A(f"v_lshrrev_b32 v{vSP}, 5, v{vL}"); A(f"v_mul_u32_u24 v{vSP}, {BO}, v{vSP}"); A(f"v_and_b32 v{T}, 31, v{vL}"); A(f"v_lshl_add_u32 v{vSP}, v{T}, 2, v{vSP}")
    A(f"s_add_u32 s{sT}, s{sSPB}, {W_SP}"); A(f"v_add_u32 v{vSP}, s{sT}, v{vSP}")
    checkAB("T", T, T+1)
    def maxchain(dst, regs):
        A(f"v_max3_u32 v{dst}, v{regs[0]}, v{regs[1]}, v{regs[2]}")
        k = 3
        while k < len(regs):
            if k + 1 < len(regs): A(f"v_max3_u32 v{dst}, v{dst}, v{regs[k]}, v{regs[k+1]}"); k += 2
            else: A(f"v_max_u32 v{dst}, v{dst}, v{regs[k]}"); k += 1
    def pollmask(tag, loads, regs):
        sl = {"HM": MSL, "H1": H1SL, "H2": H2SL}[tag]
        A(f"s_mov_b32 s{sCNT}, {LIMIT}")
        A.label(f"L_{tag}")
        loads()
        A("s_waitcnt vmcnt(0)")
        if len(regs) > 8:
            h = len(regs) // 2
            maxchain(T, regs[:h]); maxchain(T+1, regs[h:]); A(f"v_max_u32 v{T}, v{T}, v{T+1}")
        else: maxchain(T, regs)
        A(f"v_cmp_eq_u32 vcc, -1, v{T}"); A(f"s_cbranch_vccz L_{tag}_OK")
        A("s_mov_b64 exec, vcc")
        if sl: A(f"s_sleep {sl}")
        A(f"s_sub_u32 s{sCNT}, s{sCNT}, 1"); A(f"s_cmp_lg_u32 s{sCNT}, 0"); A(f"s_cbranch_scc1 L_{tag}")
        A.label(f"L_{tag}_OK")
        A("s_mov_b64 exec, -1")

    AA = 136; ML = 152; WN = 24
    A(f"v_mov_b32 v{vSP+1}, 1"); A(f"v_mov_b32 v{vSP+2}, {L_SPD}")
    if MLFIRST: ldswait("OW", L_CNTI, 8, 4)
    else: ldswait("OW", L_CNTO, 8, 1); stamp(6)
    pollmask("HM", lambda: [A(f"global_load_dwordx2 v[{ML+2*i}:{ML+2*i+1}], v{vMLa}, {ws} offset:{640*i} sc1") for i in range(4)], list(range(ML, ML+8)))
    m = [ML, ML+2, ML+4, ML+6]; l = [ML+1, ML+3, ML+5, ML+7]
    def aloads():
        for t in range(4): A(f"global_load_dwordx4 {rng(AA+4*t)}, v{vA}, {ws} offset:{64*t} {F1}")
    A(f"v_max3_f32 v{T}, v{m[0]}, v{m[1]}, v{m[2]}"); A(f"v_max_f32 v{T}, v{T}, v{m[3]}")
    A(f"v_mov_b32 v{T+1}, v{T}"); A(f"v_permlane16_swap_b32 v{T+1}, v{T}"); A(f"v_max_f32 v{T}, v{T+1}, v{T}")
    for i in range(4): A(f"v_sub_f32 v{m[i]}, v{m[i]}, v{T}")
    for i in range(4): A(f"v_exp_f32 v{m[i]}, v{m[i]}")
    A(f"v_mul_f32 v{T+2}, v{m[0]}, v{l[0]}")
    for i in range(1, 4): A(f"v_fmac_f32 v{T+2}, v{m[i]}, v{l[i]}")
    A(f"v_mov_b32 v{T+1}, v{T+2}"); A(f"v_permlane16_swap_b32 v{T+1}, v{T+2}"); A(f"v_add_f32 v{T+2}, v{T+1}, v{T+2}")
    A(f"v_rcp_f32 v{T+2}, v{T+2}")
    for i in range(4): A(f"v_mul_f32 v{WN+i}, v{m[i]}, v{T+2}")
    if MLFIRST:
        ldswait("PW", L_PUBD, 1, 1); stamp(6)
        if H1DELAY: A(f"s_sleep {H1DELAY}")
    pollmask("H1", aloads, list(range(AA, AA+16)))
    stamp(7)
    def mf(t, n): return f"v_mfma_f32_16x16x32_bf16 {rng(4+4*n)}, {rng(AA+4*t)}, {rng(40+16*n+4*t)}, {'0' if t == 0 else rng(4+4*n)}"
    def epi(n): return [f"v_mul_f32 v{T+n}, v{WN}, v{4+4*n}"] + [f"v_fmac_f32 v{T+n}, v{WN+i}, v{4+4*n+i}" for i in range(1, 4)]
    def fin2(n): return [f"v_permlane16_swap_b32 v{T+n-1}, v{T+n}", f"v_add_f32 v{T+n}, v{T+n-1}, v{T+n}", f"v_min_u32 v{T+n}, -2, v{T+n}",
                         f"global_store_dword v{vSP}, v{T+n}, {ws} offset:{128*(n//2)} {FS}"]
    def fin4(): return [f"v_mov_b32 v{T+5}, v{T+4}", None, None, f"v_permlane16_swap_b32 v{T+5}, v{T+4}", f"v_add_f32 v{T+4}, v{T+5}, v{T+4}", f"v_min_u32 v{T+4}, -2, v{T+4}"] + \
                       ([] if FULL else ["s_mov_b32 exec_lo, 0xff", "s_mov_b32 exec_hi, 0xff"]) + [f"global_store_dword v{vSP}, v{T+4}, {ws} offset:256 {FS}"] + ([] if FULL else ["s_mov_b64 exec, -1"])
    if REORD:
        for t in range(4): A(mf(t, 4)); A(mf(t, 0))
        side = [None, None] + epi(4) + fin4()
        for t in range(4):
            A(mf(t, 1))
            for _ in range(4):
                if side:
                    x = side.pop(0)
                    if x: A(x)
        for x in side:
            if x: A(x)
        side = epi(0) + [None] + epi(1) + [None] + fin2(1)
        for t in range(4):
            for n in (2, 3):
                A(mf(t, n))
                for _ in range(2):
                    if side:
                        x = side.pop(0)
                        if x: A(x)
        for x in side:
            if x: A(x)
        for x in epi(2) + epi(3) + fin2(3): A(x)
    else:
        for t in range(4):
            for n in range(5): A(mf(t, n))
        for x in epi(0) + epi(1) + fin2(1) + epi(2) + epi(3) + fin2(3) + epi(4) + fin4():
            if x: A(x)
    A(f"ds_write_b32 v{vSP+2}, v{vSP+1}")
    A("s_mov_b64 exec, -1")
    stamp(9)
    A("s_branch L_EXIT")

    A.label("L_HOP2")
    A(f"s_cmp_ge_u32 s2, 144"); A("s_cbranch_scc1 L_EXIT")
    YY = 120
    checkAB("G", T, T+1)
    sCH = sPASS
    if C2MAP:
        A(f"s_lshr_b32 s{sT}, s2, 3"); A(f"s_and_b32 s{sT2}, s2, 7"); A(f"s_cmp_ge_u32 s{sT}, 9")
        A(f"s_cselect_b32 s{sT3}, {BO - 288}, 0"); A(f"s_cselect_b32 s{sCH}, 63, 0")
        A(f"s_add_u32 s{sCH}, s{sCH}, s{sT}"); A(f"s_mul_i32 s{sCNT}, s{sT2}, 9"); A(f"s_add_u32 s{sCH}, s{sCH}, s{sCNT}")
        A(f"s_lshl_b32 s{sT}, s{sT}, 5"); A(f"s_add_u32 s{sT3}, s{sT3}, s{sT}"); A(f"s_mul_i32 s{sT2}, s{sT2}, {32*SL}"); A(f"s_add_u32 s{sT3}, s{sT3}, s{sT2}")
    else:
        A(f"s_mov_b32 s{sCH}, s2")
        A(f"s_cmp_ge_u32 s2, 72"); A(f"s_cselect_b32 s{sT}, 72, 0"); A(f"s_cselect_b32 s{sT3}, {BO}, 0"); A(f"s_sub_u32 s{sT}, s2, s{sT}")
        A(f"s_mul_i32 s{sT2}, s{sT}, 57"); A(f"s_lshr_b32 s{sT2}, s{sT2}, 9")
        A(f"s_lshl_b32 s{sT}, s{sT}, 5"); A(f"s_add_u32 s{sT3}, s{sT3}, s{sT}"); A(f"s_mul_i32 s{sT2}, s{sT2}, {32*SL - 288}"); A(f"s_add_u32 s{sT3}, s{sT3}, s{sT2}")
    A(f"s_add_u32 s{sT3}, s{sT3}, {W_SP}")
    A(f"v_lshrrev_b32 v{vH2}, 3, v{vL}"); A(f"v_mul_u32_u24 v{vH2}, {4*SL}, v{vH2}"); A(f"v_and_b32 v{vOA}, 7, v{vL}"); A(f"v_lshl_add_u32 v{vH2}, v{vOA}, 2, v{vH2}")
    A(f"v_add_u32 v{vH2}, s{sT3}, v{vH2}")
    A(f"v_add_u32 v{T}, {W_YP - W_SP}, v{vH2}")
    for k in range(4): A(f"global_load_dword v{YY+k}, v{T}, {ws} offset:{SL*k} sc1")
    A(f"v_lshlrev_b32 v{vOA}, 1, v{vOA}"); A(f"s_lshl_b32 s{sT}, s{sCH}, 4"); A(f"v_add_u32 v{vOA}, s{sT}, v{vOA}")
    A(f"global_load_ushort v{vXo}, v{vOA}, s[{sX}:{sX+1}]")
    A(f"v_mov_b32 v{T+1}, 0")
    A(f"global_load_ushort v{YY+4}, v{T+1}, s[{sB2}:{sB2+1}]")
    A("s_waitcnt vmcnt(0)")
    red32(YY, YY+5)
    rnd1(YY); A(f"v_lshlrev_b32 v{YY+4}, 16, v{YY+4}"); A(f"v_add_f32 v{YY}, v{YY}, v{YY+4}"); rnd1(YY)
    A(f"v_mul_f32 v{YY+1}, {hx(f2u(-LOG2E))}, v{YY}"); A(f"v_exp_f32 v{YY+1}, v{YY+1}"); A(f"v_add_f32 v{YY+1}, 1.0, v{YY+1}"); A(f"v_rcp_f32 v{YY+1}, v{YY+1}")
    A(f"v_mul_f32 v{vG}, v{YY}, v{YY+1}"); rnd1(vG)
    A(f"v_lshlrev_b32 v{vXo}, 16, v{vXo}")
    SS = 112
    if H2WAIT == "sp": ldswait("OW2", L_SPD, 1, 1)
    else: ldswait("OW2", L_CNTO, 8, 1)
    if H2DELAY: A(f"s_sleep {H2DELAY}")
    pollmask("H2", lambda: [A(f"global_load_dword v{SS+k}, v{vH2}, {ws} offset:{SL*k} {F2}") for k in range(4)], list(range(SS, SS+4)))
    stamp(7)
    red32(SS, T)
    rnd1(SS); A(f"v_mul_f32 v{SS}, v{SS}, v{vG}"); rnd1(SS); A(f"v_add_f32 v{SS}, v{SS}, v{vXo}")
    A(f"v_cvt_pk_bf16_f32 v{SS}, v{SS}, v{SS}")
    A("s_mov_b64 exec, 0xff")
    A(f"global_store_short v{vOA}, v{SS}, s[{sOUT}:{sOUT+1}]")
    A("s_mov_b64 exec, -1")
    A.label("L_EXIT")
    if ECHO:
        stamp(11); A("s_waitcnt lgkmcnt(0)")
        A(f"s_cmp_lg_u32 s2, 0"); A("s_cbranch_scc1 L_END")
        A(f"s_cmp_lg_u32 s{sW}, {ECHO[0]}"); A("s_cbranch_scc1 L_END")
        A(f"s_sub_u32 s{sT}, s{SB+2*ECHO[1]}, s{SB}"); A(f"s_lshl_b32 s{sT}, s{sT}, 2"); A(f"s_add_u32 s{sT}, s{sT}, 4000"); A(f"s_add_u32 s{sT}, s{sT}, s{SB}")
        A.label("L_ECHO")
        A(f"s_memrealtime s[{sR}:{sR+1}]"); A("s_waitcnt lgkmcnt(0)"); A(f"s_sub_u32 s{sT2}, s{sR}, s{sT}"); A(f"s_cmp_lt_i32 s{sT2}, 0"); A("s_cbranch_scc1 L_ECHO")
    elif STAMP:
        stamp(11)
        A("s_waitcnt lgkmcnt(0) vmcnt(0)")
        A(f"s_lshl_b32 s{sT}, s2, 3"); A(f"s_add_u32 s{sT}, s{sT}, s{sW}"); A(f"s_mul_i32 s{sT}, s{sT}, {NST*8}"); A(f"s_add_u32 s{sT}, s{sT}, {W_ST}")
        A(f"v_mov_b32 v3, s{sT}")
        for k in range(2*NST): A(f"v_mov_b32 v{40+k}, s{SB+k}")
        A("s_mov_b64 exec, 1")
        for q in range(NST // 2): A(f"global_store_dwordx4 v3, {rng(40+4*q)}, {ws} offset:{16*q}")
    A.label("L_END")
    A("s_endpgm")
    svc = A.lines[MARK_SERVICE:MARK_STREAM2]
    assert A.lines[MARK_SERVICE-1].strip() == "s_branch L_STREAM2"
    A.lines = A.lines[:MARK_SERVICE-1] + A.lines[MARK_STREAM2:] + svc + ["    s_branch L_STREAM2", "L_CODE_END:"]
    A.raw(".set CODE_KB, (L_CODE_END - L_PC0) >> 10" if PF else "")
    A.raw("    s_endpgm"); A.raw(".fill 260, 4, 0xbf800000")
    A.raw('.section .rodata,"a"'); A.raw(".p2align 6"); A.raw(f".amdhsa_kernel {KN}_kernel")
    A.raw("  .amdhsa_next_free_vgpr 256"); A.raw("  .amdhsa_next_free_sgpr 102"); A.raw("  .amdhsa_accum_offset 168")
    A.raw("  .amdhsa_group_segment_fixed_size 0"); A.raw("  .amdhsa_kernarg_size 104"); A.raw("  .amdhsa_user_sgpr_count 2")
    A.raw("  .amdhsa_user_sgpr_kernarg_segment_ptr 1"); A.raw("  .amdhsa_system_sgpr_workgroup_id_x 1")
    A.raw("  .amdhsa_float_denorm_mode_32 3")
    A.raw(".end_amdhsa_kernel")
    return A.text()

if __name__ == "__main__":
    out = sys.argv[1]
    kw = eval("dict(" + (sys.argv[2] if len(sys.argv) > 2 else "") + ")")
    open(out, "w").write(gen(**kw))
```

```python
import re
TRANS = ("v_exp_f32", "v_log_f32", "v_rcp_f32", "v_rsq_f32", "v_sqrt_f32", "v_sin_f32", "v_cos_f32")
_reg = re.compile(r"\b([vas])(\d+)\b|\b([vas])\[(\d+):(\d+)\]|\b(vcc|exec|m0|scc)\b")
def regs_of(op):
    out = set()
    for m in _reg.finditer(op):
        if m.group(1): out.add((m.group(1), int(m.group(2))))
        elif m.group(3):
            for i in range(int(m.group(4)), int(m.group(5)) + 1): out.add((m.group(3), i))
        else: out.add((m.group(6), 0))
    return out
def split_ops(s):
    ops = []; depth = 0; cur = ""
    for ch in s:
        if ch == "[": depth += 1
        if ch == "]": depth -= 1
        if ch == "," and depth == 0: ops.append(cur.strip()); cur = ""
        else: cur += ch
    if cur.strip(): ops.append(cur.strip())
    return ops
class Ins:
    pass
class Asm:
    def __init__(self):
        self.lines = []; self.hist = []; self.nops = 0
    def raw(self, s): self.lines.append(s)
    def comment(self, s): self.lines.append("    ; " + s)
    def classify(self, text):
        t = text.split(";")[0].strip()
        parts = t.split(None, 1)
        op = parts[0]; rest = parts[1] if len(parts) > 1 else ""
        ops = split_ops(rest)
        I = Ins(); I.op = op; I.text = t
        I.w = set(); I.r = set(); I.kind = "other"; I.ws = 1
        I.dpp = ("_dpp" in op) or ("quad_perm" in t) or ("row_" in t)
        base = op.replace("_dpp", "").replace("_e32", "").replace("_e64", "")
        I.base = base
        if op == "s_nop":
            I.kind = "nop"; I.ws = int(ops[0], 0) + 1; return I
        def first_tok(x): return x.split()[0] if x.split() else x
        if op.startswith("v_mfma"):
            I.kind = "mfma"; I.w = regs_of(ops[0]); I.a = regs_of(ops[1]) | regs_of(ops[2]); I.c = regs_of(first_tok(ops[3])); I.r = I.a | I.c
            I.passes = 4 if ("16x16x32" in op or "16x16x16" in op) else (8 if "32x32x16" in op else None)
            assert I.passes, op
            return I
        if op.startswith("v_"):
            I.kind = "valu"
            o = [first_tok(x) for x in ops]
            if "permlane" in op:
                I.w = regs_of(o[0]) | regs_of(o[1]); I.r = set(I.w); I.perm = True; return I
            nd = 1
            if "_co_" in op: nd = 2
            for x in o[:nd]: I.w |= regs_of(x)
            for x in o[nd:]: I.r |= regs_of(x)
            if base in ("v_fmac_f32", "v_dot2c_f32_bf16", "v_writelane_b32") or I.dpp: I.r |= regs_of(o[0])
            if base == "v_cndmask_b32" and len(o) == 3: I.r.add(("vcc", 0))
            return I
        if op.startswith("ds_"):
            I.kind = "ds"; o = [first_tok(x) for x in ops]
            if "read" in op or "rtn" in op or "permute" in op or "swizzle" in op:
                I.w = regs_of(o[0]);
                for x in o[1:]: I.r |= regs_of(x)
            else:
                for x in o: I.r |= regs_of(x)
            return I
        if op.startswith("buffer_") or op.startswith("global_"):
            I.kind = "vmem"; o = [first_tok(x) for x in ops]
            I.store = ("store" in op) or ("atomic" in op)
            if op.startswith("buffer_"):
                data = regs_of(o[0]); addr = set()
                for x in o[1:]: addr |= regs_of(x)
                if I.store: I.r = data | addr; I.data = data
                else: I.w = data; I.r = addr
                if "atomic" in op and " sc0" in t: I.w = data
            else:
                if "store" in op or ("atomic" in op and " sc0" not in t):
                    I.data = regs_of(o[1]); I.r = regs_of(o[0]) | I.data | regs_of(o[2])
                elif "atomic" in op:
                    I.w = regs_of(o[0]); I.data = regs_of(o[2]); I.r = regs_of(o[1]) | I.data | regs_of(o[3])
                else:
                    I.w = regs_of(o[0]); I.r = regs_of(o[1]) | regs_of(o[2])
            I.wide = I.store and ("x3" in op or "x4" in op)
            return I
        if op.startswith("s_"):
            I.kind = "salu"
            o = [first_tok(x) for x in ops]
            if op.startswith("s_cmp") or op.startswith("s_cbranch") or op in ("s_branch", "s_waitcnt", "s_barrier", "s_sleep", "s_setprio", "s_endpgm"):
                for x in o: I.r |= regs_of(x)
            elif o:
                I.w = regs_of(o[0])
                for x in o[1:]: I.r |= regs_of(x)
            return I
        return I
    def need(self, P, C):
        n = 0
        vw = {x for x in P.w if x[0] in "va"}
        sw = {x for x in P.w if x[0] in ("s", "vcc")}
        if P.kind == "valu":
            if C.kind == "valu":
                if vw & C.r:
                    if C.dpp: n = max(n, 2)
                    if getattr(C, "perm", False): n = max(n, 2)
                    if C.base in ("v_readlane_b32", "v_readfirstlane_b32"): n = max(n, 1)
                    if P.base in TRANS: n = max(n, 1)
                if sw & C.r:
                    n = max(n, 4 if C.base in ("v_readlane_b32", "v_writelane_b32") else 2)
            if C.kind == "mfma" and vw & C.r: n = max(n, 2)
            if C.kind == "vmem" and sw & C.r: n = max(n, 5)
            if C.kind == "salu" and sw & C.r: n = max(n, 1)
            if P.base.startswith("v_dot2"):
                if C.kind == "valu" and C.base == P.base:
                    srcab = C.r - C.w if P.base == "v_dot2c_f32_bf16" else C.r
                    o = split_ops(C.text.split(None, 1)[1])
                    ab = regs_of(o[1].split()[0]) | regs_of(o[2].split()[0])
                    if vw & ab: n = max(n, 3)
                elif vw & (C.r | C.w): n = max(n, 3)
        if P.kind == "mfma":
            big = {4: 8, 8: 12}[P.passes]
            if C.kind == "mfma":
                if P.w & C.a: n = max(n, big)
                if P.w & C.c:
                    if C.c == P.w and C.passes == P.passes: pass
                    else: n = max(n, {4: 6, 8: 10}[P.passes])
            elif C.kind == "valu":
                if P.w & (C.r | C.w): n = max(n, big)
                if P.c & C.w: n = max(n, {4: 3, 8: 7}[P.passes])
            elif C.kind in ("vmem", "ds"):
                if P.w & (C.r | C.w): n = max(n, big)
        if P.kind == "vmem" and getattr(P, "wide", False):
            if C.kind in ("valu", "mfma") and (P.data & C.w): n = max(n, 2)
            elif P.data & C.w: n = max(n, 1)
        return n
    def worst(self, P):
        if P.kind == "valu":
            n = 2
            if {x for x in P.w if x[0] == "s"}: n = 5
            if P.base.startswith("v_dot2"): n = 3
            return n
        if P.kind == "mfma": return {4: 8, 8: 12}[P.passes]
        if P.kind == "vmem" and getattr(P, "wide", False): return 2
        return 0
    def _pad(self, k):
        while k > 0:
            c = min(k, 16)
            self.lines.append(f"    s_nop {c-1}"); I = self.classify(f"s_nop {c-1}"); self.hist.append(I); k -= c; self.nops += 1
    def settle(self, minus=0):
        d = minus; k = 0
        for P in reversed(self.hist[-14:]):
            k = max(k, self.worst(P) - d); d += P.ws
        self._pad(k)
    def __call__(self, text, quick=False):
        C = self.classify(text)
        if (C.op.startswith("s_cbranch") or C.op in ("s_branch",)) and not quick:
            self.settle(minus=1)
        d = 0; k = 0
        for P in reversed(self.hist[-14:]):
            k = max(k, self.need(P, C) - d); d += P.ws
        self._pad(k)
        self.lines.append("    " + text); self.hist.append(C)
    def label(self, name, quick=False):
        if not quick: self.settle()
        self.lines.append(name + ":")
    def text(self): return "\n".join(self.lines) + "\n"
```

```python
import sys, struct, math
sys.path.insert(0, __file__.rsplit("/", 1)[0] if "/" in __file__ else ".")
from asmlib import Asm
KN = "recurrent_scan__gqa_block_cached__mixer_token_mlp__decode"
def f2u(x): return struct.unpack("<I", struct.pack("<f", x))[0]
def hx(x): return f"0x{x & 0xffffffff:08x}"
LOG2E = 1.4426950408889634
SCALE = 128 ** -0.5
L_MISC = 0
L_QFLAG = 0; L_CNTB = 4; L_CNTI = 8; L_CNTO = 12; L_CNTW = 16; L_SPD = 20; L_PUBD = 24; L_CNTL = 28
L_MLW = 64; L_FW = 192; L_Q = 256; L_OW = 768; L_XL = L_OW + 8192; L_WO = L_XL + 4 * 2304; L_END = L_WO + 128 * 144 + 64
W_QP = 0; W_REC = 0x40000; W_SP = 0x70000; W_YP = 0xA8000; W_PC = 0xE0000; W_ST = 128 << 20
LIMIT = 1 << 15
OOB = 0x200000

def gen(MAP="kvh", CMAP=False, NT=True, ROUND=True, STAMP=False, NPRE=36, NEARLY=54, SCH_QK=(2,)*8, SCH_SM=(1,)*8, SCH_PV={3:1,7:1,11:1,15:1},
        NSIG=8, ECHO=None, H2WAIT="sp", H2DELAY=0, WONT=False, EPRIO=1, PF=0, NFIRST=8, EXTRA=0, WOAT=20, JJ=False, ROT=1, SKIP='', W0INL=False, NS0=True, DELAY1=False, THR=0, MLFIRST=False, H1DELAY=0, MSL=0, H1SL=0, H2SL=0, FULL=True, HS=227, PSL=2, F1='sc1', F2='sc1', FS='sc1', C2MAP=True, REORD=True, QBF=False, SKW=0, EFAST=False, H1W=1, MLAT=None):
    SL = 768 if FULL else 640; BO = 384 if FULL else 288
    GL = 8; BAR2 = False; GATE_AT = 99; NWORK = 4
    A = Asm()
    nt = " nt" if NT else ""
    NST = 12; SB = 76
    POOL = GL < 8
    UPW = 8 - GL if POOL else 0
    NUNIT = 32 * UPW
    if ECHO: STAMP = True
    A.raw(f"; @launch grid=(256,1,1) block=(512,1,1) lds={(L_END + 255) // 256 * 256}")
    if STAMP and not ECHO: A.raw(f"; STAMPS nrec=2048 n={NST}")
    for ln in """
; out = x + attn(LN(x)) * silu(mixer(LN(x))) for B=2, D=576, Hq=32, Hkv=16, Sk=8192, Dh=128, F=4608 -- one launch, 256 workgroups x 8 waves.
; Workgroup = (kv head g, batch b, key split sp): 1024 keys of K and V, streamed straight into registers (nt loads).
;   waves 1-4 start streaming at once; wave 0 first computes a 72-row slice of q = LN(x) @ wq for head pair g, waves 5-7 first
;   compute a 144 x 144 slice of the token-mixing MLP; then they stream too.
;   QK: v_dot2 + DPP reduce; softmax with the true per-wave max; PV: one 16x16x32 MFMA per 4 keys (B = diag-expanded p).
; Hand-offs between workgroups (all payload stored and loaded sc1):
;   q slices: counter in d_debug (zero at launch) -> last arriver clears the members' flags -> members sum the 8 slices.
;   (m,l), o partials and s = o @ wo partials: slots in d_ws set to all-ones first (before the counters are bumped), consumers
;   poll until no all-ones word is left (a real value never is all-ones: clamped).
; kernarg: x 0, K 8, V 16, wq 24, wo 32, B_x 40 (unused by the reference), w1 48, b1 56, w2 64, b2 72, out 80, debug 88, ws 96
""".strip().splitlines(): A.raw(ln)
    A.raw('.amdgcn_target "amdgcn-amd-amdhsa--gfx950"')
    A.raw(".text"); A.raw(f".globl {KN}_kernel"); A.raw(".p2align 8"); A.raw(f".type {KN}_kernel,@function"); A.raw(f"{KN}_kernel:")
    def stamp(k):
        if STAMP: A(f"s_memrealtime s[{SB+2*k}:{SB+1+2*k}]")
    sX, sK, sV, sWQ, sWO, sW1, sB1, sW2, sB2, sOUT, sDBG, sWS = 4, 6, 8, 10, 12, 16, 18, 20, 22, 24, 26, 28
    KS, VS = 32, 36
    sW, sG, sB, sSP, sJ, sLATE, sCG, sP, sBASE, sT, sT2, sT3, sCNT, sPASS, sC1, sREC = range(40, 56)
    sA = 56; sPC = 58; sBASE2 = 59; sR = 60; sU = 64; sNX = 66; sBIAS = 67; sQP = 68; sRG = 69; sSPB = 70; sX8 = 71; sB8 = 72
    vL, vOFF = 1, 2
    D = 4; QA = 8; QB = 12; MK = 16; B0 = 20; B1 = 24; T = 28; vM = 36; vLs = 37; vG = 38; vXo = 39
    KB = 40
    def ks(i): return KB + 4 * i
    def rng(r, n=4): return f"v[{r}:{r+n-1}]"
    dm = " row_mask:0xf bank_mask:0xf"
    ws = f"s[{sWS}:{sWS+1}]"
    stamp(0)
    A("s_load_dwordx16 s[4:19], s[0:1], 0"); A("s_load_dwordx8 s[20:27], s[0:1], 64"); A("s_load_dwordx2 s[28:29], s[0:1], 96")
    A("v_lshrrev_b32 v3, 6, v0"); A(f"v_and_b32 v{vL}, 63, v0")
    A("s_cmp_ge_u32 s2, 256"); A("s_cbranch_scc1 L_END")
    A(f"v_readfirstlane_b32 s{sW}, v3"); A(f"v_lshlrev_b32 v{vOFF}, 4, v{vL}")
    if MAP == "kvh":
        A(f"s_and_b32 s{sG}, s2, 7"); A(f"s_lshr_b32 s{sT}, s2, 7"); A(f"s_lshl_b32 s{sT}, s{sT}, 3"); A(f"s_or_b32 s{sG}, s{sG}, s{sT}")
        A(f"s_bfe_u32 s{sJ}, s2, 0x40003")
    elif MAP == "pair":
        A(f"s_bfe_u32 s{sG}, s2, 0x20001"); A(f"s_lshr_b32 s{sT}, s2, 6"); A(f"s_lshl_b32 s{sT}, s{sT}, 2"); A(f"s_or_b32 s{sG}, s{sG}, s{sT}")
        A(f"s_bfe_u32 s{sJ}, s2, 0x30003"); A(f"s_lshl_b32 s{sJ}, s{sJ}, 1"); A(f"s_and_b32 s{sT}, s2, 1"); A(f"s_or_b32 s{sJ}, s{sJ}, s{sT}")
    else:
        A(f"s_lshr_b32 s{sG}, s2, 4"); A(f"s_and_b32 s{sJ}, s2, 15")
    A(f"s_and_b32 s{sSP}, s{sJ}, 7"); A(f"s_lshr_b32 s{sB}, s{sJ}, 3")
    A(f"s_and_b32 s{sT}, s{sW}, 3"); A(f"s_lshl_b32 s{sBASE}, s{sT}, {12 if JJ else 10}")
    A(f"s_add_u32 s{sT}, s{sW}, 7"); A(f"s_bfe_u32 s{sLATE}, s{sT}, 0x10002"); A(f"s_lshl_b32 s{sT}, s{sLATE}, 17"); A(f"s_or_b32 s{sBASE}, s{sBASE}, s{sT}")
    A(f"s_lshl_b32 s{sT}, s{sSP}, 18"); A(f"s_or_b32 s{sBASE}, s{sBASE}, s{sT}")
    if ROT:
        A(f"s_or_b32 s{sT}, s2, 1"); A(f"s_mul_i32 s{sT}, s{sT}, 0x9E3779B1"); A(f"s_lshr_b32 s{sT}, s{sT}, {29 if JJ else 27}"); A(f"s_lshl_b32 s{sT}, s{sT}, {14 if JJ else 12}"); A(f"s_or_b32 s{sBASE}, s{sBASE}, s{sT}")
    A(f"s_lshl_b32 s{sT}, s{sB}, 4"); A(f"s_or_b32 s{sT}, s{sT}, s{sG}"); A(f"s_lshl_b32 s{sT}, s{sT}, 21")
    A(f"s_and_b32 s{sT2}, s{sJ}, 1"); A(f"s_lshr_b32 s{sRG}, s{sJ}, 1")
    A(f"s_lshl_b32 s{sQP}, s{sG}, 1"); A(f"s_or_b32 s{sQP}, s{sQP}, s{sT2}")
    A(f"s_mov_b32 s{KS+2}, {OOB}"); A(f"s_mov_b32 s{KS+3}, 0x20000"); A(f"s_mov_b32 s{VS+2}, {OOB}"); A(f"s_mov_b32 s{VS+3}, 0x20000")
    if STAMP:
        for k in range(1, NST): A(f"s_mov_b64 s[{SB+2*k}:{SB+1+2*k}], 0")
    A("s_waitcnt lgkmcnt(0)")
    stamp(1)
    A(f"s_add_u32 s{KS}, s{sK}, s{sT}"); A(f"s_addc_u32 s{KS+1}, s{sK+1}, 0")
    A(f"s_add_u32 s{VS}, s{sV}, s{sT}"); A(f"s_addc_u32 s{VS+1}, s{sV+1}, 0")
    X = 40; E = 50; vXO = 3; WQ = 96
    def xloads():
        A(f"v_lshrrev_b32 v{T}, 5, v{vL}"); A(f"v_mul_u32_u24 v{T}, 1152, v{T}")
        A(f"v_and_b32 v{vXO}, 31, v{vL}"); A(f"v_lshl_add_u32 v{vXO}, v{vXO}, 2, v{T}")
        for k in range(9): A(f"global_load_dword v{X+k}, v{vXO}, s[{sX}:{sX+1}] offset:{128*k}")
    def wqloads():
        A(f"s_mov_b32 s{sR}, s{sWQ}"); A(f"s_mov_b32 s{sR+1}, s{sWQ+1}"); A(f"s_mov_b32 s{sR+2}, {576*8192}"); A(f"s_mov_b32 s{sR+3}, 0x20000")
        A(f"v_lshrrev_b32 v{T+4}, 4, v{vL}"); A(f"v_lshlrev_b32 v{T+4}, 13, v{T+4}"); A(f"v_and_b32 v{T+1}, 15, v{vL}"); A(f"v_lshl_add_u32 v{T+4}, v{T+1}, 4, v{T+4}")
        A(f"s_mul_i32 s{sT}, s{sRG}, {72*8192}"); A(f"s_lshl_b32 s{sT2}, s{sQP}, 8"); A(f"s_add_u32 s{sT}, s{sT}, s{sT2}")
        for i in range(18):
            if 'W' in SKIP: A(f"buffer_load_dwordx4 {rng(WQ+4*i)}, v{vOFF}, s[{sR}:{sR+3}], 0 offen")
            else: A(f"buffer_load_dwordx4 {rng(WQ+4*i)}, v{T+4}, s[{sR}:{sR+3}], s{sT} offen{nt}")
            if i < 17: A(f"s_add_u32 s{sT}, s{sT}, 32768")
    if W0INL and 'h' not in SKIP:
        A(f"s_cmp_lg_u32 s{sW}, 0"); A("s_cbranch_scc1 L_NOTW0")
        A("s_setprio 3")
        xloads(); wqloads()
        A("s_branch L_W0B")
        A.label("L_NOTW0")
    A(f"s_cmp_eq_u32 s{sLATE}, 1"); A("s_cbranch_scc1 L_SERVICE")
    free = [0, 1, 2, 4, 5, 6, 8, 9, 10, 12]
    def vreg(i): return f"a[{4*i}:{4*i+3}]" if i < 22 else rng(ks(free[i-22]))
    cur = [None]
    def issue(n):
        i = n % 32
        if THR and WOAT <= n < NEARLY: A(f"s_waitcnt vmcnt({THR-1})")
        dst = rng(ks(i)) if n < 32 else vreg(i)
        srd = f"s[{KS}:{KS+3}]" if n < 32 else f"s[{VS}:{VS+3}]"
        if JJ:
            if i < 4: A(f"buffer_load_dwordx4 {dst}, v{vOFF}, {srd}, s{sBASE} offen offset:{(i&3)<<10}{nt}"); return
            if cur[0] != i >> 2: A(f"s_xor_b32 s{sT}, s{sBASE}, {(i >> 2) << 14}"); cur[0] = i >> 2
            A(f"buffer_load_dwordx4 {dst}, v{vOFF}, {srd}, s{sT} offen offset:{(i&3)<<10}{nt}")
        else:
            A(f"s_xor_b32 s{sT}, s{sBASE2 if (SKW and i >= 28) else sBASE}, {i << 12}"); A(f"buffer_load_dwordx4 {dst}, v{vOFF}, {srd}, s{sT} offen{nt}")
    def common():
        if CMAP:
            A(f"s_and_b32 s{sP}, s2, 7"); A(f"s_lshr_b32 s{sT2}, s2, 6"); A(f"s_lshl_b32 s{sT2}, s{sT2}, 3"); A(f"s_or_b32 s{sP}, s{sP}, s{sT2}")
            A(f"s_bfe_u32 s{sCG}, s2, 0x30003")
        else:
            A(f"s_mov_b32 s{sP}, s{sQP}"); A(f"s_mov_b32 s{sCG}, s{sRG}")
        A(f"s_lshl_b32 s{sREC}, s{sG}, 4"); A(f"s_add_u32 s{sREC}, s{sREC}, s{sJ}"); A(f"s_mul_i32 s{sREC}, s{sREC}, 640"); A(f"s_add_u32 s{sREC}, s{sREC}, {W_REC}")
        A(f"s_lshl_b32 s{sSPB}, s{sCG}, 5"); A(f"s_add_u32 s{sSPB}, s{sSPB}, s{sP}"); A(f"s_mul_i32 s{sSPB}, s{sSPB}, {SL}")
        A(f"v_and_b32 v{MK+3}, 1, v{vL}"); A(f"v_lshlrev_b32 v{MK+3}, 4, v{MK+3}"); A(f"v_mov_b32 v{MK+2}, 0xffff"); A(f"v_lshlrev_b32 v{MK+3}, v{MK+3}, v{MK+2}")
        A(f"v_bfe_u32 v{QA}, v{vL}, 1, 2")
        for k in range(4):
            A(f"v_cmp_eq_u32 vcc, {k}, v{QA}"); A(f"v_cndmask_b32 v{MK+k}, 0, v{MK+3}, vcc")
        A(f"s_mov_b32 s{sC1}, {hx(f2u(LOG2E if ROUND else LOG2E * SCALE))}")
        if SKW:
            A(f"s_and_b32 s{sT2}, s{sW}, 3"); A(f"s_lshr_b32 s{sT2}, {SKW}, s{sT2}"); A(f"s_and_b32 s{sT2}, s{sT2}, 1")
            A(f"s_and_b32 s{sT3}, s{sT2}, s{sSP}"); A(f"s_and_b32 s{sT3}, s{sT3}, s{sLATE}"); A(f"s_cmp_eq_u32 s{sT3}, 1")
            A(f"s_cselect_b32 s{sBASE2}, {OOB}, s{sBASE}"); A(f"s_cselect_b32 s{sBIAS}, 0xff800000, 0")
            A(f"s_or_b32 s{sT3}, s{sSP}, s{sLATE}"); A(f"s_andn2_b32 s{sX8}, s{sT2}, s{sT3}"); A(f"s_and_b32 s{sX8}, s{sX8}, 1")
            A(f"s_or_b32 s{sB8}, s{sBASE}, 0x60000")
    if DELAY1: common()
    for n in range(NFIRST):
        issue(n)
        if n == 0: stamp(4)
    stamp(5)
    if PF:
        A(f"s_cmp_lg_u32 s{sW}, 4"); A("s_cbranch_scc1 L_NOPF")
        A(f"s_getpc_b64 s[{sA}:{sA+1}]")
        A.raw("L_PC0:")
        A(f"s_lshr_b32 s{sT2}, s2, 3"); A(f"s_mul_i32 s{sT2}, s{sT2}, {PF}"); A(f"s_and_b32 s{sT2}, s{sT2}, 31")
        for k in range(PF):
            A(f"s_add_u32 s{sT3}, s{sT2}, {k}"); A(f"s_min_u32 s{sT3}, s{sT3}, CODE_KB"); A(f"s_lshl_b32 s{sT3}, s{sT3}, 10"); A(f"v_add_u32 v{T}, s{sT3}, v{vOFF}")
            A(f"global_load_dwordx4 a[84:87], v{T}, s[{sA}:{sA+1}]")
        A.label("L_NOPF")
    if not DELAY1: common()
    A(f"v_mov_b32 v{vG}, 0")
    A(f"s_cmp_lg_u32 s{sW}, 1"); A("s_cbranch_scc1 L_NOINIT")
    A(f"v_lshlrev_b32 v3, 2, v{vL}")
    A("s_mov_b64 exec, 0xffff"); A(f"ds_write_b32 v3, v{vG} offset:{L_MISC}"); A("s_mov_b64 exec, -1")
    A("s_waitcnt lgkmcnt(0)")
    A.label("L_NOINIT")
    A("s_barrier")
    cur[0] = None
    for n in range(NFIRST, WOAT): issue(n)
    A(f"s_cmp_eq_u32 s{sW}, 4"); A("s_cbranch_scc1 L_NOWO")
    if 'o' in SKIP: A("s_branch L_NOWO")
    A(f"s_mov_b32 s{sWO+2}, {4096*1152}"); A(f"s_mov_b32 s{sWO+3}, 0x20000")
    A(f"s_sub_u32 s{sT3}, s{sW}, 1"); A(f"s_mul_i32 s{sT3}, s{sT3}, 384"); A(f"v_add_u32 v{vG}, s{sT3}, v{vL}")
    A(f"s_mul_i32 s{sT3}, s{sP}, {128*1152}"); A(f"s_mul_i32 s{sT2}, s{sCG}, 144"); A(f"s_add_u32 s{sT3}, s{sT3}, s{sT2}")
    A(f"s_mov_b32 s{sT2}, 7282")
    for k in range(6):
        A(f"v_add_u32 v{T}, {64*k}, v{vG}"); A(f"v_mul_u32_u24 v{T+1}, s{sT2}, v{T}"); A(f"v_lshrrev_b32 v{T+1}, 16, v{T+1}")
        A(f"v_mul_u32_u24 v{T+1}, {1152-144}, v{T+1}"); A(f"v_lshl_add_u32 v{T+2}, v{T}, 4, v{T+1}")
        A(f"buffer_load_dwordx4 a[{60+4*k}:{63+4*k}], v{T+2}, s[{sWO}:{sWO+3}], s{sT3} offen{nt if WONT else ''}")
    A(f"v_lshlrev_b32 v{vG}, 4, v{vG}")
    A.label("L_NOWO")
    A("s_branch L_STREAM2")
    MARK_SERVICE = len(A.lines)

    def xrow(v, t, op):
        A(f"v_mov_b32 v{t}, v{v}"); A(f"v_permlane16_swap_b32 v{t}, v{v}"); A(f"{op} v{v}, v{t}, v{v}")
        A(f"v_mov_b32 v{t}, v{v}"); A(f"v_permlane32_swap_b32 v{t}, v{v}"); A(f"{op} v{v}, v{t}, v{v}")
    def rnd1(v):
        A(f"v_cvt_pk_bf16_f32 v{v}, v{v}, v{v}"); A(f"v_lshlrev_b32 v{v}, 16, v{v}")
    def ldswait(tag, addr, val, sleep=2, cmp="eq"):
        A(f"v_mov_b32 v{T+3}, {addr}"); A(f"s_mov_b32 s{sCNT}, {LIMIT*4}")
        A.label(f"L_{tag}")
        A(f"ds_read_b32 v{T}, v{T+3}"); A("s_waitcnt lgkmcnt(0)"); A(f"v_readfirstlane_b32 s{sT2}, v{T}")
        A(f"s_cmp_{cmp}_u32 s{sT2}, {val}"); A(f"s_cbranch_scc1 L_{tag}_OK", quick=True)
        A(f"s_sleep {sleep}"); A(f"s_sub_u32 s{sCNT}, s{sCNT}, 1"); A(f"s_cmp_lg_u32 s{sCNT}, 0"); A(f"s_cbranch_scc1 L_{tag}")
        A.label(f"L_{tag}_OK")
    def ldsinc(addr):
        A(f"v_mov_b32 v{T+6}, 1"); A(f"v_mov_b32 v{T+7}, {addr}")
        A("s_mov_b64 exec, 1"); A(f"ds_add_u32 v{T+7}, v{T+6}"); A("s_mov_b64 exec, -1")

    A.label("L_SERVICE"); A.comment("waves 0,5,6,7: side jobs before streaming")
    A(f"s_cmp_lg_u32 s{sW}, 0"); A("s_cbranch_scc1 L_Y_PRE")
    if 'h' in SKIP:
        common(); A("s_barrier")
        if 'H' in SKIP:
            h = HS
            while h > 0: A(f"s_sleep {min(h,127)}"); h -= 127
        A(f"v_mov_b32 v{T+2}, 1"); A(f"v_mov_b32 v{T+3}, {L_QFLAG}"); A(f"ds_write_b32 v{T+3}, v{T+2}"); A("s_branch L_STREAM")
    A("s_setprio 3")
    xloads(); wqloads()
    A.label("L_W0B")
    common()
    A("s_barrier")
    for k in range(4): A(f"v_mov_b32 v{B0+k}, -1")
    A(f"v_add_u32 v{T}, s{sREC}, v{vOFF}"); A(f"s_add_u32 s{sT}, s{sSPB}, {W_SP}"); A(f"v_add_u32 v{T+1}, s{sT}, v{vOFF}")
    if 'R' in SKIP: A(f"global_load_dword v{T+5}, v{T}, {ws}"); A(f"global_load_dword v{T+5}, v{T}, {ws}")
    else: A(f"s_mov_b32 exec_hi, {0xff if FULL else 3}"); A(f"global_store_dwordx4 v{T}, {rng(B0)}, {ws} sc1")
    if 'R' not in SKIP: A(f"s_mov_b32 exec_hi, {0xffff if FULL else 15}"); A(f"global_store_dwordx4 v{T+1}, {rng(B0)}, {ws} sc1")
    A("s_mov_b64 exec, -1")
    A(f"s_mov_b32 s{sPASS}, 1"); A(f"s_mov_b32 s{sT3}, {L_XL}")
    A("s_waitcnt vmcnt(20)")
    A("s_branch L_LN")

    WR = 70
    A.label("L_Y_PRE"); A.comment("waves 5-7: x and the w1/b1/w2 slice")
    if 'b' in SKIP:
        common(); A("s_barrier")
        if 'B' in SKIP: A("s_sleep 127"); A("s_sleep 60")
        A("s_branch L_STREAM")
    A("s_setprio 2")
    xloads()
    common()
    A("s_barrier")
    A(f"v_and_b32 v{T}, 7, v{vL}"); A(f"v_mul_u32_u24 v{T}, 36, v{T}"); A(f"s_mul_i32 s{sT}, s{sP}, 288"); A(f"v_add_u32 v{T}, s{sT}, v{T}")
    for a, sp_ in enumerate((sW1, sB1, sW2)):
        R = WR + 10 * a
        A(f"global_load_dwordx4 {rng(R)}, v{T}, s[{sp_}:{sp_+1}]"); A(f"global_load_dwordx4 {rng(R+4)}, v{T}, s[{sp_}:{sp_+1}] offset:16")
        A(f"global_load_dword v{R+8}, v{T}, s[{sp_}:{sp_+1}] offset:32")
    A(f"s_mov_b32 s{sPASS}, 2"); A(f"s_sub_u32 s{sT3}, s{sW}, 4"); A(f"s_mul_i32 s{sT3}, s{sT3}, 2304"); A(f"s_add_u32 s{sT3}, s{sT3}, {L_XL}")
    A("s_waitcnt vmcnt(9)")

    def allred32(v, t, op):
        for pat in ("quad_perm:[1,0,3,2]", "quad_perm:[2,3,0,1]", "row_half_mirror", "row_mirror"):
            A(f"{op}_dpp v{v}, v{v}, v{v} {pat}{dm}")
        A(f"v_mov_b32 v{t}, v{v}"); A(f"v_permlane16_swap_b32 v{t}, v{v}"); A(f"{op} v{v}, v{t}, v{v}")
    A.label("L_LN"); A.comment("layer norm of both rows (lanes 0-31 batch 0, 32-63 batch 1), bf16 roundings as in the reference; 1 or 2 passes")
    for k in range(9):
        A(f"v_lshlrev_b32 v{E+2*k}, 16, v{X+k}"); A(f"v_and_b32 v{E+2*k+1}, 0xffff0000, v{X+k}")
    A(f"v_add_f32 v{T}, v{E}, v{E+1}"); A(f"v_add_f32 v{T+1}, v{E+2}, v{E+3}")
    for k in range(4, 18, 2):
        A(f"v_add_f32 v{T}, v{T}, v{E+k}"); A(f"v_add_f32 v{T+1}, v{T+1}, v{E+k+1}")
    A(f"v_add_f32 v{T}, v{T}, v{T+1}")
    allred32(T, T+1, "v_add_f32")
    A(f"v_mul_f32 v{T}, {hx(f2u(1/576))}, v{T}")
    A(f"v_mov_b32 v{T+2}, 0"); A(f"v_mov_b32 v{T+3}, 0")
    for k in range(0, 18, 2):
        A(f"v_sub_f32 v{T+4}, v{E+k}, v{T}"); A(f"v_sub_f32 v{T+5}, v{E+k+1}, v{T}")
        A(f"v_fmac_f32 v{T+2}, v{T+4}, v{T+4}"); A(f"v_fmac_f32 v{T+3}, v{T+5}, v{T+5}")
    A(f"v_add_f32 v{T+2}, v{T+2}, v{T+3}")
    allred32(T+2, T+3, "v_add_f32")
    A(f"v_mul_f32 v{T+2}, {hx(f2u(1/576))}, v{T+2}")
    rnd1(T); rnd1(T+2)
    A(f"v_add_f32 v{T+2}, {hx(f2u(1e-5))}, v{T+2}"); rnd1(T+2)
    A(f"v_sqrt_f32 v{T+2}, v{T+2}"); rnd1(T+2)
    A(f"v_rcp_f32 v{T+2}, v{T+2}")
    for k in range(9):
        a, b = E+2*k, E+2*k+1
        A(f"v_sub_f32 v{a}, v{a}, v{T}"); A(f"v_sub_f32 v{b}, v{b}, v{T}")
        A(f"v_cvt_pk_bf16_f32 v{X+k}, v{a}, v{b}")
        A(f"v_lshlrev_b32 v{a}, 16, v{X+k}"); A(f"v_and_b32 v{b}, 0xffff0000, v{X+k}")
        A(f"v_mul_f32 v{a}, v{a}, v{T+2}"); A(f"v_mul_f32 v{b}, v{b}, v{T+2}")
        A(f"v_cvt_pk_bf16_f32 v{X+k}, v{a}, v{b}")
    A(f"s_sub_u32 s{sPASS}, s{sPASS}, 1"); A(f"s_cmp_lg_u32 s{sPASS}, 0"); A("s_cbranch_scc1 L_LN")
    A(f"v_add_u32 v{vXO}, s{sT3}, v{vXO}")
    for k in range(9): A(f"ds_write_b32 v{vXO}, v{X+k} offset:{128*k}")
    A(f"s_cmp_lg_u32 s{sW}, 0"); A("s_cbranch_scc1 L_BBR")

    XV = 50
    A(f"v_bfe_u32 v{T}, v{vL}, 3, 1"); A(f"v_mul_u32_u24 v{T}, 1152, v{T}")
    A(f"v_lshrrev_b32 v{T+1}, 4, v{vL}"); A(f"v_lshl_add_u32 v{T}, v{T+1}, 1, v{T}")
    A(f"s_mul_i32 s{sT}, s{sRG}, 144"); A(f"s_add_u32 s{sT}, s{sT}, {L_XL}"); A(f"v_add_u32 v{T}, s{sT}, v{T}")
    A("s_waitcnt lgkmcnt(0)")
    for i in range(18):
        A(f"ds_read_u16 v{XV+i}, v{T} offset:{8*i}")
        if i == 8: A("s_waitcnt lgkmcnt(0)")
    A("s_waitcnt lgkmcnt(0)")
    for i in range(18): A(f"v_lshl_or_b32 v{XV+i}, v{XV+i}, 16, v{XV+i}")
    for i in range(18):
        Bx = B0 if i % 2 == 0 else B1
        for k in range(4): A(f"v_and_b32 v{Bx+k}, v{XV+i}, v{MK+k}")
        if i > 0:
            Bp = B1 if i % 2 == 0 else B0
            A(f"s_waitcnt vmcnt({19-(i-1)})")
            A(f"v_mfma_f32_16x16x32_bf16 {rng(D)}, {rng(WQ+4*(i-1))}, {rng(Bp)}, {'0' if i == 1 else rng(D)}")
    A("s_waitcnt vmcnt(2)")
    A(f"v_mfma_f32_16x16x32_bf16 {rng(D)}, {rng(WQ+4*17)}, {rng(B1)}, {rng(D)}")
    qs = 1 if QBF else 0
    A(f"v_bfe_u32 v{T}, v{vL}, 3, 1"); A(f"v_lshlrev_b32 v{T}, {13-qs}, v{T}")
    A(f"v_lshrrev_b32 v{T+1}, 4, v{vL}"); A(f"v_lshl_add_u32 v{T}, v{T+1}, {7-qs}, v{T}")
    A(f"v_and_b32 v{T+1}, 7, v{vL}"); A(f"v_lshl_add_u32 v{T}, v{T+1}, {4-qs}, v{T}")
    A(f"s_lshl_b32 s{sT}, s{sG}, {14-qs}"); A(f"s_lshl_b32 s{sT2}, s{sJ}, {9-qs}"); A(f"s_add_u32 s{sT}, s{sT}, s{sT2}")
    A(f"v_add_u32 v{T}, s{sT}, v{T}")
    if QBF:
        A(f"v_cvt_pk_bf16_f32 v{D}, v{D}, v{D+1}"); A(f"v_cvt_pk_bf16_f32 v{D+1}, v{D+2}, v{D+3}")
        A(f"global_store_dwordx2 v{T}, v[{D}:{D+1}], {ws} sc1")
    elif 'S' not in SKIP: A(f"global_store_dwordx4 v{T}, {rng(D)}, {ws} sc1")
    stamp(2)
    if NS0:
        cur[0] = None
        A("s_nop 1")
        for n in range(WOAT): issue(n)
    A(f"s_lshl_b32 s{sT}, s{sG}, 4"); A(f"s_mov_b32 s{sT2}, 1"); A(f"s_add_u32 s{sT3}, s{sREC}, 528")
    A(f"s_waitcnt vmcnt({WOAT if NS0 else 0})")
    if 'A' in SKIP: A("s_sleep 60"); A("s_branch L_POLLA_OK")
    A(f"s_atomic_add s{sT2}, s[{sDBG}:{sDBG+1}], s{sT} glc"); A("s_waitcnt lgkmcnt(0)")
    A(f"s_cmp_lg_u32 s{sT2}, 15"); A("s_cbranch_scc1 L_NOTMASTER")
    A(f"s_mul_i32 s{sT}, s{sG}, {16*640}"); A(f"s_add_u32 s{sT}, s{sT}, {W_REC+528}"); A(f"s_add_u32 s{sA}, s{sWS}, s{sT}"); A(f"s_addc_u32 s{sA+1}, s{sWS+1}, 0")
    A(f"s_mov_b32 s{sT2}, 0")
    for j in range(16): A(f"s_atomic_and s{sT2}, s[{sA}:{sA+1}], {640*j}")
    A("s_branch L_POLLA_OK")
    A.label("L_NOTMASTER")
    A(f"s_mov_b32 s{sCNT}, {LIMIT}")
    A.label("L_POLLA")
    A(f"s_load_dword s{sT2}, {ws}, s{sT3} glc"); A("s_waitcnt lgkmcnt(0)")
    A(f"s_cmp_eq_u32 s{sT2}, 0"); A("s_cbranch_scc1 L_POLLA_OK")
    A(f"s_sleep {PSL}"); A(f"s_sub_u32 s{sCNT}, s{sCNT}, 1"); A(f"s_cmp_lg_u32 s{sCNT}, 0"); A("s_cbranch_scc1 L_POLLA")
    A.label("L_POLLA_OK")
    stamp(3)
    GQ = 128
    A(f"s_lshl_b32 s{sT}, s{sG}, {14-qs}"); A(f"s_lshl_b32 s{sT2}, s{sB}, {13-qs}"); A(f"s_add_u32 s{sT}, s{sT}, s{sT2}")
    if QBF:
        A(f"v_lshlrev_b32 v{T}, 3, v{vL}"); A(f"v_add_u32 v{T}, s{sT}, v{T}")
        for r in range(8): A(f"global_load_dwordx2 v[{GQ+8+2*r}:{GQ+9+2*r}], v{T}, {ws} offset:{512*r} sc1")
    else:
        A(f"v_add_u32 v{T}, s{sT}, v{vOFF}"); A(f"v_add_u32 v{T+1}, 4096, v{T}")
        for r in range(8 if 'G' not in SKIP else 0): A(f"global_load_dwordx4 {rng(GQ+4*r)}, v{T + r//4}, {ws} offset:{1024*(r%4)} sc1")
    A(f"v_lshrrev_b32 v{T+2}, 3, v{vL}"); A(f"v_lshlrev_b32 v{T+2}, 6, v{T+2}"); A(f"v_and_b32 v{T+3}, 7, v{vL}"); A(f"v_lshl_add_u32 v{T+2}, v{T+3}, 1, v{T+2}")
    if QBF:
        for r in range(8):
            A(f"s_waitcnt vmcnt({7-r})")
            o = GQ if r == 0 else GQ + 4
            for h in range(2):
                A(f"v_lshlrev_b32 v{o+2*h}, 16, v{GQ+8+2*r+h}"); A(f"v_and_b32 v{o+2*h+1}, 0xffff0000, v{GQ+8+2*r+h}")
            if r:
                for k in range(4): A(f"v_add_f32 v{GQ+k}, v{GQ+k}, v{GQ+4+k}")
    else:
        for r in range(1, 8):
            A(f"s_waitcnt vmcnt({7-r})")
            for k in range(4): A(f"v_add_f32 v{GQ+k}, v{GQ+k}, v{GQ+4*r+k}")
    A(f"v_cvt_pk_bf16_f32 v{GQ}, v{GQ}, v{GQ+1}"); A(f"v_cvt_pk_bf16_f32 v{GQ+1}, v{GQ+2}, v{GQ+3}")
    A(f"ds_write_b16 v{T+2}, v{GQ} offset:{L_Q}"); A(f"ds_write_b16_d16_hi v{T+2}, v{GQ} offset:{L_Q+16}")
    A(f"ds_write_b16 v{T+2}, v{GQ+1} offset:{L_Q+32}"); A(f"ds_write_b16_d16_hi v{T+2}, v{GQ+1} offset:{L_Q+48}")
    A(f"v_mov_b32 v{T+2}, 1"); A(f"v_mov_b32 v{T+3}, {L_QFLAG}")
    A("s_waitcnt lgkmcnt(0)")
    A(f"ds_write_b32 v{T+3}, v{T+2}")
    A("s_setprio 0")
    if NS0:
        stamp(6); A(f"v_mov_b32 v{vG}, 0"); A("s_branch L_STREAM2")
    else: A("s_branch L_STREAM")

    A.label("L_BBR"); A.comment("token-mixing MLP slice: 48 outputs x 144 hidden units per wave")
    W1 = 100; BB = 118; W2 = WR + 20; U = 136; PK = 40; ZZ = 50; RES = 154; vC1 = 156; vC0 = 158; vONE = 160; vH = 162; vHA = 164; ACC = 165; vFL = 166
    def pr(r): return f"v[{r}:{r+1}]"
    A("s_waitcnt vmcnt(0)")
    for k in range(9):
        A(f"v_lshlrev_b32 v{W1+2*k}, 16, v{WR+k}"); A(f"v_and_b32 v{W1+2*k+1}, 0xffff0000, v{WR+k}")
        A(f"v_lshlrev_b32 v{BB+2*k}, 16, v{WR+10+k}"); A(f"v_and_b32 v{BB+2*k+1}, 0xffff0000, v{WR+10+k}")
    c0 = -2 * math.sqrt(2 / math.pi) * LOG2E; c1 = c0 * 0.044715
    for k in range(2):
        A(f"v_mov_b32 v{vC1+k}, {hx(f2u(c1))}"); A(f"v_mov_b32 v{vC0+k}, {hx(f2u(c0))}"); A(f"v_mov_b32 v{vONE+k}, 1.0")
    A(f"v_and_b32 v{vFL}, 7, v{vL}")
    A(f"s_sub_u32 s{sT}, s{sW}, 5"); A(f"s_mul_i32 s{sT}, s{sT}, 6")
    A(f"s_mul_i32 s{sT2}, s{sCG}, 144"); A(f"s_add_u32 s{sT3}, s{sT3}, s{sT2}")
    A(f"v_lshrrev_b32 v{vHA}, 3, v{vL}"); A(f"v_lshlrev_b32 v{vHA}, 1, v{vHA}"); A(f"v_add_u32 v{vHA}, s{sT3}, v{vHA}")
    A(f"s_mov_b32 s{sPASS}, 0"); A(f"v_mov_b32 v{RES}, 0")
    A("s_setprio 0")
    A.label("L_BLOOP")
    A(f"s_add_u32 s{sT2}, s{sT}, s{sPASS}"); A(f"s_cmp_ge_u32 s{sT2}, 9"); A(f"s_cselect_b32 s{sT3}, 63, 0"); A(f"s_add_u32 s{sT2}, s{sT2}, s{sT3}"); A(f"s_lshl_b32 s{sT2}, s{sT2}, 4")
    A(f"v_add_u32 v{vH+1}, s{sT2}, v{vHA}")
    A(f"ds_read_u16 v{vH}, v{vH+1}")
    A("s_waitcnt lgkmcnt(0)")
    A(f"v_lshlrev_b32 v{vH}, 16, v{vH}"); A(f"v_mov_b32 v{vH+1}, v{vH}")
    def round9():
        for k in range(9): A(f"v_cvt_pk_bf16_f32 v{PK+k}, v{U+2*k}, v{U+2*k+1}")
        for k in range(9):
            A(f"v_lshlrev_b32 v{U+2*k}, 16, v{PK+k}"); A(f"v_and_b32 v{U+2*k+1}, 0xffff0000, v{PK+k}")
    for k in range(9): A(f"v_pk_mul_f32 {pr(U+2*k)}, {pr(vH)}, {pr(W1+2*k)}")
    round9()
    for k in range(9): A(f"v_pk_add_f32 {pr(U+2*k)}, {pr(U+2*k)}, {pr(BB+2*k)}")
    round9()
    for k in range(9): A(f"v_pk_mul_f32 {pr(ZZ+2*k)}, {pr(U+2*k)}, {pr(U+2*k)}")
    for k in range(9): A(f"v_pk_fma_f32 {pr(ZZ+2*k)}, {pr(ZZ+2*k)}, {pr(vC1)}, {pr(vC0)}")
    for k in range(9): A(f"v_pk_mul_f32 {pr(ZZ+2*k)}, {pr(ZZ+2*k)}, {pr(U+2*k)}")
    for k in range(18): A(f"v_exp_f32 v{ZZ+k}, v{ZZ+k}")
    for k in range(9): A(f"v_pk_add_f32 {pr(ZZ+2*k)}, {pr(ZZ+2*k)}, {pr(vONE)}")
    for k in range(18): A(f"v_rcp_f32 v{ZZ+k}, v{ZZ+k}")
    for k in range(9): A(f"v_pk_mul_f32 {pr(U+2*k)}, {pr(U+2*k)}, {pr(ZZ+2*k)}")
    for k in range(9): A(f"v_cvt_pk_bf16_f32 v{PK+k}, v{U+2*k}, v{U+2*k+1}")
    A(f"v_mov_b32 v{ACC}, 0")
    for k in range(9): A(f"v_dot2c_f32_bf16 v{ACC}, v{PK+k}, v{W2+k}")
    for pat in ("quad_perm:[1,0,3,2]", "quad_perm:[2,3,0,1]", "row_half_mirror"):
        A(f"v_add_f32_dpp v{ACC}, v{ACC}, v{ACC} {pat}{dm}")
    A(f"v_cmp_eq_u32 vcc, s{sPASS}, v{vFL}"); A(f"v_cndmask_b32 v{RES}, v{RES}, v{ACC}, vcc")
    A(f"s_add_u32 s{sPASS}, s{sPASS}, 1"); A(f"s_cmp_lt_u32 s{sPASS}, 6"); A("s_cbranch_scc1 L_BLOOP")
    A("s_setprio 2")
    A(f"v_lshlrev_b32 v{T}, 5, v{vFL}"); A(f"v_lshrrev_b32 v{T+1}, 3, v{vL}"); A(f"v_lshl_add_u32 v{T}, v{T+1}, 2, v{T}")
    if FULL:
        A(f"v_add_u32 v{T+1}, s{sT}, v{vFL}"); A(f"v_cmp_le_u32 vcc, 9, v{T+1}"); A(f"v_cndmask_b32 v{T+1}, 0, 3, vcc"); A(f"v_lshl_add_u32 v{T}, v{T+1}, 5, v{T}")
    A(f"s_lshl_b32 s{sT}, s{sT}, 5"); A(f"s_add_u32 s{sT}, s{sT}, s{sSPB}"); A(f"s_add_u32 s{sT}, s{sT}, {W_YP}"); A(f"v_add_u32 v{T}, s{sT}, v{T}")
    A(f"s_mov_b32 exec_lo, 0x3f3f3f3f"); A(f"s_mov_b32 exec_hi, 0x3f3f3f3f")
    A(f"global_store_dword v{T}, v{RES}, {ws} sc1")
    A("s_mov_b64 exec, -1")
    if EXTRA:
        A(f"s_lshl_b32 s{sT}, s2, 3"); A(f"s_add_u32 s{sT}, s{sT}, s{sW}"); A(f"s_lshl_b32 s{sT}, s{sT}, 13"); A(f"s_add_u32 s{sT}, s{sT}, 0x1000000"); A(f"v_add_u32 v{T}, s{sT}, v{vOFF}")
        for k in range(EXTRA): A(f"global_store_dwordx4 v{T}, v[40:43], {ws} offset:{1024*k} sc1")
    stamp(2)

    A.label("L_STREAM")
    stamp(6)
    A(f"v_mov_b32 v{vG}, 0")
    cur[0] = None
    issued = 0
    while issued < NSIG: issue(issued); issued += 1
    A(f"s_cmp_lt_u32 s{sW}, 5"); A("s_cbranch_scc1 L_BDONE")
    A("s_mov_b64 exec, 1")
    A(f"v_mov_b32 v{T+2}, 1"); A(f"v_mov_b32 v{T+3}, {L_CNTB}")
    A(f"s_waitcnt vmcnt({NSIG})")
    A(f"ds_add_rtn_u32 v{T+4}, v{T+3}, v{T+2}")
    A(f"s_lshl_b32 s{sT2}, s{sG}, 4"); A(f"s_add_u32 s{sT2}, s{sT2}, 4"); A(f"s_mov_b32 s{sT3}, 1")
    A("s_waitcnt lgkmcnt(0)")
    A(f"v_readfirstlane_b32 s{sCNT}, v{T+4}")
    A("s_mov_b64 exec, -1")
    A("s_setprio 0")
    A(f"s_cmp_lg_u32 s{sCNT}, 2"); A("s_cbranch_scc1 L_BDONE")
    A(f"s_atomic_add s{sT3}, s[{sDBG}:{sDBG+1}], s{sT2}")
    A.label("L_BDONE")
    cur[0] = None
    while issued < WOAT: issue(issued); issued += 1
    MARK_STREAM2 = len(A.lines)
    A.label("L_STREAM2"); A.comment("K/V stream")
    cur[0] = None
    while issued < NPRE: issue(issued); issued += 1
    A(f"s_cmp_eq_u32 s{sLATE}, 1"); A("s_cbranch_scc1 L_LATE0")
    e = NPRE
    while e < min(NEARLY, 46): issue(e); e += 1
    A(f"s_cmp_eq_u32 s{sW}, 4"); A("s_cbranch_scc1 L_NOWO2")
    A(f"s_waitcnt vmcnt({e - WOAT})")
    for k in range(6): A(f"ds_write_b128 v{vG}, a[{60+4*k}:{63+4*k}] offset:{L_WO+1024*k}")
    ldsinc(L_CNTW)
    A("s_waitcnt lgkmcnt(0)")
    A.label("L_NOWO2")
    cur[0] = None
    while e < NEARLY: issue(e); e += 1
    A.label("L_LATE0"); A.comment("wait for q, then QK in groups of 16 keys")
    stamp(7)
    ldswait("QW", L_QFLAG, 0, 2, "lg")
    A(f"v_bfe_u32 v{T}, v{vL}, 3, 1"); A(f"v_lshlrev_b32 v{T}, 8, v{T}"); A(f"v_and_b32 v{T+1}, 15, v{vL}"); A(f"v_lshl_add_u32 v{T}, v{T+1}, 4, v{T}")
    A(f"v_xor_b32 v{T+1}, 128, v{T}")
    A(f"ds_read_b128 {rng(QA)}, v{T} offset:{L_Q}"); A(f"ds_read_b128 {rng(QB)}, v{T+1} offset:{L_Q}")
    A("s_waitcnt lgkmcnt(0)")
    stamp(8)
    if EPRIO:
        A(f"s_cmp_eq_u32 s{sLATE}, 1"); A("s_cbranch_scc1 L_NOEP"); A(f"s_setprio {EPRIO}"); A.label("L_NOEP")
    def sreg(i): return ks(4 * (i >> 2) + 3) + (i & 3)
    nlab = [0]
    K8 = [13, 14, 16, 17]; V8 = [24, 25, 26, 28]
    def x8(kind):
        srd = f"s[{KS}:{KS+3}]" if kind == "K" else f"s[{VS}:{VS+3}]"
        for a in range(4):
            A(f"s_xor_b32 s{sT}, s{sB8}, {(28+a) << 12}"); A(f"buffer_load_dwordx4 {rng(ks((K8 if kind == 'K' else V8)[a]))}, v{vOFF}, {srd}, s{sT} offen{nt}")
    EQ = {0: [54, 55, 56], 1: [57, 58, 59], 2: [60, 61, 62], 3: [63]}
    def more(n, kdone=32, gq=None):
        nonlocal issued
        todo = list(range(issued, min(issued + n, 64)))
        lim = 64 if EFAST else NEARLY
        lateonly = [k for k in todo if k < lim]; both = [k for k in todo if k >= lim]
        early = EQ.get(gq, []) if EFAST else []
        nlab[0] += 1
        if lateonly or early:
            A(f"s_cmp_eq_u32 s{sLATE}, 0"); A(f"s_cbranch_scc1 L_SK{nlab[0]}")
            cur[0] = None
            for k in lateonly:
                i = k - 32
                assert not (i >= 22 and free[i-22] >= kdone), (i, kdone)
                issue(k)
            if early: A(f"s_branch L_SJ{nlab[0]}")
            A.label(f"L_SK{nlab[0]}")
            if early:
                for k in early: issue(k)
                A.label(f"L_SJ{nlab[0]}")
        if SKW and gq in (4, 7):
            A(f"s_cmp_eq_u32 s{sX8}, 0"); A(f"s_cbranch_scc1 L_SX{nlab[0]}")
            x8("K" if gq == 4 else "V")
            A.label(f"L_SX{nlab[0]}")
        cur[0] = None
        for k in both:
            i = k - 32
            assert not (i >= 22 and free[i-22] >= kdone), (i, kdone)
            issue(k)
            if k == 63 and MLAT == 'last': ldsinc(L_CNTL)
        issued += len(todo)
    def qk(Kr, S, mid=None, bias=False):
        for a in range(4): A(f"v_dot2_f32_bf16 v{T+a}, v{Kr[a]}, v{QA}, 0")
        for c in range(1, 4):
            for a in range(4): A(f"v_dot2c_f32_bf16 v{T+a}, v{Kr[a]+c}, v{QA+c}")
        for c in range(4):
            for a in range(4): A(f"v_dot2c_f32_bf16_dpp v{T+a}, v{Kr[a]+c}, v{QB+c} row_ror:8{dm}")
        if mid: mid()
        for a in range(4): A(f"v_add_f32_dpp v{T+a}, v{T+a}, v{T+a} quad_perm:[1,0,3,2]{dm}")
        for a in range(4): A(f"v_add_f32_dpp v{T+a}, v{T+a}, v{T+a} quad_perm:[2,3,0,1]{dm}")
        for a in range(4): A(f"v_add_f32_dpp v{S+a}, v{T+a}, v{T+a} row_half_mirror{dm}")
        if ROUND:
            for rep in range(2):
                A(f"v_cvt_pk_bf16_f32 v{T+4}, v{S}, v{S+1}"); A(f"v_cvt_pk_bf16_f32 v{T+5}, v{S+2}, v{S+3}")
                A(f"v_lshlrev_b32 v{S}, 16, v{T+4}"); A(f"v_and_b32 v{S+1}, 0xffff0000, v{T+4}")
                A(f"v_lshlrev_b32 v{S+2}, 16, v{T+5}"); A(f"v_and_b32 v{S+3}, 0xffff0000, v{T+5}")
                if rep == 0:
                    for a in range(4): A(f"v_mul_f32 v{S+a}, {hx(f2u(SCALE))}, v{S+a}")
        if bias:
            for a in range(4): A(f"v_add_f32 v{S+a}, s{sBIAS}, v{S+a}")
    for gq in range(8):
        A(f"s_waitcnt vmcnt({issued - (4*gq+4)})")
        S = ks(4*gq+3)
        qk([ks(4*gq+a) for a in range(4)], S, lambda: more(SCH_QK[gq], 4*gq+4, gq), bool(SKW) and gq == 7)
        if gq == 0: A(f"v_max3_f32 v{vM}, v{S}, v{S+1}, v{S+2}"); A(f"v_max_f32 v{vM}, v{vM}, v{S+3}")
        else: A(f"v_max3_f32 v{vM}, v{vM}, v{S}, v{S+1}"); A(f"v_max3_f32 v{vM}, v{vM}, v{S+2}, v{S+3}")
    S8 = ks(K8[3])
    if SKW:
        assert EFAST and NEARLY == 54
        A(f"s_cmp_eq_u32 s{sX8}, 0"); A("s_cbranch_scc1 L_NQ8")
        A("s_waitcnt vmcnt(4)")
        qk([ks(q) for q in K8], S8)
        A(f"v_max3_f32 v{vM}, v{vM}, v{S8}, v{S8+1}"); A(f"v_max3_f32 v{vM}, v{vM}, v{S8+2}, v{S8+3}")
        A.label("L_NQ8")
    xrow(vM, T, "v_max_f32")
    A(f"v_mul_f32 v{vM}, s{sC1}, v{vM}")
    stamp(9)
    A(f"v_mov_b32 v{vLs}, 0")
    for q in range(8):
        S = ks(4*q+3)
        for a in range(4): A(f"v_fma_f32 v{S+a}, v{S+a}, s{sC1}, -v{vM}")
        for a in range(4): A(f"v_exp_f32 v{S+a}, v{S+a}")
        for a in range(4): A(f"v_add_f32 v{vLs}, v{vLs}, v{S+a}")
        for a in range(4): A(f"v_cvt_pk_bf16_f32 v{S+a}, v{S+a}, v{S+a}")
        more(SCH_SM[q])
    if SKW:
        A(f"s_cmp_eq_u32 s{sX8}, 0"); A("s_cbranch_scc1 L_NS8")
        for a in range(4): A(f"v_fma_f32 v{S8+a}, v{S8+a}, s{sC1}, -v{vM}")
        for a in range(4): A(f"v_exp_f32 v{S8+a}, v{S8+a}")
        for a in range(4): A(f"v_add_f32 v{vLs}, v{vLs}, v{S8+a}")
        for a in range(4): A(f"v_cvt_pk_bf16_f32 v{S8+a}, v{S8+a}, v{S8+a}")
        A.label("L_NS8")
    xrow(vLs, T, "v_add_f32")
    vH6 = T + 6
    A(f"v_bfe_u32 v{T+7}, v{vL}, 3, 1"); A(f"v_lshlrev_b32 v{vH6}, 6, v{T+7}")
    A(f"s_lshl_b32 s{sT2}, s{sW}, 3"); A(f"v_add_u32 v{T}, s{sT2}, v{vH6}")
    A(f"v_mov_b32 v{T+2}, 1"); A(f"v_mov_b32 v{T+3}, {L_CNTI}")
    A("s_mov_b64 exec, 0x101"); A(f"ds_write_b64 v{T}, v[{vM}:{vM+1}] offset:{L_MLW}")
    A("s_mov_b64 exec, 1"); A(f"ds_add_rtn_u32 v{T+4}, v{T+3}, v{T+2}"); A("s_mov_b64 exec, -1")
    A(f"v_lshlrev_b32 v{vM}, 8, v{T+7}"); A(f"v_lshrrev_b32 v{T+1}, 4, v{vL}"); A(f"v_lshl_add_u32 v{vM}, v{T+1}, 6, v{vM}")
    A(f"v_and_b32 v{T+1}, 7, v{vL}"); A(f"v_lshl_add_u32 v{vM}, v{T+1}, 3, v{vM}"); A(f"v_add_u32 v{vM}, s{sREC}, v{vM}")
    A(f"s_lshl_b32 s{sT2}, s{sW}, 10"); A(f"v_add_u32 v{vLs}, s{sT2}, v{vOFF}")
    A("s_waitcnt lgkmcnt(0)")
    A(f"v_readfirstlane_b32 s{sT2}, v{T+4}")
    A(f"s_cmp_lg_u32 s{sT2}, 7"); A("s_cbranch_scc1 L_NOF")
    MQ = [ks(18), ks(20), ks(21), ks(22)]; FF = ks(29)
    for k in range(4): A(f"ds_read_b128 {rng(MQ[k])}, v{vH6} offset:{L_MLW+16*k}")
    mm = [MQ[k // 2] + 2 * (k % 2) for k in range(8)]
    A(f"v_lshlrev_b32 v{T+2}, 3, v{T+7}"); A(f"v_add_u32 v{T+2}, s{sREC}, v{T+2}")
    A("s_waitcnt lgkmcnt(0)")
    A(f"v_max3_f32 v{T}, v{mm[0]}, v{mm[1]}, v{mm[2]}"); A(f"v_max3_f32 v{T}, v{T}, v{mm[3]}, v{mm[4]}"); A(f"v_max3_f32 v{T}, v{T}, v{mm[5]}, v{mm[6]}"); A(f"v_max_f32 v{T}, v{T}, v{mm[7]}")
    for k in range(8): A(f"v_sub_f32 v{FF+k}, v{mm[k]}, v{T}")
    for k in range(8): A(f"v_exp_f32 v{FF+k}, v{FF+k}")
    A(f"v_mul_f32 v{T+1}, v{FF}, v{mm[0]+1}")
    for k in range(1, 8): A(f"v_fmac_f32 v{T+1}, v{FF+k}, v{mm[k]+1}")
    A(f"v_lshrrev_b32 v{T+3}, 1, v{vH6}")
    A(f"v_min_u32 v{T}, -2, v{T}"); A(f"v_min_u32 v{T+1}, -2, v{T+1}")
    A("s_mov_b64 exec, 0x101")
    A(f"ds_write_b128 v{T+3}, {rng(FF)} offset:{L_FW}"); A(f"ds_write_b128 v{T+3}, {rng(FF+4)} offset:{L_FW+16}")
    if 't' not in SKIP: A(f"global_store_dwordx2 v{T+2}, v[{T}:{T+1}], {ws} offset:512 sc1")
    A("s_mov_b64 exec, -1")
    A.label("L_NOF"); A.comment("PV")
    A(f"v_mov_b32 v{T+2}, 1"); A(f"v_mov_b32 v{T+3}, {L_CNTO}"); A(f"v_lshrrev_b32 v{T+4}, 1, v{vH6}")
    for i in range(33):
        if i < 32:
            Bx = B0 if i % 2 == 0 else B1
            for k in range(4): A(f"v_and_b32 v{Bx+k}, v{sreg(i)}, v{MK+k}")
        if i > 0:
            Bp = B0 if (i-1) % 2 == 0 else B1
            assert issued > 32 + i - 1
            A(f"s_waitcnt vmcnt({issued - (32 + i)})")
            A(f"v_mfma_f32_16x16x32_bf16 {rng(D)}, {vreg(i-1)}, {rng(Bp)}, {'0' if i == 1 else rng(D)}")
            more(SCH_PV.get(i-1, 0))
    assert issued == 64
    if SKW:
        A(f"s_cmp_eq_u32 s{sX8}, 0"); A("s_cbranch_scc1 L_NP8")
        for a in range(4):
            Bc = B0 if a % 2 == 0 else B1
            for k in range(4): A(f"v_and_b32 v{Bc+k}, v{S8+a}, v{MK+k}")
            A(f"v_mfma_f32_16x16x32_bf16 {rng(D)}, {rng(ks(V8[a]))}, {rng(Bc)}, {rng(D)}")
        A.label("L_NP8")
    stamp(10)
    if 't' in SKIP: A("s_branch L_EXIT")
    A(f"ds_write_b128 v{vLs}, {rng(D)} offset:{L_OW}")
    A("s_mov_b64 exec, 1"); A(f"ds_add_rtn_u32 v{T+5}, v{T+3}, v{T+2}"); A("s_mov_b64 exec, -1")
    A("s_waitcnt lgkmcnt(0)")
    A(f"v_readfirstlane_b32 s{sT2}, v{T+5}")
    A(f"s_cmp_lg_u32 s{sT2}, 7"); A("s_cbranch_scc1 L_NOPUB", quick=True)
    OO = 40; FR = 72
    A(f"ds_read_b128 {rng(FR)}, v{T+4} offset:{L_FW}"); A(f"ds_read_b128 {rng(FR+4)}, v{T+4} offset:{L_FW+16}")
    for k in range(8): A(f"ds_read_b128 {rng(OO+4*k)}, v{vOFF} offset:{L_OW+1024*k}")
    for k in range(8):
        A(f"s_waitcnt lgkmcnt({7-k})")
        for c in range(4):
            if k == 0: A(f"v_mul_f32 v{D+c}, v{FR}, v{OO+c}")
            else: A(f"v_fmac_f32 v{D+c}, v{FR+k}, v{OO+4*k+c}")
    A(f"v_cvt_pk_bf16_f32 v{D}, v{D}, v{D+1}"); A(f"v_cvt_pk_bf16_f32 v{D+1}, v{D+2}, v{D+3}")
    A(f"v_min_u32 v{D}, -2, v{D}"); A(f"v_min_u32 v{D+1}, -2, v{D+1}")
    A(f"global_store_dwordx2 v{vM}, v[{D}:{D+1}], {ws} {FS}")
    if MLFIRST or MLAT: A(f"ds_write_b32 v{T+3}, v{T+2} offset:{L_PUBD - L_CNTO}")
    stamp(3)
    A.label("L_NOPUB"); A.comment("wave 1: o @ wo slice (hop 1); wave 2: final sum and output (hop 2)")
    A(f"s_cmp_eq_u32 s{sW}, 2"); A("s_cbranch_scc1 L_HOP2")
    if H1W == 2: A(f"s_and_b32 s{sT2}, s{sW}, 5"); A(f"s_cmp_lg_u32 s{sT2}, 1"); A("s_cbranch_scc1 L_EXIT")
    else: A(f"s_cmp_lg_u32 s{sW}, 1"); A("s_cbranch_scc1 L_EXIT")

    def checkAB(tag, va, vd):
        A(f"s_mov_b32 s{sCNT}, {LIMIT}")
        A(f"v_and_b32 v{va}, 15, v{vL}"); A(f"v_lshlrev_b32 v{va}, 4, v{va}"); A(f"v_bfe_u32 v{vd}, v{vL}, 4, 1"); A(f"v_lshl_add_u32 v{va}, v{vd}, 2, v{va}")
        A.label(f"L_CB{tag}")
        A(f"global_load_dword v{vd}, v{va}, s[{sDBG}:{sDBG+1}] sc1"); A("s_waitcnt vmcnt(0)")
        A(f"v_cmp_ne_u32 vcc, 16, v{vd}"); A(f"s_cbranch_vccz L_CB{tag}_OK")
        A("s_sleep 16"); A(f"s_sub_u32 s{sCNT}, s{sCNT}, 1"); A(f"s_cmp_lg_u32 s{sCNT}, 0"); A(f"s_cbranch_scc1 L_CB{tag}")
        A.label(f"L_CB{tag}_OK")
    def red32(v, t):
        A(f"v_add_f32 v{v}, v{v}, v{v+1}"); A(f"v_add_f32 v{v+2}, v{v+2}, v{v+3}"); A(f"v_add_f32 v{v}, v{v}, v{v+2}")
        A(f"v_add_f32_dpp v{v}, v{v}, v{v} row_ror:8{dm}")
        xrow(v, t, "v_add_f32")
    RAW = 120; vA = 160; vMLa = 161; vSP = 162; vH2 = 160; vOA = 161
    ldswait("WW", L_CNTW, 3, 2)
    A(f"v_lshrrev_b32 v{T}, 4, v{vL}"); A(f"v_mul_u32_u24 v{T}, 288, v{T}"); A(f"v_and_b32 v{T+1}, 15, v{vL}"); A(f"v_lshl_add_u32 v{T}, v{T+1}, 1, v{T}")
    if H1W == 2:
        A(f"s_sub_u32 s{sT}, s{sW}, 1"); A(f"s_lshl_b32 s{sT}, s{sT}, 5"); A(f"v_add_u32 v{T}, s{sT}, v{T}")
    for n in (range(5) if H1W == 1 else (0, 1, 4)):
        for t in range(4):
            for e_ in range(8): A(f"ds_read_u16 v{RAW+e_}, v{T} offset:{L_WO + 32*n + (32*t + 8*(e_&3) + (e_>>2))*144}")
            A("s_waitcnt lgkmcnt(0)")
            for k in range(4): A(f"v_lshl_or_b32 v{40+16*n+4*t+k}, v{RAW+2*k+1}, 16, v{RAW+2*k}")
    A(f"s_lshr_b32 s{sT}, s{sP}, 1"); A(f"s_mul_i32 s{sT}, s{sT}, {16*640}"); A(f"s_add_u32 s{sT}, s{sT}, {W_REC}"); A(f"s_and_b32 s{sT2}, s{sP}, 1")
    A(f"s_lshl_b32 s{sT3}, s{sT2}, 8"); A(f"s_add_u32 s{sT3}, s{sT3}, s{sT}")
    A(f"v_mul_u32_u24 v{vA}, 640, v{T+1}"); A(f"v_lshrrev_b32 v{T}, 4, v{vL}"); A(f"v_lshl_add_u32 v{vA}, v{T}, 4, v{vA}"); A(f"v_add_u32 v{vA}, s{sT3}, v{vA}")
    A(f"s_lshl_b32 s{sT3}, s{sT2}, 3"); A(f"s_add_u32 s{sT3}, s{sT3}, s{sT}"); A(f"s_add_u32 s{sT3}, s{sT3}, 512")
    A(f"v_mul_u32_u24 v{vMLa}, 2560, v{T}"); A(f"v_add_u32 v{vMLa}, s{sT3}, v{vMLa}")
    A(f"v_lshrrev_b32 v{vSP}, 5, v{vL}"); A(f"v_mul_u32_u24 v{vSP}, {BO}, v{vSP}"); A(f"v_and_b32 v{T}, 31, v{vL}"); A(f"v_lshl_add_u32 v{vSP}, v{T}, 2, v{vSP}")
    A(f"s_add_u32 s{sT}, s{sSPB}, {W_SP}")
    if H1W == 2: A(f"s_sub_u32 s{sT2}, s{sW}, 1"); A(f"s_lshl_b32 s{sT2}, s{sT2}, 6"); A(f"s_add_u32 s{sT}, s{sT}, s{sT2}")
    A(f"v_add_u32 v{vSP}, s{sT}, v{vSP}")
    checkAB("T", T, T+1)
    def maxchain(dst, regs):
        A(f"v_max3_u32 v{dst}, v{regs[0]}, v{regs[1]}, v{regs[2]}")
        k = 3
        while k < len(regs):
            if k + 1 < len(regs): A(f"v_max3_u32 v{dst}, v{dst}, v{regs[k]}, v{regs[k+1]}"); k += 2
            else: A(f"v_max_u32 v{dst}, v{dst}, v{regs[k]}"); k += 1
    def pollmask(tag, loads, regs):
        sl = {"HM": MSL, "H1": H1SL, "H2": H2SL}[tag]
        A(f"s_mov_b32 s{sCNT}, {LIMIT}")
        A.label(f"L_{tag}")
        loads()
        A("s_waitcnt vmcnt(0)")
        if len(regs) > 8:
            h = len(regs) // 2
            maxchain(T, regs[:h]); maxchain(T+1, regs[h:]); A(f"v_max_u32 v{T}, v{T}, v{T+1}")
        else: maxchain(T, regs)
        A(f"v_cmp_eq_u32 vcc, -1, v{T}"); A(f"s_cbranch_vccz L_{tag}_OK")
        A("s_mov_b64 exec, vcc")
        if sl: A(f"s_sleep {sl}")
        A(f"s_sub_u32 s{sCNT}, s{sCNT}, 1"); A(f"s_cmp_lg_u32 s{sCNT}, 0"); A(f"s_cbranch_scc1 L_{tag}")
        A.label(f"L_{tag}_OK")
        A("s_mov_b64 exec, -1")

    AA = 136; ML = 152; WN = 24
    A(f"v_mov_b32 v{vSP+1}, 1"); A(f"v_mov_b32 v{vSP+2}, {L_SPD}")
    if MLAT == 'last': ldswait("OW", L_CNTL, 8, 1)
    elif MLAT == 'o5': ldswait("OW", L_CNTO, 5, 1, "ge")
    elif MLFIRST: ldswait("OW", L_CNTI, 8, 4)
    else: ldswait("OW", L_CNTO, 8, 1); stamp(6)
    pollmask("HM", lambda: [A(f"global_load_dwordx2 v[{ML+2*i}:{ML+2*i+1}], v{vMLa}, {ws} offset:{640*i} sc1") for i in range(4)], list(range(ML, ML+8)))
    m = [ML, ML+2, ML+4, ML+6]; l = [ML+1, ML+3, ML+5, ML+7]
    def aloads():
        for t in range(4): A(f"global_load_dwordx4 {rng(AA+4*t)}, v{vA}, {ws} offset:{64*t} {F1}")
    A(f"v_max3_f32 v{T}, v{m[0]}, v{m[1]}, v{m[2]}"); A(f"v_max_f32 v{T}, v{T}, v{m[3]}")
    A(f"v_mov_b32 v{T+1}, v{T}"); A(f"v_permlane16_swap_b32 v{T+1}, v{T}"); A(f"v_max_f32 v{T}, v{T+1}, v{T}")
    for i in range(4): A(f"v_sub_f32 v{m[i]}, v{m[i]}, v{T}")
    for i in range(4): A(f"v_exp_f32 v{m[i]}, v{m[i]}")
    A(f"v_mul_f32 v{T+2}, v{m[0]}, v{l[0]}")
    for i in range(1, 4): A(f"v_fmac_f32 v{T+2}, v{m[i]}, v{l[i]}")
    A(f"v_mov_b32 v{T+1}, v{T+2}"); A(f"v_permlane16_swap_b32 v{T+1}, v{T+2}"); A(f"v_add_f32 v{T+2}, v{T+1}, v{T+2}")
    A(f"v_rcp_f32 v{T+2}, v{T+2}")
    for i in range(4): A(f"v_mul_f32 v{WN+i}, v{m[i]}, v{T+2}")
    if MLFIRST or MLAT:
        ldswait("PW", L_PUBD, 1, 1); stamp(6)
        if H1DELAY: A(f"s_sleep {H1DELAY}")
    pollmask("H1", aloads, list(range(AA, AA+16)))
    stamp(7)
    def mf(t, n): return f"v_mfma_f32_16x16x32_bf16 {rng(4+4*n)}, {rng(AA+4*t)}, {rng(40+16*n+4*t)}, {'0' if t == 0 else rng(4+4*n)}"
    def epi(n): return [f"v_mul_f32 v{T+n}, v{WN}, v{4+4*n}"] + [f"v_fmac_f32 v{T+n}, v{WN+i}, v{4+4*n+i}" for i in range(1, 4)]
    def fin2(n): return [f"v_permlane16_swap_b32 v{T+n-1}, v{T+n}", f"v_add_f32 v{T+n}, v{T+n-1}, v{T+n}", f"v_min_u32 v{T+n}, -2, v{T+n}",
                         f"global_store_dword v{vSP}, v{T+n}, {ws} offset:{128*(n//2)} {FS}"]
    def fin4(): return [f"v_mov_b32 v{T+5}, v{T+4}", None, None, f"v_permlane16_swap_b32 v{T+5}, v{T+4}", f"v_add_f32 v{T+4}, v{T+5}, v{T+4}", f"v_min_u32 v{T+4}, -2, v{T+4}"] + \
                       ([] if FULL else ["s_mov_b32 exec_lo, 0xff", "s_mov_b32 exec_hi, 0xff"]) + [f"global_store_dword v{vSP}, v{T+4}, {ws} offset:256 {FS}"] + ([] if FULL else ["s_mov_b64 exec, -1"])
    if H1W == 2:
        for t in range(4): A(mf(t, 0)); A(mf(t, 1))
        A(f"s_cmp_eq_u32 s{sW}, 3"); A("s_cbranch_scc1 L_H1B", quick=True)
        side = [None, None] + epi(0) + epi(1) + [None] + fin2(1)
        for t in range(4):
            A(mf(t, 4))
            for _ in range(4):
                if side:
                    x = side.pop(0)
                    if x: A(x)
        for x in side + epi(4) + fin4():
            if x: A(x)
        A("s_branch L_H1C")
        A.label("L_H1B", quick=True)
        A("s_nop 5")
        for x in epi(0) + epi(1) + fin2(1): A(x)
        A.label("L_H1C")
    elif REORD:
        for t in range(4): A(mf(t, 4)); A(mf(t, 0))
        side = [None, None] + epi(4) + fin4()
        for t in range(4):
            A(mf(t, 1))
            for _ in range(4):
                if side:
                    x = side.pop(0)
                    if x: A(x)
        for x in side:
            if x: A(x)
        side = epi(0) + [None] + epi(1) + [None] + fin2(1)
        for t in range(4):
            for n in (2, 3):
                A(mf(t, n))
                for _ in range(2):
                    if side:
                        x = side.pop(0)
                        if x: A(x)
        for x in side:
            if x: A(x)
        for x in epi(2) + epi(3) + fin2(3): A(x)
    else:
        for t in range(4):
            for n in range(5): A(mf(t, n))
        for x in epi(0) + epi(1) + fin2(1) + epi(2) + epi(3) + fin2(3) + epi(4) + fin4():
            if x: A(x)
    A(f"ds_write_b32 v{vSP+2}, v{vSP+1}")
    A("s_mov_b64 exec, -1")
    stamp(9)
    A("s_branch L_EXIT")

    A.label("L_HOP2"); A.comment("hop 2")
    A(f"s_cmp_ge_u32 s2, 144"); A("s_cbranch_scc1 L_EXIT")
    YY = 120
    checkAB("G", T, T+1)
    sCH = sPASS
    if C2MAP:
        A(f"s_lshr_b32 s{sT}, s2, 3"); A(f"s_and_b32 s{sT2}, s2, 7"); A(f"s_cmp_ge_u32 s{sT}, 9")
        A(f"s_cselect_b32 s{sT3}, {BO - 288}, 0"); A(f"s_cselect_b32 s{sCH}, 63, 0")
        A(f"s_add_u32 s{sCH}, s{sCH}, s{sT}"); A(f"s_mul_i32 s{sCNT}, s{sT2}, 9"); A(f"s_add_u32 s{sCH}, s{sCH}, s{sCNT}")
        A(f"s_lshl_b32 s{sT}, s{sT}, 5"); A(f"s_add_u32 s{sT3}, s{sT3}, s{sT}"); A(f"s_mul_i32 s{sT2}, s{sT2}, {32*SL}"); A(f"s_add_u32 s{sT3}, s{sT3}, s{sT2}")
    else:
        A(f"s_mov_b32 s{sCH}, s2")
        A(f"s_cmp_ge_u32 s2, 72"); A(f"s_cselect_b32 s{sT}, 72, 0"); A(f"s_cselect_b32 s{sT3}, {BO}, 0"); A(f"s_sub_u32 s{sT}, s2, s{sT}")
        A(f"s_mul_i32 s{sT2}, s{sT}, 57"); A(f"s_lshr_b32 s{sT2}, s{sT2}, 9")
        A(f"s_lshl_b32 s{sT}, s{sT}, 5"); A(f"s_add_u32 s{sT3}, s{sT3}, s{sT}"); A(f"s_mul_i32 s{sT2}, s{sT2}, {32*SL - 288}"); A(f"s_add_u32 s{sT3}, s{sT3}, s{sT2}")
    A(f"s_add_u32 s{sT3}, s{sT3}, {W_SP}")
    A(f"v_lshrrev_b32 v{vH2}, 3, v{vL}"); A(f"v_mul_u32_u24 v{vH2}, {4*SL}, v{vH2}"); A(f"v_and_b32 v{vOA}, 7, v{vL}"); A(f"v_lshl_add_u32 v{vH2}, v{vOA}, 2, v{vH2}")
    A(f"v_add_u32 v{vH2}, s{sT3}, v{vH2}")
    A(f"v_add_u32 v{T}, {W_YP - W_SP}, v{vH2}")
    for k in range(4): A(f"global_load_dword v{YY+k}, v{T}, {ws} offset:{SL*k} sc1")
    A(f"v_lshlrev_b32 v{vOA}, 1, v{vOA}"); A(f"s_lshl_b32 s{sT}, s{sCH}, 4"); A(f"v_add_u32 v{vOA}, s{sT}, v{vOA}")
    A(f"global_load_ushort v{vXo}, v{vOA}, s[{sX}:{sX+1}]")
    A(f"v_mov_b32 v{T+1}, 0")
    A(f"global_load_ushort v{YY+4}, v{T+1}, s[{sB2}:{sB2+1}]")
    A("s_waitcnt vmcnt(0)")
    red32(YY, YY+5)
    rnd1(YY); A(f"v_lshlrev_b32 v{YY+4}, 16, v{YY+4}"); A(f"v_add_f32 v{YY}, v{YY}, v{YY+4}"); rnd1(YY)
    A(f"v_mul_f32 v{YY+1}, {hx(f2u(-LOG2E))}, v{YY}"); A(f"v_exp_f32 v{YY+1}, v{YY+1}"); A(f"v_add_f32 v{YY+1}, 1.0, v{YY+1}"); A(f"v_rcp_f32 v{YY+1}, v{YY+1}")
    A(f"v_mul_f32 v{vG}, v{YY}, v{YY+1}"); rnd1(vG)
    A(f"v_lshlrev_b32 v{vXo}, 16, v{vXo}")
    SS = 112
    if H2WAIT == "sp": ldswait("OW2", L_SPD, 1, 1)
    else: ldswait("OW2", L_CNTO, 8, 1)
    if H2DELAY: A(f"s_sleep {H2DELAY}")
    pollmask("H2", lambda: [A(f"global_load_dword v{SS+k}, v{vH2}, {ws} offset:{SL*k} {F2}") for k in range(4)], list(range(SS, SS+4)))
    stamp(7)
    red32(SS, T)
    rnd1(SS); A(f"v_mul_f32 v{SS}, v{SS}, v{vG}"); rnd1(SS); A(f"v_add_f32 v{SS}, v{SS}, v{vXo}")
    A(f"v_cvt_pk_bf16_f32 v{SS}, v{SS}, v{SS}")
    A("s_mov_b64 exec, 0xff")
    A(f"global_store_short v{vOA}, v{SS}, s[{sOUT}:{sOUT+1}]")
    A("s_mov_b64 exec, -1")
    A.label("L_EXIT")
    if ECHO:
        stamp(11); A("s_waitcnt lgkmcnt(0)")
        A(f"s_cmp_lg_u32 s2, 0"); A("s_cbranch_scc1 L_END")
        A(f"s_cmp_lg_u32 s{sW}, {ECHO[0]}"); A("s_cbranch_scc1 L_END")
        A(f"s_sub_u32 s{sT}, s{SB+2*ECHO[1]}, s{SB}"); A(f"s_lshl_b32 s{sT}, s{sT}, 2"); A(f"s_add_u32 s{sT}, s{sT}, 4000"); A(f"s_add_u32 s{sT}, s{sT}, s{SB}")
        A.label("L_ECHO")
        A(f"s_memrealtime s[{sR}:{sR+1}]"); A("s_waitcnt lgkmcnt(0)"); A(f"s_sub_u32 s{sT2}, s{sR}, s{sT}"); A(f"s_cmp_lt_i32 s{sT2}, 0"); A("s_cbranch_scc1 L_ECHO")
    elif STAMP:
        stamp(11)
        A("s_waitcnt lgkmcnt(0) vmcnt(0)")
        A(f"s_lshl_b32 s{sT}, s2, 3"); A(f"s_add_u32 s{sT}, s{sT}, s{sW}"); A(f"s_mul_i32 s{sT}, s{sT}, {NST*8}"); A(f"s_add_u32 s{sT}, s{sT}, {W_ST}")
        A(f"v_mov_b32 v3, s{sT}")
        for k in range(2*NST): A(f"v_mov_b32 v{40+k}, s{SB+k}")
        A("s_mov_b64 exec, 1")
        for q in range(NST // 2): A(f"global_store_dwordx4 v3, {rng(40+4*q)}, {ws} offset:{16*q}")
    A.label("L_END")
    A("s_endpgm")
    svc = A.lines[MARK_SERVICE:MARK_STREAM2]
    assert A.lines[MARK_SERVICE-1].strip() == "s_branch L_STREAM2"
    A.lines = A.lines[:MARK_SERVICE-1] + A.lines[MARK_STREAM2:] + svc + ["    s_branch L_STREAM2", "L_CODE_END:"]
    A.raw(".set CODE_KB, (L_CODE_END - L_PC0) >> 10" if PF else "")
    A.raw("    s_endpgm"); A.raw(".fill 260, 4, 0xbf800000")
    A.raw('.section .rodata,"a"'); A.raw(".p2align 6"); A.raw(f".amdhsa_kernel {KN}_kernel")
    A.raw("  .amdhsa_next_free_vgpr 256"); A.raw("  .amdhsa_next_free_sgpr 102"); A.raw("  .amdhsa_accum_offset 168")
    A.raw("  .amdhsa_group_segment_fixed_size 0"); A.raw("  .amdhsa_kernarg_size 104"); A.raw("  .amdhsa_user_sgpr_count 2")
    A.raw("  .amdhsa_user_sgpr_kernarg_segment_ptr 1"); A.raw("  .amdhsa_system_sgpr_workgroup_id_x 1")
    A.raw("  .amdhsa_float_denorm_mode_32 3")
    A.raw(".end_amdhsa_kernel")
    return A.text()

if __name__ == "__main__":
    out = sys.argv[1]
    kw = eval("dict(" + (sys.argv[2] if len(sys.argv) > 2 else "") + ")")
    open(out, "w").write(gen(**kw))
```

```python
import sys, struct, math
sys.path.insert(0, __file__.rsplit("/", 1)[0] if "/" in __file__ else ".")
from asmlib import Asm
KN = "recurrent_scan__gqa_block_cached__mixer_token_mlp__decode"
def f2u(x): return struct.unpack("<I", struct.pack("<f", x))[0]
def hx(x): return f"0x{x & 0xffffffff:08x}"
LOG2E = 1.4426950408889634
SCALE = 128 ** -0.5
L_MISC = 0
L_QFLAG = 0; L_CNTB = 4; L_CNTI = 8; L_CNTO = 12; L_CNTW = 16; L_SPD = 20; L_PUBD = 24; L_CNTL = 28; L_AOK = 32; L_SNOK = 36
L_MLW = 64; L_FW = 192; L_Q = 256; L_TAG = 768; L_OW = 1024; L_XL = L_OW + 8192; L_WO = L_XL + 4 * 2304; L_WQ = L_WO + 128 * 144 + 64; L_END = L_WQ + 18432
W_QP = 0; W_REC = 0x40000; W_SP = 0x70000; W_YP = 0xA8000; W_PC = 0xE0000; W_ST = 128 << 20
LIMIT = 1 << 15
OOB = 0x200000

def gen(MAP="kvh", CMAP=False, NT=True, ROUND=True, STAMP=False, NPRE=36, NEARLY=54, SCH_QK=(2,)*8, SCH_SM=(1,)*8, SCH_PV={3:1,7:1,11:1,15:1},
        NSIG=8, ECHO=None, H2WAIT="sp", H2DELAY=0, WONT=False, EPRIO=1, PF=0, NFIRST=8, EXTRA=0, WOAT=20, JJ=False, ROT=1, SKIP='', W0INL=False, NS0=False, DELAY1=False, THR=0, MLFIRST=False, H1DELAY=0, MSL=0, H1SL=0, H2SL=0, FULL=True, HS=227, PSL=2, F1='sc1', F2='sc1', FS='sc1', C2MAP=True, REORD=True, QBF=False, SKW=0, EFAST=True, H1W=1, MLAT=None, P0=3, NS0P=None, TAGS=True, RNDT=False, QCOL=True, NRG=4, YTAG=True, YAT='qk', YSL=32, SNLATE=True, SNW5=True, GFLAG=False, SK2=True, WQF='nt'):
    SL = 768 if FULL else 640; BO = 384 if FULL else 288
    GL = 8; BAR2 = False; GATE_AT = 99; NWORK = 4
    A = Asm()
    nt = " nt" if NT else ""
    NST = 12; SB = 76
    POOL = GL < 8
    UPW = 8 - GL if POOL else 0
    NUNIT = 32 * UPW
    if ECHO: STAMP = True
    A.raw(f"; @launch grid=(256,1,1) block=(512,1,1) lds={(L_END + 255) // 256 * 256}")
    if STAMP and not ECHO: A.raw(f"; STAMPS nrec=2048 n={NST}")
    for ln in """
; out = x + attn(LN(x)) * silu(mixer(LN(x))) for B=2, D=576, Hq=32, Hkv=16, Sk=8192, Dh=128, F=4608 -- one launch, 256 workgroups x 8 waves.
; Workgroup = (kv head g, batch b, key split sp): 1024 keys of K and V, streamed straight into registers (nt loads).
;   waves 1-4 start streaming at once; wave 0 first computes a 144 x 64 slice of q = LN(x) @ wq for head pair g, waves 5-7 first
;   compute a 144 x 144 slice of the token-mixing MLP; then they stream too.
;   QK: v_dot2 + DPP reduce; softmax with the true per-wave max; PV: one 16x16x32 MFMA per 4 keys (B = diag-expanded p).
; Hand-offs between workgroups (all payload stored and loaded sc1):
;   q slices: counter in d_debug (zero at launch) -> the last arriver bumps the members' flag words -> members sum the 4 slices.
;   (m,l), o partials, y partials and s = o @ wo partials: slots in d_ws. Before it bumps the counter a workgroup reads the low bit
;   of every slot word it will write or wait for; writers store the opposite bit, readers poll until every bit has flipped and
;   then clear it, so what d_ws held on entry only tells new words from old ones.
; kernarg: x 0, K 8, V 16, wq 24, wo 32, B_x 40 (unused by the reference), w1 48, b1 56, w2 64, b2 72, out 80, debug 88, ws 96
""".strip().splitlines(): A.raw(ln)
    A.raw('.amdgcn_target "amdgcn-amd-amdhsa--gfx950"')
    A.raw(".text"); A.raw(f".globl {KN}_kernel"); A.raw(".p2align 8"); A.raw(f".type {KN}_kernel,@function"); A.raw(f"{KN}_kernel:")
    def stamp(k):
        if STAMP: A(f"s_memrealtime s[{SB+2*k}:{SB+1+2*k}]")
    sX, sK, sV, sWQ, sWO, sW1, sB1, sW2, sB2, sOUT, sDBG, sWS = 4, 6, 8, 10, 12, 16, 18, 20, 22, 24, 26, 28
    KS, VS = 32, 36
    sW, sG, sB, sSP, sJ, sLATE, sCG, sP, sBASE, sT, sT2, sT3, sCNT, sPASS, sC1, sREC = range(40, 56)
    sA = 56; sPC = 58; sBASE2 = 59; sR = 60; sU = 64; sNX = 66; sBIAS = 67; sQP = 68; sRG = 69; sSPB = 70; sX8 = 71; sB8 = 72; sF0 = 73
    vL, vOFF = 1, 2
    D = 4; QA = 8; QB = 12; MK = 16; B0 = 20; B1 = 24; T = 28; vM = 36; vLs = 37; vG = 38; vXo = 39
    KB = 40
    def ks(i): return KB + 4 * i
    def rng(r, n=4): return f"v[{r}:{r+n-1}]"
    dm = " row_mask:0xf bank_mask:0xf"
    ws = f"s[{sWS}:{sWS+1}]"
    stamp(0)
    A("s_load_dwordx16 s[4:19], s[0:1], 0"); A("s_load_dwordx8 s[20:27], s[0:1], 64"); A("s_load_dwordx2 s[28:29], s[0:1], 96")
    A("v_lshrrev_b32 v3, 6, v0"); A(f"v_and_b32 v{vL}, 63, v0")
    A("s_cmp_ge_u32 s2, 256"); A("s_cbranch_scc1 L_END")
    A(f"v_readfirstlane_b32 s{sW}, v3"); A(f"v_lshlrev_b32 v{vOFF}, 4, v{vL}")
    if MAP == "kvh":
        A(f"s_and_b32 s{sG}, s2, 7"); A(f"s_lshr_b32 s{sT}, s2, 7"); A(f"s_lshl_b32 s{sT}, s{sT}, 3"); A(f"s_or_b32 s{sG}, s{sG}, s{sT}")
        A(f"s_bfe_u32 s{sJ}, s2, 0x40003")
    elif MAP == "pair":
        A(f"s_bfe_u32 s{sG}, s2, 0x20001"); A(f"s_lshr_b32 s{sT}, s2, 6"); A(f"s_lshl_b32 s{sT}, s{sT}, 2"); A(f"s_or_b32 s{sG}, s{sG}, s{sT}")
        A(f"s_bfe_u32 s{sJ}, s2, 0x30003"); A(f"s_lshl_b32 s{sJ}, s{sJ}, 1"); A(f"s_and_b32 s{sT}, s2, 1"); A(f"s_or_b32 s{sJ}, s{sJ}, s{sT}")
    else:
        A(f"s_lshr_b32 s{sG}, s2, 4"); A(f"s_and_b32 s{sJ}, s2, 15")
    A(f"s_and_b32 s{sSP}, s{sJ}, 7"); A(f"s_lshr_b32 s{sB}, s{sJ}, 3")
    A(f"s_and_b32 s{sT}, s{sW}, 3"); A(f"s_lshl_b32 s{sBASE}, s{sT}, {12 if JJ else 10}")
    A(f"s_add_u32 s{sT}, s{sW}, 7"); A(f"s_bfe_u32 s{sLATE}, s{sT}, 0x10002"); A(f"s_lshl_b32 s{sT}, s{sLATE}, 17"); A(f"s_or_b32 s{sBASE}, s{sBASE}, s{sT}")
    A(f"s_lshl_b32 s{sT}, s{sSP}, 18"); A(f"s_or_b32 s{sBASE}, s{sBASE}, s{sT}")
    if ROT:
        A(f"s_or_b32 s{sT}, s2, 1"); A(f"s_mul_i32 s{sT}, s{sT}, 0x9E3779B1"); A(f"s_lshr_b32 s{sT}, s{sT}, {29 if JJ else 27}"); A(f"s_lshl_b32 s{sT}, s{sT}, {14 if JJ else 12}"); A(f"s_or_b32 s{sBASE}, s{sBASE}, s{sT}")
    A(f"s_lshl_b32 s{sT}, s{sB}, 4"); A(f"s_or_b32 s{sT}, s{sT}, s{sG}"); A(f"s_lshl_b32 s{sT}, s{sT}, 21")
    A(f"s_and_b32 s{sT2}, s{sJ}, 1"); A(f"s_lshr_b32 s{sRG}, s{sJ}, 1")
    A(f"s_lshl_b32 s{sQP}, s{sG}, 1"); A(f"s_or_b32 s{sQP}, s{sQP}, s{sT2}")
    A(f"s_mov_b32 s{KS+2}, {OOB}"); A(f"s_mov_b32 s{KS+3}, 0x20000"); A(f"s_mov_b32 s{VS+2}, {OOB}"); A(f"s_mov_b32 s{VS+3}, 0x20000")
    if STAMP:
        for k in range(1, NST): A(f"s_mov_b64 s[{SB+2*k}:{SB+1+2*k}], 0")
    A("s_waitcnt lgkmcnt(0)")
    stamp(1)
    A(f"s_add_u32 s{KS}, s{sK}, s{sT}"); A(f"s_addc_u32 s{KS+1}, s{sK+1}, 0")
    A(f"s_add_u32 s{VS}, s{sV}, s{sT}"); A(f"s_addc_u32 s{VS+1}, s{sV+1}, 0")
    X = 40; E = 50; vXO = 3; WQ = 96
    def xloads():
        A(f"v_lshrrev_b32 v{T}, 5, v{vL}"); A(f"v_mul_u32_u24 v{T}, 1152, v{T}")
        A(f"v_and_b32 v{vXO}, 31, v{vL}"); A(f"v_lshl_add_u32 v{vXO}, v{vXO}, 2, v{T}")
        for k in range(9): A(f"global_load_dword v{X+k}, v{vXO}, s[{sX}:{sX+1}] offset:{128*k}")
    def wqloads():
        A(f"s_mov_b32 s{sR}, s{sWQ}"); A(f"s_mov_b32 s{sR+1}, s{sWQ+1}"); A(f"s_mov_b32 s{sR+2}, {576*8192}"); A(f"s_mov_b32 s{sR+3}, 0x20000")
        if QCOL:
            lc = {4: 3, 2: 2}[NRG]; lq = {4: 2, 2: 3}[NRG]
            A(f"v_lshrrev_b32 v{T+4}, {lc}, v{vL}"); A(f"v_lshlrev_b32 v{T+4}, 13, v{T+4}"); A(f"v_and_b32 v{T+1}, {(1<<lc)-1}, v{vL}"); A(f"v_lshl_add_u32 v{T+4}, v{T+1}, 4, v{T+4}")
            A(f"s_lshr_b32 s{sT}, s{sJ}, {lq}"); A(f"s_mul_i32 s{sT}, s{sT}, {576//NRG*8192}"); A(f"s_lshl_b32 s{sT2}, s{sG}, 9"); A(f"s_add_u32 s{sT}, s{sT}, s{sT2}")
            A(f"s_and_b32 s{sT2}, s{sJ}, {(1<<lq)-1}"); A(f"s_lshl_b32 s{sT2}, s{sT2}, {4+lc}"); A(f"s_add_u32 s{sT}, s{sT}, s{sT2}")
            for i in range(18):
                A(f"buffer_load_dwordx4 {rng(WQ+4*i)}, v{T+4}, s[{sR}:{sR+3}], s{sT} offen {WQF}")
                if i < 17: A(f"s_add_u32 s{sT}, s{sT}, {(64>>lc)*8192}")
            return
        A(f"v_lshrrev_b32 v{T+4}, 4, v{vL}"); A(f"v_lshlrev_b32 v{T+4}, 13, v{T+4}"); A(f"v_and_b32 v{T+1}, 15, v{vL}"); A(f"v_lshl_add_u32 v{T+4}, v{T+1}, 4, v{T+4}")
        A(f"s_mul_i32 s{sT}, s{sRG}, {72*8192}"); A(f"s_lshl_b32 s{sT2}, s{sQP}, 8"); A(f"s_add_u32 s{sT}, s{sT}, s{sT2}")
        for i in range(18):
            if 'W' in SKIP: A(f"buffer_load_dwordx4 {rng(WQ+4*i)}, v{vOFF}, s[{sR}:{sR+3}], 0 offen")
            else: A(f"buffer_load_dwordx4 {rng(WQ+4*i)}, v{T+4}, s[{sR}:{sR+3}], s{sT} offen{nt}")
            if i < 17: A(f"s_add_u32 s{sT}, s{sT}, 32768")
    if W0INL and 'h' not in SKIP:
        A(f"s_cmp_lg_u32 s{sW}, 0"); A("s_cbranch_scc1 L_NOTW0")
        A("s_setprio 3")
        xloads(); wqloads()
        A("s_branch L_W0B")
        A.label("L_NOTW0")
    A(f"s_cmp_eq_u32 s{sLATE}, 1"); A("s_cbranch_scc1 L_SERVICE")
    free = [0, 1, 2, 4, 5, 6, 8, 9, 10, 12]
    def vreg(i): return f"a[{4*i}:{4*i+3}]" if i < 22 else rng(ks(free[i-22]))
    cur = [None]
    def issue(n):
        i = n % 32
        if THR and WOAT <= n < NEARLY: A(f"s_waitcnt vmcnt({THR-1})")
        dst = rng(ks(i)) if n < 32 else vreg(i)
        srd = f"s[{KS}:{KS+3}]" if n < 32 else f"s[{VS}:{VS+3}]"
        if JJ:
            if i < 4: A(f"buffer_load_dwordx4 {dst}, v{vOFF}, {srd}, s{sBASE} offen offset:{(i&3)<<10}{nt}"); return
            if cur[0] != i >> 2: A(f"s_xor_b32 s{sT}, s{sBASE}, {(i >> 2) << 14}"); cur[0] = i >> 2
            A(f"buffer_load_dwordx4 {dst}, v{vOFF}, {srd}, s{sT} offen offset:{(i&3)<<10}{nt}")
        else:
            A(f"s_xor_b32 s{sT}, s{sBASE2 if (SKW and i >= 28) else sBASE}, {i << 12}"); A(f"buffer_load_dwordx4 {dst}, v{vOFF}, {srd}, s{sT} offen{nt}")
    def common():
        if CMAP:
            A(f"s_and_b32 s{sP}, s2, 7"); A(f"s_lshr_b32 s{sT2}, s2, 6"); A(f"s_lshl_b32 s{sT2}, s{sT2}, 3"); A(f"s_or_b32 s{sP}, s{sP}, s{sT2}")
            A(f"s_bfe_u32 s{sCG}, s2, 0x30003")
        else:
            A(f"s_mov_b32 s{sP}, s{sQP}"); A(f"s_mov_b32 s{sCG}, s{sRG}")
        A(f"s_lshl_b32 s{sREC}, s{sG}, 4"); A(f"s_add_u32 s{sREC}, s{sREC}, s{sJ}"); A(f"s_mul_i32 s{sREC}, s{sREC}, 640"); A(f"s_add_u32 s{sREC}, s{sREC}, {W_REC}")
        A(f"s_lshl_b32 s{sSPB}, s{sCG}, 5"); A(f"s_add_u32 s{sSPB}, s{sSPB}, s{sP}"); A(f"s_mul_i32 s{sSPB}, s{sSPB}, {SL}")
        A(f"v_and_b32 v{MK+3}, 1, v{vL}"); A(f"v_lshlrev_b32 v{MK+3}, 4, v{MK+3}"); A(f"v_mov_b32 v{MK+2}, 0xffff"); A(f"v_lshlrev_b32 v{MK+3}, v{MK+3}, v{MK+2}")
        A(f"v_bfe_u32 v{QA}, v{vL}, 1, 2")
        for k in range(4):
            A(f"v_cmp_eq_u32 vcc, {k}, v{QA}"); A(f"v_cndmask_b32 v{MK+k}, 0, v{MK+3}, vcc")
        A(f"s_mov_b32 s{sC1}, {hx(f2u(LOG2E if ROUND else LOG2E * SCALE))}")
        if SKW:
            A(f"s_and_b32 s{sT2}, s{sW}, 3"); A(f"s_lshr_b32 s{sT2}, {SKW}, s{sT2}"); A(f"s_and_b32 s{sT2}, s{sT2}, 1")
            A(f"s_and_b32 s{sT3}, s{sT2}, s{sSP}"); A(f"s_and_b32 s{sT3}, s{sT3}, s{sLATE}"); A(f"s_cmp_eq_u32 s{sT3}, 1")
            A(f"s_cselect_b32 s{sBASE2}, {OOB}, s{sBASE}"); A(f"s_cselect_b32 s{sBIAS}, 0xff800000, 0")
            A(f"s_or_b32 s{sT3}, s{sSP}, s{sLATE}"); A(f"s_andn2_b32 s{sX8}, s{sT2}, s{sT3}"); A(f"s_and_b32 s{sX8}, s{sX8}, 1")
            A(f"s_or_b32 s{sB8}, s{sBASE}, 0x60000")
    if DELAY1: common()
    for n in range(NFIRST):
        issue(n)
        if n == 0: stamp(4)
    stamp(5)
    if PF:
        A(f"s_cmp_lg_u32 s{sW}, 4"); A("s_cbranch_scc1 L_NOPF")
        A(f"s_getpc_b64 s[{sA}:{sA+1}]")
        A.raw("L_PC0:")
        A(f"s_lshr_b32 s{sT2}, s2, 3"); A(f"s_mul_i32 s{sT2}, s{sT2}, {PF}"); A(f"s_and_b32 s{sT2}, s{sT2}, 31")
        for k in range(PF):
            A(f"s_add_u32 s{sT3}, s{sT2}, {k}"); A(f"s_min_u32 s{sT3}, s{sT3}, CODE_KB"); A(f"s_lshl_b32 s{sT3}, s{sT3}, 10"); A(f"v_add_u32 v{T}, s{sT3}, v{vOFF}")
            A(f"global_load_dwordx4 a[84:87], v{T}, s[{sA}:{sA+1}]")
        A.label("L_NOPF")
    if not DELAY1: common()
    A(f"v_mov_b32 v{vG}, 0")
    A(f"s_cmp_lg_u32 s{sW}, 1"); A("s_cbranch_scc1 L_NOINIT")
    A(f"v_lshlrev_b32 v3, 2, v{vL}")
    A("s_mov_b64 exec, 0xffff"); A(f"ds_write_b32 v3, v{vG} offset:{L_MISC}"); A("s_mov_b64 exec, -1")
    A("s_waitcnt lgkmcnt(0)")
    A.label("L_NOINIT")
    A("s_barrier")
    cur[0] = None
    for n in range(NFIRST, WOAT): issue(n)
    A(f"s_cmp_eq_u32 s{sW}, 4"); A("s_cbranch_scc1 L_NOWO")
    if 'o' in SKIP: A("s_branch L_NOWO")
    A(f"s_mov_b32 s{sWO+2}, {4096*1152}"); A(f"s_mov_b32 s{sWO+3}, 0x20000")
    A(f"s_sub_u32 s{sT3}, s{sW}, 1"); A(f"s_mul_i32 s{sT3}, s{sT3}, 384"); A(f"v_add_u32 v{vG}, s{sT3}, v{vL}")
    A(f"s_mul_i32 s{sT3}, s{sP}, {128*1152}"); A(f"s_mul_i32 s{sT2}, s{sCG}, 144"); A(f"s_add_u32 s{sT3}, s{sT3}, s{sT2}")
    A(f"s_mov_b32 s{sT2}, 7282")
    for k in range(6):
        A(f"v_add_u32 v{T}, {64*k}, v{vG}"); A(f"v_mul_u32_u24 v{T+1}, s{sT2}, v{T}"); A(f"v_lshrrev_b32 v{T+1}, 16, v{T+1}")
        A(f"v_mul_u32_u24 v{T+1}, {1152-144}, v{T+1}"); A(f"v_lshl_add_u32 v{T+2}, v{T}, 4, v{T+1}")
        A(f"buffer_load_dwordx4 a[{60+4*k}:{63+4*k}], v{T+2}, s[{sWO}:{sWO+3}], s{sT3} offen{nt if WONT else ''}")
    A(f"v_lshlrev_b32 v{vG}, 4, v{vG}")
    A.label("L_NOWO")
    A("s_branch L_STREAM2")
    MARK_SERVICE = len(A.lines)

    def xrow(v, t, op):
        A(f"v_mov_b32 v{t}, v{v}"); A(f"v_permlane16_swap_b32 v{t}, v{v}"); A(f"{op} v{v}, v{t}, v{v}")
        A(f"v_mov_b32 v{t}, v{v}"); A(f"v_permlane32_swap_b32 v{t}, v{v}"); A(f"{op} v{v}, v{t}, v{v}")
    def rnd1(v):
        A(f"v_cvt_pk_bf16_f32 v{v}, v{v}, v{v}"); A(f"v_lshlrev_b32 v{v}, 16, v{v}")
    def ldswait(tag, addr, val, sleep=2, cmp="eq"):
        A(f"v_mov_b32 v{T+3}, {addr}"); A(f"s_mov_b32 s{sCNT}, {LIMIT*4}")
        A.label(f"L_{tag}")
        A(f"ds_read_b32 v{T}, v{T+3}"); A("s_waitcnt lgkmcnt(0)"); A(f"v_readfirstlane_b32 s{sT2}, v{T}")
        A(f"s_cmp_{cmp}_u32 s{sT2}, {val}"); A(f"s_cbranch_scc1 L_{tag}_OK", quick=True)
        A(f"s_sleep {sleep}"); A(f"s_sub_u32 s{sCNT}, s{sCNT}, 1"); A(f"s_cmp_lg_u32 s{sCNT}, 0"); A(f"s_cbranch_scc1 L_{tag}")
        A.label(f"L_{tag}_OK")
    def ldsinc(addr):
        A(f"v_mov_b32 v{T+6}, 1"); A(f"v_mov_b32 v{T+7}, {addr}")
        A("s_mov_b64 exec, 1"); A(f"ds_add_u32 v{T+7}, v{T+6}"); A("s_mov_b64 exec, -1")

    def addr_o(v, t):
        A(f"v_bfe_u32 v{t}, v{vL}, 3, 1"); A(f"v_lshlrev_b32 v{v}, 8, v{t}"); A(f"v_lshrrev_b32 v{t}, 4, v{vL}"); A(f"v_lshl_add_u32 v{v}, v{t}, 6, v{v}")
        A(f"v_and_b32 v{t}, 7, v{vL}"); A(f"v_lshl_add_u32 v{v}, v{t}, 3, v{v}"); A(f"v_add_u32 v{v}, s{sREC}, v{v}")
    def addr_ml(v):
        A(f"v_bfe_u32 v{v}, v{vL}, 3, 1"); A(f"v_lshlrev_b32 v{v}, 3, v{v}"); A(f"v_add_u32 v{v}, s{sREC}, v{v}")
    def addr_sp(v, t):
        A(f"v_lshrrev_b32 v{v}, 5, v{vL}"); A(f"v_mul_u32_u24 v{v}, {BO}, v{v}"); A(f"v_and_b32 v{t}, 31, v{vL}"); A(f"v_lshl_add_u32 v{v}, v{t}, 2, v{v}")
        A(f"s_add_u32 s{sT}, s{sSPB}, {W_SP}"); A(f"v_add_u32 v{v}, s{sT}, v{v}")
    def addr_in1(va, vm, t):
        A(f"s_lshr_b32 s{sT}, s{sP}, 1"); A(f"s_mul_i32 s{sT}, s{sT}, {16*640}"); A(f"s_add_u32 s{sT}, s{sT}, {W_REC}"); A(f"s_and_b32 s{sT2}, s{sP}, 1")
        A(f"s_lshl_b32 s{sT3}, s{sT2}, 8"); A(f"s_add_u32 s{sT3}, s{sT3}, s{sT}")
        A(f"v_and_b32 v{t}, 15, v{vL}"); A(f"v_mul_u32_u24 v{va}, 640, v{t}"); A(f"v_lshrrev_b32 v{t}, 4, v{vL}"); A(f"v_lshl_add_u32 v{va}, v{t}, 4, v{va}"); A(f"v_add_u32 v{va}, s{sT3}, v{va}")
        A(f"s_lshl_b32 s{sT3}, s{sT2}, 3"); A(f"s_add_u32 s{sT3}, s{sT3}, s{sT}"); A(f"s_add_u32 s{sT3}, s{sT3}, 512")
        A(f"v_mul_u32_u24 v{vm}, 2560, v{t}"); A(f"v_add_u32 v{vm}, s{sT3}, v{vm}")
    def addr_in2(v, t, sch):
        A(f"s_lshr_b32 s{sT}, s2, 3"); A(f"s_min_u32 s{sT}, s{sT}, 17"); A(f"s_and_b32 s{sT2}, s2, 7"); A(f"s_cmp_ge_u32 s{sT}, 9")
        A(f"s_cselect_b32 s{sT3}, {BO - 288}, 0"); A(f"s_cselect_b32 s{sch}, 63, 0")
        A(f"s_add_u32 s{sch}, s{sch}, s{sT}"); A(f"s_mul_i32 s{sCNT}, s{sT2}, 9"); A(f"s_add_u32 s{sch}, s{sch}, s{sCNT}")
        A(f"s_lshl_b32 s{sT}, s{sT}, 5"); A(f"s_add_u32 s{sT3}, s{sT3}, s{sT}"); A(f"s_mul_i32 s{sT2}, s{sT2}, {32*SL}"); A(f"s_add_u32 s{sT3}, s{sT3}, s{sT2}")
        A(f"s_add_u32 s{sT3}, s{sT3}, {W_SP}")
        A(f"v_lshrrev_b32 v{v}, 3, v{vL}"); A(f"v_mul_u32_u24 v{v}, {4*SL}, v{v}"); A(f"v_and_b32 v{t}, 7, v{vL}"); A(f"v_lshl_add_u32 v{v}, v{t}, 2, v{v}")
        A(f"v_add_u32 v{v}, s{sT3}, v{v}")
    def addr_y(v, t, t2, ci0):
        A(f"v_and_b32 v{t}, 7, v{vL}"); A(f"v_min_u32 v{t}, 5, v{t}"); A(f"v_add_u32 v{t}, {ci0}, v{t}")
        A(f"v_cmp_le_u32 vcc, 9, v{t}"); A(f"v_cndmask_b32 v{t2}, 0, 3, vcc"); A(f"v_add_u32 v{t}, v{t}, v{t2}")
        A(f"v_lshlrev_b32 v{v}, 5, v{t}"); A(f"v_lshrrev_b32 v{t}, 3, v{vL}"); A(f"v_lshl_add_u32 v{v}, v{t}, 2, v{v}")
        A(f"s_add_u32 s{sT2}, s{sSPB}, {W_YP}"); A(f"v_add_u32 v{v}, s{sT2}, v{v}")
    vTAG = 0; vY = 3
    A.label("L_SERVICE"); A.comment("waves 0,5,6,7: side jobs before streaming")
    A(f"s_cmp_lg_u32 s{sW}, 0"); A("s_cbranch_scc1 L_Y_PRE")
    if 'h' in SKIP:
        common(); A("s_barrier")
        if 'H' in SKIP:
            h = HS
            while h > 0: A(f"s_sleep {min(h,127)}"); h -= 127
        A(f"v_mov_b32 v{T+2}, 1"); A(f"v_mov_b32 v{T+3}, {L_QFLAG}"); A(f"ds_write_b32 v{T+3}, v{T+2}"); A("s_branch L_STREAM")
    A(f"s_setprio {P0}")
    xloads(); wqloads()
    A.label("L_W0B")
    common()
    A("s_barrier")
    SN = 100 if SNW5 else (120 if SNLATE else 68)
    MX = list(range(128, 140)) if SNW5 else [QB, QB+1, QA, QA+1, QA+2, QA+3, QB+2, QB+3, vM, vM+1, vM+2, vM+3]
    NSNAP = 24 if YTAG else 17
    NEXTRA = (0 if (SNLATE or SNW5) else NSNAP) if TAGS else 2
    def snapshot():
        if 'N' in SKIP: return
        addr_in1(T, T+1, T+2)
        for t in range(4): A(f"global_load_dwordx4 {rng(SN+4*t)}, v{T}, {ws} offset:{64*t} sc1")
        for i in range(4): A(f"global_load_dwordx2 v[{SN+16+2*i}:{SN+17+2*i}], v{T+1}, {ws} offset:{640*i} sc1")
        if SK2: A("s_cmp_ge_u32 s2, 144"); A("s_cbranch_scc1 L_NOIN2")
        addr_in2(T, T+2, sPASS)
        for k in range(4): A(f"global_load_dword v{SN+24+k}, v{T}, {ws} offset:{SL*k} sc1")
        if YTAG:
            A(f"v_add_u32 v{T}, {W_YP - W_SP}, v{T}")
            for k in range(4): A(f"global_load_dword v{MX[8+k]}, v{T}, {ws} offset:{SL*k} sc1")
            if SK2: A.label("L_NOIN2")
            for k in range(3):
                addr_y(T, T+2, T+3, 6*k); A(f"global_load_dword v{MX[5+k]}, v{T}, {ws} sc1")
        addr_o(T, T+2); A(f"global_load_dword v{MX[0]}, v{T}, {ws} sc1")
        addr_ml(T); A(f"global_load_dword v{MX[1]}, v{T}, {ws} offset:516 sc1")
        addr_sp(T, T+2)
        for k in range(3): A(f"global_load_dword v{MX[2+k]}, v{T}, {ws} offset:{128*k} sc1")
    if TAGS:
        if GFLAG: A(f"s_lshl_b32 s{sPC}, s{sG}, 7"); A(f"s_add_u32 s{sPC}, s{sPC}, {W_PC}")
        else: A(f"s_add_u32 s{sPC}, s{sREC}, 528")
        A(f"s_load_dword s{sF0}, {ws}, s{sPC} glc")
        if not SNLATE and not SNW5: snapshot()
    else:
        for k in range(4): A(f"v_mov_b32 v{B0+k}, -1")
        A(f"v_add_u32 v{T}, s{sREC}, v{vOFF}"); A(f"s_add_u32 s{sT}, s{sSPB}, {W_SP}"); A(f"v_add_u32 v{T+1}, s{sT}, v{vOFF}")
        if 'R' in SKIP: A(f"global_load_dword v{T+5}, v{T}, {ws}"); A(f"global_load_dword v{T+5}, v{T}, {ws}")
        else: A(f"s_mov_b32 exec_hi, {0xff if FULL else 3}"); A(f"global_store_dwordx4 v{T}, {rng(B0)}, {ws} sc1")
        if 'R' not in SKIP: A(f"s_mov_b32 exec_hi, {0xffff if FULL else 15}"); A(f"global_store_dwordx4 v{T+1}, {rng(B0)}, {ws} sc1")
        A("s_mov_b64 exec, -1")
    A(f"s_mov_b32 s{sPASS}, 1"); A(f"s_mov_b32 s{sT3}, {L_XL}")
    A(f"s_waitcnt vmcnt({18 + NEXTRA})")
    A("s_branch L_LN")

    WR = 70
    A.label("L_Y_PRE"); A.comment("waves 5-7: x and the w1/b1/w2 slice")
    if 'b' in SKIP:
        common(); A("s_barrier")
        if 'B' in SKIP: A("s_sleep 127"); A("s_sleep 60")
        A("s_branch L_STREAM")
    A("s_setprio 2")
    xloads()
    common()
    A("s_barrier")
    A(f"v_and_b32 v{T}, 7, v{vL}"); A(f"v_mul_u32_u24 v{T}, 36, v{T}"); A(f"s_mul_i32 s{sT}, s{sP}, 288"); A(f"v_add_u32 v{T}, s{sT}, v{T}")
    for a, sp_ in enumerate((sW1, sB1, sW2)):
        R = WR + 10 * a
        A(f"global_load_dwordx4 {rng(R)}, v{T}, s[{sp_}:{sp_+1}]"); A(f"global_load_dwordx4 {rng(R+4)}, v{T}, s[{sp_}:{sp_+1}] offset:16")
        A(f"global_load_dword v{R+8}, v{T}, s[{sp_}:{sp_+1}] offset:32")
    if TAGS and SNW5:
        A(f"s_cmp_lg_u32 s{sW}, 5"); A("s_cbranch_scc1 L_NOSN")
        A("s_waitcnt vmcnt(9)")
        snapshot()
        A("s_branch L_SNJ")
        A.label("L_NOSN")
        A("s_waitcnt vmcnt(9)")
        A.label("L_SNJ")
    A(f"s_mov_b32 s{sPASS}, 2"); A(f"s_sub_u32 s{sT3}, s{sW}, 4"); A(f"s_mul_i32 s{sT3}, s{sT3}, 2304"); A(f"s_add_u32 s{sT3}, s{sT3}, {L_XL}")
    if not (TAGS and SNW5): A("s_waitcnt vmcnt(9)")

    def allred32(v, t, op):
        for pat in ("quad_perm:[1,0,3,2]", "quad_perm:[2,3,0,1]", "row_half_mirror", "row_mirror"):
            A(f"{op}_dpp v{v}, v{v}, v{v} {pat}{dm}")
        A(f"v_mov_b32 v{t}, v{v}"); A(f"v_permlane16_swap_b32 v{t}, v{v}"); A(f"{op} v{v}, v{t}, v{v}")
    A.label("L_LN"); A.comment("layer norm of both rows (lanes 0-31 batch 0, 32-63 batch 1), bf16 roundings as in the reference; 1 or 2 passes")
    for k in range(9):
        A(f"v_lshlrev_b32 v{E+2*k}, 16, v{X+k}"); A(f"v_and_b32 v{E+2*k+1}, 0xffff0000, v{X+k}")
    A(f"v_add_f32 v{T}, v{E}, v{E+1}"); A(f"v_add_f32 v{T+1}, v{E+2}, v{E+3}")
    for k in range(4, 18, 2):
        A(f"v_add_f32 v{T}, v{T}, v{E+k}"); A(f"v_add_f32 v{T+1}, v{T+1}, v{E+k+1}")
    A(f"v_add_f32 v{T}, v{T}, v{T+1}")
    allred32(T, T+1, "v_add_f32")
    A(f"v_mul_f32 v{T}, {hx(f2u(1/576))}, v{T}")
    A(f"v_mov_b32 v{T+2}, 0"); A(f"v_mov_b32 v{T+3}, 0")
    for k in range(0, 18, 2):
        A(f"v_sub_f32 v{T+4}, v{E+k}, v{T}"); A(f"v_sub_f32 v{T+5}, v{E+k+1}, v{T}")
        A(f"v_fmac_f32 v{T+2}, v{T+4}, v{T+4}"); A(f"v_fmac_f32 v{T+3}, v{T+5}, v{T+5}")
    A(f"v_add_f32 v{T+2}, v{T+2}, v{T+3}")
    allred32(T+2, T+3, "v_add_f32")
    A(f"v_mul_f32 v{T+2}, {hx(f2u(1/576))}, v{T+2}")
    rnd1(T); rnd1(T+2)
    A(f"v_add_f32 v{T+2}, {hx(f2u(1e-5))}, v{T+2}"); rnd1(T+2)
    A(f"v_sqrt_f32 v{T+2}, v{T+2}"); rnd1(T+2)
    A(f"v_rcp_f32 v{T+2}, v{T+2}")
    for k in range(9):
        a, b = E+2*k, E+2*k+1
        A(f"v_sub_f32 v{a}, v{a}, v{T}"); A(f"v_sub_f32 v{b}, v{b}, v{T}")
        A(f"v_cvt_pk_bf16_f32 v{X+k}, v{a}, v{b}")
        A(f"v_lshlrev_b32 v{a}, 16, v{X+k}"); A(f"v_and_b32 v{b}, 0xffff0000, v{X+k}")
        A(f"v_mul_f32 v{a}, v{a}, v{T+2}"); A(f"v_mul_f32 v{b}, v{b}, v{T+2}")
        A(f"v_cvt_pk_bf16_f32 v{X+k}, v{a}, v{b}")
    A(f"s_sub_u32 s{sPASS}, s{sPASS}, 1"); A(f"s_cmp_lg_u32 s{sPASS}, 0"); A("s_cbranch_scc1 L_LN")
    A(f"v_add_u32 v{vXO}, s{sT3}, v{vXO}")
    for k in range(9): A(f"ds_write_b32 v{vXO}, v{X+k} offset:{128*k}")
    A(f"s_cmp_lg_u32 s{sW}, 0"); A("s_cbranch_scc1 L_BBR")

    qs = 0
    if QCOL:
        for i in range(18):
            A(f"s_waitcnt vmcnt({17 + NEXTRA - i})"); A(f"ds_write_b128 v{vOFF}, {rng(WQ+4*i)} offset:{L_WQ + 1024*i}")
        lc = {4: 3, 2: 2}[NRG]; lq = {4: 2, 2: 3}[NRG]; NS_ = 36 // NRG; NI = NRG + 1
        A(f"v_lshrrev_b32 v{T}, 4, v{vL}"); A(f"v_lshrrev_b32 v{T+1}, 2, v{vL}"); A(f"v_lshlrev_b32 v{T+1}, {4+lc}, v{T+1}")
        A(f"v_and_b32 v{T+2}, 3, v{vL}"); A(f"v_lshl_add_u32 v{T+1}, v{T+2}, 3, v{T+1}")
        A(f"v_and_b32 v{T+2}, 1, v{vL}"); A(f"v_mul_u32_u24 v{T+2}, 1152, v{T+2}"); A(f"v_lshl_add_u32 v{T+2}, v{T}, 3, v{T+2}")
        A(f"s_lshr_b32 s{sT}, s{sJ}, {lq}"); A(f"s_mul_i32 s{sT}, s{sT}, {1152//NRG}"); A(f"v_add_u32 v{T+2}, s{sT}, v{T+2}")
        A("s_waitcnt lgkmcnt(0)")
        DQ = 52
        def qread(i):
            r = WQ + 10 * (i % 4)
            for n in range(NRG): A(f"ds_read_b64_tr_b16 v[{r+2*n}:{r+2*n+1}], v{T+1} offset:{L_WQ + (256<<lc)*i + 32*n}")
            A(f"ds_read_b64 v[{r+8}:{r+9}], v{T+2} offset:{L_XL + 32*i}")
        qread(0); qread(1)
        for i in range(NS_):
            if i + 2 < NS_: qread(i + 2)
            A(f"s_waitcnt lgkmcnt({NI * min(2, NS_ - 1 - i)})")
            r = WQ + 10 * (i % 4)
            for n in range(NRG): A(f"v_mfma_f32_16x16x16_bf16 {rng(DQ+4*n)}, v[{r+8}:{r+9}], v[{r+2*n}:{r+2*n+1}], {'0' if i == 0 else rng(DQ+4*n)}")
        SB_ = 64 * NRG
        A(f"s_mul_i32 s{sT}, s{sG}, {32*SB_}"); A(f"s_mul_i32 s{sT2}, s{sJ}, {SB_}"); A(f"s_add_u32 s{sT}, s{sT}, s{sT2}")
        A(f"v_lshlrev_b32 v{T}, {lc+1}, v{vL}"); A(f"v_add_u32 v{T}, s{sT}, v{T}"); A(f"v_add_u32 v{T+1}, {16*SB_}, v{T}")
        for b_ in range(2):
            for n in range(NRG): A(f"v_mov_b32 v{D+4*b_+n}, v{DQ+4*n+b_}")
        A("s_mov_b64 exec, 0xffff"); A(f"global_store_dwordx{NRG} v{T}, {rng(D, NRG)}, {ws} sc1"); A(f"global_store_dwordx{NRG} v{T+1}, {rng(D+4, NRG)}, {ws} sc1"); A("s_mov_b64 exec, -1")
    else:
        XV = 50
        A(f"v_bfe_u32 v{T}, v{vL}, 3, 1"); A(f"v_mul_u32_u24 v{T}, 1152, v{T}")
        A(f"v_lshrrev_b32 v{T+1}, 4, v{vL}"); A(f"v_lshl_add_u32 v{T}, v{T+1}, 1, v{T}")
        A(f"s_mul_i32 s{sT}, s{sRG}, 144"); A(f"s_add_u32 s{sT}, s{sT}, {L_XL}"); A(f"v_add_u32 v{T}, s{sT}, v{T}")
        A("s_waitcnt lgkmcnt(0)")
        for i in range(18):
            A(f"ds_read_u16 v{XV+i}, v{T} offset:{8*i}")
            if i == 8: A("s_waitcnt lgkmcnt(0)")
        A("s_waitcnt lgkmcnt(0)")
        for i in range(18): A(f"v_lshl_or_b32 v{XV+i}, v{XV+i}, 16, v{XV+i}")
        for i in range(18):
            Bx = B0 if i % 2 == 0 else B1
            for k in range(4): A(f"v_and_b32 v{Bx+k}, v{XV+i}, v{MK+k}")
            if i > 0:
                Bp = B1 if i % 2 == 0 else B0
                A(f"s_waitcnt vmcnt({17+NEXTRA-(i-1)})")
                A(f"v_mfma_f32_16x16x32_bf16 {rng(D)}, {rng(WQ+4*(i-1))}, {rng(Bp)}, {'0' if i == 1 else rng(D)}")
        A(f"s_waitcnt vmcnt({NEXTRA})")
        A(f"v_mfma_f32_16x16x32_bf16 {rng(D)}, {rng(WQ+4*17)}, {rng(B1)}, {rng(D)}")
        qs = 1 if QBF else 0
        A(f"v_bfe_u32 v{T}, v{vL}, 3, 1"); A(f"v_lshlrev_b32 v{T}, {13-qs}, v{T}")
        A(f"v_lshrrev_b32 v{T+1}, 4, v{vL}"); A(f"v_lshl_add_u32 v{T}, v{T+1}, {7-qs}, v{T}")
        A(f"v_and_b32 v{T+1}, 7, v{vL}"); A(f"v_lshl_add_u32 v{T}, v{T+1}, {4-qs}, v{T}")
        A(f"s_lshl_b32 s{sT}, s{sG}, {14-qs}"); A(f"s_lshl_b32 s{sT2}, s{sJ}, {9-qs}"); A(f"s_add_u32 s{sT}, s{sT}, s{sT2}")
        A(f"v_add_u32 v{T}, s{sT}, v{T}")
        if QBF:
            A(f"v_cvt_pk_bf16_f32 v{D}, v{D}, v{D+1}"); A(f"v_cvt_pk_bf16_f32 v{D+1}, v{D+2}, v{D+3}")
            A(f"global_store_dwordx2 v{T}, v[{D}:{D+1}], {ws} sc1")
        elif 'S' not in SKIP: A(f"global_store_dwordx4 v{T}, {rng(D)}, {ws} sc1")
    stamp(2)
    def packtags():
        bits = [SN + 2*k for k in range(8)] + [SN + 17 + 2*i for i in range(4)] + [SN + 24 + k for k in range(4)] + MX[:5]
        if YTAG: bits += MX[5:12]
        A(f"v_mov_b32 v{vTAG}, 0")
        for r in bits: A(f"v_alignbit_b32 v{vTAG}, v{r}, v{vTAG}, 1")
        A(f"v_lshrrev_b32 v{vTAG}, {32 - len(bits)}, v{vTAG}"); A(f"v_not_b32 v{vTAG}, v{vTAG}")
        A(f"v_lshlrev_b32 v{T+1}, 2, v{vL}"); A(f"ds_write_b32 v{T+1}, v{vTAG} offset:{L_TAG}")
    if TAGS:
        if SNW5: pass
        elif SNLATE: snapshot()
        else: A("s_waitcnt vmcnt(1)"); packtags()
    if NS0:
        cur[0] = None
        A("s_nop 1")
        if NS0P is not None: A(f"s_setprio {NS0P}")
        for n in range(WOAT): issue(n)
        if NS0P is not None: A(f"s_setprio {P0}")
    A(f"s_lshl_b32 s{sT}, s{sG}, 4"); A(f"s_mov_b32 s{sT2}, 1"); A(f"s_mov_b32 s{sT3}, s{sPC}" if TAGS else f"s_add_u32 s{sT3}, s{sREC}, 528")
    A(f"s_waitcnt vmcnt({WOAT if NS0 else 0}) lgkmcnt(0)")
    POSTPACK = TAGS and SNLATE and not SNW5
    if TAGS and SNW5:
        ldswait("SNW", L_SNOK, 1, 1); A(f"s_mov_b32 s{sT2}, 1")
    if 'A' in SKIP: A("s_sleep 60"); A("s_branch L_POLLA_OK")
    A(f"s_atomic_add s{sT2}, s[{sDBG}:{sDBG+1}], s{sT} glc")
    if POSTPACK: packtags()
    A("s_waitcnt lgkmcnt(0)")
    A(f"s_cmp_lg_u32 s{sT2}, 15"); A("s_cbranch_scc1 L_NOTMASTER")
    A(f"s_mul_i32 s{sT}, s{sG}, {16*640}"); A(f"s_add_u32 s{sT}, s{sT}, {W_REC+528}"); A(f"s_add_u32 s{sA}, s{sWS}, s{sT}"); A(f"s_addc_u32 s{sA+1}, s{sWS+1}, 0")
    if TAGS:
        A(f"s_mov_b32 s{sT2}, 1")
        if GFLAG: A(f"s_atomic_add s{sT2}, {ws}, s{sPC}")
        else:
            for j in range(16): A(f"s_atomic_add s{sT2}, s[{sA}:{sA+1}], {640*j}")
    else:
        A(f"s_mov_b32 s{sT2}, 0")
        for j in range(16): A(f"s_atomic_and s{sT2}, s[{sA}:{sA+1}], {640*j}")
    A("s_branch L_POLLA_OK")
    A.label("L_NOTMASTER")
    A(f"s_mov_b32 s{sCNT}, {LIMIT}")
    A.label("L_POLLA")
    A(f"s_load_dword s{sT2}, {ws}, s{sT3} glc"); A("s_waitcnt lgkmcnt(0)")
    if TAGS: A(f"s_cmp_lg_u32 s{sT2}, s{sF0}")
    else: A(f"s_cmp_eq_u32 s{sT2}, 0")
    A("s_cbranch_scc1 L_POLLA_OK")
    A(f"s_sleep {PSL}"); A(f"s_sub_u32 s{sCNT}, s{sCNT}, 1"); A(f"s_cmp_lg_u32 s{sCNT}, 0"); A("s_cbranch_scc1 L_POLLA")
    A.label("L_POLLA_OK")
    stamp(3)
    GQ = 128
    if QCOL:
        A(f"s_mul_i32 s{sT}, s{sG}, {32*SB_}"); A(f"s_mul_i32 s{sT2}, s{sB}, {16*SB_}"); A(f"s_add_u32 s{sT}, s{sT}, s{sT2}"); A(f"v_add_u32 v{T}, s{sT}, v{vOFF}")
        for r in range(NRG): A(f"global_load_dwordx4 {rng(GQ+4*r)}, v{T}, {ws} offset:{1024*r} sc1")
        if NRG == 4:
            A(f"v_lshrrev_b32 v{T+2}, 4, v{vL}"); A(f"v_lshlrev_b32 v{T+2}, 7, v{T+2}"); A(f"v_and_b32 v{T+3}, 15, v{vL}"); A(f"v_lshl_add_u32 v{T+2}, v{T+3}, 1, v{T+2}")
            offs = [0, 32, 64, 96]
        else:
            A(f"v_lshrrev_b32 v{T+2}, 3, v{vL}"); A(f"v_lshlrev_b32 v{T+2}, 6, v{T+2}"); A(f"v_and_b32 v{T+3}, 7, v{vL}"); A(f"v_lshl_add_u32 v{T+2}, v{T+3}, 2, v{T+2}")
            offs = [0, 32, 2, 34]
        for r in range(1, NRG):
            A(f"s_waitcnt vmcnt({NRG-1-r})")
            for k in range(4): A(f"v_add_f32 v{GQ+k}, v{GQ+k}, v{GQ+4*r+k}")
        A(f"v_cvt_pk_bf16_f32 v{GQ}, v{GQ}, v{GQ+1}"); A(f"v_cvt_pk_bf16_f32 v{GQ+1}, v{GQ+2}, v{GQ+3}")
        A(f"ds_write_b16 v{T+2}, v{GQ} offset:{L_Q+offs[0]}"); A(f"ds_write_b16_d16_hi v{T+2}, v{GQ} offset:{L_Q+offs[1]}")
        A(f"ds_write_b16 v{T+2}, v{GQ+1} offset:{L_Q+offs[2]}"); A(f"ds_write_b16_d16_hi v{T+2}, v{GQ+1} offset:{L_Q+offs[3]}")
    else:
        A(f"s_lshl_b32 s{sT}, s{sG}, {14-qs}"); A(f"s_lshl_b32 s{sT2}, s{sB}, {13-qs}"); A(f"s_add_u32 s{sT}, s{sT}, s{sT2}")
        if QBF:
            A(f"v_lshlrev_b32 v{T}, 3, v{vL}"); A(f"v_add_u32 v{T}, s{sT}, v{T}")
            for r in range(8): A(f"global_load_dwordx2 v[{GQ+8+2*r}:{GQ+9+2*r}], v{T}, {ws} offset:{512*r} sc1")
        else:
            A(f"v_add_u32 v{T}, s{sT}, v{vOFF}"); A(f"v_add_u32 v{T+1}, 4096, v{T}")
            for r in range(8 if 'G' not in SKIP else 0): A(f"global_load_dwordx4 {rng(GQ+4*r)}, v{T + r//4}, {ws} offset:{1024*(r%4)} sc1")
        A(f"v_lshrrev_b32 v{T+2}, 3, v{vL}"); A(f"v_lshlrev_b32 v{T+2}, 6, v{T+2}"); A(f"v_and_b32 v{T+3}, 7, v{vL}"); A(f"v_lshl_add_u32 v{T+2}, v{T+3}, 1, v{T+2}")
        if QBF:
            for r in range(8):
                A(f"s_waitcnt vmcnt({7-r})")
                o = GQ if r == 0 else GQ + 4
                for h in range(2):
                    A(f"v_lshlrev_b32 v{o+2*h}, 16, v{GQ+8+2*r+h}"); A(f"v_and_b32 v{o+2*h+1}, 0xffff0000, v{GQ+8+2*r+h}")
                if r:
                    for k in range(4): A(f"v_add_f32 v{GQ+k}, v{GQ+k}, v{GQ+4+k}")
        else:
            for r in range(1, 8):
                A(f"s_waitcnt vmcnt({7-r})")
                for k in range(4): A(f"v_add_f32 v{GQ+k}, v{GQ+k}, v{GQ+4*r+k}")
        A(f"v_cvt_pk_bf16_f32 v{GQ}, v{GQ}, v{GQ+1}"); A(f"v_cvt_pk_bf16_f32 v{GQ+1}, v{GQ+2}, v{GQ+3}")
        A(f"ds_write_b16 v{T+2}, v{GQ} offset:{L_Q}"); A(f"ds_write_b16_d16_hi v{T+2}, v{GQ} offset:{L_Q+16}")
        A(f"ds_write_b16 v{T+2}, v{GQ+1} offset:{L_Q+32}"); A(f"ds_write_b16_d16_hi v{T+2}, v{GQ+1} offset:{L_Q+48}")
    A(f"v_mov_b32 v{T+2}, 1"); A(f"v_mov_b32 v{T+3}, {L_QFLAG}")
    A("s_waitcnt lgkmcnt(0)")
    A(f"ds_write_b32 v{T+3}, v{T+2}")
    A("s_setprio 0")
    if NS0:
        stamp(6); A(f"v_mov_b32 v{vG}, 0"); A("s_branch L_STREAM2")
    else: A("s_branch L_STREAM")

    A.label("L_BBR"); A.comment("token-mixing MLP slice: 48 outputs x 144 hidden units per wave")
    W1 = 100; BB = 118; W2 = WR + 20; U = 136; PK = 40; ZZ = 50; RES = 154; vC1 = 156; vC0 = 158; vONE = 160; vH = 162; vHA = 164; ACC = 165; vFL = 166
    def pr(r): return f"v[{r}:{r+1}]"
    A("s_waitcnt vmcnt(0)")
    if TAGS and SNW5:
        A(f"s_cmp_lg_u32 s{sW}, 5"); A("s_cbranch_scc1 L_NOPK")
        packtags()
        A(f"v_mov_b32 v{T}, {L_SNOK}"); A(f"v_mov_b32 v{T+1}, 1"); A(f"ds_write_b32 v{T}, v{T+1}")
        A.label("L_NOPK")
    for k in range(9):
        A(f"v_lshlrev_b32 v{W1+2*k}, 16, v{WR+k}"); A(f"v_and_b32 v{W1+2*k+1}, 0xffff0000, v{WR+k}")
        A(f"v_lshlrev_b32 v{BB+2*k}, 16, v{WR+10+k}"); A(f"v_and_b32 v{BB+2*k+1}, 0xffff0000, v{WR+10+k}")
    c0 = -2 * math.sqrt(2 / math.pi) * LOG2E; c1 = c0 * 0.044715
    for k in range(2):
        A(f"v_mov_b32 v{vC1+k}, {hx(f2u(c1))}"); A(f"v_mov_b32 v{vC0+k}, {hx(f2u(c0))}"); A(f"v_mov_b32 v{vONE+k}, 1.0")
    A(f"v_and_b32 v{vFL}, 7, v{vL}")
    A(f"s_sub_u32 s{sT}, s{sW}, 5"); A(f"s_mul_i32 s{sT}, s{sT}, 6")
    A(f"s_mul_i32 s{sT2}, s{sCG}, 144"); A(f"s_add_u32 s{sT3}, s{sT3}, s{sT2}")
    A(f"v_lshrrev_b32 v{vHA}, 3, v{vL}"); A(f"v_lshlrev_b32 v{vHA}, 1, v{vHA}"); A(f"v_add_u32 v{vHA}, s{sT3}, v{vHA}")
    A(f"s_mov_b32 s{sPASS}, 0"); A(f"v_mov_b32 v{RES}, 0")
    A("s_setprio 0")
    A.label("L_BLOOP")
    A(f"s_add_u32 s{sT2}, s{sT}, s{sPASS}"); A(f"s_cmp_ge_u32 s{sT2}, 9"); A(f"s_cselect_b32 s{sT3}, 63, 0"); A(f"s_add_u32 s{sT2}, s{sT2}, s{sT3}"); A(f"s_lshl_b32 s{sT2}, s{sT2}, 4")
    A(f"v_add_u32 v{vH+1}, s{sT2}, v{vHA}")
    A(f"ds_read_u16 v{vH}, v{vH+1}")
    A("s_waitcnt lgkmcnt(0)")
    A(f"v_lshlrev_b32 v{vH}, 16, v{vH}"); A(f"v_mov_b32 v{vH+1}, v{vH}")
    def round9():
        for k in range(9): A(f"v_cvt_pk_bf16_f32 v{PK+k}, v{U+2*k}, v{U+2*k+1}")
        for k in range(9):
            A(f"v_lshlrev_b32 v{U+2*k}, 16, v{PK+k}"); A(f"v_and_b32 v{U+2*k+1}, 0xffff0000, v{PK+k}")
    for k in range(9): A(f"v_pk_mul_f32 {pr(U+2*k)}, {pr(vH)}, {pr(W1+2*k)}")
    round9()
    for k in range(9): A(f"v_pk_add_f32 {pr(U+2*k)}, {pr(U+2*k)}, {pr(BB+2*k)}")
    round9()
    for k in range(9): A(f"v_pk_mul_f32 {pr(ZZ+2*k)}, {pr(U+2*k)}, {pr(U+2*k)}")
    for k in range(9): A(f"v_pk_fma_f32 {pr(ZZ+2*k)}, {pr(ZZ+2*k)}, {pr(vC1)}, {pr(vC0)}")
    for k in range(9): A(f"v_pk_mul_f32 {pr(ZZ+2*k)}, {pr(ZZ+2*k)}, {pr(U+2*k)}")
    for k in range(18): A(f"v_exp_f32 v{ZZ+k}, v{ZZ+k}")
    for k in range(9): A(f"v_pk_add_f32 {pr(ZZ+2*k)}, {pr(ZZ+2*k)}, {pr(vONE)}")
    for k in range(18): A(f"v_rcp_f32 v{ZZ+k}, v{ZZ+k}")
    for k in range(9): A(f"v_pk_mul_f32 {pr(U+2*k)}, {pr(U+2*k)}, {pr(ZZ+2*k)}")
    for k in range(9): A(f"v_cvt_pk_bf16_f32 v{PK+k}, v{U+2*k}, v{U+2*k+1}")
    A(f"v_mov_b32 v{ACC}, 0")
    for k in range(9): A(f"v_dot2c_f32_bf16 v{ACC}, v{PK+k}, v{W2+k}")
    for pat in ("quad_perm:[1,0,3,2]", "quad_perm:[2,3,0,1]", "row_half_mirror"):
        A(f"v_add_f32_dpp v{ACC}, v{ACC}, v{ACC} {pat}{dm}")
    A(f"v_cmp_eq_u32 vcc, s{sPASS}, v{vFL}"); A(f"v_cndmask_b32 v{RES}, v{RES}, v{ACC}, vcc")
    A(f"s_add_u32 s{sPASS}, s{sPASS}, 1"); A(f"s_cmp_lt_u32 s{sPASS}, 6"); A("s_cbranch_scc1 L_BLOOP")
    if YTAG: A(f"v_mov_b32 v{vY}, v{RES}")
    else:
        A("s_setprio 2")
        A(f"v_lshlrev_b32 v{T}, 5, v{vFL}"); A(f"v_lshrrev_b32 v{T+1}, 3, v{vL}"); A(f"v_lshl_add_u32 v{T}, v{T+1}, 2, v{T}")
        if FULL:
            A(f"v_add_u32 v{T+1}, s{sT}, v{vFL}"); A(f"v_cmp_le_u32 vcc, 9, v{T+1}"); A(f"v_cndmask_b32 v{T+1}, 0, 3, vcc"); A(f"v_lshl_add_u32 v{T}, v{T+1}, 5, v{T}")
        A(f"s_lshl_b32 s{sT}, s{sT}, 5"); A(f"s_add_u32 s{sT}, s{sT}, s{sSPB}"); A(f"s_add_u32 s{sT}, s{sT}, {W_YP}"); A(f"v_add_u32 v{T}, s{sT}, v{T}")
        A(f"s_mov_b32 exec_lo, 0x3f3f3f3f"); A(f"s_mov_b32 exec_hi, 0x3f3f3f3f")
        A(f"global_store_dword v{T}, v{RES}, {ws} sc1")
        A("s_mov_b64 exec, -1")
    if EXTRA:
        A(f"s_lshl_b32 s{sT}, s2, 3"); A(f"s_add_u32 s{sT}, s{sT}, s{sW}"); A(f"s_lshl_b32 s{sT}, s{sT}, 13"); A(f"s_add_u32 s{sT}, s{sT}, 0x1000000"); A(f"v_add_u32 v{T}, s{sT}, v{vOFF}")
        for k in range(EXTRA): A(f"global_store_dwordx4 v{T}, v[40:43], {ws} offset:{1024*k} sc1")
    stamp(2)

    A.label("L_STREAM")
    stamp(6)
    A(f"v_mov_b32 v{vG}, 0")
    cur[0] = None
    issued = 0
    while issued < NSIG: issue(issued); issued += 1
    if not YTAG:
        A(f"s_cmp_lt_u32 s{sW}, 5"); A("s_cbranch_scc1 L_BDONE")
        A("s_mov_b64 exec, 1")
        A(f"v_mov_b32 v{T+2}, 1"); A(f"v_mov_b32 v{T+3}, {L_CNTB}")
        A(f"s_waitcnt vmcnt({NSIG})")
        A(f"ds_add_rtn_u32 v{T+4}, v{T+3}, v{T+2}")
        A(f"s_lshl_b32 s{sT2}, s{sG}, 4"); A(f"s_add_u32 s{sT2}, s{sT2}, 4"); A(f"s_mov_b32 s{sT3}, 1")
        A("s_waitcnt lgkmcnt(0)")
        A(f"v_readfirstlane_b32 s{sCNT}, v{T+4}")
        A("s_mov_b64 exec, -1")
        A("s_setprio 0")
        A(f"s_cmp_lg_u32 s{sCNT}, 2"); A("s_cbranch_scc1 L_BDONE")
        A(f"s_atomic_add s{sT3}, s[{sDBG}:{sDBG+1}], s{sT2}")
    A.label("L_BDONE")
    cur[0] = None
    while issued < WOAT: issue(issued); issued += 1
    MARK_STREAM2 = len(A.lines)
    A.label("L_STREAM2"); A.comment("K/V stream")
    cur[0] = None
    while issued < NPRE: issue(issued); issued += 1
    A(f"s_cmp_eq_u32 s{sLATE}, 1"); A("s_cbranch_scc1 L_LATE0")
    e = NPRE
    while e < min(NEARLY, 46): issue(e); e += 1
    A(f"s_cmp_eq_u32 s{sW}, 4"); A("s_cbranch_scc1 L_NOWO2")
    A(f"s_waitcnt vmcnt({e - WOAT})")
    for k in range(6): A(f"ds_write_b128 v{vG}, a[{60+4*k}:{63+4*k}] offset:{L_WO+1024*k}")
    ldsinc(L_CNTW)
    A("s_waitcnt lgkmcnt(0)")
    A.label("L_NOWO2")
    cur[0] = None
    while e < NEARLY: issue(e); e += 1
    A.label("L_LATE0"); A.comment("wait for q, then QK in groups of 16 keys")
    stamp(7)
    ldswait("QW", L_QFLAG, 0, 2, "lg")
    A(f"v_bfe_u32 v{T}, v{vL}, 3, 1"); A(f"v_lshlrev_b32 v{T}, 8, v{T}"); A(f"v_and_b32 v{T+1}, 15, v{vL}"); A(f"v_lshl_add_u32 v{T}, v{T+1}, 4, v{T}")
    A(f"v_xor_b32 v{T+1}, 128, v{T}")
    A(f"ds_read_b128 {rng(QA)}, v{T} offset:{L_Q}"); A(f"ds_read_b128 {rng(QB)}, v{T+1} offset:{L_Q}")
    if TAGS: A(f"v_lshlrev_b32 v{T+2}, 2, v{vL}"); A(f"ds_read_b32 v{vTAG}, v{T+2} offset:{L_TAG}")
    A("s_waitcnt lgkmcnt(0)")
    stamp(8)
    YQ = len(A.lines)
    if EPRIO:
        A(f"s_cmp_eq_u32 s{sLATE}, 1"); A("s_cbranch_scc1 L_NOEP"); A(f"s_setprio {EPRIO}"); A.label("L_NOEP")
    def sreg(i): return ks(4 * (i >> 2) + 3) + (i & 3)
    nlab = [0]
    K8 = [13, 14, 16, 17]; V8 = [24, 25, 26, 28]
    def x8(kind):
        srd = f"s[{KS}:{KS+3}]" if kind == "K" else f"s[{VS}:{VS+3}]"
        for a in range(4):
            A(f"s_xor_b32 s{sT}, s{sB8}, {(28+a) << 12}"); A(f"buffer_load_dwordx4 {rng(ks((K8 if kind == 'K' else V8)[a]))}, v{vOFF}, {srd}, s{sT} offen{nt}")
    EQ = {0: [54, 55, 56], 1: [57, 58, 59], 2: [60, 61, 62], 3: [63]}
    def more(n, kdone=32, gq=None):
        nonlocal issued
        todo = list(range(issued, min(issued + n, 64)))
        lim = 64 if EFAST else NEARLY
        lateonly = [k for k in todo if k < lim]; both = [k for k in todo if k >= lim]
        early = EQ.get(gq, []) if EFAST else []
        nlab[0] += 1
        if lateonly or early:
            A(f"s_cmp_eq_u32 s{sLATE}, 0"); A(f"s_cbranch_scc1 L_SK{nlab[0]}")
            cur[0] = None
            for k in lateonly:
                i = k - 32
                assert not (i >= 22 and free[i-22] >= kdone), (i, kdone)
                issue(k)
                if k == 63 and MLAT == 'last': ldsinc(L_CNTL)
            if early: A(f"s_branch L_SJ{nlab[0]}")
            A.label(f"L_SK{nlab[0]}")
            if early:
                for k in early: issue(k)
                A.label(f"L_SJ{nlab[0]}")
        if SKW and gq in (4, 7):
            A(f"s_cmp_eq_u32 s{sX8}, 0"); A(f"s_cbranch_scc1 L_SX{nlab[0]}")
            x8("K" if gq == 4 else "V")
            A.label(f"L_SX{nlab[0]}")
        cur[0] = None
        for k in both:
            i = k - 32
            assert not (i >= 22 and free[i-22] >= kdone), (i, kdone)
            issue(k)
            if k == 63 and MLAT == 'last': ldsinc(L_CNTL)
        issued += len(todo)
    def qk(Kr, S, mid=None, bias=False):
        for a in range(4): A(f"v_dot2_f32_bf16 v{T+a}, v{Kr[a]}, v{QA}, 0")
        for c in range(1, 4):
            for a in range(4): A(f"v_dot2c_f32_bf16 v{T+a}, v{Kr[a]+c}, v{QA+c}")
        for c in range(4):
            for a in range(4): A(f"v_dot2c_f32_bf16_dpp v{T+a}, v{Kr[a]+c}, v{QB+c} row_ror:8{dm}")
        if mid: mid()
        for a in range(4): A(f"v_add_f32_dpp v{T+a}, v{T+a}, v{T+a} quad_perm:[1,0,3,2]{dm}")
        for a in range(4): A(f"v_add_f32_dpp v{T+a}, v{T+a}, v{T+a} quad_perm:[2,3,0,1]{dm}")
        for a in range(4): A(f"v_add_f32_dpp v{S+a}, v{T+a}, v{T+a} row_half_mirror{dm}")
        if ROUND:
            for rep in range(2):
                A(f"v_cvt_pk_bf16_f32 v{T+4}, v{S}, v{S+1}"); A(f"v_cvt_pk_bf16_f32 v{T+5}, v{S+2}, v{S+3}")
                A(f"v_lshlrev_b32 v{S}, 16, v{T+4}"); A(f"v_and_b32 v{S+1}, 0xffff0000, v{T+4}")
                A(f"v_lshlrev_b32 v{S+2}, 16, v{T+5}"); A(f"v_and_b32 v{S+3}, 0xffff0000, v{T+5}")
                if rep == 0:
                    for a in range(4): A(f"v_mul_f32 v{S+a}, {hx(f2u(SCALE))}, v{S+a}")
        if bias:
            for a in range(4): A(f"v_add_f32 v{S+a}, s{sBIAS}, v{S+a}")
    for gq in range(8):
        A(f"s_waitcnt vmcnt({issued - (4*gq+4)})")
        S = ks(4*gq+3)
        qk([ks(4*gq+a) for a in range(4)], S, lambda: more(SCH_QK[gq], 4*gq+4, gq), bool(SKW) and gq == 7)
        if gq == 0: A(f"v_max3_f32 v{vM}, v{S}, v{S+1}, v{S+2}"); A(f"v_max_f32 v{vM}, v{vM}, v{S+3}")
        else: A(f"v_max3_f32 v{vM}, v{vM}, v{S}, v{S+1}"); A(f"v_max3_f32 v{vM}, v{vM}, v{S+2}, v{S+3}")
    S8 = ks(K8[3])
    if SKW:
        assert EFAST and NEARLY == 54
        A(f"s_cmp_eq_u32 s{sX8}, 0"); A("s_cbranch_scc1 L_NQ8")
        A("s_waitcnt vmcnt(4)")
        qk([ks(q) for q in K8], S8)
        A(f"v_max3_f32 v{vM}, v{vM}, v{S8}, v{S8+1}"); A(f"v_max3_f32 v{vM}, v{vM}, v{S8+2}, v{S8+3}")
        A.label("L_NQ8")
    xrow(vM, T, "v_max_f32")
    A(f"v_mul_f32 v{vM}, s{sC1}, v{vM}")
    stamp(9)
    def ystore():
        A(f"s_cmp_lt_u32 s{sW}, 5"); A("s_cbranch_scc1 L_NOY")
        if 't' not in SKIP: ldswait("AOK", L_AOK, 1, 2)
        A(f"s_sub_u32 s{sT3}, s{sW}, 5"); A(f"s_mul_i32 s{sCNT}, s{sT3}, 6"); addr_y(T, T+1, T+2, f"s{sCNT}")
        A(f"s_add_u32 s{sT3}, s{sT3}, 21"); A(f"v_lshrrev_b32 v{T+1}, s{sT3}, v{vTAG}"); A(f"v_bfi_b32 v{vY}, 1, v{T+1}, v{vY}")
        A(f"s_mov_b32 exec_lo, 0x3f3f3f3f"); A(f"s_mov_b32 exec_hi, 0x3f3f3f3f")
        if 'Y' not in SKIP: A(f"global_store_dword v{T}, v{vY}, {ws} sc1")
        A("s_mov_b64 exec, -1")
        A.label("L_NOY")
    if YTAG and YAT == 'qk': ystore()
    A(f"v_mov_b32 v{vLs}, 0")
    for q in range(8):
        S = ks(4*q+3)
        for a in range(4): A(f"v_fma_f32 v{S+a}, v{S+a}, s{sC1}, -v{vM}")
        for a in range(4): A(f"v_exp_f32 v{S+a}, v{S+a}")
        for a in range(4): A(f"v_add_f32 v{vLs}, v{vLs}, v{S+a}")
        for a in range(4): A(f"v_cvt_pk_bf16_f32 v{S+a}, v{S+a}, v{S+a}")
        more(SCH_SM[q])
    if SKW:
        A(f"s_cmp_eq_u32 s{sX8}, 0"); A("s_cbranch_scc1 L_NS8")
        for a in range(4): A(f"v_fma_f32 v{S8+a}, v{S8+a}, s{sC1}, -v{vM}")
        for a in range(4): A(f"v_exp_f32 v{S8+a}, v{S8+a}")
        for a in range(4): A(f"v_add_f32 v{vLs}, v{vLs}, v{S8+a}")
        for a in range(4): A(f"v_cvt_pk_bf16_f32 v{S8+a}, v{S8+a}, v{S8+a}")
        A.label("L_NS8")
    xrow(vLs, T, "v_add_f32")
    vH6 = T + 6
    A(f"v_bfe_u32 v{T+7}, v{vL}, 3, 1"); A(f"v_lshlrev_b32 v{vH6}, 6, v{T+7}")
    A(f"s_lshl_b32 s{sT2}, s{sW}, 3"); A(f"v_add_u32 v{T}, s{sT2}, v{vH6}")
    A(f"v_mov_b32 v{T+2}, 1"); A(f"v_mov_b32 v{T+3}, {L_CNTI}")
    A("s_mov_b64 exec, 0x101"); A(f"ds_write_b64 v{T}, v[{vM}:{vM+1}] offset:{L_MLW}")
    A("s_mov_b64 exec, 1"); A(f"ds_add_rtn_u32 v{T+4}, v{T+3}, v{T+2}"); A("s_mov_b64 exec, -1")
    A(f"v_lshlrev_b32 v{vM}, 8, v{T+7}"); A(f"v_lshrrev_b32 v{T+1}, 4, v{vL}"); A(f"v_lshl_add_u32 v{vM}, v{T+1}, 6, v{vM}")
    A(f"v_and_b32 v{T+1}, 7, v{vL}"); A(f"v_lshl_add_u32 v{vM}, v{T+1}, 3, v{vM}"); A(f"v_add_u32 v{vM}, s{sREC}, v{vM}")
    A(f"s_lshl_b32 s{sT2}, s{sW}, 10"); A(f"v_add_u32 v{vLs}, s{sT2}, v{vOFF}")
    A("s_waitcnt lgkmcnt(0)")
    A(f"v_readfirstlane_b32 s{sT2}, v{T+4}")
    A(f"s_cmp_lg_u32 s{sT2}, 7"); A("s_cbranch_scc1 L_NOF")
    MQ = [ks(18), ks(20), ks(21), ks(22)]; FF = ks(29)
    for k in range(4): A(f"ds_read_b128 {rng(MQ[k])}, v{vH6} offset:{L_MLW+16*k}")
    mm = [MQ[k // 2] + 2 * (k % 2) for k in range(8)]
    A(f"v_lshlrev_b32 v{T+2}, 3, v{T+7}"); A(f"v_add_u32 v{T+2}, s{sREC}, v{T+2}")
    A("s_waitcnt lgkmcnt(0)")
    A(f"v_max3_f32 v{T}, v{mm[0]}, v{mm[1]}, v{mm[2]}"); A(f"v_max3_f32 v{T}, v{T}, v{mm[3]}, v{mm[4]}"); A(f"v_max3_f32 v{T}, v{T}, v{mm[5]}, v{mm[6]}"); A(f"v_max_f32 v{T}, v{T}, v{mm[7]}")
    for k in range(8): A(f"v_sub_f32 v{FF+k}, v{mm[k]}, v{T}")
    for k in range(8): A(f"v_exp_f32 v{FF+k}, v{FF+k}")
    A(f"v_mul_f32 v{T+1}, v{FF}, v{mm[0]+1}")
    for k in range(1, 8): A(f"v_fmac_f32 v{T+1}, v{FF+k}, v{mm[k]+1}")
    A(f"v_lshrrev_b32 v{T+3}, 1, v{vH6}")
    if TAGS: A(f"v_lshrrev_b32 v{T+4}, 17, v{vTAG}"); A(f"v_bfi_b32 v{T+1}, 1, v{T+4}, v{T+1}")
    else: A(f"v_min_u32 v{T}, -2, v{T}"); A(f"v_min_u32 v{T+1}, -2, v{T+1}")
    A("s_mov_b64 exec, 0x101")
    A(f"ds_write_b128 v{T+3}, {rng(FF)} offset:{L_FW}"); A(f"ds_write_b128 v{T+3}, {rng(FF+4)} offset:{L_FW+16}")
    if 't' not in SKIP: A(f"global_store_dwordx2 v{T+2}, v[{T}:{T+1}], {ws} offset:512 sc1")
    A("s_mov_b64 exec, -1")
    A.label("L_NOF"); A.comment("PV")
    A(f"v_mov_b32 v{T+2}, 1"); A(f"v_mov_b32 v{T+3}, {L_CNTO}"); A(f"v_lshrrev_b32 v{T+4}, 1, v{vH6}")
    if TAGS: A(f"v_lshrrev_b32 v{T+1}, 16, v{vTAG}")
    for i in range(33):
        if i < 32:
            Bx = B0 if i % 2 == 0 else B1
            for k in range(4): A(f"v_and_b32 v{Bx+k}, v{sreg(i)}, v{MK+k}")
        if i > 0:
            Bp = B0 if (i-1) % 2 == 0 else B1
            assert issued > 32 + i - 1
            A(f"s_waitcnt vmcnt({issued - (32 + i)})")
            A(f"v_mfma_f32_16x16x32_bf16 {rng(D)}, {vreg(i-1)}, {rng(Bp)}, {'0' if i == 1 else rng(D)}")
            more(SCH_PV.get(i-1, 0))
    assert issued == 64
    if SKW:
        A(f"s_cmp_eq_u32 s{sX8}, 0"); A("s_cbranch_scc1 L_NP8")
        for a in range(4):
            Bc = B0 if a % 2 == 0 else B1
            for k in range(4): A(f"v_and_b32 v{Bc+k}, v{S8+a}, v{MK+k}")
            A(f"v_mfma_f32_16x16x32_bf16 {rng(D)}, {rng(ks(V8[a]))}, {rng(Bc)}, {rng(D)}")
        A.label("L_NP8")
    stamp(10)
    if 't' in SKIP: A("s_branch L_EXIT")
    A(f"ds_write_b128 v{vLs}, {rng(D)} offset:{L_OW}")
    A("s_mov_b64 exec, 1"); A(f"ds_add_rtn_u32 v{T+5}, v{T+3}, v{T+2}"); A("s_mov_b64 exec, -1")
    A("s_waitcnt lgkmcnt(0)")
    A(f"v_readfirstlane_b32 s{sT2}, v{T+5}")
    A(f"s_cmp_lg_u32 s{sT2}, 7"); A("s_cbranch_scc1 L_NOPUB", quick=True)
    OO = 40; FR = 72
    A(f"ds_read_b128 {rng(FR)}, v{T+4} offset:{L_FW}"); A(f"ds_read_b128 {rng(FR+4)}, v{T+4} offset:{L_FW+16}")
    for k in range(8): A(f"ds_read_b128 {rng(OO+4*k)}, v{vOFF} offset:{L_OW+1024*k}")
    for k in range(8):
        A(f"s_waitcnt lgkmcnt({7-k})")
        for c in range(4):
            if k == 0: A(f"v_mul_f32 v{D+c}, v{FR}, v{OO+c}")
            else: A(f"v_fmac_f32 v{D+c}, v{FR+k}, v{OO+4*k+c}")
    A(f"v_cvt_pk_bf16_f32 v{D}, v{D}, v{D+1}"); A(f"v_cvt_pk_bf16_f32 v{D+1}, v{D+2}, v{D+3}")
    if TAGS: A(f"v_add_u32 v{D}, 1, v{D}") if RNDT else None; A(f"v_bfi_b32 v{D}, 1, v{T+1}, v{D}")
    else: A(f"v_min_u32 v{D}, -2, v{D}"); A(f"v_min_u32 v{D+1}, -2, v{D+1}")
    A(f"global_store_dwordx2 v{vM}, v[{D}:{D+1}], {ws} {FS}")
    if MLFIRST or MLAT: A(f"ds_write_b32 v{T+3}, v{T+2} offset:{L_PUBD - L_CNTO}")
    stamp(3)
    A.label("L_NOPUB"); A.comment("wave 1: o @ wo slice (hop 1); wave 2: final sum and output (hop 2)")
    A(f"s_cmp_eq_u32 s{sW}, 2"); A("s_cbranch_scc1 L_HOP2")
    if H1W == 2: A(f"s_and_b32 s{sT2}, s{sW}, 5"); A(f"s_cmp_lg_u32 s{sT2}, 1"); A("s_cbranch_scc1 L_EXIT")
    else: A(f"s_cmp_lg_u32 s{sW}, 1"); A("s_cbranch_scc1 L_EXIT")

    def checkAB(tag, va, vd):
        A(f"s_mov_b32 s{sCNT}, {LIMIT}")
        A(f"v_and_b32 v{va}, 15, v{vL}"); A(f"v_lshlrev_b32 v{va}, 4, v{va}"); (A(f"v_bfe_u32 v{vd}, v{vL}, 4, 1"), A(f"v_lshl_add_u32 v{va}, v{vd}, 2, v{va}")) if not YTAG else None
        A.label(f"L_CB{tag}")
        A(f"global_load_dword v{vd}, v{va}, s[{sDBG}:{sDBG+1}] sc1"); A("s_waitcnt vmcnt(0)")
        A(f"v_cmp_ne_u32 vcc, 16, v{vd}"); A(f"s_cbranch_vccz L_CB{tag}_OK")
        A("s_sleep 16"); A(f"s_sub_u32 s{sCNT}, s{sCNT}, 1"); A(f"s_cmp_lg_u32 s{sCNT}, 0"); A(f"s_cbranch_scc1 L_CB{tag}")
        A.label(f"L_CB{tag}_OK")
    def red32(v, t):
        A(f"v_add_f32 v{v}, v{v}, v{v+1}"); A(f"v_add_f32 v{v+2}, v{v+2}, v{v+3}"); A(f"v_add_f32 v{v}, v{v}, v{v+2}")
        A(f"v_add_f32_dpp v{v}, v{v}, v{v} row_ror:8{dm}")
        xrow(v, t, "v_add_f32")
    RAW = 120; vA = 160; vMLa = 161; vSP = 162; vH2 = 160; vOA = 161
    checkAB("T", T, T+1)
    if YTAG: A(f"v_mov_b32 v{T}, {L_AOK}"); A(f"v_mov_b32 v{T+1}, 1"); A(f"ds_write_b32 v{T}, v{T+1}")
    ldswait("WW", L_CNTW, 3, 2)
    A(f"v_lshrrev_b32 v{T}, 4, v{vL}"); A(f"v_mul_u32_u24 v{T}, 288, v{T}"); A(f"v_and_b32 v{T+1}, 15, v{vL}"); A(f"v_lshl_add_u32 v{T}, v{T+1}, 1, v{T}")
    if H1W == 2:
        A(f"s_sub_u32 s{sT}, s{sW}, 1"); A(f"s_lshl_b32 s{sT}, s{sT}, 5"); A(f"v_add_u32 v{T}, s{sT}, v{T}")
    for n in (range(5) if H1W == 1 else (0, 1, 4)):
        for t in range(4):
            for e_ in range(8): A(f"ds_read_u16 v{RAW+e_}, v{T} offset:{L_WO + 32*n + (32*t + 8*(e_&3) + (e_>>2))*144}")
            A("s_waitcnt lgkmcnt(0)")
            for k in range(4): A(f"v_lshl_or_b32 v{40+16*n+4*t+k}, v{RAW+2*k+1}, 16, v{RAW+2*k}")
    assert H1W == 1
    addr_in1(vA, vMLa, T); addr_sp(vSP, T)
    vTB = vSP + 3
    if TAGS:
        for k in range(3): A(f"v_lshrrev_b32 v{vTB+k}, {18+k}, v{vTAG}")

    def maxchain(dst, regs):
        A(f"v_max3_u32 v{dst}, v{regs[0]}, v{regs[1]}, v{regs[2]}")
        k = 3
        while k < len(regs):
            if k + 1 < len(regs): A(f"v_max3_u32 v{dst}, v{dst}, v{regs[k]}, v{regs[k+1]}"); k += 2
            else: A(f"v_max_u32 v{dst}, v{dst}, v{regs[k]}"); k += 1
    def pollmask(tag, loads, regs):
        sl = {"HM": MSL, "H1": H1SL, "H2": H2SL, "HY": YSL}[tag]
        if TAGS:
            n_, sh_ = {"HM": (4, 8), "H1": (8, 0), "H2": (4, 12), "HY": (4, 24)}[tag]
            A(f"v_lshlrev_b32 v{T+1}, {32 - n_ - sh_}, v{vTAG}")
        A(f"s_mov_b32 s{sCNT}, {LIMIT}")
        A.label(f"L_{tag}")
        loads()
        A("s_waitcnt vmcnt(0)")
        if TAGS:
            tg, sh = {"HM": (regs[1::2], 8), "H1": (regs[0::2], 0), "H2": (regs, 12), "HY": (regs, 24)}[tag]
            A(f"v_alignbit_b32 v{T}, v{tg[0]}, v{tg[0]}, 1")
            for r in tg[1:]: A(f"v_alignbit_b32 v{T}, v{r}, v{T}, 1")
            A(f"v_xor_b32 v{T}, v{T}, v{T+1}"); A(f"v_cmp_le_u32 vcc, {hx(1 << (32 - len(tg)))}, v{T}"); A(f"s_cbranch_vccz L_{tag}_OK")
        else:
            if len(regs) > 8:
                h = len(regs) // 2
                maxchain(T, regs[:h]); maxchain(T+1, regs[h:]); A(f"v_max_u32 v{T}, v{T}, v{T+1}")
            else: maxchain(T, regs)
            A(f"v_cmp_eq_u32 vcc, -1, v{T}"); A(f"s_cbranch_vccz L_{tag}_OK")
        A("s_mov_b64 exec, vcc")
        if sl: A(f"s_sleep {sl}")
        A(f"s_sub_u32 s{sCNT}, s{sCNT}, 1"); A(f"s_cmp_lg_u32 s{sCNT}, 0"); A(f"s_cbranch_scc1 L_{tag}")
        A.label(f"L_{tag}_OK")
        A("s_mov_b64 exec, -1")
        if TAGS:
            for r in {"HM": regs[1::2], "H1": regs[0::2], "H2": regs, "HY": regs}[tag]: A(f"v_and_b32 v{r}, -2, v{r}")

    AA = 136; ML = 152; WN = 24
    A(f"v_mov_b32 v{vSP+1}, 1"); A(f"v_mov_b32 v{vSP+2}, {L_SPD}")
    if MLAT == 'last': ldswait("OW", L_CNTL, 4 if EFAST else 8, 1)
    elif MLAT == 'o5': ldswait("OW", L_CNTO, 5, 1, "ge")
    elif MLFIRST: ldswait("OW", L_CNTI, 8, 4)
    else: ldswait("OW", L_CNTO, 8, 1); stamp(6)
    pollmask("HM", lambda: [A(f"global_load_dwordx2 v[{ML+2*i}:{ML+2*i+1}], v{vMLa}, {ws} offset:{640*i} sc1") for i in range(4)], list(range(ML, ML+8)))
    m = [ML, ML+2, ML+4, ML+6]; l = [ML+1, ML+3, ML+5, ML+7]
    def aloads():
        for t in range(4): A(f"global_load_dwordx4 {rng(AA+4*t)}, v{vA}, {ws} offset:{64*t} {F1}")
    A(f"v_max3_f32 v{T}, v{m[0]}, v{m[1]}, v{m[2]}"); A(f"v_max_f32 v{T}, v{T}, v{m[3]}")
    A(f"v_mov_b32 v{T+1}, v{T}"); A(f"v_permlane16_swap_b32 v{T+1}, v{T}"); A(f"v_max_f32 v{T}, v{T+1}, v{T}")
    for i in range(4): A(f"v_sub_f32 v{m[i]}, v{m[i]}, v{T}")
    for i in range(4): A(f"v_exp_f32 v{m[i]}, v{m[i]}")
    A(f"v_mul_f32 v{T+2}, v{m[0]}, v{l[0]}")
    for i in range(1, 4): A(f"v_fmac_f32 v{T+2}, v{m[i]}, v{l[i]}")
    A(f"v_mov_b32 v{T+1}, v{T+2}"); A(f"v_permlane16_swap_b32 v{T+1}, v{T+2}"); A(f"v_add_f32 v{T+2}, v{T+1}, v{T+2}")
    A(f"v_rcp_f32 v{T+2}, v{T+2}")
    for i in range(4): A(f"v_mul_f32 v{WN+i}, v{m[i]}, v{T+2}")
    if MLFIRST or MLAT:
        ldswait("PW", L_PUBD, 1, 1); stamp(6)
        if H1DELAY: A(f"s_sleep {H1DELAY}")
    pollmask("H1", aloads, list(range(AA, AA+16)))
    stamp(7)
    def mf(t, n): return f"v_mfma_f32_16x16x32_bf16 {rng(4+4*n)}, {rng(AA+4*t)}, {rng(40+16*n+4*t)}, {'0' if t == 0 else rng(4+4*n)}"
    def epi(n): return [f"v_mul_f32 v{T+n}, v{WN}, v{4+4*n}"] + [f"v_fmac_f32 v{T+n}, v{WN+i}, v{4+4*n+i}" for i in range(1, 4)]
    def fin2(n): return [f"v_permlane16_swap_b32 v{T+n-1}, v{T+n}", f"v_add_f32 v{T+n}, v{T+n-1}, v{T+n}", (f"v_bfi_b32 v{T+n}, 1, v{vTB+n//2}, v{T+n}" if TAGS else f"v_min_u32 v{T+n}, -2, v{T+n}"),
                         f"global_store_dword v{vSP}, v{T+n}, {ws} offset:{128*(n//2)} {FS}"]
    def fin4(): return [f"v_mov_b32 v{T+5}, v{T+4}", None, None, f"v_permlane16_swap_b32 v{T+5}, v{T+4}", f"v_add_f32 v{T+4}, v{T+5}, v{T+4}", (f"v_bfi_b32 v{T+4}, 1, v{vTB+2}, v{T+4}" if TAGS else f"v_min_u32 v{T+4}, -2, v{T+4}")] + \
                       ([] if FULL else ["s_mov_b32 exec_lo, 0xff", "s_mov_b32 exec_hi, 0xff"]) + [f"global_store_dword v{vSP}, v{T+4}, {ws} offset:256 {FS}"] + ([] if FULL else ["s_mov_b64 exec, -1"])
    if H1W == 2:
        for t in range(4): A(mf(t, 0)); A(mf(t, 1))
        A(f"s_cmp_eq_u32 s{sW}, 3"); A("s_cbranch_scc1 L_H1B", quick=True)
        side = [None, None] + epi(0) + epi(1) + [None] + fin2(1)
        for t in range(4):
            A(mf(t, 4))
            for _ in range(4):
                if side:
                    x = side.pop(0)
                    if x: A(x)
        for x in side + epi(4) + fin4():
            if x: A(x)
        A("s_branch L_H1C")
        A.label("L_H1B", quick=True)
        A("s_nop 5")
        for x in epi(0) + epi(1) + fin2(1): A(x)
        A.label("L_H1C")
    elif REORD:
        for t in range(4): A(mf(t, 4)); A(mf(t, 0))
        side = [None, None] + epi(4) + fin4()
        for t in range(4):
            A(mf(t, 1))
            for _ in range(4):
                if side:
                    x = side.pop(0)
                    if x: A(x)
        for x in side:
            if x: A(x)
        side = epi(0) + [None] + epi(1) + [None] + fin2(1)
        for t in range(4):
            for n in (2, 3):
                A(mf(t, n))
                for _ in range(2):
                    if side:
                        x = side.pop(0)
                        if x: A(x)
        for x in side:
            if x: A(x)
        for x in epi(2) + epi(3) + fin2(3): A(x)
    else:
        for t in range(4):
            for n in range(5): A(mf(t, n))
        for x in epi(0) + epi(1) + fin2(1) + epi(2) + epi(3) + fin2(3) + epi(4) + fin4():
            if x: A(x)
    A(f"ds_write_b32 v{vSP+2}, v{vSP+1}")
    A("s_mov_b64 exec, -1")
    stamp(9)
    A("s_branch L_EXIT")

    A.label("L_HOP2"); A.comment("hop 2")
    A(f"s_cmp_ge_u32 s2, 144"); A("s_cbranch_scc1 L_EXIT")
    YY = 120
    if not YTAG: checkAB("G", T, T+1)
    sCH = sPASS
    addr_in2(vH2, vOA, sCH)
    A(f"v_add_u32 v{T}, {W_YP - W_SP}, v{vH2}")
    if YTAG: A(f"v_mov_b32 v{YY+6}, v{T}")
    else:
        for k in range(4): A(f"global_load_dword v{YY+k}, v{T}, {ws} offset:{SL*k} sc1")
    A(f"v_lshlrev_b32 v{vOA}, 1, v{vOA}"); A(f"s_lshl_b32 s{sT}, s{sCH}, 4"); A(f"v_add_u32 v{vOA}, s{sT}, v{vOA}")
    A(f"global_load_ushort v{vXo}, v{vOA}, s[{sX}:{sX+1}]")
    A(f"v_mov_b32 v{T+1}, 0")
    A(f"global_load_ushort v{YY+4}, v{T+1}, s[{sB2}:{sB2+1}]")
    if YTAG:
        ldswait("YW", L_CNTI, 8, 4)
        pollmask("HY", lambda: [A(f"global_load_dword v{YY+k}, v{YY+6}, {ws} offset:{SL*k} sc1") for k in range(4)], list(range(YY, YY+4)))
    A("s_waitcnt vmcnt(0)")
    red32(YY, YY+5)
    rnd1(YY); A(f"v_lshlrev_b32 v{YY+4}, 16, v{YY+4}"); A(f"v_add_f32 v{YY}, v{YY}, v{YY+4}"); rnd1(YY)
    A(f"v_mul_f32 v{YY+1}, {hx(f2u(-LOG2E))}, v{YY}"); A(f"v_exp_f32 v{YY+1}, v{YY+1}"); A(f"v_add_f32 v{YY+1}, 1.0, v{YY+1}"); A(f"v_rcp_f32 v{YY+1}, v{YY+1}")
    A(f"v_mul_f32 v{vG}, v{YY}, v{YY+1}"); rnd1(vG)
    A(f"v_lshlrev_b32 v{vXo}, 16, v{vXo}")
    SS = 112
    if H2WAIT == "sp": ldswait("OW2", L_SPD, 1, 1)
    else: ldswait("OW2", L_CNTO, 8, 1)
    if H2DELAY: A(f"s_sleep {H2DELAY}")
    pollmask("H2", lambda: [A(f"global_load_dword v{SS+k}, v{vH2}, {ws} offset:{SL*k} {F2}") for k in range(4)], list(range(SS, SS+4)))
    stamp(7)
    red32(SS, T)
    rnd1(SS); A(f"v_mul_f32 v{SS}, v{SS}, v{vG}"); rnd1(SS); A(f"v_add_f32 v{SS}, v{SS}, v{vXo}")
    A(f"v_cvt_pk_bf16_f32 v{SS}, v{SS}, v{SS}")
    A("s_mov_b64 exec, 0xff")
    A(f"global_store_short v{vOA}, v{SS}, s[{sOUT}:{sOUT+1}]")
    A("s_mov_b64 exec, -1")
    A.label("L_EXIT")
    if ECHO:
        stamp(11); A("s_waitcnt lgkmcnt(0)")
        A(f"s_cmp_lg_u32 s2, 0"); A("s_cbranch_scc1 L_END")
        A(f"s_cmp_lg_u32 s{sW}, {ECHO[0]}"); A("s_cbranch_scc1 L_END")
        A(f"s_sub_u32 s{sT}, s{SB+2*ECHO[1]}, s{SB}"); A(f"s_lshl_b32 s{sT}, s{sT}, 2"); A(f"s_add_u32 s{sT}, s{sT}, 4000"); A(f"s_add_u32 s{sT}, s{sT}, s{SB}")
        A.label("L_ECHO")
        A(f"s_memrealtime s[{sR}:{sR+1}]"); A("s_waitcnt lgkmcnt(0)"); A(f"s_sub_u32 s{sT2}, s{sR}, s{sT}"); A(f"s_cmp_lt_i32 s{sT2}, 0"); A("s_cbranch_scc1 L_ECHO")
    elif STAMP:
        stamp(11)
        A("s_waitcnt lgkmcnt(0) vmcnt(0)")
        A(f"s_lshl_b32 s{sT}, s2, 3"); A(f"s_add_u32 s{sT}, s{sT}, s{sW}"); A(f"s_mul_i32 s{sT}, s{sT}, {NST*8}"); A(f"s_add_u32 s{sT}, s{sT}, {W_ST}")
        A(f"v_mov_b32 v3, s{sT}")
        for k in range(2*NST): A(f"v_mov_b32 v{40+k}, s{SB+k}")
        A("s_mov_b64 exec, 1")
        for q in range(NST // 2): A(f"global_store_dwordx4 v3, {rng(40+4*q)}, {ws} offset:{16*q}")
    A.label("L_END")
    A("s_endpgm")
    svc = A.lines[MARK_SERVICE:MARK_STREAM2]
    assert A.lines[MARK_SERVICE-1].strip() == "s_branch L_STREAM2"
    A.lines = A.lines[:MARK_SERVICE-1] + A.lines[MARK_STREAM2:] + svc + ["    s_branch L_STREAM2", "L_CODE_END:"]
    A.raw(".set CODE_KB, (L_CODE_END - L_PC0) >> 10" if PF else "")
    A.raw("    s_endpgm"); A.raw(".fill 260, 4, 0xbf800000")
    A.raw('.section .rodata,"a"'); A.raw(".p2align 6"); A.raw(f".amdhsa_kernel {KN}_kernel")
    A.raw("  .amdhsa_next_free_vgpr 256"); A.raw("  .amdhsa_next_free_sgpr 102"); A.raw("  .amdhsa_accum_offset 168")
    A.raw("  .amdhsa_group_segment_fixed_size 0"); A.raw("  .amdhsa_kernarg_size 104"); A.raw("  .amdhsa_user_sgpr_count 2")
    A.raw("  .amdhsa_user_sgpr_kernarg_segment_ptr 1"); A.raw("  .amdhsa_system_sgpr_workgroup_id_x 1")
    A.raw("  .amdhsa_float_denorm_mode_32 3")
    A.raw(".end_amdhsa_kernel")
    return A.text()

if __name__ == "__main__":
    out = sys.argv[1]
    kw = eval("dict(" + (sys.argv[2] if len(sys.argv) > 2 else "") + ")")
    open(out, "w").write(gen(**kw))
```

```python
import sys, struct, math
sys.path.insert(0, __file__.rsplit("/", 1)[0] if "/" in __file__ else ".")
from asmlib import Asm
KN = "recurrent_scan__gqa_block_cached__mixer_token_mlp__decode"
def f2u(x): return struct.unpack("<I", struct.pack("<f", x))[0]
def hx(x): return f"0x{x & 0xffffffff:08x}"
LOG2E = 1.4426950408889634
SCALE = 128 ** -0.5
L_MISC = 0
L_QFLAG = 0; L_CNTB = 4; L_CNTI = 8; L_CNTO = 12; L_CNTW = 16; L_SPD = 20; L_PUBD = 24; L_CNTL = 28; L_AOK = 32; L_SNOK = 36
L_MLW = 64; L_FW = 192; L_Q = 256; L_TAG = 768; L_OW = 1024; L_XL = L_OW + 8192; L_WO = L_XL + 4 * 2304; L_WQ = L_WO + 128 * 144 + 64; L_END = L_WQ + 18432
W_QP = 0; W_REC = 0x40000; W_SP = 0x70000; W_YP = 0xA8000; W_PC = 0xE0000; W_ST = 128 << 20
LIMIT = 1 << 15
OOB = 0x200000

def gen(MAP="kvh", CMAP=False, NT=True, ROUND=True, STAMP=False, NPRE=36, NEARLY=54, SCH_QK=(2,)*8, SCH_SM=(1,)*8, SCH_PV={3:1,7:1,11:1,15:1},
        NSIG=8, ECHO=None, H2WAIT="sp", H2DELAY=0, WONT=False, EPRIO=1, PF=0, NFIRST=8, EXTRA=0, WOAT=20, JJ=False, ROT=2, SKIP='', W0INL=False, NS0=False, DELAY1=False, THR=0, MLFIRST=False, H1DELAY=0, MSL=0, H1SL=0, H2SL=0, FULL=True, HS=227, PSL=2, F1='sc1', F2='sc1', FS='sc1', C2MAP=True, REORD=True, QBF=False, SKW=0, EFAST=True, H1W=1, MLAT='last', P0=3, NS0P=None, TAGS=True, RNDT=False, QCOL=True, NRG=4, YTAG=True, YAT='qk', YSL=32, SNLATE=True, SNW5=True, GFLAG=False, SK2=True, FAST=True, YLOC=True, QPL=True, FORCE2=False, JP=0, XL_=0, WQF='nt'):
    SL = 768 if FULL else 640; BO = 384 if FULL else 288
    GL = 8; BAR2 = False; GATE_AT = 99; NWORK = 4
    JPERM = {0: lambda i: i, 1: lambda i: ((i & 3) << 3) | (i >> 2), 2: lambda i: ((i & 1) << 1) | ((i >> 1) & 1) | (i & 28)}[JP]
    JOFF = {0: lambda i: JPERM(i) << 12, 1: lambda i: ((i & 3) << 10) | ((i >> 2) << 14), 2: lambda i: ((i >> 3) << 10) | ((i & 7) << 14), 3: lambda i: ((i & 1) << 11) | ((i >> 1) << 13)}[XL_]
    WSH = {0: 10, 1: 8, 2: 8, 3: 9}[XL_]
    A = Asm()
    nt = " nt" if NT else ""
    NST = 12; SB = 76
    POOL = GL < 8
    UPW = 8 - GL if POOL else 0
    NUNIT = 32 * UPW
    if ECHO: STAMP = True
    A.raw(f"; @launch grid=(256,1,1) block=(512,1,1) lds={(L_END + 255) // 256 * 256}")
    if STAMP and not ECHO: A.raw(f"; STAMPS nrec=2048 n={NST}")
    for ln in """
; out = x + attn(LN(x)) * silu(mixer(LN(x))) for B=2, D=576, Hq=32, Hkv=16, Sk=8192, Dh=128, F=4608 -- one launch, 256 workgroups x 8 waves.
; Workgroup = (kv head g, batch b, key split sp): 1024 keys of K and V, streamed straight into registers (nt loads).
;   waves 1-4 start streaming at once; wave 0 first computes a 144 x 64 slice of q = LN(x) @ wq for head pair g, waves 5-7 first
;   compute a 144 x 144 slice of the token-mixing MLP; then they stream too.
;   QK: v_dot2 + DPP reduce; softmax with the true per-wave max; PV: one 16x16x32 MFMA per 4 keys (B = diag-expanded p).
; Hand-offs between workgroups (all payload stored and loaded sc1):
;   q slices: counter in d_debug (zero at launch) -> the last arriver bumps the members' flag words -> members sum the 4 slices.
;   (m,l), o partials, y partials and s = o @ wo partials: slots in d_ws. Before it bumps the counter a workgroup reads the low bit
;   of every slot word it will write or wait for; writers store the opposite bit, readers poll until every bit has flipped and
;   then clear it, so what d_ws held on entry only tells new words from old ones.
; kernarg: x 0, K 8, V 16, wq 24, wo 32, B_x 40 (unused by the reference), w1 48, b1 56, w2 64, b2 72, out 80, debug 88, ws 96
""".strip().splitlines(): A.raw(ln)
    A.raw('.amdgcn_target "amdgcn-amd-amdhsa--gfx950"')
    A.raw(".text"); A.raw(f".globl {KN}_kernel"); A.raw(".p2align 8"); A.raw(f".type {KN}_kernel,@function"); A.raw(f"{KN}_kernel:")
    def stamp(k):
        if STAMP: A(f"s_memrealtime s[{SB+2*k}:{SB+1+2*k}]")
    sX, sK, sV, sWQ, sWO, sW1, sB1, sW2, sB2, sOUT, sDBG, sWS = 4, 6, 8, 10, 12, 16, 18, 20, 22, 24, 26, 28
    KS, VS = 32, 36
    sW, sG, sB, sSP, sJ, sLATE, sCG, sP, sBASE, sT, sT2, sT3, sCNT, sPASS, sC1, sREC = range(40, 56)
    sA = 56; sPC = 58; sBASE2 = 59; sR = 60; sU = 64; sNX = 66; sBIAS = 67; sQP = 68; sRG = 69; sSPB = 70; sX8 = 71; sB8 = 72; sF0 = 73; sFAST = 74; sXC = 75; sYB = 30; sYP = 31; sYC = 3
    vL, vOFF = 1, 2
    D = 4; QA = 8; QB = 12; MK = 16; B0 = 20; B1 = 24; T = 28; vM = 36; vLs = 37; vG = 38; vXo = 39
    KB = 40
    def ks(i): return KB + 4 * i
    def rng(r, n=4): return f"v[{r}:{r+n-1}]"
    dm = " row_mask:0xf bank_mask:0xf"
    ws = f"s[{sWS}:{sWS+1}]"
    stamp(0)
    A("s_load_dwordx16 s[4:19], s[0:1], 0"); A("s_load_dwordx8 s[20:27], s[0:1], 64"); A("s_load_dwordx2 s[28:29], s[0:1], 96")
    A("v_lshrrev_b32 v3, 6, v0"); A(f"v_and_b32 v{vL}, 63, v0")
    A("s_cmp_ge_u32 s2, 256"); A("s_cbranch_scc1 L_END")
    A(f"v_readfirstlane_b32 s{sW}, v3"); A(f"v_lshlrev_b32 v{vOFF}, 4, v{vL}")
    if MAP == "kvh":
        A(f"s_and_b32 s{sG}, s2, 7"); A(f"s_lshr_b32 s{sT}, s2, 7"); A(f"s_lshl_b32 s{sT}, s{sT}, 3"); A(f"s_or_b32 s{sG}, s{sG}, s{sT}")
        A(f"s_bfe_u32 s{sJ}, s2, 0x40003")
    elif MAP == "pair":
        A(f"s_bfe_u32 s{sG}, s2, 0x20001"); A(f"s_lshr_b32 s{sT}, s2, 6"); A(f"s_lshl_b32 s{sT}, s{sT}, 2"); A(f"s_or_b32 s{sG}, s{sG}, s{sT}")
        A(f"s_bfe_u32 s{sJ}, s2, 0x30003"); A(f"s_lshl_b32 s{sJ}, s{sJ}, 1"); A(f"s_and_b32 s{sT}, s2, 1"); A(f"s_or_b32 s{sJ}, s{sJ}, s{sT}")
    else:
        A(f"s_lshr_b32 s{sG}, s2, 4"); A(f"s_and_b32 s{sJ}, s2, 15")
    A(f"s_and_b32 s{sSP}, s{sJ}, 7"); A(f"s_lshr_b32 s{sB}, s{sJ}, 3")
    A(f"s_and_b32 s{sT}, s{sW}, 3"); A(f"s_lshl_b32 s{sBASE}, s{sT}, {12 if JJ else WSH}")
    A(f"s_add_u32 s{sT}, s{sW}, 7"); A(f"s_bfe_u32 s{sLATE}, s{sT}, 0x10002"); A(f"s_lshl_b32 s{sT}, s{sLATE}, 17"); A(f"s_or_b32 s{sBASE}, s{sBASE}, s{sT}")
    A(f"s_lshl_b32 s{sT}, s{sSP}, 18"); A(f"s_or_b32 s{sBASE}, s{sBASE}, s{sT}")
    if ROT == 2: A(f"s_bfe_u32 s{sT}, s2, 0x30003"); A(f"s_lshl_b32 s{sT}, s{sT}, 12"); A(f"s_or_b32 s{sBASE}, s{sBASE}, s{sT}")
    elif ROT == 3: A(f"s_lshr_b32 s{sT}, s2, 3"); A(f"s_lshl_b32 s{sT}, s{sT}, 12"); A(f"s_or_b32 s{sBASE}, s{sBASE}, s{sT}")
    elif ROT == 4: A(f"s_and_b32 s{sT}, s2, 7"); A(f"s_lshl_b32 s{sT}, s{sT}, 12"); A(f"s_or_b32 s{sBASE}, s{sBASE}, s{sT}")
    elif ROT == 5: A(f"s_and_b32 s{sT}, s2, 31"); A(f"s_lshl_b32 s{sT}, s{sT}, 12"); A(f"s_or_b32 s{sBASE}, s{sBASE}, s{sT}")
    elif ROT:
        A(f"s_or_b32 s{sT}, s2, 1"); A(f"s_mul_i32 s{sT}, s{sT}, 0x9E3779B1"); A(f"s_lshr_b32 s{sT}, s{sT}, {29 if JJ else 27}"); A(f"s_lshl_b32 s{sT}, s{sT}, {14 if JJ else 12}"); A(f"s_or_b32 s{sBASE}, s{sBASE}, s{sT}")
    A(f"s_lshl_b32 s{sT}, s{sB}, 4"); A(f"s_or_b32 s{sT}, s{sT}, s{sG}"); A(f"s_lshl_b32 s{sT}, s{sT}, 21")
    A(f"s_and_b32 s{sT2}, s{sJ}, 1"); A(f"s_lshr_b32 s{sRG}, s{sJ}, 1")
    A(f"s_lshl_b32 s{sQP}, s{sG}, 1"); A(f"s_or_b32 s{sQP}, s{sQP}, s{sT2}")
    A(f"s_mov_b32 s{KS+2}, {OOB}"); A(f"s_mov_b32 s{KS+3}, 0x20000"); A(f"s_mov_b32 s{VS+2}, {OOB}"); A(f"s_mov_b32 s{VS+3}, 0x20000")
    vSO = vOFF
    if XL_:
        vSO = vXo
        sh = {1: 12, 2: 12, 3: 9}[XL_]
        A(f"v_lshrrev_b32 v{vSO}, 4, v{vL}"); A(f"v_and_b32 v3, 15, v{vL}")
        if XL_ == 3:
            A(f"v_and_b32 v{T}, 1, v{vSO}"); A(f"v_lshrrev_b32 v{vSO}, 1, v{vSO}"); A(f"v_lshlrev_b32 v{vSO}, 12, v{vSO}"); A(f"v_lshl_add_u32 v{vSO}, v{T}, 8, v{vSO}")
        else: A(f"v_lshlrev_b32 v{vSO}, 12, v{vSO}")
        A(f"v_lshl_add_u32 v{vSO}, v3, 4, v{vSO}")
    if STAMP:
        for k in range(1, NST): A(f"s_mov_b64 s[{SB+2*k}:{SB+1+2*k}], 0")
    A("s_waitcnt lgkmcnt(0)")
    stamp(1)
    A(f"s_add_u32 s{KS}, s{sK}, s{sT}"); A(f"s_addc_u32 s{KS+1}, s{sK+1}, 0")
    A(f"s_add_u32 s{VS}, s{sV}, s{sT}"); A(f"s_addc_u32 s{VS+1}, s{sV+1}, 0")
    X = 40; E = 50; vXO = 3; WQ = 96
    def xloads():
        A(f"v_lshrrev_b32 v{T}, 5, v{vL}"); A(f"v_mul_u32_u24 v{T}, 1152, v{T}")
        A(f"v_and_b32 v{vXO}, 31, v{vL}"); A(f"v_lshl_add_u32 v{vXO}, v{vXO}, 2, v{T}")
        for k in range(9): A(f"global_load_dword v{X+k}, v{vXO}, s[{sX}:{sX+1}] offset:{128*k}")
    def wqloads():
        A(f"s_mov_b32 s{sR}, s{sWQ}"); A(f"s_mov_b32 s{sR+1}, s{sWQ+1}"); A(f"s_mov_b32 s{sR+2}, {576*8192}"); A(f"s_mov_b32 s{sR+3}, 0x20000")
        if QCOL:
            lc = {4: 3, 2: 2}[NRG]; lq = {4: 2, 2: 3}[NRG]
            A(f"v_lshrrev_b32 v{T+4}, {lc}, v{vL}"); A(f"v_lshlrev_b32 v{T+4}, 13, v{T+4}"); A(f"v_and_b32 v{T+1}, {(1<<lc)-1}, v{vL}"); A(f"v_lshl_add_u32 v{T+4}, v{T+1}, 4, v{T+4}")
            A(f"s_lshr_b32 s{sT}, s{sJ}, {lq}"); A(f"s_mul_i32 s{sT}, s{sT}, {576//NRG*8192}"); A(f"s_lshl_b32 s{sT2}, s{sG}, 9"); A(f"s_add_u32 s{sT}, s{sT}, s{sT2}")
            A(f"s_and_b32 s{sT2}, s{sJ}, {(1<<lq)-1}"); A(f"s_lshl_b32 s{sT2}, s{sT2}, {4+lc}"); A(f"s_add_u32 s{sT}, s{sT}, s{sT2}")
            for i in range(18):
                A(f"buffer_load_dwordx4 {rng(WQ+4*i)}, v{T+4}, s[{sR}:{sR+3}], s{sT} offen {WQF}")
                if i < 17: A(f"s_add_u32 s{sT}, s{sT}, {(64>>lc)*8192}")
            return
        A(f"v_lshrrev_b32 v{T+4}, 4, v{vL}"); A(f"v_lshlrev_b32 v{T+4}, 13, v{T+4}"); A(f"v_and_b32 v{T+1}, 15, v{vL}"); A(f"v_lshl_add_u32 v{T+4}, v{T+1}, 4, v{T+4}")
        A(f"s_mul_i32 s{sT}, s{sRG}, {72*8192}"); A(f"s_lshl_b32 s{sT2}, s{sQP}, 8"); A(f"s_add_u32 s{sT}, s{sT}, s{sT2}")
        for i in range(18):
            if 'W' in SKIP: A(f"buffer_load_dwordx4 {rng(WQ+4*i)}, v{vOFF}, s[{sR}:{sR+3}], 0 offen")
            else: A(f"buffer_load_dwordx4 {rng(WQ+4*i)}, v{T+4}, s[{sR}:{sR+3}], s{sT} offen{nt}")
            if i < 17: A(f"s_add_u32 s{sT}, s{sT}, 32768")
    if W0INL and 'h' not in SKIP:
        A(f"s_cmp_lg_u32 s{sW}, 0"); A("s_cbranch_scc1 L_NOTW0")
        A("s_setprio 3")
        xloads(); wqloads()
        A("s_branch L_W0B")
        A.label("L_NOTW0")
    A(f"s_cmp_eq_u32 s{sLATE}, 1"); A("s_cbranch_scc1 L_SERVICE")
    free = [0, 1, 2, 4, 5, 6, 8, 9, 10, 12]
    def vreg(i): return f"a[{4*i}:{4*i+3}]" if i < 22 else rng(ks(free[i-22]))
    cur = [None]
    def issue(n):
        i = n % 32
        if THR and WOAT <= n < NEARLY: A(f"s_waitcnt vmcnt({THR-1})")
        dst = rng(ks(i)) if n < 32 else vreg(i)
        srd = f"s[{KS}:{KS+3}]" if n < 32 else f"s[{VS}:{VS+3}]"
        if JJ:
            if i < 4: A(f"buffer_load_dwordx4 {dst}, v{vOFF}, {srd}, s{sBASE} offen offset:{(i&3)<<10}{nt}"); return
            if cur[0] != i >> 2: A(f"s_xor_b32 s{sT}, s{sBASE}, {(i >> 2) << 14}"); cur[0] = i >> 2
            A(f"buffer_load_dwordx4 {dst}, v{vOFF}, {srd}, s{sT} offen offset:{(i&3)<<10}{nt}")
        else:
            A(f"s_xor_b32 s{sT}, s{sBASE2 if (SKW and i >= 28) else sBASE}, {JOFF(i)}"); A(f"buffer_load_dwordx4 {dst}, v{vSO}, {srd}, s{sT} offen{nt}")
    def common():
        if CMAP:
            A(f"s_and_b32 s{sP}, s2, 7"); A(f"s_lshr_b32 s{sT2}, s2, 6"); A(f"s_lshl_b32 s{sT2}, s{sT2}, 3"); A(f"s_or_b32 s{sP}, s{sP}, s{sT2}")
            A(f"s_bfe_u32 s{sCG}, s2, 0x30003")
        else:
            A(f"s_mov_b32 s{sP}, s{sQP}"); A(f"s_mov_b32 s{sCG}, s{sRG}")
        A(f"s_lshl_b32 s{sREC}, s{sG}, 4"); A(f"s_add_u32 s{sREC}, s{sREC}, s{sJ}"); A(f"s_mul_i32 s{sREC}, s{sREC}, 640"); A(f"s_add_u32 s{sREC}, s{sREC}, {W_REC}")
        A(f"s_lshl_b32 s{sSPB}, s{sCG}, 5"); A(f"s_add_u32 s{sSPB}, s{sSPB}, s{sP}"); A(f"s_mul_i32 s{sSPB}, s{sSPB}, {SL}")
        if YLOC: A(f"s_lshr_b32 s{sYP}, s2, 3"); A(f"s_and_b32 s{sYC}, s2, 7")
        else: A(f"s_mov_b32 s{sYP}, s{sP}"); A(f"s_mov_b32 s{sYC}, s{sCG}")
        A(f"s_lshl_b32 s{sYB}, s{sYC}, 5"); A(f"s_add_u32 s{sYB}, s{sYB}, s{sYP}"); A(f"s_mul_i32 s{sYB}, s{sYB}, {SL}")
        A(f"v_and_b32 v{MK+3}, 1, v{vL}"); A(f"v_lshlrev_b32 v{MK+3}, 4, v{MK+3}"); A(f"v_mov_b32 v{MK+2}, 0xffff"); A(f"v_lshlrev_b32 v{MK+3}, v{MK+3}, v{MK+2}")
        A(f"v_bfe_u32 v{QA}, v{vL}, 1, 2")
        for k in range(4):
            A(f"v_cmp_eq_u32 vcc, {k}, v{QA}"); A(f"v_cndmask_b32 v{MK+k}, 0, v{MK+3}, vcc")
        A(f"s_mov_b32 s{sC1}, {hx(f2u(LOG2E if ROUND else LOG2E * SCALE))}")
        if SKW:
            A(f"s_and_b32 s{sT2}, s{sW}, 3"); A(f"s_lshr_b32 s{sT2}, {SKW}, s{sT2}"); A(f"s_and_b32 s{sT2}, s{sT2}, 1")
            A(f"s_and_b32 s{sT3}, s{sT2}, s{sSP}"); A(f"s_and_b32 s{sT3}, s{sT3}, s{sLATE}"); A(f"s_cmp_eq_u32 s{sT3}, 1")
            A(f"s_cselect_b32 s{sBASE2}, {OOB}, s{sBASE}"); A(f"s_cselect_b32 s{sBIAS}, 0xff800000, 0")
            A(f"s_or_b32 s{sT3}, s{sSP}, s{sLATE}"); A(f"s_andn2_b32 s{sX8}, s{sT2}, s{sT3}"); A(f"s_and_b32 s{sX8}, s{sX8}, 1")
            A(f"s_or_b32 s{sB8}, s{sBASE}, 0x60000")
    if DELAY1: common()
    for n in range(NFIRST):
        issue(n)
        if n == 0: stamp(4)
    stamp(5)
    if PF:
        A(f"s_cmp_lg_u32 s{sW}, 4"); A("s_cbranch_scc1 L_NOPF")
        A(f"s_getpc_b64 s[{sA}:{sA+1}]")
        A.raw("L_PC0:")
        A(f"s_lshr_b32 s{sT2}, s2, 3"); A(f"s_mul_i32 s{sT2}, s{sT2}, {PF}"); A(f"s_and_b32 s{sT2}, s{sT2}, 31")
        for k in range(PF):
            A(f"s_add_u32 s{sT3}, s{sT2}, {k}"); A(f"s_min_u32 s{sT3}, s{sT3}, CODE_KB"); A(f"s_lshl_b32 s{sT3}, s{sT3}, 10"); A(f"v_add_u32 v{T}, s{sT3}, v{vOFF}")
            A(f"global_load_dwordx4 a[84:87], v{T}, s[{sA}:{sA+1}]")
        A.label("L_NOPF")
    if not DELAY1: common()
    A(f"v_mov_b32 v{vG}, 0")
    A(f"s_cmp_lg_u32 s{sW}, 1"); A("s_cbranch_scc1 L_NOINIT")
    A(f"v_lshlrev_b32 v3, 2, v{vL}")
    A("s_mov_b64 exec, 0xffff"); A(f"ds_write_b32 v3, v{vG} offset:{L_MISC}"); A("s_mov_b64 exec, -1")
    A("s_waitcnt lgkmcnt(0)")
    A.label("L_NOINIT")
    A("s_barrier")
    cur[0] = None
    for n in range(NFIRST, WOAT): issue(n)
    A(f"s_cmp_eq_u32 s{sW}, 4"); A("s_cbranch_scc1 L_NOWO")
    if 'o' in SKIP: A("s_branch L_NOWO")
    A(f"s_mov_b32 s{sWO+2}, {4096*1152}"); A(f"s_mov_b32 s{sWO+3}, 0x20000")
    A(f"s_sub_u32 s{sT3}, s{sW}, 1"); A(f"s_mul_i32 s{sT3}, s{sT3}, 384"); A(f"v_add_u32 v{vG}, s{sT3}, v{vL}")
    A(f"s_mul_i32 s{sT3}, s{sP}, {128*1152}"); A(f"s_mul_i32 s{sT2}, s{sCG}, 144"); A(f"s_add_u32 s{sT3}, s{sT3}, s{sT2}")
    A(f"s_mov_b32 s{sT2}, 7282")
    for k in range(6):
        A(f"v_add_u32 v{T}, {64*k}, v{vG}"); A(f"v_mul_u32_u24 v{T+1}, s{sT2}, v{T}"); A(f"v_lshrrev_b32 v{T+1}, 16, v{T+1}")
        A(f"v_mul_u32_u24 v{T+1}, {1152-144}, v{T+1}"); A(f"v_lshl_add_u32 v{T+2}, v{T}, 4, v{T+1}")
        A(f"buffer_load_dwordx4 a[{60+4*k}:{63+4*k}], v{T+2}, s[{sWO}:{sWO+3}], s{sT3} offen{nt if WONT else ''}")
    A(f"v_lshlrev_b32 v{vG}, 4, v{vG}")
    A.label("L_NOWO")
    A("s_branch L_STREAM2")
    MARK_SERVICE = len(A.lines)

    def xrow(v, t, op):
        A(f"v_mov_b32 v{t}, v{v}"); A(f"v_permlane16_swap_b32 v{t}, v{v}"); A(f"{op} v{v}, v{t}, v{v}")
        A(f"v_mov_b32 v{t}, v{v}"); A(f"v_permlane32_swap_b32 v{t}, v{v}"); A(f"{op} v{v}, v{t}, v{v}")
    def rnd1(v):
        A(f"v_cvt_pk_bf16_f32 v{v}, v{v}, v{v}"); A(f"v_lshlrev_b32 v{v}, 16, v{v}")
    def ldswait(tag, addr, val, sleep=2, cmp="eq"):
        A(f"v_mov_b32 v{T+3}, {addr}"); A(f"s_mov_b32 s{sCNT}, {LIMIT*4}")
        A.label(f"L_{tag}")
        A(f"ds_read_b32 v{T}, v{T+3}"); A("s_waitcnt lgkmcnt(0)"); A(f"v_readfirstlane_b32 s{sT2}, v{T}")
        A(f"s_cmp_{cmp}_u32 s{sT2}, {val}"); A(f"s_cbranch_scc1 L_{tag}_OK", quick=True)
        A(f"s_sleep {sleep}"); A(f"s_sub_u32 s{sCNT}, s{sCNT}, 1"); A(f"s_cmp_lg_u32 s{sCNT}, 0"); A(f"s_cbranch_scc1 L_{tag}")
        A.label(f"L_{tag}_OK")
    def ldsinc(addr):
        A(f"v_mov_b32 v{T+6}, 1"); A(f"v_mov_b32 v{T+7}, {addr}")
        A("s_mov_b64 exec, 1"); A(f"ds_add_u32 v{T+7}, v{T+6}"); A("s_mov_b64 exec, -1")

    def addr_o(v, t):
        A(f"v_bfe_u32 v{t}, v{vL}, 3, 1"); A(f"v_lshlrev_b32 v{v}, 8, v{t}"); A(f"v_lshrrev_b32 v{t}, 4, v{vL}"); A(f"v_lshl_add_u32 v{v}, v{t}, 6, v{v}")
        A(f"v_and_b32 v{t}, 7, v{vL}"); A(f"v_lshl_add_u32 v{v}, v{t}, 3, v{v}"); A(f"v_add_u32 v{v}, s{sREC}, v{v}")
    def addr_ml(v):
        A(f"v_bfe_u32 v{v}, v{vL}, 3, 1"); A(f"v_lshlrev_b32 v{v}, 3, v{v}"); A(f"v_add_u32 v{v}, s{sREC}, v{v}")
    def addr_sp(v, t):
        A(f"v_lshrrev_b32 v{v}, 5, v{vL}"); A(f"v_mul_u32_u24 v{v}, {BO}, v{v}"); A(f"v_and_b32 v{t}, 31, v{vL}"); A(f"v_lshl_add_u32 v{v}, v{t}, 2, v{v}")
        A(f"s_add_u32 s{sT}, s{sSPB}, {W_SP}"); A(f"v_add_u32 v{v}, s{sT}, v{v}")
    def addr_in1(va, vm, t):
        A(f"s_lshr_b32 s{sT}, s{sP}, 1"); A(f"s_mul_i32 s{sT}, s{sT}, {16*640}"); A(f"s_add_u32 s{sT}, s{sT}, {W_REC}"); A(f"s_and_b32 s{sT2}, s{sP}, 1")
        A(f"s_lshl_b32 s{sT3}, s{sT2}, 8"); A(f"s_add_u32 s{sT3}, s{sT3}, s{sT}")
        A(f"v_and_b32 v{t}, 15, v{vL}"); A(f"v_mul_u32_u24 v{va}, 640, v{t}"); A(f"v_lshrrev_b32 v{t}, 4, v{vL}"); A(f"v_lshl_add_u32 v{va}, v{t}, 4, v{va}"); A(f"v_add_u32 v{va}, s{sT3}, v{va}")
        A(f"s_lshl_b32 s{sT3}, s{sT2}, 3"); A(f"s_add_u32 s{sT3}, s{sT3}, s{sT}"); A(f"s_add_u32 s{sT3}, s{sT3}, 512")
        A(f"v_mul_u32_u24 v{vm}, 2560, v{t}"); A(f"v_add_u32 v{vm}, s{sT3}, v{vm}")
    def addr_in2(v, t, sch):
        A(f"s_lshr_b32 s{sT}, s2, 3"); A(f"s_min_u32 s{sT}, s{sT}, 17"); A(f"s_and_b32 s{sT2}, s2, 7"); A(f"s_cmp_ge_u32 s{sT}, 9")
        A(f"s_cselect_b32 s{sT3}, {BO - 288}, 0"); A(f"s_cselect_b32 s{sch}, 63, 0")
        A(f"s_add_u32 s{sch}, s{sch}, s{sT}"); A(f"s_mul_i32 s{sCNT}, s{sT2}, 9"); A(f"s_add_u32 s{sch}, s{sch}, s{sCNT}")
        A(f"s_lshl_b32 s{sT}, s{sT}, 5"); A(f"s_add_u32 s{sT3}, s{sT3}, s{sT}"); A(f"s_mul_i32 s{sT2}, s{sT2}, {32*SL}"); A(f"s_add_u32 s{sT3}, s{sT3}, s{sT2}")
        A(f"s_add_u32 s{sT3}, s{sT3}, {W_SP}")
        A(f"v_lshrrev_b32 v{v}, 3, v{vL}"); A(f"v_mul_u32_u24 v{v}, {4*SL}, v{v}"); A(f"v_and_b32 v{t}, 7, v{vL}"); A(f"v_lshl_add_u32 v{v}, v{t}, 2, v{v}")
        A(f"v_add_u32 v{v}, s{sT3}, v{v}")
    def addr_y(v, t, t2, ci0):
        A(f"v_and_b32 v{t}, 7, v{vL}"); A(f"v_min_u32 v{t}, 5, v{t}"); A(f"v_add_u32 v{t}, {ci0}, v{t}")
        A(f"v_cmp_le_u32 vcc, 9, v{t}"); A(f"v_cndmask_b32 v{t2}, 0, 3, vcc"); A(f"v_add_u32 v{t}, v{t}, v{t2}")
        A(f"v_lshlrev_b32 v{v}, 5, v{t}"); A(f"v_lshrrev_b32 v{t}, 3, v{vL}"); A(f"v_lshl_add_u32 v{v}, v{t}, 2, v{v}")
        A(f"s_add_u32 s{sT2}, s{sYB}, {W_YP}"); A(f"v_add_u32 v{v}, s{sT2}, v{v}")
    vTAG = 0; vY = 3
    A.label("L_SERVICE"); A.comment("waves 0,5,6,7: side jobs before streaming")
    A(f"s_cmp_lg_u32 s{sW}, 0"); A("s_cbranch_scc1 L_Y_PRE")
    if 'h' in SKIP:
        common(); A("s_barrier")
        if 'H' in SKIP:
            h = HS
            while h > 0: A(f"s_sleep {min(h,127)}"); h -= 127
        A(f"v_mov_b32 v{T+2}, 1"); A(f"v_mov_b32 v{T+3}, {L_QFLAG}"); A(f"ds_write_b32 v{T+3}, v{T+2}"); A("s_branch L_STREAM")
    A(f"s_setprio {P0}")
    xloads(); wqloads()
    A.label("L_W0B")
    common()
    A("s_barrier")
    SN = 100 if SNW5 else (120 if SNLATE else 68)
    MX = list(range(128, 140)) if SNW5 else [QB, QB+1, QA, QA+1, QA+2, QA+3, QB+2, QB+3, vM, vM+1, vM+2, vM+3]
    NSNAP = 24 if YTAG else 17
    NEXTRA = (0 if (SNLATE or SNW5) else NSNAP) if TAGS else 2
    def snapshot():
        if 'N' in SKIP: return
        addr_in1(T, T+1, T+2)
        for t in range(4): A(f"global_load_dwordx4 {rng(SN+4*t)}, v{T}, {ws} offset:{64*t} sc1")
        for i in range(4): A(f"global_load_dwordx2 v[{SN+16+2*i}:{SN+17+2*i}], v{T+1}, {ws} offset:{640*i} sc1")
        if SK2: A("s_cmp_ge_u32 s2, 144"); A("s_cbranch_scc1 L_NOIN2")
        addr_in2(T, T+2, sPASS)
        for k in range(4): A(f"global_load_dword v{SN+24+k}, v{T}, {ws} offset:{SL*k} sc1")
        if YTAG:
            A(f"v_add_u32 v{T}, {W_YP - W_SP}, v{T}")
            for k in range(4): A(f"global_load_dword v{MX[8+k]}, v{T}, {ws} offset:{SL*k} sc1")
            if SK2: A.label("L_NOIN2")
            for k in range(3):
                addr_y(T, T+2, T+3, 6*k); A(f"global_load_dword v{MX[5+k]}, v{T}, {ws} sc1")
        addr_o(T, T+2); A(f"global_load_dword v{MX[0]}, v{T}, {ws} sc1")
        addr_ml(T); A(f"global_load_dword v{MX[1]}, v{T}, {ws} offset:516 sc1")
        addr_sp(T, T+2)
        for k in range(3): A(f"global_load_dword v{MX[2+k]}, v{T}, {ws} offset:{128*k} sc1")
    if TAGS:
        if GFLAG: A(f"s_lshl_b32 s{sPC}, s{sG}, 7"); A(f"s_add_u32 s{sPC}, s{sPC}, {W_PC}")
        else: A(f"s_add_u32 s{sPC}, s{sREC}, 528")
        A(f"s_load_dword s{sF0}, {ws}, s{sPC} glc")
        if not SNLATE and not SNW5: snapshot()
    else:
        for k in range(4): A(f"v_mov_b32 v{B0+k}, -1")
        A(f"v_add_u32 v{T}, s{sREC}, v{vOFF}"); A(f"s_add_u32 s{sT}, s{sSPB}, {W_SP}"); A(f"v_add_u32 v{T+1}, s{sT}, v{vOFF}")
        if 'R' in SKIP: A(f"global_load_dword v{T+5}, v{T}, {ws}"); A(f"global_load_dword v{T+5}, v{T}, {ws}")
        else: A(f"s_mov_b32 exec_hi, {0xff if FULL else 3}"); A(f"global_store_dwordx4 v{T}, {rng(B0)}, {ws} sc1")
        if 'R' not in SKIP: A(f"s_mov_b32 exec_hi, {0xffff if FULL else 15}"); A(f"global_store_dwordx4 v{T+1}, {rng(B0)}, {ws} sc1")
        A("s_mov_b64 exec, -1")
    A(f"s_mov_b32 s{sPASS}, 1"); A(f"s_mov_b32 s{sT3}, {L_XL}")
    A(f"s_waitcnt vmcnt({18 + NEXTRA})")
    A("s_branch L_LN")

    WR = 70
    A.label("L_Y_PRE"); A.comment("waves 5-7: x and the w1/b1/w2 slice")
    if 'b' in SKIP:
        common(); A("s_barrier")
        if 'B' in SKIP: A("s_sleep 127"); A("s_sleep 60")
        A("s_branch L_STREAM")
    A("s_setprio 2")
    xloads()
    common()
    A("s_barrier")
    A(f"v_and_b32 v{T}, 7, v{vL}"); A(f"v_mul_u32_u24 v{T}, 36, v{T}"); A(f"s_mul_i32 s{sT}, s{sYP}, 288"); A(f"v_add_u32 v{T}, s{sT}, v{T}")
    for a, sp_ in enumerate((sW1, sB1, sW2)):
        R = WR + 10 * a
        A(f"global_load_dwordx4 {rng(R)}, v{T}, s[{sp_}:{sp_+1}]"); A(f"global_load_dwordx4 {rng(R+4)}, v{T}, s[{sp_}:{sp_+1}] offset:16")
        A(f"global_load_dword v{R+8}, v{T}, s[{sp_}:{sp_+1}] offset:32")
    if TAGS and SNW5:
        A(f"s_cmp_lg_u32 s{sW}, 5"); A("s_cbranch_scc1 L_NOSN")
        A("s_waitcnt vmcnt(9)")
        snapshot()
        A("s_branch L_SNJ")
        A.label("L_NOSN")
        A("s_waitcnt vmcnt(9)")
        A.label("L_SNJ")
    A(f"s_mov_b32 s{sPASS}, 2"); A(f"s_sub_u32 s{sT3}, s{sW}, 4"); A(f"s_mul_i32 s{sT3}, s{sT3}, 2304"); A(f"s_add_u32 s{sT3}, s{sT3}, {L_XL}")
    if not (TAGS and SNW5): A("s_waitcnt vmcnt(9)")

    def allred32(v, t, op):
        for pat in ("quad_perm:[1,0,3,2]", "quad_perm:[2,3,0,1]", "row_half_mirror", "row_mirror"):
            A(f"{op}_dpp v{v}, v{v}, v{v} {pat}{dm}")
        A(f"v_mov_b32 v{t}, v{v}"); A(f"v_permlane16_swap_b32 v{t}, v{v}"); A(f"{op} v{v}, v{t}, v{v}")
    A.label("L_LN"); A.comment("layer norm of both rows (lanes 0-31 batch 0, 32-63 batch 1), bf16 roundings as in the reference; 1 or 2 passes")
    for k in range(9):
        A(f"v_lshlrev_b32 v{E+2*k}, 16, v{X+k}"); A(f"v_and_b32 v{E+2*k+1}, 0xffff0000, v{X+k}")
    A(f"v_add_f32 v{T}, v{E}, v{E+1}"); A(f"v_add_f32 v{T+1}, v{E+2}, v{E+3}")
    for k in range(4, 18, 2):
        A(f"v_add_f32 v{T}, v{T}, v{E+k}"); A(f"v_add_f32 v{T+1}, v{T+1}, v{E+k+1}")
    A(f"v_add_f32 v{T}, v{T}, v{T+1}")
    allred32(T, T+1, "v_add_f32")
    A(f"v_mul_f32 v{T}, {hx(f2u(1/576))}, v{T}")
    A(f"v_mov_b32 v{T+2}, 0"); A(f"v_mov_b32 v{T+3}, 0")
    for k in range(0, 18, 2):
        A(f"v_sub_f32 v{T+4}, v{E+k}, v{T}"); A(f"v_sub_f32 v{T+5}, v{E+k+1}, v{T}")
        A(f"v_fmac_f32 v{T+2}, v{T+4}, v{T+4}"); A(f"v_fmac_f32 v{T+3}, v{T+5}, v{T+5}")
    A(f"v_add_f32 v{T+2}, v{T+2}, v{T+3}")
    allred32(T+2, T+3, "v_add_f32")
    A(f"v_mul_f32 v{T+2}, {hx(f2u(1/576))}, v{T+2}")
    rnd1(T); rnd1(T+2)
    A(f"v_add_f32 v{T+2}, {hx(f2u(1e-5))}, v{T+2}"); rnd1(T+2)
    A(f"v_sqrt_f32 v{T+2}, v{T+2}"); rnd1(T+2)
    A(f"v_rcp_f32 v{T+2}, v{T+2}")
    for k in range(9):
        a, b = E+2*k, E+2*k+1
        A(f"v_sub_f32 v{a}, v{a}, v{T}"); A(f"v_sub_f32 v{b}, v{b}, v{T}")
        A(f"v_cvt_pk_bf16_f32 v{X+k}, v{a}, v{b}")
        A(f"v_lshlrev_b32 v{a}, 16, v{X+k}"); A(f"v_and_b32 v{b}, 0xffff0000, v{X+k}")
        A(f"v_mul_f32 v{a}, v{a}, v{T+2}"); A(f"v_mul_f32 v{b}, v{b}, v{T+2}")
        A(f"v_cvt_pk_bf16_f32 v{X+k}, v{a}, v{b}")
    A(f"s_sub_u32 s{sPASS}, s{sPASS}, 1"); A(f"s_cmp_lg_u32 s{sPASS}, 0"); A("s_cbranch_scc1 L_LN")
    A(f"v_add_u32 v{vXO}, s{sT3}, v{vXO}")
    for k in range(9): A(f"ds_write_b32 v{vXO}, v{X+k} offset:{128*k}")
    A(f"s_cmp_lg_u32 s{sW}, 0"); A("s_cbranch_scc1 L_BBR")

    qs = 0
    if QCOL:
        for i in range(18):
            A(f"s_waitcnt vmcnt({17 + NEXTRA - i})"); A(f"ds_write_b128 v{vOFF}, {rng(WQ+4*i)} offset:{L_WQ + 1024*i}")
        lc = {4: 3, 2: 2}[NRG]; lq = {4: 2, 2: 3}[NRG]; NS_ = 36 // NRG; NI = NRG + 1
        A(f"v_lshrrev_b32 v{T}, 4, v{vL}"); A(f"v_lshrrev_b32 v{T+1}, 2, v{vL}"); A(f"v_lshlrev_b32 v{T+1}, {4+lc}, v{T+1}")
        A(f"v_and_b32 v{T+2}, 3, v{vL}"); A(f"v_lshl_add_u32 v{T+1}, v{T+2}, 3, v{T+1}")
        A(f"v_and_b32 v{T+2}, 1, v{vL}"); A(f"v_mul_u32_u24 v{T+2}, 1152, v{T+2}"); A(f"v_lshl_add_u32 v{T+2}, v{T}, 3, v{T+2}")
        A(f"s_lshr_b32 s{sT}, s{sJ}, {lq}"); A(f"s_mul_i32 s{sT}, s{sT}, {1152//NRG}"); A(f"v_add_u32 v{T+2}, s{sT}, v{T+2}")
        A("s_waitcnt lgkmcnt(0)")
        DQ = 52
        def qread(i):
            r = WQ + 10 * (i % 4)
            for n in range(NRG): A(f"ds_read_b64_tr_b16 v[{r+2*n}:{r+2*n+1}], v{T+1} offset:{L_WQ + (256<<lc)*i + 32*n}")
            A(f"ds_read_b64 v[{r+8}:{r+9}], v{T+2} offset:{L_XL + 32*i}")
        qread(0); qread(1)
        for i in range(NS_):
            if i + 2 < NS_: qread(i + 2)
            A(f"s_waitcnt lgkmcnt({NI * min(2, NS_ - 1 - i)})")
            r = WQ + 10 * (i % 4)
            for n in range(NRG): A(f"v_mfma_f32_16x16x16_bf16 {rng(DQ+4*n)}, v[{r+8}:{r+9}], v[{r+2*n}:{r+2*n+1}], {'0' if i == 0 else rng(DQ+4*n)}")
        SB_ = 64 * NRG
        A(f"s_mul_i32 s{sT}, s{sG}, {32*SB_}"); A(f"s_mul_i32 s{sT2}, s{sJ}, {SB_}"); A(f"s_add_u32 s{sT}, s{sT}, s{sT2}")
        A(f"v_lshlrev_b32 v{T}, {lc+1}, v{vL}"); A(f"v_add_u32 v{T+4}, s{sT}, v{T}"); A(f"v_add_u32 v{T+5}, {16*SB_}, v{T+4}")
        for b_ in range(2):
            for n in range(NRG): A(f"v_mov_b32 v{D+4*b_+n}, v{DQ+4*n+b_}")
        def qstore(fl):
            A("s_mov_b64 exec, 0xffff"); A(f"global_store_dwordx{NRG} v{T+4}, {rng(D, NRG)}, {ws}{fl}"); A(f"global_store_dwordx{NRG} v{T+5}, {rng(D+4, NRG)}, {ws}{fl}"); A("s_mov_b64 exec, -1")
        if 'S' not in SKIP: qstore("" if QPL else " sc1")
    else:
        XV = 50
        A(f"v_bfe_u32 v{T}, v{vL}, 3, 1"); A(f"v_mul_u32_u24 v{T}, 1152, v{T}")
        A(f"v_lshrrev_b32 v{T+1}, 4, v{vL}"); A(f"v_lshl_add_u32 v{T}, v{T+1}, 1, v{T}")
        A(f"s_mul_i32 s{sT}, s{sRG}, 144"); A(f"s_add_u32 s{sT}, s{sT}, {L_XL}"); A(f"v_add_u32 v{T}, s{sT}, v{T}")
        A("s_waitcnt lgkmcnt(0)")
        for i in range(18):
            A(f"ds_read_u16 v{XV+i}, v{T} offset:{8*i}")
            if i == 8: A("s_waitcnt lgkmcnt(0)")
        A("s_waitcnt lgkmcnt(0)")
        for i in range(18): A(f"v_lshl_or_b32 v{XV+i}, v{XV+i}, 16, v{XV+i}")
        for i in range(18):
            Bx = B0 if i % 2 == 0 else B1
            for k in range(4): A(f"v_and_b32 v{Bx+k}, v{XV+i}, v{MK+k}")
            if i > 0:
                Bp = B1 if i % 2 == 0 else B0
                A(f"s_waitcnt vmcnt({17+NEXTRA-(i-1)})")
                A(f"v_mfma_f32_16x16x32_bf16 {rng(D)}, {rng(WQ+4*(i-1))}, {rng(Bp)}, {'0' if i == 1 else rng(D)}")
        A(f"s_waitcnt vmcnt({NEXTRA})")
        A(f"v_mfma_f32_16x16x32_bf16 {rng(D)}, {rng(WQ+4*17)}, {rng(B1)}, {rng(D)}")
        qs = 1 if QBF else 0
        A(f"v_bfe_u32 v{T}, v{vL}, 3, 1"); A(f"v_lshlrev_b32 v{T}, {13-qs}, v{T}")
        A(f"v_lshrrev_b32 v{T+1}, 4, v{vL}"); A(f"v_lshl_add_u32 v{T}, v{T+1}, {7-qs}, v{T}")
        A(f"v_and_b32 v{T+1}, 7, v{vL}"); A(f"v_lshl_add_u32 v{T}, v{T+1}, {4-qs}, v{T}")
        A(f"s_lshl_b32 s{sT}, s{sG}, {14-qs}"); A(f"s_lshl_b32 s{sT2}, s{sJ}, {9-qs}"); A(f"s_add_u32 s{sT}, s{sT}, s{sT2}")
        A(f"v_add_u32 v{T}, s{sT}, v{T}")
        if QBF:
            A(f"v_cvt_pk_bf16_f32 v{D}, v{D}, v{D+1}"); A(f"v_cvt_pk_bf16_f32 v{D+1}, v{D+2}, v{D+3}")
            A(f"global_store_dwordx2 v{T}, v[{D}:{D+1}], {ws} sc1")
        elif 'S' not in SKIP: A(f"global_store_dwordx4 v{T}, {rng(D)}, {ws} sc1")
    stamp(2)
    def packtags():
        bits = [SN + 2*k for k in range(8)] + [SN + 17 + 2*i for i in range(4)] + [SN + 24 + k for k in range(4)] + MX[:5]
        if YTAG: bits += MX[5:12]
        A(f"v_mov_b32 v{vTAG}, 0")
        for r in bits: A(f"v_alignbit_b32 v{vTAG}, v{r}, v{vTAG}, 1")
        A(f"v_lshrrev_b32 v{vTAG}, {32 - len(bits)}, v{vTAG}"); A(f"v_not_b32 v{vTAG}, v{vTAG}")
        A(f"v_lshlrev_b32 v{T+1}, 2, v{vL}"); A(f"ds_write_b32 v{T+1}, v{vTAG} offset:{L_TAG}")
    if TAGS:
        if SNW5: pass
        elif SNLATE: snapshot()
        else: A("s_waitcnt vmcnt(1)"); packtags()
    if NS0:
        cur[0] = None
        A("s_nop 1")
        if NS0P is not None: A(f"s_setprio {NS0P}")
        for n in range(WOAT): issue(n)
        if NS0P is not None: A(f"s_setprio {P0}")
    A(f"s_lshl_b32 s{sT}, s{sG}, 4"); A(f"s_mov_b32 s{sT2}, 1"); A(f"s_mov_b32 s{sT3}, s{sPC}" if TAGS else f"s_add_u32 s{sT3}, s{sREC}, 528")
    A(f"s_waitcnt vmcnt({WOAT if NS0 else 0}) lgkmcnt(0)")
    POSTPACK = TAGS and SNLATE and not SNW5
    if TAGS and SNW5:
        if 'b' not in SKIP: ldswait("SNW", L_SNOK, 1, 1)
        A(f"s_mov_b32 s{sT2}, 1")
    if FAST:
        A(f"s_getreg_b32 s{sXC}, hwreg(HW_REG_XCC_ID)"); A(f"s_and_b32 s{sXC}, s{sXC}, 15"); A(f"s_mul_i32 s{sT2}, s{sXC}, s{sXC}")
        A(f"s_lshl_b32 s{sT2}, s{sT2}, 8"); A(f"s_add_u32 s{sT2}, s{sT2}, s{sXC}"); A(f"s_lshl_b32 s{sT2}, s{sT2}, 8"); A(f"s_add_u32 s{sT2}, s{sT2}, 1")
        A(f"s_mul_i32 s{sXC}, s{sT2}, 15")
    if 'A' in SKIP: A("s_sleep 60"); A("s_branch L_POLLA_OK")
    A(f"s_atomic_add s{sT2}, s[{sDBG}:{sDBG+1}], s{sT} glc")
    if POSTPACK: packtags()
    A("s_waitcnt lgkmcnt(0)")
    if FAST:
        A(f"s_cmp_eq_u32 s{sT2}, s{sXC}"); A(f"s_cselect_b32 s{sFAST}, {2 if FORCE2 else 1}, 2")
        A(f"s_and_b32 s{sT2}, s{sT2}, 0xff")
    A(f"s_cmp_lg_u32 s{sT2}, 15"); A("s_cbranch_scc1 L_NOTMASTER")
    A(f"s_mul_i32 s{sT}, s{sG}, {16*640}"); A(f"s_add_u32 s{sT}, s{sT}, {W_REC+528}"); A(f"s_add_u32 s{sA}, s{sWS}, s{sT}"); A(f"s_addc_u32 s{sA+1}, s{sWS+1}, 0")
    if TAGS:
        A(f"s_mov_b32 s{sT2}, s{sFAST}" if FAST else f"s_mov_b32 s{sT2}, 1")
        if GFLAG: A(f"s_atomic_add s{sT2}, {ws}, s{sPC}")
        else:
            for j in range(16): A(f"s_atomic_add s{sT2}, s[{sA}:{sA+1}], {640*j}")
    else:
        A(f"s_mov_b32 s{sT2}, 0")
        for j in range(16): A(f"s_atomic_and s{sT2}, s[{sA}:{sA+1}], {640*j}")
    A("s_branch L_POLLA_OK")
    A.label("L_NOTMASTER")
    A(f"s_mov_b32 s{sCNT}, {LIMIT}")
    A.label("L_POLLA")
    A(f"s_load_dword s{sT2}, {ws}, s{sT3} glc"); A("s_waitcnt lgkmcnt(0)")
    if FAST: A(f"s_sub_u32 s{sFAST}, s{sT2}, s{sF0}"); A(f"s_cmp_lg_u32 s{sFAST}, 0")
    elif TAGS: A(f"s_cmp_lg_u32 s{sT2}, s{sF0}")
    else: A(f"s_cmp_eq_u32 s{sT2}, 0")
    A("s_cbranch_scc1 L_POLLA_OK")
    A(f"s_sleep {PSL}"); A(f"s_sub_u32 s{sCNT}, s{sCNT}, 1"); A(f"s_cmp_lg_u32 s{sCNT}, 0"); A("s_cbranch_scc1 L_POLLA")
    A.label("L_POLLA_OK")
    if QPL:
        A(f"s_cmp_eq_u32 s{sFAST}, 1"); A("s_cbranch_scc1 L_QOK")
        qstore(" sc1")
        A(f"s_lshl_b32 s{sT}, s{sG}, 4"); A(f"s_add_u32 s{sT}, s{sT}, 4"); A(f"s_mov_b32 s{sT2}, 1")
        A("s_waitcnt vmcnt(0)")
        A(f"s_atomic_add s{sT2}, s[{sDBG}:{sDBG+1}], s{sT} glc"); A("s_waitcnt lgkmcnt(0)")
        A(f"s_cmp_lg_u32 s{sT2}, 15"); A("s_cbranch_scc1 L_NOTM2")
        A(f"s_mul_i32 s{sT}, s{sG}, {16*640}"); A(f"s_add_u32 s{sT}, s{sT}, {W_REC+528}"); A(f"s_add_u32 s{sA}, s{sWS}, s{sT}"); A(f"s_addc_u32 s{sA+1}, s{sWS+1}, 0")
        A(f"s_mov_b32 s{sT2}, 1")
        for j in range(16): A(f"s_atomic_add s{sT2}, s[{sA}:{sA+1}], {640*j}")
        A("s_branch L_QOK")
        A.label("L_NOTM2")
        A(f"s_mov_b32 s{sCNT}, {LIMIT}"); A(f"s_add_u32 s{sF0}, s{sF0}, 3")
        A.label("L_POLL2")
        A(f"s_load_dword s{sT2}, {ws}, s{sT3} glc"); A("s_waitcnt lgkmcnt(0)")
        A(f"s_cmp_eq_u32 s{sT2}, s{sF0}"); A("s_cbranch_scc1 L_QOK")
        A(f"s_sleep {PSL}"); A(f"s_sub_u32 s{sCNT}, s{sCNT}, 1"); A(f"s_cmp_lg_u32 s{sCNT}, 0"); A("s_cbranch_scc1 L_POLL2")
        A.label("L_QOK")
    stamp(3)
    GQ = 128
    if QCOL:
        A(f"s_mul_i32 s{sT}, s{sG}, {32*SB_}"); A(f"s_mul_i32 s{sT2}, s{sB}, {16*SB_}"); A(f"s_add_u32 s{sT}, s{sT}, s{sT2}"); A(f"v_add_u32 v{T}, s{sT}, v{vOFF}")
        for r in range(NRG): A(f"global_load_dwordx4 {rng(GQ+4*r)}, v{T}, {ws} offset:{1024*r} sc1")
        if NRG == 4:
            A(f"v_lshrrev_b32 v{T+2}, 4, v{vL}"); A(f"v_lshlrev_b32 v{T+2}, 7, v{T+2}"); A(f"v_and_b32 v{T+3}, 15, v{vL}"); A(f"v_lshl_add_u32 v{T+2}, v{T+3}, 1, v{T+2}")
            offs = [0, 32, 64, 96]
        else:
            A(f"v_lshrrev_b32 v{T+2}, 3, v{vL}"); A(f"v_lshlrev_b32 v{T+2}, 6, v{T+2}"); A(f"v_and_b32 v{T+3}, 7, v{vL}"); A(f"v_lshl_add_u32 v{T+2}, v{T+3}, 2, v{T+2}")
            offs = [0, 32, 2, 34]
        for r in range(1, NRG):
            A(f"s_waitcnt vmcnt({NRG-1-r})")
            for k in range(4): A(f"v_add_f32 v{GQ+k}, v{GQ+k}, v{GQ+4*r+k}")
        A(f"v_cvt_pk_bf16_f32 v{GQ}, v{GQ}, v{GQ+1}"); A(f"v_cvt_pk_bf16_f32 v{GQ+1}, v{GQ+2}, v{GQ+3}")
        A(f"ds_write_b16 v{T+2}, v{GQ} offset:{L_Q+offs[0]}"); A(f"ds_write_b16_d16_hi v{T+2}, v{GQ} offset:{L_Q+offs[1]}")
        A(f"ds_write_b16 v{T+2}, v{GQ+1} offset:{L_Q+offs[2]}"); A(f"ds_write_b16_d16_hi v{T+2}, v{GQ+1} offset:{L_Q+offs[3]}")
    else:
        A(f"s_lshl_b32 s{sT}, s{sG}, {14-qs}"); A(f"s_lshl_b32 s{sT2}, s{sB}, {13-qs}"); A(f"s_add_u32 s{sT}, s{sT}, s{sT2}")
        if QBF:
            A(f"v_lshlrev_b32 v{T}, 3, v{vL}"); A(f"v_add_u32 v{T}, s{sT}, v{T}")
            for r in range(8): A(f"global_load_dwordx2 v[{GQ+8+2*r}:{GQ+9+2*r}], v{T}, {ws} offset:{512*r} sc1")
        else:
            A(f"v_add_u32 v{T}, s{sT}, v{vOFF}"); A(f"v_add_u32 v{T+1}, 4096, v{T}")
            for r in range(8 if 'G' not in SKIP else 0): A(f"global_load_dwordx4 {rng(GQ+4*r)}, v{T + r//4}, {ws} offset:{1024*(r%4)} sc1")
        A(f"v_lshrrev_b32 v{T+2}, 3, v{vL}"); A(f"v_lshlrev_b32 v{T+2}, 6, v{T+2}"); A(f"v_and_b32 v{T+3}, 7, v{vL}"); A(f"v_lshl_add_u32 v{T+2}, v{T+3}, 1, v{T+2}")
        if QBF:
            for r in range(8):
                A(f"s_waitcnt vmcnt({7-r})")
                o = GQ if r == 0 else GQ + 4
                for h in range(2):
                    A(f"v_lshlrev_b32 v{o+2*h}, 16, v{GQ+8+2*r+h}"); A(f"v_and_b32 v{o+2*h+1}, 0xffff0000, v{GQ+8+2*r+h}")
                if r:
                    for k in range(4): A(f"v_add_f32 v{GQ+k}, v{GQ+k}, v{GQ+4+k}")
        else:
            for r in range(1, 8):
                A(f"s_waitcnt vmcnt({7-r})")
                for k in range(4): A(f"v_add_f32 v{GQ+k}, v{GQ+k}, v{GQ+4*r+k}")
        A(f"v_cvt_pk_bf16_f32 v{GQ}, v{GQ}, v{GQ+1}"); A(f"v_cvt_pk_bf16_f32 v{GQ+1}, v{GQ+2}, v{GQ+3}")
        A(f"ds_write_b16 v{T+2}, v{GQ} offset:{L_Q}"); A(f"ds_write_b16_d16_hi v{T+2}, v{GQ} offset:{L_Q+16}")
        A(f"ds_write_b16 v{T+2}, v{GQ+1} offset:{L_Q+32}"); A(f"ds_write_b16_d16_hi v{T+2}, v{GQ+1} offset:{L_Q+48}")
    if FAST: A(f"s_cmp_eq_u32 s{sFAST}, 1"); A(f"s_cselect_b32 s{sFAST}, 1, 2"); A(f"v_mov_b32 v{T+2}, s{sFAST}")
    else: A(f"v_mov_b32 v{T+2}, 1")
    A(f"v_mov_b32 v{T+3}, {L_QFLAG}")
    A("s_waitcnt lgkmcnt(0)")
    A(f"ds_write_b32 v{T+3}, v{T+2}")
    A("s_setprio 0")
    if NS0:
        stamp(6); A(f"v_mov_b32 v{vG}, 0"); A("s_branch L_STREAM2")
    else: A("s_branch L_STREAM")

    A.label("L_BBR"); A.comment("token-mixing MLP slice: 48 outputs x 144 hidden units per wave")
    W1 = 100; BB = 118; W2 = WR + 20; U = 136; PK = 40; ZZ = 50; RES = 154; vC1 = 156; vC0 = 158; vONE = 160; vH = 162; vHA = 164; ACC = 165; vFL = 166
    def pr(r): return f"v[{r}:{r+1}]"
    A("s_waitcnt vmcnt(0)")
    if TAGS and SNW5:
        A(f"s_cmp_lg_u32 s{sW}, 5"); A("s_cbranch_scc1 L_NOPK")
        packtags()
        A(f"v_mov_b32 v{T}, {L_SNOK}"); A(f"v_mov_b32 v{T+1}, 1"); A(f"ds_write_b32 v{T}, v{T+1}")
        A.label("L_NOPK")
    for k in range(9):
        A(f"v_lshlrev_b32 v{W1+2*k}, 16, v{WR+k}"); A(f"v_and_b32 v{W1+2*k+1}, 0xffff0000, v{WR+k}")
        A(f"v_lshlrev_b32 v{BB+2*k}, 16, v{WR+10+k}"); A(f"v_and_b32 v{BB+2*k+1}, 0xffff0000, v{WR+10+k}")
    c0 = -2 * math.sqrt(2 / math.pi) * LOG2E; c1 = c0 * 0.044715
    for k in range(2):
        A(f"v_mov_b32 v{vC1+k}, {hx(f2u(c1))}"); A(f"v_mov_b32 v{vC0+k}, {hx(f2u(c0))}"); A(f"v_mov_b32 v{vONE+k}, 1.0")
    A(f"v_and_b32 v{vFL}, 7, v{vL}")
    A(f"s_sub_u32 s{sT}, s{sW}, 5"); A(f"s_mul_i32 s{sT}, s{sT}, 6")
    A(f"s_mul_i32 s{sT2}, s{sYC}, 144"); A(f"s_add_u32 s{sT3}, s{sT3}, s{sT2}")
    A(f"v_lshrrev_b32 v{vHA}, 3, v{vL}"); A(f"v_lshlrev_b32 v{vHA}, 1, v{vHA}"); A(f"v_add_u32 v{vHA}, s{sT3}, v{vHA}")
    A(f"s_mov_b32 s{sPASS}, 0"); A(f"v_mov_b32 v{RES}, 0")
    A("s_setprio 0")
    A.label("L_BLOOP")
    A(f"s_add_u32 s{sT2}, s{sT}, s{sPASS}"); A(f"s_cmp_ge_u32 s{sT2}, 9"); A(f"s_cselect_b32 s{sT3}, 63, 0"); A(f"s_add_u32 s{sT2}, s{sT2}, s{sT3}"); A(f"s_lshl_b32 s{sT2}, s{sT2}, 4")
    A(f"v_add_u32 v{vH+1}, s{sT2}, v{vHA}")
    A(f"ds_read_u16 v{vH}, v{vH+1}")
    A("s_waitcnt lgkmcnt(0)")
    A(f"v_lshlrev_b32 v{vH}, 16, v{vH}"); A(f"v_mov_b32 v{vH+1}, v{vH}")
    def round9():
        for k in range(9): A(f"v_cvt_pk_bf16_f32 v{PK+k}, v{U+2*k}, v{U+2*k+1}")
        for k in range(9):
            A(f"v_lshlrev_b32 v{U+2*k}, 16, v{PK+k}"); A(f"v_and_b32 v{U+2*k+1}, 0xffff0000, v{PK+k}")
    for k in range(9): A(f"v_pk_mul_f32 {pr(U+2*k)}, {pr(vH)}, {pr(W1+2*k)}")
    round9()
    for k in range(9): A(f"v_pk_add_f32 {pr(U+2*k)}, {pr(U+2*k)}, {pr(BB+2*k)}")
    round9()
    for k in range(9): A(f"v_pk_mul_f32 {pr(ZZ+2*k)}, {pr(U+2*k)}, {pr(U+2*k)}")
    for k in range(9): A(f"v_pk_fma_f32 {pr(ZZ+2*k)}, {pr(ZZ+2*k)}, {pr(vC1)}, {pr(vC0)}")
    for k in range(9): A(f"v_pk_mul_f32 {pr(ZZ+2*k)}, {pr(ZZ+2*k)}, {pr(U+2*k)}")
    for k in range(18): A(f"v_exp_f32 v{ZZ+k}, v{ZZ+k}")
    for k in range(9): A(f"v_pk_add_f32 {pr(ZZ+2*k)}, {pr(ZZ+2*k)}, {pr(vONE)}")
    for k in range(18): A(f"v_rcp_f32 v{ZZ+k}, v{ZZ+k}")
    for k in range(9): A(f"v_pk_mul_f32 {pr(U+2*k)}, {pr(U+2*k)}, {pr(ZZ+2*k)}")
    for k in range(9): A(f"v_cvt_pk_bf16_f32 v{PK+k}, v{U+2*k}, v{U+2*k+1}")
    A(f"v_mov_b32 v{ACC}, 0")
    for k in range(9): A(f"v_dot2c_f32_bf16 v{ACC}, v{PK+k}, v{W2+k}")
    for pat in ("quad_perm:[1,0,3,2]", "quad_perm:[2,3,0,1]", "row_half_mirror"):
        A(f"v_add_f32_dpp v{ACC}, v{ACC}, v{ACC} {pat}{dm}")
    A(f"v_cmp_eq_u32 vcc, s{sPASS}, v{vFL}"); A(f"v_cndmask_b32 v{RES}, v{RES}, v{ACC}, vcc")
    A(f"s_add_u32 s{sPASS}, s{sPASS}, 1"); A(f"s_cmp_lt_u32 s{sPASS}, 6"); A("s_cbranch_scc1 L_BLOOP")
    if YTAG: A(f"v_mov_b32 v{vY}, v{RES}")
    else:
        A("s_setprio 2")
        A(f"v_lshlrev_b32 v{T}, 5, v{vFL}"); A(f"v_lshrrev_b32 v{T+1}, 3, v{vL}"); A(f"v_lshl_add_u32 v{T}, v{T+1}, 2, v{T}")
        if FULL:
            A(f"v_add_u32 v{T+1}, s{sT}, v{vFL}"); A(f"v_cmp_le_u32 vcc, 9, v{T+1}"); A(f"v_cndmask_b32 v{T+1}, 0, 3, vcc"); A(f"v_lshl_add_u32 v{T}, v{T+1}, 5, v{T}")
        A(f"s_lshl_b32 s{sT}, s{sT}, 5"); A(f"s_add_u32 s{sT}, s{sT}, s{sSPB}"); A(f"s_add_u32 s{sT}, s{sT}, {W_YP}"); A(f"v_add_u32 v{T}, s{sT}, v{T}")
        A(f"s_mov_b32 exec_lo, 0x3f3f3f3f"); A(f"s_mov_b32 exec_hi, 0x3f3f3f3f")
        A(f"global_store_dword v{T}, v{RES}, {ws} sc1")
        A("s_mov_b64 exec, -1")
    if EXTRA:
        A(f"s_lshl_b32 s{sT}, s2, 3"); A(f"s_add_u32 s{sT}, s{sT}, s{sW}"); A(f"s_lshl_b32 s{sT}, s{sT}, 13"); A(f"s_add_u32 s{sT}, s{sT}, 0x1000000"); A(f"v_add_u32 v{T}, s{sT}, v{vOFF}")
        for k in range(EXTRA): A(f"global_store_dwordx4 v{T}, v[40:43], {ws} offset:{1024*k} sc1")
    stamp(2)

    A.label("L_STREAM")
    stamp(6)
    A(f"v_mov_b32 v{vG}, 0")
    cur[0] = None
    issued = 0
    while issued < NSIG: issue(issued); issued += 1
    if not YTAG:
        A(f"s_cmp_lt_u32 s{sW}, 5"); A("s_cbranch_scc1 L_BDONE")
        A("s_mov_b64 exec, 1")
        A(f"v_mov_b32 v{T+2}, 1"); A(f"v_mov_b32 v{T+3}, {L_CNTB}")
        A(f"s_waitcnt vmcnt({NSIG})")
        A(f"ds_add_rtn_u32 v{T+4}, v{T+3}, v{T+2}")
        A(f"s_lshl_b32 s{sT2}, s{sG}, 4"); A(f"s_add_u32 s{sT2}, s{sT2}, 4"); A(f"s_mov_b32 s{sT3}, 1")
        A("s_waitcnt lgkmcnt(0)")
        A(f"v_readfirstlane_b32 s{sCNT}, v{T+4}")
        A("s_mov_b64 exec, -1")
        A("s_setprio 0")
        A(f"s_cmp_lg_u32 s{sCNT}, 2"); A("s_cbranch_scc1 L_BDONE")
        A(f"s_atomic_add s{sT3}, s[{sDBG}:{sDBG+1}], s{sT2}")
    A.label("L_BDONE")
    cur[0] = None
    while issued < WOAT: issue(issued); issued += 1
    MARK_STREAM2 = len(A.lines)
    A.label("L_STREAM2"); A.comment("K/V stream")
    cur[0] = None
    while issued < NPRE: issue(issued); issued += 1
    A(f"s_cmp_eq_u32 s{sLATE}, 1"); A("s_cbranch_scc1 L_LATE0")
    e = NPRE
    while e < min(NEARLY, 46): issue(e); e += 1
    A(f"s_cmp_eq_u32 s{sW}, 4"); A("s_cbranch_scc1 L_NOWO2")
    A(f"s_waitcnt vmcnt({e - WOAT})")
    for k in range(6): A(f"ds_write_b128 v{vG}, a[{60+4*k}:{63+4*k}] offset:{L_WO+1024*k}")
    ldsinc(L_CNTW)
    A("s_waitcnt lgkmcnt(0)")
    A.label("L_NOWO2")
    cur[0] = None
    while e < NEARLY: issue(e); e += 1
    A.label("L_LATE0"); A.comment("wait for q, then QK in groups of 16 keys")
    stamp(7)
    ldswait("QW", L_QFLAG, 0, 2, "lg")
    if FAST: A(f"s_mov_b32 s{sFAST}, s{sT2}")
    A(f"v_bfe_u32 v{T}, v{vL}, 3, 1"); A(f"v_lshlrev_b32 v{T}, 8, v{T}"); A(f"v_and_b32 v{T+1}, 15, v{vL}"); A(f"v_lshl_add_u32 v{T}, v{T+1}, 4, v{T}")
    A(f"v_xor_b32 v{T+1}, 128, v{T}")
    A(f"ds_read_b128 {rng(QA)}, v{T} offset:{L_Q}"); A(f"ds_read_b128 {rng(QB)}, v{T+1} offset:{L_Q}")
    if TAGS: A(f"v_lshlrev_b32 v{T+2}, 2, v{vL}"); A(f"ds_read_b32 v{vTAG}, v{T+2} offset:{L_TAG}")
    A("s_waitcnt lgkmcnt(0)")
    stamp(8)
    YQ = len(A.lines)
    if EPRIO:
        A(f"s_cmp_eq_u32 s{sLATE}, 1"); A("s_cbranch_scc1 L_NOEP"); A(f"s_setprio {EPRIO}"); A.label("L_NOEP")
    def sreg(i): return ks(4 * (i >> 2) + 3) + (i & 3)
    nlab = [0]
    K8 = [13, 14, 16, 17]; V8 = [24, 25, 26, 28]
    def x8(kind):
        srd = f"s[{KS}:{KS+3}]" if kind == "K" else f"s[{VS}:{VS+3}]"
        for a in range(4):
            A(f"s_xor_b32 s{sT}, s{sB8}, {(28+a) << 12}"); A(f"buffer_load_dwordx4 {rng(ks((K8 if kind == 'K' else V8)[a]))}, v{vOFF}, {srd}, s{sT} offen{nt}")
    EQ = {0: [54, 55, 56], 1: [57, 58, 59], 2: [60, 61, 62], 3: [63]}
    def more(n, kdone=32, gq=None):
        nonlocal issued
        todo = list(range(issued, min(issued + n, 64)))
        lim = 64 if EFAST else NEARLY
        lateonly = [k for k in todo if k < lim]; both = [k for k in todo if k >= lim]
        early = EQ.get(gq, []) if EFAST else []
        nlab[0] += 1
        if lateonly or early:
            A(f"s_cmp_eq_u32 s{sLATE}, 0"); A(f"s_cbranch_scc1 L_SK{nlab[0]}")
            cur[0] = None
            for k in lateonly:
                i = k - 32
                assert not (i >= 22 and free[i-22] >= kdone), (i, kdone)
                issue(k)
                if k == 63 and MLAT == 'last': ldsinc(L_CNTL)
            if early: A(f"s_branch L_SJ{nlab[0]}")
            A.label(f"L_SK{nlab[0]}")
            if early:
                for k in early: issue(k)
                A.label(f"L_SJ{nlab[0]}")
        if SKW and gq in (4, 7):
            A(f"s_cmp_eq_u32 s{sX8}, 0"); A(f"s_cbranch_scc1 L_SX{nlab[0]}")
            x8("K" if gq == 4 else "V")
            A.label(f"L_SX{nlab[0]}")
        cur[0] = None
        for k in both:
            i = k - 32
            assert not (i >= 22 and free[i-22] >= kdone), (i, kdone)
            issue(k)
            if k == 63 and MLAT == 'last': ldsinc(L_CNTL)
        issued += len(todo)
    def qk(Kr, S, mid=None, bias=False):
        for a in range(4): A(f"v_dot2_f32_bf16 v{T+a}, v{Kr[a]}, v{QA}, 0")
        for c in range(1, 4):
            for a in range(4): A(f"v_dot2c_f32_bf16 v{T+a}, v{Kr[a]+c}, v{QA+c}")
        for c in range(4):
            for a in range(4): A(f"v_dot2c_f32_bf16_dpp v{T+a}, v{Kr[a]+c}, v{QB+c} row_ror:8{dm}")
        if mid: mid()
        for a in range(4): A(f"v_add_f32_dpp v{T+a}, v{T+a}, v{T+a} quad_perm:[1,0,3,2]{dm}")
        for a in range(4): A(f"v_add_f32_dpp v{T+a}, v{T+a}, v{T+a} quad_perm:[2,3,0,1]{dm}")
        for a in range(4): A(f"v_add_f32_dpp v{S+a}, v{T+a}, v{T+a} row_half_mirror{dm}")
        if ROUND:
            for rep in range(2):
                A(f"v_cvt_pk_bf16_f32 v{T+4}, v{S}, v{S+1}"); A(f"v_cvt_pk_bf16_f32 v{T+5}, v{S+2}, v{S+3}")
                A(f"v_lshlrev_b32 v{S}, 16, v{T+4}"); A(f"v_and_b32 v{S+1}, 0xffff0000, v{T+4}")
                A(f"v_lshlrev_b32 v{S+2}, 16, v{T+5}"); A(f"v_and_b32 v{S+3}, 0xffff0000, v{T+5}")
                if rep == 0:
                    for a in range(4): A(f"v_mul_f32 v{S+a}, {hx(f2u(SCALE))}, v{S+a}")
        if bias:
            for a in range(4): A(f"v_add_f32 v{S+a}, s{sBIAS}, v{S+a}")
    for gq in range(8):
        A(f"s_waitcnt vmcnt({issued - (4*gq+4)})")
        S = ks(4*gq+3)
        qk([ks(4*gq+a) for a in range(4)], S, lambda: more(SCH_QK[gq], 4*gq+4, gq), bool(SKW) and gq == 7)
        if gq == 0: A(f"v_max3_f32 v{vM}, v{S}, v{S+1}, v{S+2}"); A(f"v_max_f32 v{vM}, v{vM}, v{S+3}")
        else: A(f"v_max3_f32 v{vM}, v{vM}, v{S}, v{S+1}"); A(f"v_max3_f32 v{vM}, v{vM}, v{S+2}, v{S+3}")
    S8 = ks(K8[3])
    if SKW:
        assert EFAST and NEARLY == 54
        A(f"s_cmp_eq_u32 s{sX8}, 0"); A("s_cbranch_scc1 L_NQ8")
        A("s_waitcnt vmcnt(4)")
        qk([ks(q) for q in K8], S8)
        A(f"v_max3_f32 v{vM}, v{vM}, v{S8}, v{S8+1}"); A(f"v_max3_f32 v{vM}, v{vM}, v{S8+2}, v{S8+3}")
        A.label("L_NQ8")
    xrow(vM, T, "v_max_f32")
    A(f"v_mul_f32 v{vM}, s{sC1}, v{vM}")
    stamp(9)
    def ystore():
        A(f"s_cmp_lt_u32 s{sW}, 5"); A("s_cbranch_scc1 L_NOY")
        if 't' not in SKIP: ldswait("AOK", L_AOK, 0, 2, "lg")
        A(f"s_mov_b32 s{sXC}, s{sT2}")
        A(f"s_sub_u32 s{sT3}, s{sW}, 5"); A(f"s_mul_i32 s{sCNT}, s{sT3}, 6"); addr_y(T, T+1, T+2, f"s{sCNT}")
        A(f"s_add_u32 s{sT3}, s{sT3}, 21"); A(f"v_lshrrev_b32 v{T+1}, s{sT3}, v{vTAG}"); A(f"v_bfi_b32 v{vY}, 1, v{T+1}, v{vY}")
        A(f"s_mov_b32 exec_lo, 0x3f3f3f3f"); A(f"s_mov_b32 exec_hi, 0x3f3f3f3f")
        if YLOC:
            A(f"s_cmp_eq_u32 s{sXC}, 1"); A("s_cbranch_scc1 L_YF")
            A(f"global_store_dword v{T}, v{vY}, {ws} sc1"); A("s_branch L_YJ")
            A.label("L_YF"); A(f"global_store_dword v{T}, v{vY}, {ws}"); A.label("L_YJ")
        elif 'Y' not in SKIP: A(f"global_store_dword v{T}, v{vY}, {ws} sc1")
        A("s_mov_b64 exec, -1")
        A.label("L_NOY")
    if YTAG and YAT == 'qk': ystore()
    A(f"v_mov_b32 v{vLs}, 0")
    for q in range(8):
        S = ks(4*q+3)
        for a in range(4): A(f"v_fma_f32 v{S+a}, v{S+a}, s{sC1}, -v{vM}")
        for a in range(4): A(f"v_exp_f32 v{S+a}, v{S+a}")
        for a in range(4): A(f"v_add_f32 v{vLs}, v{vLs}, v{S+a}")
        for a in range(4): A(f"v_cvt_pk_bf16_f32 v{S+a}, v{S+a}, v{S+a}")
        more(SCH_SM[q])
    if SKW:
        A(f"s_cmp_eq_u32 s{sX8}, 0"); A("s_cbranch_scc1 L_NS8")
        for a in range(4): A(f"v_fma_f32 v{S8+a}, v{S8+a}, s{sC1}, -v{vM}")
        for a in range(4): A(f"v_exp_f32 v{S8+a}, v{S8+a}")
        for a in range(4): A(f"v_add_f32 v{vLs}, v{vLs}, v{S8+a}")
        for a in range(4): A(f"v_cvt_pk_bf16_f32 v{S8+a}, v{S8+a}, v{S8+a}")
        A.label("L_NS8")
    xrow(vLs, T, "v_add_f32")
    vH6 = T + 6
    A(f"v_bfe_u32 v{T+7}, v{vL}, 3, 1"); A(f"v_lshlrev_b32 v{vH6}, 6, v{T+7}")
    A(f"s_lshl_b32 s{sT2}, s{sW}, 3"); A(f"v_add_u32 v{T}, s{sT2}, v{vH6}")
    A(f"v_mov_b32 v{T+2}, 1"); A(f"v_mov_b32 v{T+3}, {L_CNTI}")
    A("s_mov_b64 exec, 0x101"); A(f"ds_write_b64 v{T}, v[{vM}:{vM+1}] offset:{L_MLW}")
    A("s_mov_b64 exec, 1"); A(f"ds_add_rtn_u32 v{T+4}, v{T+3}, v{T+2}"); A("s_mov_b64 exec, -1")
    A(f"v_lshlrev_b32 v{vM}, 8, v{T+7}"); A(f"v_lshrrev_b32 v{T+1}, 4, v{vL}"); A(f"v_lshl_add_u32 v{vM}, v{T+1}, 6, v{vM}")
    A(f"v_and_b32 v{T+1}, 7, v{vL}"); A(f"v_lshl_add_u32 v{vM}, v{T+1}, 3, v{vM}"); A(f"v_add_u32 v{vM}, s{sREC}, v{vM}")
    A(f"s_lshl_b32 s{sT2}, s{sW}, 10"); A(f"v_add_u32 v{vLs}, s{sT2}, v{vOFF}")
    A("s_waitcnt lgkmcnt(0)")
    A(f"v_readfirstlane_b32 s{sT2}, v{T+4}")
    A(f"s_cmp_lg_u32 s{sT2}, 7"); A("s_cbranch_scc1 L_NOF")
    MQ = [ks(18), ks(20), ks(21), ks(22)]; FF = ks(29)
    for k in range(4): A(f"ds_read_b128 {rng(MQ[k])}, v{vH6} offset:{L_MLW+16*k}")
    mm = [MQ[k // 2] + 2 * (k % 2) for k in range(8)]
    A(f"v_lshlrev_b32 v{T+2}, 3, v{T+7}"); A(f"v_add_u32 v{T+2}, s{sREC}, v{T+2}")
    A("s_waitcnt lgkmcnt(0)")
    A(f"v_max3_f32 v{T}, v{mm[0]}, v{mm[1]}, v{mm[2]}"); A(f"v_max3_f32 v{T}, v{T}, v{mm[3]}, v{mm[4]}"); A(f"v_max3_f32 v{T}, v{T}, v{mm[5]}, v{mm[6]}"); A(f"v_max_f32 v{T}, v{T}, v{mm[7]}")
    for k in range(8): A(f"v_sub_f32 v{FF+k}, v{mm[k]}, v{T}")
    for k in range(8): A(f"v_exp_f32 v{FF+k}, v{FF+k}")
    A(f"v_mul_f32 v{T+1}, v{FF}, v{mm[0]+1}")
    for k in range(1, 8): A(f"v_fmac_f32 v{T+1}, v{FF+k}, v{mm[k]+1}")
    A(f"v_lshrrev_b32 v{T+3}, 1, v{vH6}")
    if TAGS: A(f"v_lshrrev_b32 v{T+4}, 17, v{vTAG}"); A(f"v_bfi_b32 v{T+1}, 1, v{T+4}, v{T+1}")
    else: A(f"v_min_u32 v{T}, -2, v{T}"); A(f"v_min_u32 v{T+1}, -2, v{T+1}")
    A("s_mov_b64 exec, 0x101")
    A(f"ds_write_b128 v{T+3}, {rng(FF)} offset:{L_FW}"); A(f"ds_write_b128 v{T+3}, {rng(FF+4)} offset:{L_FW+16}")
    def pub(tag, text):
        if FAST:
            A(f"s_cmp_eq_u32 s{sFAST}, 1"); A(f"s_cbranch_scc1 L_PF{tag}", quick=True)
            A(text + " sc1"); A(f"s_branch L_PJ{tag}", quick=True)
            A.label(f"L_PF{tag}", quick=True); A(text); A.label(f"L_PJ{tag}", quick=True)
        else: A(text + " sc1")
    if 't' not in SKIP: pub("M", f"global_store_dwordx2 v{T+2}, v[{T}:{T+1}], {ws} offset:512")
    A("s_mov_b64 exec, -1")
    A.label("L_NOF"); A.comment("PV")
    A(f"v_mov_b32 v{T+2}, 1"); A(f"v_mov_b32 v{T+3}, {L_CNTO}"); A(f"v_lshrrev_b32 v{T+4}, 1, v{vH6}")
    if TAGS: A(f"v_lshrrev_b32 v{T+1}, 16, v{vTAG}"); A(f"s_mov_b32 s{sB8}, 0xffff")
    for i in range(33):
        if i < 32:
            Bx = B0 if i % 2 == 0 else B1
            for k in range(4): A(f"v_and_b32 v{Bx+k}, v{sreg(i)}, v{MK+k}")
        if i > 0:
            Bp = B0 if (i-1) % 2 == 0 else B1
            assert issued > 32 + i - 1
            A(f"s_waitcnt vmcnt({issued - (32 + i)})")
            A(f"v_mfma_f32_16x16x32_bf16 {rng(D)}, {vreg(i-1)}, {rng(Bp)}, {'0' if i == 1 else rng(D)}")
            more(SCH_PV.get(i-1, 0))
    assert issued == 64
    if SKW:
        A(f"s_cmp_eq_u32 s{sX8}, 0"); A("s_cbranch_scc1 L_NP8")
        for a in range(4):
            Bc = B0 if a % 2 == 0 else B1
            for k in range(4): A(f"v_and_b32 v{Bc+k}, v{S8+a}, v{MK+k}")
            A(f"v_mfma_f32_16x16x32_bf16 {rng(D)}, {rng(ks(V8[a]))}, {rng(Bc)}, {rng(D)}")
        A.label("L_NP8")
    stamp(10)
    if 't' in SKIP: A("s_branch L_EXIT")
    A(f"ds_write_b128 v{vLs}, {rng(D)} offset:{L_OW}")
    A("s_mov_b64 exec, 1"); A(f"ds_add_rtn_u32 v{T+5}, v{T+3}, v{T+2}"); A("s_mov_b64 exec, -1")
    A("s_waitcnt lgkmcnt(0)")
    A(f"v_readfirstlane_b32 s{sT2}, v{T+5}")
    A(f"s_cmp_lg_u32 s{sT2}, 7"); A("s_cbranch_scc1 L_NOPUB", quick=True)
    OO = 40; FR = 72
    A(f"ds_read_b128 {rng(FR)}, v{T+4} offset:{L_FW}"); A(f"ds_read_b128 {rng(FR+4)}, v{T+4} offset:{L_FW+16}")
    for k in range(8): A(f"ds_read_b128 {rng(OO+4*k)}, v{vOFF} offset:{L_OW+1024*k}")
    for k in range(8):
        A(f"s_waitcnt lgkmcnt({7-k})")
        for c in range(4):
            if k == 0: A(f"v_mul_f32 v{D+c}, v{FR}, v{OO+c}")
            else: A(f"v_fmac_f32 v{D+c}, v{FR+k}, v{OO+4*k+c}")
    if TAGS and RNDT:
        A(f"v_bfe_u32 v{T+5}, v{D}, 17, 1"); A(f"v_add3_u32 v{D}, v{D}, v{T+5}, s{sB8}"); A(f"v_and_b32 v{D}, 0xfffe0000, v{D}")
    A(f"v_cvt_pk_bf16_f32 v{D}, v{D}, v{D+1}"); A(f"v_cvt_pk_bf16_f32 v{D+1}, v{D+2}, v{D+3}")
    if TAGS: A(f"v_bfi_b32 v{D}, 1, v{T+1}, v{D}")
    else: A(f"v_min_u32 v{D}, -2, v{D}"); A(f"v_min_u32 v{D+1}, -2, v{D+1}")
    pub("O", f"global_store_dwordx2 v{vM}, v[{D}:{D+1}], {ws}")
    if MLFIRST or MLAT: A(f"ds_write_b32 v{T+3}, v{T+2} offset:{L_PUBD - L_CNTO}")
    stamp(3)
    A.label("L_NOPUB"); A.comment("wave 1: o @ wo slice (hop 1); wave 2: final sum and output (hop 2)")
    A(f"s_cmp_eq_u32 s{sW}, 2"); A("s_cbranch_scc1 L_HOP2")
    if H1W == 2: A(f"s_and_b32 s{sT2}, s{sW}, 5"); A(f"s_cmp_lg_u32 s{sT2}, 1"); A("s_cbranch_scc1 L_EXIT")
    else: A(f"s_cmp_lg_u32 s{sW}, 1"); A("s_cbranch_scc1 L_EXIT")

    def checkAB(tag, va, vd):
        A(f"s_mov_b32 s{sCNT}, {LIMIT}")
        A(f"v_and_b32 v{va}, 15, v{vL}"); A(f"v_lshlrev_b32 v{va}, 4, v{va}"); (A(f"v_bfe_u32 v{vd}, v{vL}, 4, 1"), A(f"v_lshl_add_u32 v{va}, v{vd}, 2, v{va}")) if not YTAG else None
        A.label(f"L_CB{tag}")
        A(f"global_load_dword v{vd}, v{va}, s[{sDBG}:{sDBG+1}] sc1"); A("s_waitcnt vmcnt(0)")
        if FAST: A(f"v_and_b32 v{vd+1}, 0xff, v{vd}")
        A(f"v_cmp_ne_u32 vcc, 16, v{vd+1 if FAST else vd}"); A(f"s_cbranch_vccz L_CB{tag}_OK")
        A("s_sleep 16"); A(f"s_sub_u32 s{sCNT}, s{sCNT}, 1"); A(f"s_cmp_lg_u32 s{sCNT}, 0"); A(f"s_cbranch_scc1 L_CB{tag}")
        A.label(f"L_CB{tag}_OK")
    def red32(v, t):
        A(f"v_add_f32 v{v}, v{v}, v{v+1}"); A(f"v_add_f32 v{v+2}, v{v+2}, v{v+3}"); A(f"v_add_f32 v{v}, v{v}, v{v+2}")
        A(f"v_add_f32_dpp v{v}, v{v}, v{v} row_ror:8{dm}")
        xrow(v, t, "v_add_f32")
    RAW = 120; vA = 160; vMLa = 161; vSP = 162; vH2 = 160; vOA = 161
    checkAB("T", T, T+1)
    if YLOC:
        assert MAP == "kvh" and FAST
        A(f"s_getreg_b32 s{sXC}, hwreg(HW_REG_XCC_ID)"); A(f"s_and_b32 s{sXC}, s{sXC}, 15"); A(f"s_mul_i32 s{sT2}, s{sXC}, s{sXC}")
        A(f"s_lshl_b32 s{sT2}, s{sT2}, 8"); A(f"s_add_u32 s{sT2}, s{sT2}, s{sXC}"); A(f"s_lshl_b32 s{sT2}, s{sT2}, 8"); A(f"s_add_u32 s{sT2}, s{sT2}, 1"); A(f"s_lshl_b32 s{sXC}, s{sT2}, 4")
        A(f"s_add_u32 s{sT3}, s{sYC}, 8"); A(f"v_readlane_b32 s{sT}, v{T+1}, s{sYC}"); A(f"v_readlane_b32 s{sT2}, v{T+1}, s{sT3}")
        A(f"s_cmp_eq_u32 s{sT}, s{sXC}"); A(f"s_cselect_b32 s{sT}, 1, 2"); A(f"s_cmp_eq_u32 s{sT2}, s{sXC}"); A(f"s_cselect_b32 s{sT}, s{sT}, 2")
        A(f"v_mov_b32 v{T}, {L_AOK}"); A(f"v_mov_b32 v{T+1}, s{sT}"); A(f"ds_write_b32 v{T}, v{T+1}")
    elif YTAG: A(f"v_mov_b32 v{T}, {L_AOK}"); A(f"v_mov_b32 v{T+1}, 1"); A(f"ds_write_b32 v{T}, v{T+1}")
    ldswait("WW", L_CNTW, 3, 2)
    A(f"v_lshrrev_b32 v{T}, 4, v{vL}"); A(f"v_mul_u32_u24 v{T}, 288, v{T}"); A(f"v_and_b32 v{T+1}, 15, v{vL}"); A(f"v_lshl_add_u32 v{T}, v{T+1}, 1, v{T}")
    if H1W == 2:
        A(f"s_sub_u32 s{sT}, s{sW}, 1"); A(f"s_lshl_b32 s{sT}, s{sT}, 5"); A(f"v_add_u32 v{T}, s{sT}, v{T}")
    for n in (range(5) if H1W == 1 else (0, 1, 4)):
        for t in range(4):
            for e_ in range(8): A(f"ds_read_u16 v{RAW+e_}, v{T} offset:{L_WO + 32*n + (32*t + 8*(e_&3) + (e_>>2))*144}")
            A("s_waitcnt lgkmcnt(0)")
            for k in range(4): A(f"v_lshl_or_b32 v{40+16*n+4*t+k}, v{RAW+2*k+1}, 16, v{RAW+2*k}")
    assert H1W == 1
    addr_in1(vA, vMLa, T); addr_sp(vSP, T)
    vTB = vSP + 3
    if TAGS:
        for k in range(3): A(f"v_lshrrev_b32 v{vTB+k}, {18+k}, v{vTAG}")

    def maxchain(dst, regs):
        A(f"v_max3_u32 v{dst}, v{regs[0]}, v{regs[1]}, v{regs[2]}")
        k = 3
        while k < len(regs):
            if k + 1 < len(regs): A(f"v_max3_u32 v{dst}, v{dst}, v{regs[k]}, v{regs[k+1]}"); k += 2
            else: A(f"v_max_u32 v{dst}, v{dst}, v{regs[k]}"); k += 1
    def pollmask(tag, loads, regs):
        sl = {"HM": MSL, "H1": H1SL, "H2": H2SL, "HY": YSL}[tag]
        if TAGS:
            n_, sh_ = {"HM": (4, 8), "H1": (8, 0), "H2": (4, 12), "HY": (4, 24)}[tag]
            A(f"v_lshlrev_b32 v{T+1}, {32 - n_ - sh_}, v{vTAG}")
        A(f"s_mov_b32 s{sCNT}, {LIMIT}")
        A.label(f"L_{tag}")
        loads()
        A("s_waitcnt vmcnt(0)")
        if TAGS:
            tg, sh = {"HM": (regs[1::2], 8), "H1": (regs[0::2], 0), "H2": (regs, 12), "HY": (regs, 24)}[tag]
            A(f"v_alignbit_b32 v{T}, v{tg[0]}, v{tg[0]}, 1")
            for r in tg[1:]: A(f"v_alignbit_b32 v{T}, v{r}, v{T}, 1")
            A(f"v_xor_b32 v{T}, v{T}, v{T+1}"); A(f"v_cmp_le_u32 vcc, {hx(1 << (32 - len(tg)))}, v{T}"); A(f"s_cbranch_vccz L_{tag}_OK")
        else:
            if len(regs) > 8:
                h = len(regs) // 2
                maxchain(T, regs[:h]); maxchain(T+1, regs[h:]); A(f"v_max_u32 v{T}, v{T}, v{T+1}")
            else: maxchain(T, regs)
            A(f"v_cmp_eq_u32 vcc, -1, v{T}"); A(f"s_cbranch_vccz L_{tag}_OK")
        A("s_mov_b64 exec, vcc")
        if sl: A(f"s_sleep {sl}")
        A(f"s_sub_u32 s{sCNT}, s{sCNT}, 1"); A(f"s_cmp_lg_u32 s{sCNT}, 0"); A(f"s_cbranch_scc1 L_{tag}")
        A.label(f"L_{tag}_OK")
        A("s_mov_b64 exec, -1")
        if TAGS:
            for r in {"HM": regs[1::2], "H1": regs[0::2], "H2": regs, "HY": regs}[tag]: A(f"v_and_b32 v{r}, -2, v{r}")

    AA = 136; ML = 152; WN = 24
    A(f"v_mov_b32 v{vSP+1}, 1"); A(f"v_mov_b32 v{vSP+2}, {L_SPD}")
    if MLAT == 'last': ldswait("OW", L_CNTL, 4 if EFAST else 8, 1)
    elif MLAT == 'o5': ldswait("OW", L_CNTO, 5, 1, "ge")
    elif MLFIRST: ldswait("OW", L_CNTI, 8, 4)
    else: ldswait("OW", L_CNTO, 8, 1); stamp(6)
    pollmask("HM", lambda: [A(f"global_load_dwordx2 v[{ML+2*i}:{ML+2*i+1}], v{vMLa}, {ws} offset:{640*i} sc1") for i in range(4)], list(range(ML, ML+8)))
    m = [ML, ML+2, ML+4, ML+6]; l = [ML+1, ML+3, ML+5, ML+7]
    def aloads():
        for t in range(4): A(f"global_load_dwordx4 {rng(AA+4*t)}, v{vA}, {ws} offset:{64*t} {F1}")
    A(f"v_max3_f32 v{T}, v{m[0]}, v{m[1]}, v{m[2]}"); A(f"v_max_f32 v{T}, v{T}, v{m[3]}")
    A(f"v_mov_b32 v{T+1}, v{T}"); A(f"v_permlane16_swap_b32 v{T+1}, v{T}"); A(f"v_max_f32 v{T}, v{T+1}, v{T}")
    for i in range(4): A(f"v_sub_f32 v{m[i]}, v{m[i]}, v{T}")
    for i in range(4): A(f"v_exp_f32 v{m[i]}, v{m[i]}")
    A(f"v_mul_f32 v{T+2}, v{m[0]}, v{l[0]}")
    for i in range(1, 4): A(f"v_fmac_f32 v{T+2}, v{m[i]}, v{l[i]}")
    A(f"v_mov_b32 v{T+1}, v{T+2}"); A(f"v_permlane16_swap_b32 v{T+1}, v{T+2}"); A(f"v_add_f32 v{T+2}, v{T+1}, v{T+2}")
    A(f"v_rcp_f32 v{T+2}, v{T+2}")
    for i in range(4): A(f"v_mul_f32 v{WN+i}, v{m[i]}, v{T+2}")
    if MLFIRST or MLAT:
        ldswait("PW", L_PUBD, 1, 1); stamp(6)
        if H1DELAY: A(f"s_sleep {H1DELAY}")
    pollmask("H1", aloads, list(range(AA, AA+16)))
    stamp(7)
    def mf(t, n): return f"v_mfma_f32_16x16x32_bf16 {rng(4+4*n)}, {rng(AA+4*t)}, {rng(40+16*n+4*t)}, {'0' if t == 0 else rng(4+4*n)}"
    def epi(n): return [f"v_mul_f32 v{T+n}, v{WN}, v{4+4*n}"] + [f"v_fmac_f32 v{T+n}, v{WN+i}, v{4+4*n+i}" for i in range(1, 4)]
    def fin2(n): return [f"v_permlane16_swap_b32 v{T+n-1}, v{T+n}", f"v_add_f32 v{T+n}, v{T+n-1}, v{T+n}", (f"v_bfi_b32 v{T+n}, 1, v{vTB+n//2}, v{T+n}" if TAGS else f"v_min_u32 v{T+n}, -2, v{T+n}"),
                         f"global_store_dword v{vSP}, v{T+n}, {ws} offset:{128*(n//2)} {FS}"]
    def fin4(): return [f"v_mov_b32 v{T+5}, v{T+4}", None, None, f"v_permlane16_swap_b32 v{T+5}, v{T+4}", f"v_add_f32 v{T+4}, v{T+5}, v{T+4}", (f"v_bfi_b32 v{T+4}, 1, v{vTB+2}, v{T+4}" if TAGS else f"v_min_u32 v{T+4}, -2, v{T+4}")] + \
                       ([] if FULL else ["s_mov_b32 exec_lo, 0xff", "s_mov_b32 exec_hi, 0xff"]) + [f"global_store_dword v{vSP}, v{T+4}, {ws} offset:256 {FS}"] + ([] if FULL else ["s_mov_b64 exec, -1"])
    if H1W == 2:
        for t in range(4): A(mf(t, 0)); A(mf(t, 1))
        A(f"s_cmp_eq_u32 s{sW}, 3"); A("s_cbranch_scc1 L_H1B", quick=True)
        side = [None, None] + epi(0) + epi(1) + [None] + fin2(1)
        for t in range(4):
            A(mf(t, 4))
            for _ in range(4):
                if side:
                    x = side.pop(0)
                    if x: A(x)
        for x in side + epi(4) + fin4():
            if x: A(x)
        A("s_branch L_H1C")
        A.label("L_H1B", quick=True)
        A("s_nop 5")
        for x in epi(0) + epi(1) + fin2(1): A(x)
        A.label("L_H1C")
    elif REORD:
        for t in range(4): A(mf(t, 4)); A(mf(t, 0))
        side = [None, None] + epi(4) + fin4()
        for t in range(4):
            A(mf(t, 1))
            for _ in range(4):
                if side:
                    x = side.pop(0)
                    if x: A(x)
        for x in side:
            if x: A(x)
        side = epi(0) + [None] + epi(1) + [None] + fin2(1)
        for t in range(4):
            for n in (2, 3):
                A(mf(t, n))
                for _ in range(2):
                    if side:
                        x = side.pop(0)
                        if x: A(x)
        for x in side:
            if x: A(x)
        for x in epi(2) + epi(3) + fin2(3): A(x)
    else:
        for t in range(4):
            for n in range(5): A(mf(t, n))
        for x in epi(0) + epi(1) + fin2(1) + epi(2) + epi(3) + fin2(3) + epi(4) + fin4():
            if x: A(x)
    A(f"ds_write_b32 v{vSP+2}, v{vSP+1}")
    A("s_mov_b64 exec, -1")
    stamp(9)
    A("s_branch L_EXIT")

    A.label("L_HOP2"); A.comment("hop 2")
    A(f"s_cmp_ge_u32 s2, 144"); A("s_cbranch_scc1 L_EXIT")
    YY = 120
    if not YTAG: checkAB("G", T, T+1)
    sCH = sPASS
    addr_in2(vH2, vOA, sCH)
    A(f"v_add_u32 v{T}, {W_YP - W_SP}, v{vH2}")
    if YTAG: A(f"v_mov_b32 v{YY+6}, v{T}")
    else:
        for k in range(4): A(f"global_load_dword v{YY+k}, v{T}, {ws} offset:{SL*k} sc1")
    A(f"v_lshlrev_b32 v{vOA}, 1, v{vOA}"); A(f"s_lshl_b32 s{sT}, s{sCH}, 4"); A(f"v_add_u32 v{vOA}, s{sT}, v{vOA}")
    A(f"global_load_ushort v{vXo}, v{vOA}, s[{sX}:{sX+1}]")
    A(f"v_mov_b32 v{T+1}, 0")
    A(f"global_load_ushort v{YY+4}, v{T+1}, s[{sB2}:{sB2+1}]")
    if YTAG:
        ldswait("YW", L_CNTI, 8, 4)
        pollmask("HY", lambda: [A(f"global_load_dword v{YY+k}, v{YY+6}, {ws} offset:{SL*k} sc1") for k in range(4)], list(range(YY, YY+4)))
    A("s_waitcnt vmcnt(0)")
    red32(YY, YY+5)
    rnd1(YY); A(f"v_lshlrev_b32 v{YY+4}, 16, v{YY+4}"); A(f"v_add_f32 v{YY}, v{YY}, v{YY+4}"); rnd1(YY)
    A(f"v_mul_f32 v{YY+1}, {hx(f2u(-LOG2E))}, v{YY}"); A(f"v_exp_f32 v{YY+1}, v{YY+1}"); A(f"v_add_f32 v{YY+1}, 1.0, v{YY+1}"); A(f"v_rcp_f32 v{YY+1}, v{YY+1}")
    A(f"v_mul_f32 v{vG}, v{YY}, v{YY+1}"); rnd1(vG)
    A(f"v_lshlrev_b32 v{vXo}, 16, v{vXo}")
    SS = 112
    if H2WAIT == "sp": ldswait("OW2", L_SPD, 1, 1)
    else: ldswait("OW2", L_CNTO, 8, 1)
    if H2DELAY: A(f"s_sleep {H2DELAY}")
    pollmask("H2", lambda: [A(f"global_load_dword v{SS+k}, v{vH2}, {ws} offset:{SL*k} {F2}") for k in range(4)], list(range(SS, SS+4)))
    stamp(7)
    red32(SS, T)
    rnd1(SS); A(f"v_mul_f32 v{SS}, v{SS}, v{vG}"); rnd1(SS); A(f"v_add_f32 v{SS}, v{SS}, v{vXo}")
    A(f"v_cvt_pk_bf16_f32 v{SS}, v{SS}, v{SS}")
    A("s_mov_b64 exec, 0xff")
    A(f"global_store_short v{vOA}, v{SS}, s[{sOUT}:{sOUT+1}]")
    A("s_mov_b64 exec, -1")
    A.label("L_EXIT")
    if ECHO:
        stamp(11); A("s_waitcnt lgkmcnt(0)")
        A(f"s_cmp_lg_u32 s2, 0"); A("s_cbranch_scc1 L_END")
        A(f"s_cmp_lg_u32 s{sW}, {ECHO[0]}"); A("s_cbranch_scc1 L_END")
        A(f"s_sub_u32 s{sT}, s{SB+2*ECHO[1]}, s{SB}"); A(f"s_lshl_b32 s{sT}, s{sT}, 2"); A(f"s_add_u32 s{sT}, s{sT}, 4000"); A(f"s_add_u32 s{sT}, s{sT}, s{SB}")
        A.label("L_ECHO")
        A(f"s_memrealtime s[{sR}:{sR+1}]"); A("s_waitcnt lgkmcnt(0)"); A(f"s_sub_u32 s{sT2}, s{sR}, s{sT}"); A(f"s_cmp_lt_i32 s{sT2}, 0"); A("s_cbranch_scc1 L_ECHO")
    elif STAMP:
        stamp(11)
        A("s_waitcnt lgkmcnt(0) vmcnt(0)")
        A(f"s_lshl_b32 s{sT}, s2, 3"); A(f"s_add_u32 s{sT}, s{sT}, s{sW}"); A(f"s_mul_i32 s{sT}, s{sT}, {NST*8}"); A(f"s_add_u32 s{sT}, s{sT}, {W_ST}")
        A(f"v_mov_b32 v3, s{sT}")
        for k in range(2*NST): A(f"v_mov_b32 v{40+k}, s{SB+k}")
        A("s_mov_b64 exec, 1")
        for q in range(NST // 2): A(f"global_store_dwordx4 v3, {rng(40+4*q)}, {ws} offset:{16*q}")
    A.label("L_END")
    A("s_endpgm")
    svc = A.lines[MARK_SERVICE:MARK_STREAM2]
    assert A.lines[MARK_SERVICE-1].strip() == "s_branch L_STREAM2"
    A.lines = A.lines[:MARK_SERVICE-1] + A.lines[MARK_STREAM2:] + svc + ["    s_branch L_STREAM2", "L_CODE_END:"]
    A.raw(".set CODE_KB, (L_CODE_END - L_PC0) >> 10" if PF else "")
    A.raw("    s_endpgm"); A.raw(".fill 260, 4, 0xbf800000")
    A.raw('.section .rodata,"a"'); A.raw(".p2align 6"); A.raw(f".amdhsa_kernel {KN}_kernel")
    A.raw("  .amdhsa_next_free_vgpr 256"); A.raw("  .amdhsa_next_free_sgpr 102"); A.raw("  .amdhsa_accum_offset 168")
    A.raw("  .amdhsa_group_segment_fixed_size 0"); A.raw("  .amdhsa_kernarg_size 104"); A.raw("  .amdhsa_user_sgpr_count 2")
    A.raw("  .amdhsa_user_sgpr_kernarg_segment_ptr 1"); A.raw("  .amdhsa_system_sgpr_workgroup_id_x 1")
    A.raw("  .amdhsa_float_denorm_mode_32 3")
    A.raw(".end_amdhsa_kernel")
    return A.text()

if __name__ == "__main__":
    out = sys.argv[1]
    kw = eval("dict(" + (sys.argv[2] if len(sys.argv) > 2 else "") + ")")
    open(out, "w").write(gen(**kw))
```

```python
import sys, struct, math
sys.path.insert(0, __file__.rsplit("/", 1)[0] if "/" in __file__ else ".")
from asmlib import Asm
KN = "recurrent_scan__gqa_block_cached__mixer_token_mlp__decode"
def f2u(x): return struct.unpack("<I", struct.pack("<f", x))[0]
def hx(x): return f"0x{x & 0xffffffff:08x}"
LOG2E = 1.4426950408889634
SCALE = 128 ** -0.5
L_MISC = 0
L_QFLAG = 0; L_CNTB = 4; L_CNTI = 8; L_CNTO = 12; L_CNTW = 16; L_SPD = 20; L_PUBD = 24; L_CNTL = 28; L_AOK = 32; L_SNOK = 36
L_MLW = 64; L_FW = 192; L_Q = 256; L_TAG = 768; L_OW = 1024; L_XL = L_OW + 8192; L_WO = L_XL + 4 * 2304; L_WQ = L_WO + 128 * 144 + 64; L_END = L_WQ + 18432
W_QP = 0; W_REC = 0x40000; W_SP = 0x70000; W_YP = 0xA8000; W_PC = 0xE0000; W_ST = 128 << 20
LIMIT = 1 << 15
OOB = 0x200000

def gen(MAP="kvh", CMAP=False, NT=True, ROUND=True, STAMP=False, NPRE=36, NEARLY=54, SCH_QK=(2,)*8, SCH_SM=(1,)*8, SCH_PV={3:1,7:1,11:1,15:1},
        NSIG=8, ECHO=None, H2WAIT="sp", H2DELAY=0, WONT=False, EPRIO=1, PF=0, NFIRST=8, EXTRA=0, WOAT=20, JJ=False, ROT=2, SKIP='', W0INL=False, NS0=False, DELAY1=False, THR=0, MLFIRST=False, H1DELAY=0, MSL=0, H1SL=0, H2SL=0, FULL=True, HS=227, PSL=2, F1='sc1', F2='sc1', FS='sc1', C2MAP=True, REORD=True, QBF=False, SKW=0, EFAST=True, H1W=1, MLAT='last', P0=3, NS0P=None, TAGS=True, RNDT=False, QCOL=True, NRG=4, YTAG=True, YAT='qk', YSL=32, SNLATE=True, SNW5=True, GFLAG=False, SK2=True, FAST=True, YLOC=True, QPL=True, PKF=True, FORCE2=False, JP=0, XL_=0, WQF='nt'):
    SL = 768 if FULL else 640; BO = 384 if FULL else 288
    GL = 8; BAR2 = False; GATE_AT = 99; NWORK = 4
    JPERM = {0: lambda i: i, 1: lambda i: ((i & 3) << 3) | (i >> 2), 2: lambda i: ((i & 1) << 1) | ((i >> 1) & 1) | (i & 28)}[JP]
    JOFF = {0: lambda i: JPERM(i) << 12, 1: lambda i: ((i & 3) << 10) | ((i >> 2) << 14), 2: lambda i: ((i >> 3) << 10) | ((i & 7) << 14), 3: lambda i: ((i & 1) << 11) | ((i >> 1) << 13)}[XL_]
    WSH = {0: 10, 1: 8, 2: 8, 3: 9}[XL_]
    A = Asm()
    nt = " nt" if NT else ""
    NST = 12; SB = 76
    POOL = GL < 8
    UPW = 8 - GL if POOL else 0
    NUNIT = 32 * UPW
    if ECHO: STAMP = True
    A.raw(f"; @launch grid=(256,1,1) block=(512,1,1) lds={(L_END + 255) // 256 * 256}")
    if STAMP and not ECHO: A.raw(f"; STAMPS nrec=2048 n={NST}")
    for ln in """
; out = x + attn(LN(x)) * silu(mixer(LN(x))) for B=2, D=576, Hq=32, Hkv=16, Sk=8192, Dh=128, F=4608 -- one launch, 256 workgroups x 8 waves.
; Workgroup = (kv head g, batch b, key split sp): 1024 keys of K and V, streamed straight into registers (nt loads).
;   waves 1-4 start streaming at once; wave 0 first computes a 144 x 64 slice of q = LN(x) @ wq for head pair g, waves 5-7 first
;   compute a 144 x 144 slice of the token-mixing MLP; then they stream too.
;   QK: v_dot2 + DPP reduce; softmax with the true per-wave max; PV: one 16x16x32 MFMA per 4 keys (B = diag-expanded p).
; Hand-offs between workgroups (payload always loaded sc1; stored sc1, or plain when the counter words show that writer and
; readers sit on one XCD -- every arrival adds its XCC id and its square, so the sums tell whether all ids are equal):
;   q slices: counter in d_debug (zero at launch) -> the last arriver bumps the members' flag words -> members sum the 4 slices
;   (spread group: the slices are stored again, written through, and the group meets a second time).
;   (m,l), o partials, y partials and s = o @ wo partials: slots in d_ws. Before it bumps the counter a workgroup reads the low bit
;   of every slot word it will write or wait for; writers store the opposite bit, readers poll until every bit has flipped and
;   then clear it, so what d_ws held on entry only tells new words from old ones.
; kernarg: x 0, K 8, V 16, wq 24, wo 32, B_x 40 (unused by the reference), w1 48, b1 56, w2 64, b2 72, out 80, debug 88, ws 96
""".strip().splitlines(): A.raw(ln)
    A.raw('.amdgcn_target "amdgcn-amd-amdhsa--gfx950"')
    A.raw(".text"); A.raw(f".globl {KN}_kernel"); A.raw(".p2align 8"); A.raw(f".type {KN}_kernel,@function"); A.raw(f"{KN}_kernel:")
    def stamp(k):
        if STAMP: A(f"s_memrealtime s[{SB+2*k}:{SB+1+2*k}]")
    sX, sK, sV, sWQ, sWO, sW1, sB1, sW2, sB2, sOUT, sDBG, sWS = 4, 6, 8, 10, 12, 16, 18, 20, 22, 24, 26, 28
    KS, VS = 32, 36
    sW, sG, sB, sSP, sJ, sLATE, sCG, sP, sBASE, sT, sT2, sT3, sCNT, sPASS, sC1, sREC = range(40, 56)
    sA = 56; sPC = 58; sBASE2 = 59; sR = 60; sU = 64; sNX = 66; sBIAS = 67; sQP = 68; sRG = 69; sSPB = 70; sX8 = 71; sB8 = 72; sF0 = 73; sFAST = 74; sXC = 75; sYB = 30; sYP = 31; sYC = 3
    vL, vOFF = 1, 2
    D = 4; QA = 8; QB = 12; MK = 16; B0 = 20; B1 = 24; T = 28; vM = 36; vLs = 37; vG = 38; vXo = 39
    KB = 40
    def ks(i): return KB + 4 * i
    def rng(r, n=4): return f"v[{r}:{r+n-1}]"
    dm = " row_mask:0xf bank_mask:0xf"
    ws = f"s[{sWS}:{sWS+1}]"
    stamp(0)
    A("s_load_dwordx16 s[4:19], s[0:1], 0"); A("s_load_dwordx8 s[20:27], s[0:1], 64"); A("s_load_dwordx2 s[28:29], s[0:1], 96")
    A("v_lshrrev_b32 v3, 6, v0"); A(f"v_and_b32 v{vL}, 63, v0")
    A("s_cmp_ge_u32 s2, 256"); A("s_cbranch_scc1 L_END")
    A(f"v_readfirstlane_b32 s{sW}, v3"); A(f"v_lshlrev_b32 v{vOFF}, 4, v{vL}")
    if MAP == "kvh":
        A(f"s_and_b32 s{sG}, s2, 7"); A(f"s_lshr_b32 s{sT}, s2, 7"); A(f"s_lshl_b32 s{sT}, s{sT}, 3"); A(f"s_or_b32 s{sG}, s{sG}, s{sT}")
        A(f"s_bfe_u32 s{sJ}, s2, 0x40003")
    elif MAP == "pair":
        A(f"s_bfe_u32 s{sG}, s2, 0x20001"); A(f"s_lshr_b32 s{sT}, s2, 6"); A(f"s_lshl_b32 s{sT}, s{sT}, 2"); A(f"s_or_b32 s{sG}, s{sG}, s{sT}")
        A(f"s_bfe_u32 s{sJ}, s2, 0x30003"); A(f"s_lshl_b32 s{sJ}, s{sJ}, 1"); A(f"s_and_b32 s{sT}, s2, 1"); A(f"s_or_b32 s{sJ}, s{sJ}, s{sT}")
    else:
        A(f"s_lshr_b32 s{sG}, s2, 4"); A(f"s_and_b32 s{sJ}, s2, 15")
    A(f"s_and_b32 s{sSP}, s{sJ}, 7"); A(f"s_lshr_b32 s{sB}, s{sJ}, 3")
    A(f"s_and_b32 s{sT}, s{sW}, 3"); A(f"s_lshl_b32 s{sBASE}, s{sT}, {12 if JJ else WSH}")
    A(f"s_add_u32 s{sT}, s{sW}, 7"); A(f"s_bfe_u32 s{sLATE}, s{sT}, 0x10002"); A(f"s_lshl_b32 s{sT}, s{sLATE}, 17"); A(f"s_or_b32 s{sBASE}, s{sBASE}, s{sT}")
    A(f"s_lshl_b32 s{sT}, s{sSP}, 18"); A(f"s_or_b32 s{sBASE}, s{sBASE}, s{sT}")
    if ROT == 2: A(f"s_bfe_u32 s{sT}, s2, 0x30003"); A(f"s_lshl_b32 s{sT}, s{sT}, 12"); A(f"s_or_b32 s{sBASE}, s{sBASE}, s{sT}")
    elif ROT == 3: A(f"s_lshr_b32 s{sT}, s2, 3"); A(f"s_lshl_b32 s{sT}, s{sT}, 12"); A(f"s_or_b32 s{sBASE}, s{sBASE}, s{sT}")
    elif ROT == 4: A(f"s_and_b32 s{sT}, s2, 7"); A(f"s_lshl_b32 s{sT}, s{sT}, 12"); A(f"s_or_b32 s{sBASE}, s{sBASE}, s{sT}")
    elif ROT == 5: A(f"s_and_b32 s{sT}, s2, 31"); A(f"s_lshl_b32 s{sT}, s{sT}, 12"); A(f"s_or_b32 s{sBASE}, s{sBASE}, s{sT}")
    elif ROT:
        A(f"s_or_b32 s{sT}, s2, 1"); A(f"s_mul_i32 s{sT}, s{sT}, 0x9E3779B1"); A(f"s_lshr_b32 s{sT}, s{sT}, {29 if JJ else 27}"); A(f"s_lshl_b32 s{sT}, s{sT}, {14 if JJ else 12}"); A(f"s_or_b32 s{sBASE}, s{sBASE}, s{sT}")
    A(f"s_lshl_b32 s{sT}, s{sB}, 4"); A(f"s_or_b32 s{sT}, s{sT}, s{sG}"); A(f"s_lshl_b32 s{sT}, s{sT}, 21")
    A(f"s_and_b32 s{sT2}, s{sJ}, 1"); A(f"s_lshr_b32 s{sRG}, s{sJ}, 1")
    A(f"s_lshl_b32 s{sQP}, s{sG}, 1"); A(f"s_or_b32 s{sQP}, s{sQP}, s{sT2}")
    A(f"s_mov_b32 s{KS+2}, {OOB}"); A(f"s_mov_b32 s{KS+3}, 0x20000"); A(f"s_mov_b32 s{VS+2}, {OOB}"); A(f"s_mov_b32 s{VS+3}, 0x20000")
    vSO = vOFF
    if XL_:
        vSO = vXo
        sh = {1: 12, 2: 12, 3: 9}[XL_]
        A(f"v_lshrrev_b32 v{vSO}, 4, v{vL}"); A(f"v_and_b32 v3, 15, v{vL}")
        if XL_ == 3:
            A(f"v_and_b32 v{T}, 1, v{vSO}"); A(f"v_lshrrev_b32 v{vSO}, 1, v{vSO}"); A(f"v_lshlrev_b32 v{vSO}, 12, v{vSO}"); A(f"v_lshl_add_u32 v{vSO}, v{T}, 8, v{vSO}")
        else: A(f"v_lshlrev_b32 v{vSO}, 12, v{vSO}")
        A(f"v_lshl_add_u32 v{vSO}, v3, 4, v{vSO}")
    if STAMP:
        for k in range(1, NST): A(f"s_mov_b64 s[{SB+2*k}:{SB+1+2*k}], 0")
    A("s_waitcnt lgkmcnt(0)")
    stamp(1)
    A(f"s_add_u32 s{KS}, s{sK}, s{sT}"); A(f"s_addc_u32 s{KS+1}, s{sK+1}, 0")
    A(f"s_add_u32 s{VS}, s{sV}, s{sT}"); A(f"s_addc_u32 s{VS+1}, s{sV+1}, 0")
    X = 40; E = 50; vXO = 3; WQ = 96
    def xloads():
        A(f"v_lshrrev_b32 v{T}, 5, v{vL}"); A(f"v_mul_u32_u24 v{T}, 1152, v{T}")
        A(f"v_and_b32 v{vXO}, 31, v{vL}"); A(f"v_lshl_add_u32 v{vXO}, v{vXO}, 2, v{T}")
        for k in range(9): A(f"global_load_dword v{X+k}, v{vXO}, s[{sX}:{sX+1}] offset:{128*k}")
    def wqloads():
        A(f"s_mov_b32 s{sR}, s{sWQ}"); A(f"s_mov_b32 s{sR+1}, s{sWQ+1}"); A(f"s_mov_b32 s{sR+2}, {576*8192}"); A(f"s_mov_b32 s{sR+3}, 0x20000")
        if QCOL:
            lc = {4: 3, 2: 2}[NRG]; lq = {4: 2, 2: 3}[NRG]
            A(f"v_lshrrev_b32 v{T+4}, {lc}, v{vL}"); A(f"v_lshlrev_b32 v{T+4}, 13, v{T+4}"); A(f"v_and_b32 v{T+1}, {(1<<lc)-1}, v{vL}"); A(f"v_lshl_add_u32 v{T+4}, v{T+1}, 4, v{T+4}")
            A(f"s_lshr_b32 s{sT}, s{sJ}, {lq}"); A(f"s_mul_i32 s{sT}, s{sT}, {576//NRG*8192}"); A(f"s_lshl_b32 s{sT2}, s{sG}, 9"); A(f"s_add_u32 s{sT}, s{sT}, s{sT2}")
            A(f"s_and_b32 s{sT2}, s{sJ}, {(1<<lq)-1}"); A(f"s_lshl_b32 s{sT2}, s{sT2}, {4+lc}"); A(f"s_add_u32 s{sT}, s{sT}, s{sT2}")
            for i in range(18):
                A(f"buffer_load_dwordx4 {rng(WQ+4*i)}, v{T+4}, s[{sR}:{sR+3}], s{sT} offen {WQF}")
                if i < 17: A(f"s_add_u32 s{sT}, s{sT}, {(64>>lc)*8192}")
            return
        A(f"v_lshrrev_b32 v{T+4}, 4, v{vL}"); A(f"v_lshlrev_b32 v{T+4}, 13, v{T+4}"); A(f"v_and_b32 v{T+1}, 15, v{vL}"); A(f"v_lshl_add_u32 v{T+4}, v{T+1}, 4, v{T+4}")
        A(f"s_mul_i32 s{sT}, s{sRG}, {72*8192}"); A(f"s_lshl_b32 s{sT2}, s{sQP}, 8"); A(f"s_add_u32 s{sT}, s{sT}, s{sT2}")
        for i in range(18):
            if 'W' in SKIP: A(f"buffer_load_dwordx4 {rng(WQ+4*i)}, v{vOFF}, s[{sR}:{sR+3}], 0 offen")
            else: A(f"buffer_load_dwordx4 {rng(WQ+4*i)}, v{T+4}, s[{sR}:{sR+3}], s{sT} offen{nt}")
            if i < 17: A(f"s_add_u32 s{sT}, s{sT}, 32768")
    if W0INL and 'h' not in SKIP:
        A(f"s_cmp_lg_u32 s{sW}, 0"); A("s_cbranch_scc1 L_NOTW0")
        A("s_setprio 3")
        xloads(); wqloads()
        A("s_branch L_W0B")
        A.label("L_NOTW0")
    A(f"s_cmp_eq_u32 s{sLATE}, 1"); A("s_cbranch_scc1 L_SERVICE")
    free = [0, 1, 2, 4, 5, 6, 8, 9, 10, 12]
    def vreg(i): return f"a[{4*i}:{4*i+3}]" if i < 22 else rng(ks(free[i-22]))
    cur = [None]
    def issue(n):
        i = n % 32
        if THR and WOAT <= n < NEARLY: A(f"s_waitcnt vmcnt({THR-1})")
        dst = rng(ks(i)) if n < 32 else vreg(i)
        srd = f"s[{KS}:{KS+3}]" if n < 32 else f"s[{VS}:{VS+3}]"
        if JJ:
            if i < 4: A(f"buffer_load_dwordx4 {dst}, v{vOFF}, {srd}, s{sBASE} offen offset:{(i&3)<<10}{nt}"); return
            if cur[0] != i >> 2: A(f"s_xor_b32 s{sT}, s{sBASE}, {(i >> 2) << 14}"); cur[0] = i >> 2
            A(f"buffer_load_dwordx4 {dst}, v{vOFF}, {srd}, s{sT} offen offset:{(i&3)<<10}{nt}")
        else:
            A(f"s_xor_b32 s{sT}, s{sBASE2 if (SKW and i >= 28) else sBASE}, {JOFF(i)}"); A(f"buffer_load_dwordx4 {dst}, v{vSO}, {srd}, s{sT} offen{nt}")
    def common():
        if CMAP:
            A(f"s_and_b32 s{sP}, s2, 7"); A(f"s_lshr_b32 s{sT2}, s2, 6"); A(f"s_lshl_b32 s{sT2}, s{sT2}, 3"); A(f"s_or_b32 s{sP}, s{sP}, s{sT2}")
            A(f"s_bfe_u32 s{sCG}, s2, 0x30003")
        else:
            A(f"s_mov_b32 s{sP}, s{sQP}"); A(f"s_mov_b32 s{sCG}, s{sRG}")
        A(f"s_lshl_b32 s{sREC}, s{sG}, 4"); A(f"s_add_u32 s{sREC}, s{sREC}, s{sJ}"); A(f"s_mul_i32 s{sREC}, s{sREC}, 640"); A(f"s_add_u32 s{sREC}, s{sREC}, {W_REC}")
        A(f"s_lshl_b32 s{sSPB}, s{sCG}, 5"); A(f"s_add_u32 s{sSPB}, s{sSPB}, s{sP}"); A(f"s_mul_i32 s{sSPB}, s{sSPB}, {SL}")
        if YLOC: A(f"s_lshr_b32 s{sYP}, s2, 3"); A(f"s_and_b32 s{sYC}, s2, 7")
        else: A(f"s_mov_b32 s{sYP}, s{sP}"); A(f"s_mov_b32 s{sYC}, s{sCG}")
        A(f"s_lshl_b32 s{sYB}, s{sYC}, 5"); A(f"s_add_u32 s{sYB}, s{sYB}, s{sYP}"); A(f"s_mul_i32 s{sYB}, s{sYB}, {SL}")
        A(f"v_and_b32 v{MK+3}, 1, v{vL}"); A(f"v_lshlrev_b32 v{MK+3}, 4, v{MK+3}"); A(f"v_mov_b32 v{MK+2}, 0xffff"); A(f"v_lshlrev_b32 v{MK+3}, v{MK+3}, v{MK+2}")
        A(f"v_bfe_u32 v{QA}, v{vL}, 1, 2")
        for k in range(4):
            A(f"v_cmp_eq_u32 vcc, {k}, v{QA}"); A(f"v_cndmask_b32 v{MK+k}, 0, v{MK+3}, vcc")
        A(f"s_mov_b32 s{sC1}, {hx(f2u(LOG2E if ROUND else LOG2E * SCALE))}")
        if SKW:
            A(f"s_and_b32 s{sT2}, s{sW}, 3"); A(f"s_lshr_b32 s{sT2}, {SKW}, s{sT2}"); A(f"s_and_b32 s{sT2}, s{sT2}, 1")
            A(f"s_and_b32 s{sT3}, s{sT2}, s{sSP}"); A(f"s_and_b32 s{sT3}, s{sT3}, s{sLATE}"); A(f"s_cmp_eq_u32 s{sT3}, 1")
            A(f"s_cselect_b32 s{sBASE2}, {OOB}, s{sBASE}"); A(f"s_cselect_b32 s{sBIAS}, 0xff800000, 0")
            A(f"s_or_b32 s{sT3}, s{sSP}, s{sLATE}"); A(f"s_andn2_b32 s{sX8}, s{sT2}, s{sT3}"); A(f"s_and_b32 s{sX8}, s{sX8}, 1")
            A(f"s_or_b32 s{sB8}, s{sBASE}, 0x60000")
    if DELAY1: common()
    for n in range(NFIRST):
        issue(n)
        if n == 0: stamp(4)
    stamp(5)
    if PF:
        A(f"s_cmp_lg_u32 s{sW}, 4"); A("s_cbranch_scc1 L_NOPF")
        A(f"s_getpc_b64 s[{sA}:{sA+1}]")
        A.raw("L_PC0:")
        A(f"s_lshr_b32 s{sT2}, s2, 3"); A(f"s_mul_i32 s{sT2}, s{sT2}, {PF}"); A(f"s_and_b32 s{sT2}, s{sT2}, 31")
        for k in range(PF):
            A(f"s_add_u32 s{sT3}, s{sT2}, {k}"); A(f"s_min_u32 s{sT3}, s{sT3}, CODE_KB"); A(f"s_lshl_b32 s{sT3}, s{sT3}, 10"); A(f"v_add_u32 v{T}, s{sT3}, v{vOFF}")
            A(f"global_load_dwordx4 a[84:87], v{T}, s[{sA}:{sA+1}]")
        A.label("L_NOPF")
    if not DELAY1: common()
    A(f"v_mov_b32 v{vG}, 0")
    A(f"s_cmp_lg_u32 s{sW}, 1"); A("s_cbranch_scc1 L_NOINIT")
    A(f"v_lshlrev_b32 v3, 2, v{vL}")
    A("s_mov_b64 exec, 0xffff"); A(f"ds_write_b32 v3, v{vG} offset:{L_MISC}"); A("s_mov_b64 exec, -1")
    A("s_waitcnt lgkmcnt(0)")
    A.label("L_NOINIT")
    A("s_barrier")
    cur[0] = None
    for n in range(NFIRST, WOAT): issue(n)
    A(f"s_cmp_eq_u32 s{sW}, 4"); A("s_cbranch_scc1 L_NOWO")
    if 'o' in SKIP: A("s_branch L_NOWO")
    A(f"s_mov_b32 s{sWO+2}, {4096*1152}"); A(f"s_mov_b32 s{sWO+3}, 0x20000")
    A(f"s_sub_u32 s{sT3}, s{sW}, 1"); A(f"s_mul_i32 s{sT3}, s{sT3}, 384"); A(f"v_add_u32 v{vG}, s{sT3}, v{vL}")
    A(f"s_mul_i32 s{sT3}, s{sP}, {128*1152}"); A(f"s_mul_i32 s{sT2}, s{sCG}, 144"); A(f"s_add_u32 s{sT3}, s{sT3}, s{sT2}")
    A(f"s_mov_b32 s{sT2}, 7282")
    for k in range(6):
        A(f"v_add_u32 v{T}, {64*k}, v{vG}"); A(f"v_mul_u32_u24 v{T+1}, s{sT2}, v{T}"); A(f"v_lshrrev_b32 v{T+1}, 16, v{T+1}")
        A(f"v_mul_u32_u24 v{T+1}, {1152-144}, v{T+1}"); A(f"v_lshl_add_u32 v{T+2}, v{T}, 4, v{T+1}")
        A(f"buffer_load_dwordx4 a[{60+4*k}:{63+4*k}], v{T+2}, s[{sWO}:{sWO+3}], s{sT3} offen{nt if WONT else ''}")
    A(f"v_lshlrev_b32 v{vG}, 4, v{vG}")
    A.label("L_NOWO")
    A("s_branch L_STREAM2")
    MARK_SERVICE = len(A.lines)

    def xrow(v, t, op):
        A(f"v_mov_b32 v{t}, v{v}"); A(f"v_permlane16_swap_b32 v{t}, v{v}"); A(f"{op} v{v}, v{t}, v{v}")
        A(f"v_mov_b32 v{t}, v{v}"); A(f"v_permlane32_swap_b32 v{t}, v{v}"); A(f"{op} v{v}, v{t}, v{v}")
    def rnd1(v):
        A(f"v_cvt_pk_bf16_f32 v{v}, v{v}, v{v}"); A(f"v_lshlrev_b32 v{v}, 16, v{v}")
    def ldswait(tag, addr, val, sleep=2, cmp="eq"):
        A(f"v_mov_b32 v{T+3}, {addr}"); A(f"s_mov_b32 s{sCNT}, {LIMIT*4}")
        A.label(f"L_{tag}")
        A(f"ds_read_b32 v{T}, v{T+3}"); A("s_waitcnt lgkmcnt(0)"); A(f"v_readfirstlane_b32 s{sT2}, v{T}")
        A(f"s_cmp_{cmp}_u32 s{sT2}, {val}"); A(f"s_cbranch_scc1 L_{tag}_OK", quick=True)
        A(f"s_sleep {sleep}"); A(f"s_sub_u32 s{sCNT}, s{sCNT}, 1"); A(f"s_cmp_lg_u32 s{sCNT}, 0"); A(f"s_cbranch_scc1 L_{tag}")
        A.label(f"L_{tag}_OK")
    def ldsinc(addr):
        A(f"v_mov_b32 v{T+6}, 1"); A(f"v_mov_b32 v{T+7}, {addr}")
        A("s_mov_b64 exec, 1"); A(f"ds_add_u32 v{T+7}, v{T+6}"); A("s_mov_b64 exec, -1")

    def addr_o(v, t):
        A(f"v_bfe_u32 v{t}, v{vL}, 3, 1"); A(f"v_lshlrev_b32 v{v}, 8, v{t}"); A(f"v_lshrrev_b32 v{t}, 4, v{vL}"); A(f"v_lshl_add_u32 v{v}, v{t}, 6, v{v}")
        A(f"v_and_b32 v{t}, 7, v{vL}"); A(f"v_lshl_add_u32 v{v}, v{t}, 3, v{v}"); A(f"v_add_u32 v{v}, s{sREC}, v{v}")
    def addr_ml(v):
        A(f"v_bfe_u32 v{v}, v{vL}, 3, 1"); A(f"v_lshlrev_b32 v{v}, 3, v{v}"); A(f"v_add_u32 v{v}, s{sREC}, v{v}")
    def addr_sp(v, t):
        A(f"v_lshrrev_b32 v{v}, 5, v{vL}"); A(f"v_mul_u32_u24 v{v}, {BO}, v{v}"); A(f"v_and_b32 v{t}, 31, v{vL}"); A(f"v_lshl_add_u32 v{v}, v{t}, 2, v{v}")
        A(f"s_add_u32 s{sT}, s{sSPB}, {W_SP}"); A(f"v_add_u32 v{v}, s{sT}, v{v}")
    def addr_in1(va, vm, t):
        A(f"s_lshr_b32 s{sT}, s{sP}, 1"); A(f"s_mul_i32 s{sT}, s{sT}, {16*640}"); A(f"s_add_u32 s{sT}, s{sT}, {W_REC}"); A(f"s_and_b32 s{sT2}, s{sP}, 1")
        A(f"s_lshl_b32 s{sT3}, s{sT2}, 8"); A(f"s_add_u32 s{sT3}, s{sT3}, s{sT}")
        A(f"v_and_b32 v{t}, 15, v{vL}"); A(f"v_mul_u32_u24 v{va}, 640, v{t}"); A(f"v_lshrrev_b32 v{t}, 4, v{vL}"); A(f"v_lshl_add_u32 v{va}, v{t}, 4, v{va}"); A(f"v_add_u32 v{va}, s{sT3}, v{va}")
        A(f"s_lshl_b32 s{sT3}, s{sT2}, 3"); A(f"s_add_u32 s{sT3}, s{sT3}, s{sT}"); A(f"s_add_u32 s{sT3}, s{sT3}, 512")
        A(f"v_mul_u32_u24 v{vm}, 2560, v{t}"); A(f"v_add_u32 v{vm}, s{sT3}, v{vm}")
    def addr_in2(v, t, sch):
        A(f"s_lshr_b32 s{sT}, s2, 3"); A(f"s_min_u32 s{sT}, s{sT}, 17"); A(f"s_and_b32 s{sT2}, s2, 7"); A(f"s_cmp_ge_u32 s{sT}, 9")
        A(f"s_cselect_b32 s{sT3}, {BO - 288}, 0"); A(f"s_cselect_b32 s{sch}, 63, 0")
        A(f"s_add_u32 s{sch}, s{sch}, s{sT}"); A(f"s_mul_i32 s{sCNT}, s{sT2}, 9"); A(f"s_add_u32 s{sch}, s{sch}, s{sCNT}")
        A(f"s_lshl_b32 s{sT}, s{sT}, 5"); A(f"s_add_u32 s{sT3}, s{sT3}, s{sT}"); A(f"s_mul_i32 s{sT2}, s{sT2}, {32*SL}"); A(f"s_add_u32 s{sT3}, s{sT3}, s{sT2}")
        A(f"s_add_u32 s{sT3}, s{sT3}, {W_SP}")
        A(f"v_lshrrev_b32 v{v}, 3, v{vL}"); A(f"v_mul_u32_u24 v{v}, {4*SL}, v{v}"); A(f"v_and_b32 v{t}, 7, v{vL}"); A(f"v_lshl_add_u32 v{v}, v{t}, 2, v{v}")
        A(f"v_add_u32 v{v}, s{sT3}, v{v}")
    def addr_y(v, t, t2, ci0):
        A(f"v_and_b32 v{t}, 7, v{vL}"); A(f"v_min_u32 v{t}, 5, v{t}"); A(f"v_add_u32 v{t}, {ci0}, v{t}")
        A(f"v_cmp_le_u32 vcc, 9, v{t}"); A(f"v_cndmask_b32 v{t2}, 0, 3, vcc"); A(f"v_add_u32 v{t}, v{t}, v{t2}")
        A(f"v_lshlrev_b32 v{v}, 5, v{t}"); A(f"v_lshrrev_b32 v{t}, 3, v{vL}"); A(f"v_lshl_add_u32 v{v}, v{t}, 2, v{v}")
        A(f"s_add_u32 s{sT2}, s{sYB}, {W_YP}"); A(f"v_add_u32 v{v}, s{sT2}, v{v}")
    vTAG = 0; vY = 3
    A.label("L_SERVICE"); A.comment("waves 0,5,6,7: side jobs before streaming")
    A(f"s_cmp_lg_u32 s{sW}, 0"); A("s_cbranch_scc1 L_Y_PRE")
    if 'h' in SKIP:
        common(); A("s_barrier")
        if 'H' in SKIP:
            h = HS
            while h > 0: A(f"s_sleep {min(h,127)}"); h -= 127
        A(f"v_mov_b32 v{T+2}, 1"); A(f"v_mov_b32 v{T+3}, {L_QFLAG}"); A(f"ds_write_b32 v{T+3}, v{T+2}"); A("s_branch L_STREAM")
    A(f"s_setprio {P0}")
    xloads(); wqloads()
    A.label("L_W0B")
    common()
    A("s_barrier")
    SN = 100 if SNW5 else (120 if SNLATE else 68)
    MX = list(range(128, 140)) if SNW5 else [QB, QB+1, QA, QA+1, QA+2, QA+3, QB+2, QB+3, vM, vM+1, vM+2, vM+3]
    NSNAP = 24 if YTAG else 17
    NEXTRA = (0 if (SNLATE or SNW5) else NSNAP) if TAGS else 2
    def snapshot():
        if 'N' in SKIP: return
        addr_in1(T, T+1, T+2)
        for t in range(4): A(f"global_load_dwordx4 {rng(SN+4*t)}, v{T}, {ws} offset:{64*t} sc1")
        for i in range(4): A(f"global_load_dwordx2 v[{SN+16+2*i}:{SN+17+2*i}], v{T+1}, {ws} offset:{640*i} sc1")
        if SK2: A("s_cmp_ge_u32 s2, 144"); A("s_cbranch_scc1 L_NOIN2")
        addr_in2(T, T+2, sPASS)
        for k in range(4): A(f"global_load_dword v{SN+24+k}, v{T}, {ws} offset:{SL*k} sc1")
        if YTAG:
            A(f"v_add_u32 v{T}, {W_YP - W_SP}, v{T}")
            for k in range(4): A(f"global_load_dword v{MX[8+k]}, v{T}, {ws} offset:{SL*k} sc1")
            if SK2: A.label("L_NOIN2")
            for k in range(3):
                addr_y(T, T+2, T+3, 6*k); A(f"global_load_dword v{MX[5+k]}, v{T}, {ws} sc1")
        addr_o(T, T+2); A(f"global_load_dword v{MX[0]}, v{T}, {ws} sc1")
        addr_ml(T); A(f"global_load_dword v{MX[1]}, v{T}, {ws} offset:516 sc1")
        addr_sp(T, T+2)
        for k in range(3): A(f"global_load_dword v{MX[2+k]}, v{T}, {ws} offset:{128*k} sc1")
    if TAGS:
        if GFLAG: A(f"s_lshl_b32 s{sPC}, s{sG}, 7"); A(f"s_add_u32 s{sPC}, s{sPC}, {W_PC}")
        else: A(f"s_add_u32 s{sPC}, s{sREC}, 528")
        A(f"s_load_dword s{sF0}, {ws}, s{sPC} glc")
        if not SNLATE and not SNW5: snapshot()
    else:
        for k in range(4): A(f"v_mov_b32 v{B0+k}, -1")
        A(f"v_add_u32 v{T}, s{sREC}, v{vOFF}"); A(f"s_add_u32 s{sT}, s{sSPB}, {W_SP}"); A(f"v_add_u32 v{T+1}, s{sT}, v{vOFF}")
        if 'R' in SKIP: A(f"global_load_dword v{T+5}, v{T}, {ws}"); A(f"global_load_dword v{T+5}, v{T}, {ws}")
        else: A(f"s_mov_b32 exec_hi, {0xff if FULL else 3}"); A(f"global_store_dwordx4 v{T}, {rng(B0)}, {ws} sc1")
        if 'R' not in SKIP: A(f"s_mov_b32 exec_hi, {0xffff if FULL else 15}"); A(f"global_store_dwordx4 v{T+1}, {rng(B0)}, {ws} sc1")
        A("s_mov_b64 exec, -1")
    A(f"s_mov_b32 s{sPASS}, 1"); A(f"s_mov_b32 s{sT3}, {L_XL}")
    A(f"s_waitcnt vmcnt({18 + NEXTRA})")
    A("s_branch L_LN")

    WR = 70
    A.label("L_Y_PRE"); A.comment("waves 5-7: x and the w1/b1/w2 slice")
    if 'b' in SKIP:
        common(); A("s_barrier")
        if 'B' in SKIP: A("s_sleep 127"); A("s_sleep 60")
        A("s_branch L_STREAM")
    A("s_setprio 2")
    xloads()
    common()
    A("s_barrier")
    A(f"v_and_b32 v{T}, 7, v{vL}"); A(f"v_mul_u32_u24 v{T}, 36, v{T}"); A(f"s_mul_i32 s{sT}, s{sYP}, 288"); A(f"v_add_u32 v{T}, s{sT}, v{T}")
    for a, sp_ in enumerate((sW1, sB1, sW2)):
        R = WR + 10 * a
        A(f"global_load_dwordx4 {rng(R)}, v{T}, s[{sp_}:{sp_+1}]"); A(f"global_load_dwordx4 {rng(R+4)}, v{T}, s[{sp_}:{sp_+1}] offset:16")
        A(f"global_load_dword v{R+8}, v{T}, s[{sp_}:{sp_+1}] offset:32")
    if TAGS and SNW5:
        A(f"s_cmp_lg_u32 s{sW}, 5"); A("s_cbranch_scc1 L_NOSN")
        A("s_waitcnt vmcnt(9)")
        snapshot()
        A("s_branch L_SNJ")
        A.label("L_NOSN")
        A("s_waitcnt vmcnt(9)")
        A.label("L_SNJ")
    A(f"s_mov_b32 s{sPASS}, 2"); A(f"s_sub_u32 s{sT3}, s{sW}, 4"); A(f"s_mul_i32 s{sT3}, s{sT3}, 2304"); A(f"s_add_u32 s{sT3}, s{sT3}, {L_XL}")
    if not (TAGS and SNW5): A("s_waitcnt vmcnt(9)")

    def allred32(v, t, op):
        for pat in ("quad_perm:[1,0,3,2]", "quad_perm:[2,3,0,1]", "row_half_mirror", "row_mirror"):
            A(f"{op}_dpp v{v}, v{v}, v{v} {pat}{dm}")
        A(f"v_mov_b32 v{t}, v{v}"); A(f"v_permlane16_swap_b32 v{t}, v{v}"); A(f"{op} v{v}, v{t}, v{v}")
    A.label("L_LN"); A.comment("layer norm of both rows (lanes 0-31 batch 0, 32-63 batch 1), bf16 roundings as in the reference; 1 or 2 passes")
    for k in range(9):
        A(f"v_lshlrev_b32 v{E+2*k}, 16, v{X+k}"); A(f"v_and_b32 v{E+2*k+1}, 0xffff0000, v{X+k}")
    A(f"v_add_f32 v{T}, v{E}, v{E+1}"); A(f"v_add_f32 v{T+1}, v{E+2}, v{E+3}")
    for k in range(4, 18, 2):
        A(f"v_add_f32 v{T}, v{T}, v{E+k}"); A(f"v_add_f32 v{T+1}, v{T+1}, v{E+k+1}")
    A(f"v_add_f32 v{T}, v{T}, v{T+1}")
    allred32(T, T+1, "v_add_f32")
    A(f"v_mul_f32 v{T}, {hx(f2u(1/576))}, v{T}")
    A(f"v_mov_b32 v{T+2}, 0"); A(f"v_mov_b32 v{T+3}, 0")
    for k in range(0, 18, 2):
        A(f"v_sub_f32 v{T+4}, v{E+k}, v{T}"); A(f"v_sub_f32 v{T+5}, v{E+k+1}, v{T}")
        A(f"v_fmac_f32 v{T+2}, v{T+4}, v{T+4}"); A(f"v_fmac_f32 v{T+3}, v{T+5}, v{T+5}")
    A(f"v_add_f32 v{T+2}, v{T+2}, v{T+3}")
    allred32(T+2, T+3, "v_add_f32")
    A(f"v_mul_f32 v{T+2}, {hx(f2u(1/576))}, v{T+2}")
    rnd1(T); rnd1(T+2)
    A(f"v_add_f32 v{T+2}, {hx(f2u(1e-5))}, v{T+2}"); rnd1(T+2)
    A(f"v_sqrt_f32 v{T+2}, v{T+2}"); rnd1(T+2)
    A(f"v_rcp_f32 v{T+2}, v{T+2}")
    for k in range(9):
        a, b = E+2*k, E+2*k+1
        A(f"v_sub_f32 v{a}, v{a}, v{T}"); A(f"v_sub_f32 v{b}, v{b}, v{T}")
        A(f"v_cvt_pk_bf16_f32 v{X+k}, v{a}, v{b}")
        A(f"v_lshlrev_b32 v{a}, 16, v{X+k}"); A(f"v_and_b32 v{b}, 0xffff0000, v{X+k}")
        A(f"v_mul_f32 v{a}, v{a}, v{T+2}"); A(f"v_mul_f32 v{b}, v{b}, v{T+2}")
        A(f"v_cvt_pk_bf16_f32 v{X+k}, v{a}, v{b}")
    A(f"s_sub_u32 s{sPASS}, s{sPASS}, 1"); A(f"s_cmp_lg_u32 s{sPASS}, 0"); A("s_cbranch_scc1 L_LN")
    A(f"v_add_u32 v{vXO}, s{sT3}, v{vXO}")
    for k in range(9): A(f"ds_write_b32 v{vXO}, v{X+k} offset:{128*k}")
    A(f"s_cmp_lg_u32 s{sW}, 0"); A("s_cbranch_scc1 L_BBR")

    qs = 0
    if QCOL:
        for i in range(18):
            A(f"s_waitcnt vmcnt({17 + NEXTRA - i})"); A(f"ds_write_b128 v{vOFF}, {rng(WQ+4*i)} offset:{L_WQ + 1024*i}")
        lc = {4: 3, 2: 2}[NRG]; lq = {4: 2, 2: 3}[NRG]; NS_ = 36 // NRG; NI = NRG + 1
        A(f"v_lshrrev_b32 v{T}, 4, v{vL}"); A(f"v_lshrrev_b32 v{T+1}, 2, v{vL}"); A(f"v_lshlrev_b32 v{T+1}, {4+lc}, v{T+1}")
        A(f"v_and_b32 v{T+2}, 3, v{vL}"); A(f"v_lshl_add_u32 v{T+1}, v{T+2}, 3, v{T+1}")
        A(f"v_and_b32 v{T+2}, 1, v{vL}"); A(f"v_mul_u32_u24 v{T+2}, 1152, v{T+2}"); A(f"v_lshl_add_u32 v{T+2}, v{T}, 3, v{T+2}")
        A(f"s_lshr_b32 s{sT}, s{sJ}, {lq}"); A(f"s_mul_i32 s{sT}, s{sT}, {1152//NRG}"); A(f"v_add_u32 v{T+2}, s{sT}, v{T+2}")
        A("s_waitcnt lgkmcnt(0)")
        DQ = 52
        def qread(i):
            r = WQ + 10 * (i % 4)
            for n in range(NRG): A(f"ds_read_b64_tr_b16 v[{r+2*n}:{r+2*n+1}], v{T+1} offset:{L_WQ + (256<<lc)*i + 32*n}")
            A(f"ds_read_b64 v[{r+8}:{r+9}], v{T+2} offset:{L_XL + 32*i}")
        qread(0); qread(1)
        for i in range(NS_):
            if i + 2 < NS_: qread(i + 2)
            A(f"s_waitcnt lgkmcnt({NI * min(2, NS_ - 1 - i)})")
            r = WQ + 10 * (i % 4)
            for n in range(NRG): A(f"v_mfma_f32_16x16x16_bf16 {rng(DQ+4*n)}, v[{r+8}:{r+9}], v[{r+2*n}:{r+2*n+1}], {'0' if i == 0 else rng(DQ+4*n)}")
        SB_ = 64 * NRG
        A(f"s_mul_i32 s{sT}, s{sG}, {32*SB_}"); A(f"s_mul_i32 s{sT2}, s{sJ}, {SB_}"); A(f"s_add_u32 s{sT}, s{sT}, s{sT2}")
        A(f"v_lshlrev_b32 v{T}, {lc+1}, v{vL}"); A(f"v_add_u32 v{T+4}, s{sT}, v{T}"); A(f"v_add_u32 v{T+5}, {16*SB_}, v{T+4}")
        for b_ in range(2):
            for n in range(NRG): A(f"v_mov_b32 v{D+4*b_+n}, v{DQ+4*n+b_}")
        def qstore(fl):
            A("s_mov_b64 exec, 0xffff"); A(f"global_store_dwordx{NRG} v{T+4}, {rng(D, NRG)}, {ws}{fl}"); A(f"global_store_dwordx{NRG} v{T+5}, {rng(D+4, NRG)}, {ws}{fl}"); A("s_mov_b64 exec, -1")
        if 'S' not in SKIP: qstore("" if QPL else " sc1")
    else:
        XV = 50
        A(f"v_bfe_u32 v{T}, v{vL}, 3, 1"); A(f"v_mul_u32_u24 v{T}, 1152, v{T}")
        A(f"v_lshrrev_b32 v{T+1}, 4, v{vL}"); A(f"v_lshl_add_u32 v{T}, v{T+1}, 1, v{T}")
        A(f"s_mul_i32 s{sT}, s{sRG}, 144"); A(f"s_add_u32 s{sT}, s{sT}, {L_XL}"); A(f"v_add_u32 v{T}, s{sT}, v{T}")
        A("s_waitcnt lgkmcnt(0)")
        for i in range(18):
            A(f"ds_read_u16 v{XV+i}, v{T} offset:{8*i}")
            if i == 8: A("s_waitcnt lgkmcnt(0)")
        A("s_waitcnt lgkmcnt(0)")
        for i in range(18): A(f"v_lshl_or_b32 v{XV+i}, v{XV+i}, 16, v{XV+i}")
        for i in range(18):
            Bx = B0 if i % 2 == 0 else B1
            for k in range(4): A(f"v_and_b32 v{Bx+k}, v{XV+i}, v{MK+k}")
            if i > 0:
                Bp = B1 if i % 2 == 0 else B0
                A(f"s_waitcnt vmcnt({17+NEXTRA-(i-1)})")
                A(f"v_mfma_f32_16x16x32_bf16 {rng(D)}, {rng(WQ+4*(i-1))}, {rng(Bp)}, {'0' if i == 1 else rng(D)}")
        A(f"s_waitcnt vmcnt({NEXTRA})")
        A(f"v_mfma_f32_16x16x32_bf16 {rng(D)}, {rng(WQ+4*17)}, {rng(B1)}, {rng(D)}")
        qs = 1 if QBF else 0
        A(f"v_bfe_u32 v{T}, v{vL}, 3, 1"); A(f"v_lshlrev_b32 v{T}, {13-qs}, v{T}")
        A(f"v_lshrrev_b32 v{T+1}, 4, v{vL}"); A(f"v_lshl_add_u32 v{T}, v{T+1}, {7-qs}, v{T}")
        A(f"v_and_b32 v{T+1}, 7, v{vL}"); A(f"v_lshl_add_u32 v{T}, v{T+1}, {4-qs}, v{T}")
        A(f"s_lshl_b32 s{sT}, s{sG}, {14-qs}"); A(f"s_lshl_b32 s{sT2}, s{sJ}, {9-qs}"); A(f"s_add_u32 s{sT}, s{sT}, s{sT2}")
        A(f"v_add_u32 v{T}, s{sT}, v{T}")
        if QBF:
            A(f"v_cvt_pk_bf16_f32 v{D}, v{D}, v{D+1}"); A(f"v_cvt_pk_bf16_f32 v{D+1}, v{D+2}, v{D+3}")
            A(f"global_store_dwordx2 v{T}, v[{D}:{D+1}], {ws} sc1")
        elif 'S' not in SKIP: A(f"global_store_dwordx4 v{T}, {rng(D)}, {ws} sc1")
    stamp(2)
    def packtags():
        bits = [SN + 2*k for k in range(8)] + [SN + 17 + 2*i for i in range(4)] + [SN + 24 + k for k in range(4)] + MX[:5]
        if YTAG: bits += MX[5:12]
        A(f"v_mov_b32 v{vTAG}, 0")
        for r in bits: A(f"v_alignbit_b32 v{vTAG}, v{r}, v{vTAG}, 1")
        A(f"v_lshrrev_b32 v{vTAG}, {32 - len(bits)}, v{vTAG}"); A(f"v_not_b32 v{vTAG}, v{vTAG}")
        A(f"v_lshlrev_b32 v{T+1}, 2, v{vL}"); A(f"ds_write_b32 v{T+1}, v{vTAG} offset:{L_TAG}")
    if TAGS:
        if SNW5: pass
        elif SNLATE: snapshot()
        else: A("s_waitcnt vmcnt(1)"); packtags()
    if NS0:
        cur[0] = None
        A("s_nop 1")
        if NS0P is not None: A(f"s_setprio {NS0P}")
        for n in range(WOAT): issue(n)
        if NS0P is not None: A(f"s_setprio {P0}")
    A(f"s_lshl_b32 s{sT}, s{sG}, 4"); A(f"s_mov_b32 s{sT2}, 1"); A(f"s_mov_b32 s{sT3}, s{sPC}" if TAGS else f"s_add_u32 s{sT3}, s{sREC}, 528")
    A(f"s_waitcnt vmcnt({WOAT if NS0 else 0}) lgkmcnt(0)")
    POSTPACK = TAGS and SNLATE and not SNW5
    if TAGS and SNW5:
        if 'b' not in SKIP: ldswait("SNW", L_SNOK, 1, 1)
        A(f"s_mov_b32 s{sT2}, 1")
    if FAST:
        A(f"s_getreg_b32 s{sXC}, hwreg(HW_REG_XCC_ID)"); A(f"s_and_b32 s{sXC}, s{sXC}, 15"); A(f"s_mul_i32 s{sT2}, s{sXC}, s{sXC}")
        A(f"s_lshl_b32 s{sT2}, s{sT2}, 8"); A(f"s_add_u32 s{sT2}, s{sT2}, s{sXC}"); A(f"s_lshl_b32 s{sT2}, s{sT2}, 8"); A(f"s_add_u32 s{sT2}, s{sT2}, 1")
        A(f"s_mul_i32 s{sXC}, s{sT2}, 15")
    if 'A' in SKIP: A("s_sleep 60"); A("s_branch L_POLLA_OK")
    A(f"s_atomic_add s{sT2}, s[{sDBG}:{sDBG+1}], s{sT} glc")
    if POSTPACK: packtags()
    A("s_waitcnt lgkmcnt(0)")
    if FAST:
        A(f"s_cmp_eq_u32 s{sT2}, s{sXC}"); A(f"s_cselect_b32 s{sFAST}, {2 if FORCE2 else 1}, 2")
        A(f"s_and_b32 s{sT2}, s{sT2}, 0xff")
    A(f"s_cmp_lg_u32 s{sT2}, 15"); A("s_cbranch_scc1 L_NOTMASTER")
    A(f"s_mul_i32 s{sT}, s{sG}, {16*640}"); A(f"s_add_u32 s{sT}, s{sT}, {W_REC+528}"); A(f"s_add_u32 s{sA}, s{sWS}, s{sT}"); A(f"s_addc_u32 s{sA+1}, s{sWS+1}, 0")
    if TAGS:
        A(f"s_mov_b32 s{sT2}, s{sFAST}" if FAST else f"s_mov_b32 s{sT2}, 1")
        if GFLAG: A(f"s_atomic_add s{sT2}, {ws}, s{sPC}")
        else:
            for j in range(16): A(f"s_atomic_add s{sT2}, s[{sA}:{sA+1}], {640*j}")
    else:
        A(f"s_mov_b32 s{sT2}, 0")
        for j in range(16): A(f"s_atomic_and s{sT2}, s[{sA}:{sA+1}], {640*j}")
    A("s_branch L_POLLA_OK")
    A.label("L_NOTMASTER")
    A(f"s_mov_b32 s{sCNT}, {LIMIT}")
    A.label("L_POLLA")
    A(f"s_load_dword s{sT2}, {ws}, s{sT3} glc"); A("s_waitcnt lgkmcnt(0)")
    if FAST: A(f"s_sub_u32 s{sFAST}, s{sT2}, s{sF0}"); A(f"s_cmp_lg_u32 s{sFAST}, 0")
    elif TAGS: A(f"s_cmp_lg_u32 s{sT2}, s{sF0}")
    else: A(f"s_cmp_eq_u32 s{sT2}, 0")
    A("s_cbranch_scc1 L_POLLA_OK")
    A(f"s_sleep {PSL}"); A(f"s_sub_u32 s{sCNT}, s{sCNT}, 1"); A(f"s_cmp_lg_u32 s{sCNT}, 0"); A("s_cbranch_scc1 L_POLLA")
    A.label("L_POLLA_OK")
    if QPL:
        A(f"s_cmp_eq_u32 s{sFAST}, 1"); A("s_cbranch_scc1 L_QOK")
        qstore(" sc1")
        A(f"s_lshl_b32 s{sT}, s{sG}, 4"); A(f"s_add_u32 s{sT}, s{sT}, 4"); A(f"s_mov_b32 s{sT2}, 1")
        A("s_waitcnt vmcnt(0)")
        A(f"s_atomic_add s{sT2}, s[{sDBG}:{sDBG+1}], s{sT} glc"); A("s_waitcnt lgkmcnt(0)")
        A(f"s_cmp_lg_u32 s{sT2}, 15"); A("s_cbranch_scc1 L_NOTM2")
        A(f"s_mul_i32 s{sT}, s{sG}, {16*640}"); A(f"s_add_u32 s{sT}, s{sT}, {W_REC+528}"); A(f"s_add_u32 s{sA}, s{sWS}, s{sT}"); A(f"s_addc_u32 s{sA+1}, s{sWS+1}, 0")
        A(f"s_mov_b32 s{sT2}, 1")
        for j in range(16): A(f"s_atomic_add s{sT2}, s[{sA}:{sA+1}], {640*j}")
        A("s_branch L_QOK")
        A.label("L_NOTM2")
        A(f"s_mov_b32 s{sCNT}, {LIMIT}"); A(f"s_add_u32 s{sF0}, s{sF0}, 3")
        A.label("L_POLL2")
        A(f"s_load_dword s{sT2}, {ws}, s{sT3} glc"); A("s_waitcnt lgkmcnt(0)")
        A(f"s_cmp_eq_u32 s{sT2}, s{sF0}"); A("s_cbranch_scc1 L_QOK")
        A(f"s_sleep {PSL}"); A(f"s_sub_u32 s{sCNT}, s{sCNT}, 1"); A(f"s_cmp_lg_u32 s{sCNT}, 0"); A("s_cbranch_scc1 L_POLL2")
        A.label("L_QOK")
    stamp(3)
    GQ = 128
    if QCOL:
        A(f"s_mul_i32 s{sT}, s{sG}, {32*SB_}"); A(f"s_mul_i32 s{sT2}, s{sB}, {16*SB_}"); A(f"s_add_u32 s{sT}, s{sT}, s{sT2}"); A(f"v_add_u32 v{T}, s{sT}, v{vOFF}")
        for r in range(NRG): A(f"global_load_dwordx4 {rng(GQ+4*r)}, v{T}, {ws} offset:{1024*r} sc1")
        if NRG == 4:
            A(f"v_lshrrev_b32 v{T+2}, 4, v{vL}"); A(f"v_lshlrev_b32 v{T+2}, 7, v{T+2}"); A(f"v_and_b32 v{T+3}, 15, v{vL}"); A(f"v_lshl_add_u32 v{T+2}, v{T+3}, 1, v{T+2}")
            offs = [0, 32, 64, 96]
        else:
            A(f"v_lshrrev_b32 v{T+2}, 3, v{vL}"); A(f"v_lshlrev_b32 v{T+2}, 6, v{T+2}"); A(f"v_and_b32 v{T+3}, 7, v{vL}"); A(f"v_lshl_add_u32 v{T+2}, v{T+3}, 2, v{T+2}")
            offs = [0, 32, 2, 34]
        for r in range(1, NRG):
            A(f"s_waitcnt vmcnt({NRG-1-r})")
            for k in range(4): A(f"v_add_f32 v{GQ+k}, v{GQ+k}, v{GQ+4*r+k}")
        A(f"v_cvt_pk_bf16_f32 v{GQ}, v{GQ}, v{GQ+1}"); A(f"v_cvt_pk_bf16_f32 v{GQ+1}, v{GQ+2}, v{GQ+3}")
        A(f"ds_write_b16 v{T+2}, v{GQ} offset:{L_Q+offs[0]}"); A(f"ds_write_b16_d16_hi v{T+2}, v{GQ} offset:{L_Q+offs[1]}")
        A(f"ds_write_b16 v{T+2}, v{GQ+1} offset:{L_Q+offs[2]}"); A(f"ds_write_b16_d16_hi v{T+2}, v{GQ+1} offset:{L_Q+offs[3]}")
    else:
        A(f"s_lshl_b32 s{sT}, s{sG}, {14-qs}"); A(f"s_lshl_b32 s{sT2}, s{sB}, {13-qs}"); A(f"s_add_u32 s{sT}, s{sT}, s{sT2}")
        if QBF:
            A(f"v_lshlrev_b32 v{T}, 3, v{vL}"); A(f"v_add_u32 v{T}, s{sT}, v{T}")
            for r in range(8): A(f"global_load_dwordx2 v[{GQ+8+2*r}:{GQ+9+2*r}], v{T}, {ws} offset:{512*r} sc1")
        else:
            A(f"v_add_u32 v{T}, s{sT}, v{vOFF}"); A(f"v_add_u32 v{T+1}, 4096, v{T}")
            for r in range(8 if 'G' not in SKIP else 0): A(f"global_load_dwordx4 {rng(GQ+4*r)}, v{T + r//4}, {ws} offset:{1024*(r%4)} sc1")
        A(f"v_lshrrev_b32 v{T+2}, 3, v{vL}"); A(f"v_lshlrev_b32 v{T+2}, 6, v{T+2}"); A(f"v_and_b32 v{T+3}, 7, v{vL}"); A(f"v_lshl_add_u32 v{T+2}, v{T+3}, 1, v{T+2}")
        if QBF:
            for r in range(8):
                A(f"s_waitcnt vmcnt({7-r})")
                o = GQ if r == 0 else GQ + 4
                for h in range(2):
                    A(f"v_lshlrev_b32 v{o+2*h}, 16, v{GQ+8+2*r+h}"); A(f"v_and_b32 v{o+2*h+1}, 0xffff0000, v{GQ+8+2*r+h}")
                if r:
                    for k in range(4): A(f"v_add_f32 v{GQ+k}, v{GQ+k}, v{GQ+4+k}")
        else:
            for r in range(1, 8):
                A(f"s_waitcnt vmcnt({7-r})")
                for k in range(4): A(f"v_add_f32 v{GQ+k}, v{GQ+k}, v{GQ+4*r+k}")
        A(f"v_cvt_pk_bf16_f32 v{GQ}, v{GQ}, v{GQ+1}"); A(f"v_cvt_pk_bf16_f32 v{GQ+1}, v{GQ+2}, v{GQ+3}")
        A(f"ds_write_b16 v{T+2}, v{GQ} offset:{L_Q}"); A(f"ds_write_b16_d16_hi v{T+2}, v{GQ} offset:{L_Q+16}")
        A(f"ds_write_b16 v{T+2}, v{GQ+1} offset:{L_Q+32}"); A(f"ds_write_b16_d16_hi v{T+2}, v{GQ+1} offset:{L_Q+48}")
    if FAST: A(f"s_cmp_eq_u32 s{sFAST}, 1"); A(f"s_cselect_b32 s{sFAST}, 1, 2"); A(f"v_mov_b32 v{T+2}, s{sFAST}")
    else: A(f"v_mov_b32 v{T+2}, 1")
    A(f"v_mov_b32 v{T+3}, {L_QFLAG}")
    A("s_waitcnt lgkmcnt(0)")
    A(f"ds_write_b32 v{T+3}, v{T+2}")
    A("s_setprio 0")
    if NS0:
        stamp(6); A(f"v_mov_b32 v{vG}, 0"); A("s_branch L_STREAM2")
    else: A("s_branch L_STREAM")

    A.label("L_BBR"); A.comment("token-mixing MLP slice: 48 outputs x 144 hidden units per wave")
    W1 = 100; BB = 118; W2 = WR + 20; U = 136; PK = 40; ZZ = 50; RES = 154; vC1 = 156; vC0 = 158; vONE = 160; vH = 162; vHA = 164; ACC = 165; vFL = 166
    def pr(r): return f"v[{r}:{r+1}]"
    A("s_waitcnt vmcnt(0)")
    if TAGS and SNW5:
        A(f"s_cmp_lg_u32 s{sW}, 5"); A("s_cbranch_scc1 L_NOPK")
        packtags()
        A(f"v_mov_b32 v{T}, {L_SNOK}"); A(f"v_mov_b32 v{T+1}, 1"); A(f"ds_write_b32 v{T}, v{T+1}")
        A.label("L_NOPK")
    for k in range(9):
        A(f"v_lshlrev_b32 v{W1+2*k}, 16, v{WR+k}"); A(f"v_and_b32 v{W1+2*k+1}, 0xffff0000, v{WR+k}")
        A(f"v_lshlrev_b32 v{BB+2*k}, 16, v{WR+10+k}"); A(f"v_and_b32 v{BB+2*k+1}, 0xffff0000, v{WR+10+k}")
    c0 = -2 * math.sqrt(2 / math.pi) * LOG2E; c1 = c0 * 0.044715
    for k in range(2):
        A(f"v_mov_b32 v{vC1+k}, {hx(f2u(c1))}"); A(f"v_mov_b32 v{vC0+k}, {hx(f2u(c0))}"); A(f"v_mov_b32 v{vONE+k}, 1.0")
    A(f"v_and_b32 v{vFL}, 7, v{vL}")
    A(f"s_sub_u32 s{sT}, s{sW}, 5"); A(f"s_mul_i32 s{sT}, s{sT}, 6")
    A(f"s_mul_i32 s{sT2}, s{sYC}, 144"); A(f"s_add_u32 s{sT3}, s{sT3}, s{sT2}")
    A(f"v_lshrrev_b32 v{vHA}, 3, v{vL}"); A(f"v_lshlrev_b32 v{vHA}, 1, v{vHA}"); A(f"v_add_u32 v{vHA}, s{sT3}, v{vHA}")
    A(f"s_mov_b32 s{sPASS}, 0"); A(f"v_mov_b32 v{RES}, 0")
    A("s_setprio 0")
    A.label("L_BLOOP")
    A(f"s_add_u32 s{sT2}, s{sT}, s{sPASS}"); A(f"s_cmp_ge_u32 s{sT2}, 9"); A(f"s_cselect_b32 s{sT3}, 63, 0"); A(f"s_add_u32 s{sT2}, s{sT2}, s{sT3}"); A(f"s_lshl_b32 s{sT2}, s{sT2}, 4")
    A(f"v_add_u32 v{vH+1}, s{sT2}, v{vHA}")
    A(f"ds_read_u16 v{vH}, v{vH+1}")
    A("s_waitcnt lgkmcnt(0)")
    A(f"v_lshlrev_b32 v{vH}, 16, v{vH}"); A(f"v_mov_b32 v{vH+1}, v{vH}")
    def round9():
        for k in range(9): A(f"v_cvt_pk_bf16_f32 v{PK+k}, v{U+2*k}, v{U+2*k+1}")
        for k in range(9):
            A(f"v_lshlrev_b32 v{U+2*k}, 16, v{PK+k}"); A(f"v_and_b32 v{U+2*k+1}, 0xffff0000, v{PK+k}")
    for k in range(9): A(f"v_pk_mul_f32 {pr(U+2*k)}, {pr(vH)}, {pr(W1+2*k)}")
    round9()
    for k in range(9): A(f"v_pk_add_f32 {pr(U+2*k)}, {pr(U+2*k)}, {pr(BB+2*k)}")
    round9()
    for k in range(9): A(f"v_pk_mul_f32 {pr(ZZ+2*k)}, {pr(U+2*k)}, {pr(U+2*k)}")
    for k in range(9): A(f"v_pk_fma_f32 {pr(ZZ+2*k)}, {pr(ZZ+2*k)}, {pr(vC1)}, {pr(vC0)}")
    for k in range(9): A(f"v_pk_mul_f32 {pr(ZZ+2*k)}, {pr(ZZ+2*k)}, {pr(U+2*k)}")
    for k in range(18): A(f"v_exp_f32 v{ZZ+k}, v{ZZ+k}")
    for k in range(9): A(f"v_pk_add_f32 {pr(ZZ+2*k)}, {pr(ZZ+2*k)}, {pr(vONE)}")
    for k in range(18): A(f"v_rcp_f32 v{ZZ+k}, v{ZZ+k}")
    for k in range(9): A(f"v_pk_mul_f32 {pr(U+2*k)}, {pr(U+2*k)}, {pr(ZZ+2*k)}")
    for k in range(9): A(f"v_cvt_pk_bf16_f32 v{PK+k}, v{U+2*k}, v{U+2*k+1}")
    A(f"v_mov_b32 v{ACC}, 0")
    for k in range(9): A(f"v_dot2c_f32_bf16 v{ACC}, v{PK+k}, v{W2+k}")
    for pat in ("quad_perm:[1,0,3,2]", "quad_perm:[2,3,0,1]", "row_half_mirror"):
        A(f"v_add_f32_dpp v{ACC}, v{ACC}, v{ACC} {pat}{dm}")
    A(f"v_cmp_eq_u32 vcc, s{sPASS}, v{vFL}"); A(f"v_cndmask_b32 v{RES}, v{RES}, v{ACC}, vcc")
    A(f"s_add_u32 s{sPASS}, s{sPASS}, 1"); A(f"s_cmp_lt_u32 s{sPASS}, 6"); A("s_cbranch_scc1 L_BLOOP")
    if YTAG: A(f"v_mov_b32 v{vY}, v{RES}")
    else:
        A("s_setprio 2")
        A(f"v_lshlrev_b32 v{T}, 5, v{vFL}"); A(f"v_lshrrev_b32 v{T+1}, 3, v{vL}"); A(f"v_lshl_add_u32 v{T}, v{T+1}, 2, v{T}")
        if FULL:
            A(f"v_add_u32 v{T+1}, s{sT}, v{vFL}"); A(f"v_cmp_le_u32 vcc, 9, v{T+1}"); A(f"v_cndmask_b32 v{T+1}, 0, 3, vcc"); A(f"v_lshl_add_u32 v{T}, v{T+1}, 5, v{T}")
        A(f"s_lshl_b32 s{sT}, s{sT}, 5"); A(f"s_add_u32 s{sT}, s{sT}, s{sSPB}"); A(f"s_add_u32 s{sT}, s{sT}, {W_YP}"); A(f"v_add_u32 v{T}, s{sT}, v{T}")
        A(f"s_mov_b32 exec_lo, 0x3f3f3f3f"); A(f"s_mov_b32 exec_hi, 0x3f3f3f3f")
        A(f"global_store_dword v{T}, v{RES}, {ws} sc1")
        A("s_mov_b64 exec, -1")
    if EXTRA:
        A(f"s_lshl_b32 s{sT}, s2, 3"); A(f"s_add_u32 s{sT}, s{sT}, s{sW}"); A(f"s_lshl_b32 s{sT}, s{sT}, 13"); A(f"s_add_u32 s{sT}, s{sT}, 0x1000000"); A(f"v_add_u32 v{T}, s{sT}, v{vOFF}")
        for k in range(EXTRA): A(f"global_store_dwordx4 v{T}, v[40:43], {ws} offset:{1024*k} sc1")
    stamp(2)

    A.label("L_STREAM")
    stamp(6)
    A(f"v_mov_b32 v{vG}, 0")
    cur[0] = None
    issued = 0
    while issued < NSIG: issue(issued); issued += 1
    if not YTAG:
        A(f"s_cmp_lt_u32 s{sW}, 5"); A("s_cbranch_scc1 L_BDONE")
        A("s_mov_b64 exec, 1")
        A(f"v_mov_b32 v{T+2}, 1"); A(f"v_mov_b32 v{T+3}, {L_CNTB}")
        A(f"s_waitcnt vmcnt({NSIG})")
        A(f"ds_add_rtn_u32 v{T+4}, v{T+3}, v{T+2}")
        A(f"s_lshl_b32 s{sT2}, s{sG}, 4"); A(f"s_add_u32 s{sT2}, s{sT2}, 4"); A(f"s_mov_b32 s{sT3}, 1")
        A("s_waitcnt lgkmcnt(0)")
        A(f"v_readfirstlane_b32 s{sCNT}, v{T+4}")
        A("s_mov_b64 exec, -1")
        A("s_setprio 0")
        A(f"s_cmp_lg_u32 s{sCNT}, 2"); A("s_cbranch_scc1 L_BDONE")
        A(f"s_atomic_add s{sT3}, s[{sDBG}:{sDBG+1}], s{sT2}")
    A.label("L_BDONE")
    cur[0] = None
    while issued < WOAT: issue(issued); issued += 1
    MARK_STREAM2 = len(A.lines)
    A.label("L_STREAM2"); A.comment("K/V stream")
    cur[0] = None
    while issued < NPRE: issue(issued); issued += 1
    A(f"s_cmp_eq_u32 s{sLATE}, 1"); A("s_cbranch_scc1 L_LATE0")
    e = NPRE
    while e < min(NEARLY, 46): issue(e); e += 1
    A(f"s_cmp_eq_u32 s{sW}, 4"); A("s_cbranch_scc1 L_NOWO2")
    A(f"s_waitcnt vmcnt({e - WOAT})")
    for k in range(6): A(f"ds_write_b128 v{vG}, a[{60+4*k}:{63+4*k}] offset:{L_WO+1024*k}")
    ldsinc(L_CNTW)
    A("s_waitcnt lgkmcnt(0)")
    A.label("L_NOWO2")
    cur[0] = None
    while e < NEARLY: issue(e); e += 1
    A.label("L_LATE0"); A.comment("wait for q, then QK in groups of 16 keys")
    stamp(7)
    ldswait("QW", L_QFLAG, 0, 2, "lg")
    if FAST: A(f"s_mov_b32 s{sFAST}, s{sT2}")
    A(f"v_bfe_u32 v{T}, v{vL}, 3, 1"); A(f"v_lshlrev_b32 v{T}, 8, v{T}"); A(f"v_and_b32 v{T+1}, 15, v{vL}"); A(f"v_lshl_add_u32 v{T}, v{T+1}, 4, v{T}")
    A(f"v_xor_b32 v{T+1}, 128, v{T}")
    A(f"ds_read_b128 {rng(QA)}, v{T} offset:{L_Q}"); A(f"ds_read_b128 {rng(QB)}, v{T+1} offset:{L_Q}")
    if TAGS: A(f"v_lshlrev_b32 v{T+2}, 2, v{vL}"); A(f"ds_read_b32 v{vTAG}, v{T+2} offset:{L_TAG}")
    A("s_waitcnt lgkmcnt(0)")
    stamp(8)
    YQ = len(A.lines)
    if EPRIO:
        A(f"s_cmp_eq_u32 s{sLATE}, 1"); A("s_cbranch_scc1 L_NOEP"); A(f"s_setprio {EPRIO}"); A.label("L_NOEP")
    def sreg(i): return ks(4 * (i >> 2) + 3) + (i & 3)
    nlab = [0]
    K8 = [13, 14, 16, 17]; V8 = [24, 25, 26, 28]
    def x8(kind):
        srd = f"s[{KS}:{KS+3}]" if kind == "K" else f"s[{VS}:{VS+3}]"
        for a in range(4):
            A(f"s_xor_b32 s{sT}, s{sB8}, {(28+a) << 12}"); A(f"buffer_load_dwordx4 {rng(ks((K8 if kind == 'K' else V8)[a]))}, v{vOFF}, {srd}, s{sT} offen{nt}")
    EQ = {0: [54, 55, 56], 1: [57, 58, 59], 2: [60, 61, 62], 3: [63]}
    def more(n, kdone=32, gq=None):
        nonlocal issued
        todo = list(range(issued, min(issued + n, 64)))
        lim = 64 if EFAST else NEARLY
        lateonly = [k for k in todo if k < lim]; both = [k for k in todo if k >= lim]
        early = EQ.get(gq, []) if EFAST else []
        nlab[0] += 1
        if lateonly or early:
            A(f"s_cmp_eq_u32 s{sLATE}, 0"); A(f"s_cbranch_scc1 L_SK{nlab[0]}")
            cur[0] = None
            for k in lateonly:
                i = k - 32
                assert not (i >= 22 and free[i-22] >= kdone), (i, kdone)
                issue(k)
                if k == 63 and MLAT == 'last': ldsinc(L_CNTL)
            if early: A(f"s_branch L_SJ{nlab[0]}")
            A.label(f"L_SK{nlab[0]}")
            if early:
                for k in early: issue(k)
                A.label(f"L_SJ{nlab[0]}")
        if SKW and gq in (4, 7):
            A(f"s_cmp_eq_u32 s{sX8}, 0"); A(f"s_cbranch_scc1 L_SX{nlab[0]}")
            x8("K" if gq == 4 else "V")
            A.label(f"L_SX{nlab[0]}")
        cur[0] = None
        for k in both:
            i = k - 32
            assert not (i >= 22 and free[i-22] >= kdone), (i, kdone)
            issue(k)
            if k == 63 and MLAT == 'last': ldsinc(L_CNTL)
        issued += len(todo)
    def qk(Kr, S, mid=None, bias=False):
        for a in range(4): A(f"v_dot2_f32_bf16 v{T+a}, v{Kr[a]}, v{QA}, 0")
        for c in range(1, 4):
            for a in range(4): A(f"v_dot2c_f32_bf16 v{T+a}, v{Kr[a]+c}, v{QA+c}")
        for c in range(4):
            for a in range(4): A(f"v_dot2c_f32_bf16_dpp v{T+a}, v{Kr[a]+c}, v{QB+c} row_ror:8{dm}")
        if mid: mid()
        for a in range(4): A(f"v_add_f32_dpp v{T+a}, v{T+a}, v{T+a} quad_perm:[1,0,3,2]{dm}")
        for a in range(4): A(f"v_add_f32_dpp v{T+a}, v{T+a}, v{T+a} quad_perm:[2,3,0,1]{dm}")
        for a in range(4): A(f"v_add_f32_dpp v{S+a}, v{T+a}, v{T+a} row_half_mirror{dm}")
        if ROUND:
            for rep in range(2):
                A(f"v_cvt_pk_bf16_f32 v{T+4}, v{S}, v{S+1}"); A(f"v_cvt_pk_bf16_f32 v{T+5}, v{S+2}, v{S+3}")
                A(f"v_lshlrev_b32 v{S}, 16, v{T+4}"); A(f"v_and_b32 v{S+1}, 0xffff0000, v{T+4}")
                A(f"v_lshlrev_b32 v{S+2}, 16, v{T+5}"); A(f"v_and_b32 v{S+3}, 0xffff0000, v{T+5}")
                if rep == 0:
                    for a in range(4): A(f"v_mul_f32 v{S+a}, {hx(f2u(SCALE))}, v{S+a}")
        if bias:
            for a in range(4): A(f"v_add_f32 v{S+a}, s{sBIAS}, v{S+a}")
    for gq in range(8):
        A(f"s_waitcnt vmcnt({issued - (4*gq+4)})")
        S = ks(4*gq+3)
        qk([ks(4*gq+a) for a in range(4)], S, lambda: more(SCH_QK[gq], 4*gq+4, gq), bool(SKW) and gq == 7)
        if gq == 0: A(f"v_max3_f32 v{vM}, v{S}, v{S+1}, v{S+2}"); A(f"v_max_f32 v{vM}, v{vM}, v{S+3}")
        else: A(f"v_max3_f32 v{vM}, v{vM}, v{S}, v{S+1}"); A(f"v_max3_f32 v{vM}, v{vM}, v{S+2}, v{S+3}")
    S8 = ks(K8[3])
    if SKW:
        assert EFAST and NEARLY == 54
        A(f"s_cmp_eq_u32 s{sX8}, 0"); A("s_cbranch_scc1 L_NQ8")
        A("s_waitcnt vmcnt(4)")
        qk([ks(q) for q in K8], S8)
        A(f"v_max3_f32 v{vM}, v{vM}, v{S8}, v{S8+1}"); A(f"v_max3_f32 v{vM}, v{vM}, v{S8+2}, v{S8+3}")
        A.label("L_NQ8")
    xrow(vM, T, "v_max_f32")
    A(f"v_mul_f32 v{vM}, s{sC1}, v{vM}")
    stamp(9)
    def ystore():
        A(f"s_cmp_lt_u32 s{sW}, 5"); A("s_cbranch_scc1 L_NOY")
        if 't' not in SKIP: ldswait("AOK", L_AOK, 0, 2, "lg")
        A(f"s_mov_b32 s{sXC}, s{sT2}")
        A(f"s_sub_u32 s{sT3}, s{sW}, 5"); A(f"s_mul_i32 s{sCNT}, s{sT3}, 6"); addr_y(T, T+1, T+2, f"s{sCNT}")
        A(f"s_add_u32 s{sT3}, s{sT3}, 21"); A(f"v_lshrrev_b32 v{T+1}, s{sT3}, v{vTAG}"); A(f"v_bfi_b32 v{vY}, 1, v{T+1}, v{vY}")
        A(f"s_mov_b32 exec_lo, 0x3f3f3f3f"); A(f"s_mov_b32 exec_hi, 0x3f3f3f3f")
        if YLOC:
            A(f"s_cmp_eq_u32 s{sXC}, 1"); A("s_cbranch_scc1 L_YF")
            A(f"global_store_dword v{T}, v{vY}, {ws} sc1"); A("s_branch L_YJ")
            A.label("L_YF"); A(f"global_store_dword v{T}, v{vY}, {ws}"); A.label("L_YJ")
        elif 'Y' not in SKIP: A(f"global_store_dword v{T}, v{vY}, {ws} sc1")
        A("s_mov_b64 exec, -1")
        A.label("L_NOY")
    if YTAG and YAT == 'qk': ystore()
    A(f"v_mov_b32 v{vLs}, 0")
    for q in range(8):
        S = ks(4*q+3)
        for a in range(4): A(f"v_fma_f32 v{S+a}, v{S+a}, s{sC1}, -v{vM}")
        for a in range(4): A(f"v_exp_f32 v{S+a}, v{S+a}")
        for a in range(4): A(f"v_add_f32 v{vLs}, v{vLs}, v{S+a}")
        for a in range(4): A(f"v_cvt_pk_bf16_f32 v{S+a}, v{S+a}, v{S+a}")
        more(SCH_SM[q])
    if SKW:
        A(f"s_cmp_eq_u32 s{sX8}, 0"); A("s_cbranch_scc1 L_NS8")
        for a in range(4): A(f"v_fma_f32 v{S8+a}, v{S8+a}, s{sC1}, -v{vM}")
        for a in range(4): A(f"v_exp_f32 v{S8+a}, v{S8+a}")
        for a in range(4): A(f"v_add_f32 v{vLs}, v{vLs}, v{S8+a}")
        for a in range(4): A(f"v_cvt_pk_bf16_f32 v{S8+a}, v{S8+a}, v{S8+a}")
        A.label("L_NS8")
    xrow(vLs, T, "v_add_f32")
    vH6 = T + 6
    A(f"v_bfe_u32 v{T+7}, v{vL}, 3, 1"); A(f"v_lshlrev_b32 v{vH6}, 6, v{T+7}")
    A(f"s_lshl_b32 s{sT2}, s{sW}, 3"); A(f"v_add_u32 v{T}, s{sT2}, v{vH6}")
    A(f"v_mov_b32 v{T+2}, 1"); A(f"v_mov_b32 v{T+3}, {L_CNTI}")
    A("s_mov_b64 exec, 0x101"); A(f"ds_write_b64 v{T}, v[{vM}:{vM+1}] offset:{L_MLW}")
    A("s_mov_b64 exec, 1"); A(f"ds_add_rtn_u32 v{T+4}, v{T+3}, v{T+2}"); A("s_mov_b64 exec, -1")
    A(f"v_lshlrev_b32 v{vM}, 8, v{T+7}"); A(f"v_lshrrev_b32 v{T+1}, 4, v{vL}"); A(f"v_lshl_add_u32 v{vM}, v{T+1}, 6, v{vM}")
    A(f"v_and_b32 v{T+1}, 7, v{vL}"); A(f"v_lshl_add_u32 v{vM}, v{T+1}, 3, v{vM}"); A(f"v_add_u32 v{vM}, s{sREC}, v{vM}")
    A(f"s_lshl_b32 s{sT2}, s{sW}, 10"); A(f"v_add_u32 v{vLs}, s{sT2}, v{vOFF}")
    A("s_waitcnt lgkmcnt(0)")
    A(f"v_readfirstlane_b32 s{sT2}, v{T+4}")
    A(f"s_cmp_lg_u32 s{sT2}, 7"); A("s_cbranch_scc1 L_NOF")
    MQ = [ks(18), ks(20), ks(21), ks(22)]; FF = ks(29)
    for k in range(4): A(f"ds_read_b128 {rng(MQ[k])}, v{vH6} offset:{L_MLW+16*k}")
    mm = [MQ[k // 2] + 2 * (k % 2) for k in range(8)]
    A(f"v_lshlrev_b32 v{T+2}, 3, v{T+7}"); A(f"v_add_u32 v{T+2}, s{sREC}, v{T+2}")
    A("s_waitcnt lgkmcnt(0)")
    A(f"v_max3_f32 v{T}, v{mm[0]}, v{mm[1]}, v{mm[2]}"); A(f"v_max3_f32 v{T}, v{T}, v{mm[3]}, v{mm[4]}"); A(f"v_max3_f32 v{T}, v{T}, v{mm[5]}, v{mm[6]}"); A(f"v_max_f32 v{T}, v{T}, v{mm[7]}")
    for k in range(8): A(f"v_sub_f32 v{FF+k}, v{mm[k]}, v{T}")
    for k in range(8): A(f"v_exp_f32 v{FF+k}, v{FF+k}")
    A(f"v_mul_f32 v{T+1}, v{FF}, v{mm[0]+1}")
    for k in range(1, 8): A(f"v_fmac_f32 v{T+1}, v{FF+k}, v{mm[k]+1}")
    A(f"v_lshrrev_b32 v{T+3}, 1, v{vH6}")
    if TAGS: A(f"v_lshrrev_b32 v{T+4}, 17, v{vTAG}"); A(f"v_bfi_b32 v{T+1}, 1, v{T+4}, v{T+1}")
    else: A(f"v_min_u32 v{T}, -2, v{T}"); A(f"v_min_u32 v{T+1}, -2, v{T+1}")
    A("s_mov_b64 exec, 0x101")
    A(f"ds_write_b128 v{T+3}, {rng(FF)} offset:{L_FW}"); A(f"ds_write_b128 v{T+3}, {rng(FF+4)} offset:{L_FW+16}")
    def pub(tag, text):
        if FAST:
            A(f"s_cmp_eq_u32 s{sFAST}, 1"); A(f"s_cbranch_scc1 L_PF{tag}", quick=True)
            A(text + " sc1"); A(f"s_branch L_PJ{tag}", quick=True)
            A.label(f"L_PF{tag}", quick=True); A(text); A.label(f"L_PJ{tag}", quick=True)
        else: A(text + " sc1")
    if 't' not in SKIP: pub("M", f"global_store_dwordx2 v{T+2}, v[{T}:{T+1}], {ws} offset:512")
    A("s_mov_b64 exec, -1")
    A.label("L_NOF"); A.comment("PV")
    A(f"v_mov_b32 v{T+2}, 1"); A(f"v_mov_b32 v{T+3}, {L_CNTO}"); A(f"v_lshrrev_b32 v{T+4}, 1, v{vH6}")
    if TAGS: A(f"v_lshrrev_b32 v{T+1}, 16, v{vTAG}"); A(f"s_mov_b32 s{sB8}, 0xffff")
    for i in range(33):
        if i < 32:
            Bx = B0 if i % 2 == 0 else B1
            for k in range(4): A(f"v_and_b32 v{Bx+k}, v{sreg(i)}, v{MK+k}")
        if i > 0:
            Bp = B0 if (i-1) % 2 == 0 else B1
            assert issued > 32 + i - 1
            A(f"s_waitcnt vmcnt({issued - (32 + i)})")
            A(f"v_mfma_f32_16x16x32_bf16 {rng(D)}, {vreg(i-1)}, {rng(Bp)}, {'0' if i == 1 else rng(D)}")
            more(SCH_PV.get(i-1, 0))
    assert issued == 64
    if SKW:
        A(f"s_cmp_eq_u32 s{sX8}, 0"); A("s_cbranch_scc1 L_NP8")
        for a in range(4):
            Bc = B0 if a % 2 == 0 else B1
            for k in range(4): A(f"v_and_b32 v{Bc+k}, v{S8+a}, v{MK+k}")
            A(f"v_mfma_f32_16x16x32_bf16 {rng(D)}, {rng(ks(V8[a]))}, {rng(Bc)}, {rng(D)}")
        A.label("L_NP8")
    stamp(10)
    if 't' in SKIP: A("s_branch L_EXIT")
    A(f"ds_write_b128 v{vLs}, {rng(D)} offset:{L_OW}")
    A("s_mov_b64 exec, 1"); A(f"ds_add_rtn_u32 v{T+5}, v{T+3}, v{T+2}"); A("s_mov_b64 exec, -1")
    A("s_waitcnt lgkmcnt(0)")
    A(f"v_readfirstlane_b32 s{sT2}, v{T+5}")
    A(f"s_cmp_lg_u32 s{sT2}, 7"); A("s_cbranch_scc1 L_NOPUB", quick=True)
    OO = 40; FR = 72
    A(f"ds_read_b128 {rng(FR)}, v{T+4} offset:{L_FW}"); A(f"ds_read_b128 {rng(FR+4)}, v{T+4} offset:{L_FW+16}")
    for k in range(8): A(f"ds_read_b128 {rng(OO+4*k)}, v{vOFF} offset:{L_OW+1024*k}")
    for k in range(8):
        A(f"s_waitcnt lgkmcnt({7-k})")
        if PKF:
            fp = FR + (k & ~1); sel = k & 1
            for c in (0, 2):
                if k == 0: A(f"v_pk_mul_f32 v[{D+c}:{D+c+1}], v[{OO+c}:{OO+c+1}], v[{fp}:{fp+1}] op_sel_hi:[1,0]")
                else: A(f"v_pk_fma_f32 v[{D+c}:{D+c+1}], v[{OO+4*k+c}:{OO+4*k+c+1}], v[{fp}:{fp+1}], v[{D+c}:{D+c+1}] op_sel:[0,{sel},0] op_sel_hi:[1,{sel},1]")
        else:
            for c in range(4):
                if k == 0: A(f"v_mul_f32 v{D+c}, v{FR}, v{OO+c}")
                else: A(f"v_fmac_f32 v{D+c}, v{FR+k}, v{OO+4*k+c}")
    if TAGS and RNDT:
        A(f"v_bfe_u32 v{T+5}, v{D}, 17, 1"); A(f"v_add3_u32 v{D}, v{D}, v{T+5}, s{sB8}"); A(f"v_and_b32 v{D}, 0xfffe0000, v{D}")
    A(f"v_cvt_pk_bf16_f32 v{D}, v{D}, v{D+1}"); A(f"v_cvt_pk_bf16_f32 v{D+1}, v{D+2}, v{D+3}")
    if TAGS: A(f"v_bfi_b32 v{D}, 1, v{T+1}, v{D}")
    else: A(f"v_min_u32 v{D}, -2, v{D}"); A(f"v_min_u32 v{D+1}, -2, v{D+1}")
    pub("O", f"global_store_dwordx2 v{vM}, v[{D}:{D+1}], {ws}")
    if MLFIRST or MLAT: A(f"ds_write_b32 v{T+3}, v{T+2} offset:{L_PUBD - L_CNTO}")
    stamp(3)
    A.label("L_NOPUB"); A.comment("wave 1: o @ wo slice (hop 1); wave 2: final sum and output (hop 2)")
    A(f"s_cmp_eq_u32 s{sW}, 2"); A("s_cbranch_scc1 L_HOP2")
    if H1W == 2: A(f"s_and_b32 s{sT2}, s{sW}, 5"); A(f"s_cmp_lg_u32 s{sT2}, 1"); A("s_cbranch_scc1 L_EXIT")
    else: A(f"s_cmp_lg_u32 s{sW}, 1"); A("s_cbranch_scc1 L_EXIT")

    def checkAB(tag, va, vd):
        A(f"s_mov_b32 s{sCNT}, {LIMIT}")
        A(f"v_and_b32 v{va}, 15, v{vL}"); A(f"v_lshlrev_b32 v{va}, 4, v{va}"); (A(f"v_bfe_u32 v{vd}, v{vL}, 4, 1"), A(f"v_lshl_add_u32 v{va}, v{vd}, 2, v{va}")) if not YTAG else None
        A.label(f"L_CB{tag}")
        A(f"global_load_dword v{vd}, v{va}, s[{sDBG}:{sDBG+1}] sc1"); A("s_waitcnt vmcnt(0)")
        if FAST: A(f"v_and_b32 v{vd+1}, 0xff, v{vd}")
        A(f"v_cmp_ne_u32 vcc, 16, v{vd+1 if FAST else vd}"); A(f"s_cbranch_vccz L_CB{tag}_OK")
        A("s_sleep 16"); A(f"s_sub_u32 s{sCNT}, s{sCNT}, 1"); A(f"s_cmp_lg_u32 s{sCNT}, 0"); A(f"s_cbranch_scc1 L_CB{tag}")
        A.label(f"L_CB{tag}_OK")
    def red32(v, t):
        A(f"v_add_f32 v{v}, v{v}, v{v+1}"); A(f"v_add_f32 v{v+2}, v{v+2}, v{v+3}"); A(f"v_add_f32 v{v}, v{v}, v{v+2}")
        A(f"v_add_f32_dpp v{v}, v{v}, v{v} row_ror:8{dm}")
        xrow(v, t, "v_add_f32")
    RAW = 120; vA = 160; vMLa = 161; vSP = 162; vH2 = 160; vOA = 161
    checkAB("T", T, T+1)
    if YLOC:
        assert MAP == "kvh" and FAST
        A(f"s_getreg_b32 s{sXC}, hwreg(HW_REG_XCC_ID)"); A(f"s_and_b32 s{sXC}, s{sXC}, 15"); A(f"s_mul_i32 s{sT2}, s{sXC}, s{sXC}")
        A(f"s_lshl_b32 s{sT2}, s{sT2}, 8"); A(f"s_add_u32 s{sT2}, s{sT2}, s{sXC}"); A(f"s_lshl_b32 s{sT2}, s{sT2}, 8"); A(f"s_add_u32 s{sT2}, s{sT2}, 1"); A(f"s_lshl_b32 s{sXC}, s{sT2}, 4")
        A(f"s_add_u32 s{sT3}, s{sYC}, 8"); A(f"v_readlane_b32 s{sT}, v{T+1}, s{sYC}"); A(f"v_readlane_b32 s{sT2}, v{T+1}, s{sT3}")
        A(f"s_cmp_eq_u32 s{sT}, s{sXC}"); A(f"s_cselect_b32 s{sT}, 1, 2"); A(f"s_cmp_eq_u32 s{sT2}, s{sXC}"); A(f"s_cselect_b32 s{sT}, s{sT}, 2")
        A(f"v_mov_b32 v{T}, {L_AOK}"); A(f"v_mov_b32 v{T+1}, s{sT}"); A(f"ds_write_b32 v{T}, v{T+1}")
    elif YTAG: A(f"v_mov_b32 v{T}, {L_AOK}"); A(f"v_mov_b32 v{T+1}, 1"); A(f"ds_write_b32 v{T}, v{T+1}")
    ldswait("WW", L_CNTW, 3, 2)
    A(f"v_lshrrev_b32 v{T}, 4, v{vL}"); A(f"v_mul_u32_u24 v{T}, 288, v{T}"); A(f"v_and_b32 v{T+1}, 15, v{vL}"); A(f"v_lshl_add_u32 v{T}, v{T+1}, 1, v{T}")
    if H1W == 2:
        A(f"s_sub_u32 s{sT}, s{sW}, 1"); A(f"s_lshl_b32 s{sT}, s{sT}, 5"); A(f"v_add_u32 v{T}, s{sT}, v{T}")
    for n in (range(5) if H1W == 1 else (0, 1, 4)):
        for t in range(4):
            for e_ in range(8): A(f"ds_read_u16 v{RAW+e_}, v{T} offset:{L_WO + 32*n + (32*t + 8*(e_&3) + (e_>>2))*144}")
            A("s_waitcnt lgkmcnt(0)")
            for k in range(4): A(f"v_lshl_or_b32 v{40+16*n+4*t+k}, v{RAW+2*k+1}, 16, v{RAW+2*k}")
    addr_in1(vA, vMLa, T); addr_sp(vSP, T)
    if H1W == 2: A(f"s_sub_u32 s{sT2}, s{sW}, 1"); A(f"s_lshl_b32 s{sT2}, s{sT2}, 6"); A(f"v_add_u32 v{vSP}, s{sT2}, v{vSP}")
    vTB = vSP + 3
    if TAGS:
        for k in range(3): A(f"v_lshrrev_b32 v{vTB+k}, {18+k}, v{vTAG}")
        if H1W == 2: A(f"s_lshr_b32 s{sT2}, s{sW}, 1"); A(f"v_lshrrev_b32 v{vTB}, s{sT2}, v{vTB}")

    def maxchain(dst, regs):
        A(f"v_max3_u32 v{dst}, v{regs[0]}, v{regs[1]}, v{regs[2]}")
        k = 3
        while k < len(regs):
            if k + 1 < len(regs): A(f"v_max3_u32 v{dst}, v{dst}, v{regs[k]}, v{regs[k+1]}"); k += 2
            else: A(f"v_max_u32 v{dst}, v{dst}, v{regs[k]}"); k += 1
    def pollmask(tag, loads, regs):
        sl = {"HM": MSL, "H1": H1SL, "H2": H2SL, "HY": YSL}[tag]
        if TAGS:
            n_, sh_ = {"HM": (4, 8), "H1": (8, 0), "H2": (4, 12), "HY": (4, 24)}[tag]
            A(f"v_lshlrev_b32 v{T+1}, {32 - n_ - sh_}, v{vTAG}")
        A(f"s_mov_b32 s{sCNT}, {LIMIT}")
        A.label(f"L_{tag}")
        loads()
        A("s_waitcnt vmcnt(0)")
        if TAGS:
            tg, sh = {"HM": (regs[1::2], 8), "H1": (regs[0::2], 0), "H2": (regs, 12), "HY": (regs, 24)}[tag]
            A(f"v_alignbit_b32 v{T}, v{tg[0]}, v{tg[0]}, 1")
            for r in tg[1:]: A(f"v_alignbit_b32 v{T}, v{r}, v{T}, 1")
            A(f"v_xor_b32 v{T}, v{T}, v{T+1}"); A(f"v_cmp_le_u32 vcc, {hx(1 << (32 - len(tg)))}, v{T}"); A(f"s_cbranch_vccz L_{tag}_OK")
        else:
            if len(regs) > 8:
                h = len(regs) // 2
                maxchain(T, regs[:h]); maxchain(T+1, regs[h:]); A(f"v_max_u32 v{T}, v{T}, v{T+1}")
            else: maxchain(T, regs)
            A(f"v_cmp_eq_u32 vcc, -1, v{T}"); A(f"s_cbranch_vccz L_{tag}_OK")
        A("s_mov_b64 exec, vcc")
        if sl: A(f"s_sleep {sl}")
        A(f"s_sub_u32 s{sCNT}, s{sCNT}, 1"); A(f"s_cmp_lg_u32 s{sCNT}, 0"); A(f"s_cbranch_scc1 L_{tag}")
        A.label(f"L_{tag}_OK")
        A("s_mov_b64 exec, -1")
        if TAGS:
            for r in {"HM": regs[1::2], "H1": regs[0::2], "H2": regs, "HY": regs}[tag]: A(f"v_and_b32 v{r}, -2, v{r}")

    AA = 136; ML = 152; WN = 24
    A(f"v_mov_b32 v{vSP+1}, 1"); A(f"v_mov_b32 v{vSP+2}, {L_SPD}")
    if MLAT == 'last': ldswait("OW", L_CNTL, 4 if EFAST else 8, 1)
    elif MLAT == 'o5': ldswait("OW", L_CNTO, 5, 1, "ge")
    elif MLFIRST: ldswait("OW", L_CNTI, 8, 4)
    else: ldswait("OW", L_CNTO, 8, 1); stamp(6)
    pollmask("HM", lambda: [A(f"global_load_dwordx2 v[{ML+2*i}:{ML+2*i+1}], v{vMLa}, {ws} offset:{640*i} sc1") for i in range(4)], list(range(ML, ML+8)))
    m = [ML, ML+2, ML+4, ML+6]; l = [ML+1, ML+3, ML+5, ML+7]
    def aloads():
        for t in range(4): A(f"global_load_dwordx4 {rng(AA+4*t)}, v{vA}, {ws} offset:{64*t} {F1}")
    A(f"v_max3_f32 v{T}, v{m[0]}, v{m[1]}, v{m[2]}"); A(f"v_max_f32 v{T}, v{T}, v{m[3]}")
    A(f"v_mov_b32 v{T+1}, v{T}"); A(f"v_permlane16_swap_b32 v{T+1}, v{T}"); A(f"v_max_f32 v{T}, v{T+1}, v{T}")
    for i in range(4): A(f"v_sub_f32 v{m[i]}, v{m[i]}, v{T}")
    for i in range(4): A(f"v_exp_f32 v{m[i]}, v{m[i]}")
    A(f"v_mul_f32 v{T+2}, v{m[0]}, v{l[0]}")
    for i in range(1, 4): A(f"v_fmac_f32 v{T+2}, v{m[i]}, v{l[i]}")
    A(f"v_mov_b32 v{T+1}, v{T+2}"); A(f"v_permlane16_swap_b32 v{T+1}, v{T+2}"); A(f"v_add_f32 v{T+2}, v{T+1}, v{T+2}")
    A(f"v_rcp_f32 v{T+2}, v{T+2}")
    for i in range(4): A(f"v_mul_f32 v{WN+i}, v{m[i]}, v{T+2}")
    if MLFIRST or MLAT:
        ldswait("PW", L_PUBD, 1, 1); stamp(6)
        if H1DELAY: A(f"s_sleep {H1DELAY}")
    pollmask("H1", aloads, list(range(AA, AA+16)))
    stamp(7)
    def mf(t, n): return f"v_mfma_f32_16x16x32_bf16 {rng(4+4*n)}, {rng(AA+4*t)}, {rng(40+16*n+4*t)}, {'0' if t == 0 else rng(4+4*n)}"
    def epi(n): return [f"v_mul_f32 v{T+n}, v{WN}, v{4+4*n}"] + [f"v_fmac_f32 v{T+n}, v{WN+i}, v{4+4*n+i}" for i in range(1, 4)]
    def fin2(n): return [f"v_permlane16_swap_b32 v{T+n-1}, v{T+n}", f"v_add_f32 v{T+n}, v{T+n-1}, v{T+n}", (f"v_bfi_b32 v{T+n}, 1, v{vTB+n//2}, v{T+n}" if TAGS else f"v_min_u32 v{T+n}, -2, v{T+n}"),
                         f"global_store_dword v{vSP}, v{T+n}, {ws} offset:{128*(n//2)} {FS}"]
    def fin4(): return [f"v_mov_b32 v{T+5}, v{T+4}", None, None, f"v_permlane16_swap_b32 v{T+5}, v{T+4}", f"v_add_f32 v{T+4}, v{T+5}, v{T+4}", (f"v_bfi_b32 v{T+4}, 1, v{vTB+2}, v{T+4}" if TAGS else f"v_min_u32 v{T+4}, -2, v{T+4}")] + \
                       ([] if FULL else ["s_mov_b32 exec_lo, 0xff", "s_mov_b32 exec_hi, 0xff"]) + [f"global_store_dword v{vSP}, v{T+4}, {ws} offset:256 {FS}"] + ([] if FULL else ["s_mov_b64 exec, -1"])
    if H1W == 2:
        for t in range(4): A(mf(t, 0)); A(mf(t, 1))
        A(f"s_cmp_eq_u32 s{sW}, 3"); A("s_cbranch_scc1 L_H1B", quick=True)
        side = [None, None] + epi(0) + epi(1) + [None] + fin2(1)
        for t in range(4):
            A(mf(t, 4))
            for _ in range(4):
                if side:
                    x = side.pop(0)
                    if x: A(x)
        for x in side + epi(4) + fin4():
            if x: A(x)
        A("s_branch L_H1C")
        A.label("L_H1B", quick=True)
        A("s_nop 5")
        for x in epi(0) + epi(1) + fin2(1): A(x)
        A.label("L_H1C")
    elif REORD:
        for t in range(4): A(mf(t, 4)); A(mf(t, 0))
        side = [None, None] + epi(4) + fin4()
        for t in range(4):
            A(mf(t, 1))
            for _ in range(4):
                if side:
                    x = side.pop(0)
                    if x: A(x)
        for x in side:
            if x: A(x)
        side = epi(0) + [None] + epi(1) + [None] + fin2(1)
        for t in range(4):
            for n in (2, 3):
                A(mf(t, n))
                for _ in range(2):
                    if side:
                        x = side.pop(0)
                        if x: A(x)
        for x in side:
            if x: A(x)
        for x in epi(2) + epi(3) + fin2(3): A(x)
    else:
        for t in range(4):
            for n in range(5): A(mf(t, n))
        for x in epi(0) + epi(1) + fin2(1) + epi(2) + epi(3) + fin2(3) + epi(4) + fin4():
            if x: A(x)
    A(f"ds_write_b32 v{vSP+2}, v{vSP+1}")
    A("s_mov_b64 exec, -1")
    stamp(9)
    A("s_branch L_EXIT")

    A.label("L_HOP2"); A.comment("hop 2")
    A(f"s_cmp_ge_u32 s2, 144"); A("s_cbranch_scc1 L_EXIT")
    YY = 120
    if not YTAG: checkAB("G", T, T+1)
    sCH = sPASS
    addr_in2(vH2, vOA, sCH)
    A(f"v_add_u32 v{T}, {W_YP - W_SP}, v{vH2}")
    if YTAG: A(f"v_mov_b32 v{YY+6}, v{T}")
    else:
        for k in range(4): A(f"global_load_dword v{YY+k}, v{T}, {ws} offset:{SL*k} sc1")
    A(f"v_lshlrev_b32 v{vOA}, 1, v{vOA}"); A(f"s_lshl_b32 s{sT}, s{sCH}, 4"); A(f"v_add_u32 v{vOA}, s{sT}, v{vOA}")
    A(f"global_load_ushort v{vXo}, v{vOA}, s[{sX}:{sX+1}]")
    A(f"v_mov_b32 v{T+1}, 0")
    A(f"global_load_ushort v{YY+4}, v{T+1}, s[{sB2}:{sB2+1}]")
    if YTAG:
        ldswait("YW", L_CNTI, 8, 4)
        pollmask("HY", lambda: [A(f"global_load_dword v{YY+k}, v{YY+6}, {ws} offset:{SL*k} sc1") for k in range(4)], list(range(YY, YY+4)))
    A("s_waitcnt vmcnt(0)")
    red32(YY, YY+5)
    rnd1(YY); A(f"v_lshlrev_b32 v{YY+4}, 16, v{YY+4}"); A(f"v_add_f32 v{YY}, v{YY}, v{YY+4}"); rnd1(YY)
    A(f"v_mul_f32 v{YY+1}, {hx(f2u(-LOG2E))}, v{YY}"); A(f"v_exp_f32 v{YY+1}, v{YY+1}"); A(f"v_add_f32 v{YY+1}, 1.0, v{YY+1}"); A(f"v_rcp_f32 v{YY+1}, v{YY+1}")
    A(f"v_mul_f32 v{vG}, v{YY}, v{YY+1}"); rnd1(vG)
    A(f"v_lshlrev_b32 v{vXo}, 16, v{vXo}")
    SS = 112
    if H2WAIT == "sp": ldswait("OW2", L_SPD, 1, 1)
    else: ldswait("OW2", L_CNTO, 8, 1)
    if H2DELAY: A(f"s_sleep {H2DELAY}")
    pollmask("H2", lambda: [A(f"global_load_dword v{SS+k}, v{vH2}, {ws} offset:{SL*k} {F2}") for k in range(4)], list(range(SS, SS+4)))
    stamp(7)
    red32(SS, T)
    rnd1(SS); A(f"v_mul_f32 v{SS}, v{SS}, v{vG}"); rnd1(SS); A(f"v_add_f32 v{SS}, v{SS}, v{vXo}")
    A(f"v_cvt_pk_bf16_f32 v{SS}, v{SS}, v{SS}")
    A("s_mov_b64 exec, 0xff")
    A(f"global_store_short v{vOA}, v{SS}, s[{sOUT}:{sOUT+1}]")
    A("s_mov_b64 exec, -1")
    A.label("L_EXIT")
    if ECHO:
        stamp(11); A("s_waitcnt lgkmcnt(0)")
        A(f"s_cmp_lg_u32 s2, 0"); A("s_cbranch_scc1 L_END")
        A(f"s_cmp_lg_u32 s{sW}, {ECHO[0]}"); A("s_cbranch_scc1 L_END")
        A(f"s_sub_u32 s{sT}, s{SB+2*ECHO[1]}, s{SB}"); A(f"s_lshl_b32 s{sT}, s{sT}, 2"); A(f"s_add_u32 s{sT}, s{sT}, 4000"); A(f"s_add_u32 s{sT}, s{sT}, s{SB}")
        A.label("L_ECHO")
        A(f"s_memrealtime s[{sR}:{sR+1}]"); A("s_waitcnt lgkmcnt(0)"); A(f"s_sub_u32 s{sT2}, s{sR}, s{sT}"); A(f"s_cmp_lt_i32 s{sT2}, 0"); A("s_cbranch_scc1 L_ECHO")
    elif STAMP:
        stamp(11)
        A("s_waitcnt lgkmcnt(0) vmcnt(0)")
        A(f"s_lshl_b32 s{sT}, s2, 3"); A(f"s_add_u32 s{sT}, s{sT}, s{sW}"); A(f"s_mul_i32 s{sT}, s{sT}, {NST*8}"); A(f"s_add_u32 s{sT}, s{sT}, {W_ST}")
        A(f"v_mov_b32 v3, s{sT}")
        for k in range(2*NST): A(f"v_mov_b32 v{40+k}, s{SB+k}")
        A("s_mov_b64 exec, 1")
        for q in range(NST // 2): A(f"global_store_dwordx4 v3, {rng(40+4*q)}, {ws} offset:{16*q}")
    A.label("L_END")
    A("s_endpgm")
    svc = A.lines[MARK_SERVICE:MARK_STREAM2]
    assert A.lines[MARK_SERVICE-1].strip() == "s_branch L_STREAM2"
    A.lines = A.lines[:MARK_SERVICE-1] + A.lines[MARK_STREAM2:] + svc + ["    s_branch L_STREAM2", "L_CODE_END:"]
    A.raw(".set CODE_KB, (L_CODE_END - L_PC0) >> 10" if PF else "")
    A.raw("    s_endpgm"); A.raw(".fill 260, 4, 0xbf800000")
    A.raw('.section .rodata,"a"'); A.raw(".p2align 6"); A.raw(f".amdhsa_kernel {KN}_kernel")
    A.raw("  .amdhsa_next_free_vgpr 256"); A.raw("  .amdhsa_next_free_sgpr 102"); A.raw("  .amdhsa_accum_offset 168")
    A.raw("  .amdhsa_group_segment_fixed_size 0"); A.raw("  .amdhsa_kernarg_size 104"); A.raw("  .amdhsa_user_sgpr_count 2")
    A.raw("  .amdhsa_user_sgpr_kernarg_segment_ptr 1"); A.raw("  .amdhsa_system_sgpr_workgroup_id_x 1")
    A.raw("  .amdhsa_float_denorm_mode_32 3")
    A.raw(".end_amdhsa_kernel")
    return A.text()

if __name__ == "__main__":
    out = sys.argv[1]
    kw = eval("dict(" + (sys.argv[2] if len(sys.argv) > 2 else "") + ")")
    open(out, "w").write(gen(**kw))
```

```python
import sys, struct, math
sys.path.insert(0, __file__.rsplit("/", 1)[0] if "/" in __file__ else ".")
from asmlib import Asm
KN = "recurrent_scan__gqa_block_cached__mixer_token_mlp__decode"
def f2u(x): return struct.unpack("<I", struct.pack("<f", x))[0]
def hx(x): return f"0x{x & 0xffffffff:08x}"
LOG2E = 1.4426950408889634
SCALE = 128 ** -0.5
L_MISC = 0
L_QFLAG = 0; L_CNTB = 4; L_CNTI = 8; L_CNTO = 12; L_CNTW = 16; L_SPD = 20; L_PUBD = 24; L_CNTL = 28; L_AOK = 32; L_SNOK = 36
L_MLW = 64; L_FW = 192; L_Q = 256; L_TAG = 768; L_OW = 1024; L_XL = L_OW + 8192; L_WO = L_XL + 4 * 2304; L_WQ = L_WO + 128 * 144 + 64; L_END = L_WQ + 18432
W_QP = 0; W_REC = 0x40000; W_SP = 0x70000; W_YP = 0xA8000; W_PC = 0xE0000; W_ST = 128 << 20
LIMIT = 1 << 15
OOB = 0x200000

def gen(MAP="kvh", CMAP=False, NT=True, ROUND=True, STAMP=False, NPRE=36, NEARLY=54, SCH_QK=(2,)*8, SCH_SM=(1,)*8, SCH_PV={3:1,7:1,11:1,15:1},
        NSIG=8, ECHO=None, H2WAIT="sp", H2DELAY=0, WONT=False, EPRIO=1, PF=0, NFIRST=8, EXTRA=0, WOAT=20, JJ=False, ROT=2, SKIP='', W0INL=False, NS0=False, DELAY1=False, THR=0, MLFIRST=False, H1DELAY=0, MSL=0, H1SL=0, H2SL=0, FULL=True, HS=227, PSL=2, F1='sc1', F2='sc1', FS='sc1', C2MAP=True, REORD=True, QBF=False, SKW=0, EFAST=True, H1W=1, MLAT='last', P0=3, NS0P=None, TAGS=True, RNDT=False, QCOL=True, NRG=4, YTAG=True, YAT='qk', YSL=32, SNLATE=True, SNW5=True, GFLAG=False, SK2=True, FAST=True, YLOC=True, QPL=True, PKF=True, SPEC=True, FORCE2=False, JP=0, XL_=0, WQF='nt'):
    SL = 768 if FULL else 640; BO = 384 if FULL else 288
    GL = 8; BAR2 = False; GATE_AT = 99; NWORK = 4
    JPERM = {0: lambda i: i, 1: lambda i: ((i & 3) << 3) | (i >> 2), 2: lambda i: ((i & 1) << 1) | ((i >> 1) & 1) | (i & 28)}[JP]
    JOFF = {0: lambda i: JPERM(i) << 12, 1: lambda i: ((i & 3) << 10) | ((i >> 2) << 14), 2: lambda i: ((i >> 3) << 10) | ((i & 7) << 14), 3: lambda i: ((i & 1) << 11) | ((i >> 1) << 13)}[XL_]
    WSH = {0: 10, 1: 8, 2: 8, 3: 9}[XL_]
    A = Asm()
    nt = " nt" if NT else ""
    NST = 12; SB = 76
    POOL = GL < 8
    UPW = 8 - GL if POOL else 0
    NUNIT = 32 * UPW
    if ECHO: STAMP = True
    A.raw(f"; @launch grid=(256,1,1) block=(512,1,1) lds={(L_END + 255) // 256 * 256}")
    if STAMP and not ECHO: A.raw(f"; STAMPS nrec=2048 n={NST}")
    for ln in """
; out = x + attn(LN(x)) * silu(mixer(LN(x))) for B=2, D=576, Hq=32, Hkv=16, Sk=8192, Dh=128, F=4608 -- one launch, 256 workgroups x 8 waves.
; Workgroup = (kv head g, batch b, key split sp): 1024 keys of K and V, streamed straight into registers (nt loads).
;   waves 1-4 start streaming at once; wave 0 first computes a 144 x 64 slice of q = LN(x) @ wq for head pair g, waves 5-7 first
;   compute a 144 x 144 slice of the token-mixing MLP; then they stream too.
;   QK: v_dot2 + DPP reduce; softmax with the true per-wave max; PV: one 16x16x32 MFMA per 4 keys (B = diag-expanded p).
; Hand-offs between workgroups (payload always loaded sc1; stored sc1, or plain when the counter words show that writer and
; readers sit on one XCD -- every arrival adds its XCC id and its square, so the sums tell whether all ids are equal):
;   q slices: counter in d_debug (zero at launch) -> the last arriver bumps the members' flag words -> members sum the 4 slices
;   (spread group: the slices are stored again, written through, and the group meets a second time).
;   (m,l), o partials, y partials and s = o @ wo partials: slots in d_ws. Before it bumps the counter a workgroup reads the low bit
;   of every slot word it will write or wait for; writers store the opposite bit, readers poll until every bit has flipped and
;   then clear it, so what d_ws held on entry only tells new words from old ones.
; kernarg: x 0, K 8, V 16, wq 24, wo 32, B_x 40 (unused by the reference), w1 48, b1 56, w2 64, b2 72, out 80, debug 88, ws 96
""".strip().splitlines(): A.raw(ln)
    A.raw('.amdgcn_target "amdgcn-amd-amdhsa--gfx950"')
    A.raw(".text"); A.raw(f".globl {KN}_kernel"); A.raw(".p2align 8"); A.raw(f".type {KN}_kernel,@function"); A.raw(f"{KN}_kernel:")
    def stamp(k):
        if STAMP: A(f"s_memrealtime s[{SB+2*k}:{SB+1+2*k}]")
    sX, sK, sV, sWQ, sWO, sW1, sB1, sW2, sB2, sOUT, sDBG, sWS = 4, 6, 8, 10, 12, 16, 18, 20, 22, 24, 26, 28
    KS, VS = 32, 36
    sW, sG, sB, sSP, sJ, sLATE, sCG, sP, sBASE, sT, sT2, sT3, sCNT, sPASS, sC1, sREC = range(40, 56)
    sA = 56; sPC = 58; sBASE2 = 59; sR = 60; sU = 64; sNX = 66; sBIAS = 67; sQP = 68; sRG = 69; sSPB = 70; sX8 = 71; sB8 = 72; sF0 = 73; sFAST = 74; sXC = 75; sYB = 30; sYP = 31; sYC = 3
    vL, vOFF = 1, 2
    D = 4; QA = 8; QB = 12; MK = 16; B0 = 20; B1 = 24; T = 28; vM = 36; vLs = 37; vG = 38; vXo = 39
    KB = 40
    def ks(i): return KB + 4 * i
    def rng(r, n=4): return f"v[{r}:{r+n-1}]"
    dm = " row_mask:0xf bank_mask:0xf"
    ws = f"s[{sWS}:{sWS+1}]"
    stamp(0)
    A("s_load_dwordx16 s[4:19], s[0:1], 0"); A("s_load_dwordx8 s[20:27], s[0:1], 64"); A("s_load_dwordx2 s[28:29], s[0:1], 96")
    A("v_lshrrev_b32 v3, 6, v0"); A(f"v_and_b32 v{vL}, 63, v0")
    A("s_cmp_ge_u32 s2, 256"); A("s_cbranch_scc1 L_END")
    A(f"v_readfirstlane_b32 s{sW}, v3"); A(f"v_lshlrev_b32 v{vOFF}, 4, v{vL}")
    if MAP == "kvh":
        A(f"s_and_b32 s{sG}, s2, 7"); A(f"s_lshr_b32 s{sT}, s2, 7"); A(f"s_lshl_b32 s{sT}, s{sT}, 3"); A(f"s_or_b32 s{sG}, s{sG}, s{sT}")
        A(f"s_bfe_u32 s{sJ}, s2, 0x40003")
    elif MAP == "pair":
        A(f"s_bfe_u32 s{sG}, s2, 0x20001"); A(f"s_lshr_b32 s{sT}, s2, 6"); A(f"s_lshl_b32 s{sT}, s{sT}, 2"); A(f"s_or_b32 s{sG}, s{sG}, s{sT}")
        A(f"s_bfe_u32 s{sJ}, s2, 0x30003"); A(f"s_lshl_b32 s{sJ}, s{sJ}, 1"); A(f"s_and_b32 s{sT}, s2, 1"); A(f"s_or_b32 s{sJ}, s{sJ}, s{sT}")
    else:
        A(f"s_lshr_b32 s{sG}, s2, 4"); A(f"s_and_b32 s{sJ}, s2, 15")
    A(f"s_and_b32 s{sSP}, s{sJ}, 7"); A(f"s_lshr_b32 s{sB}, s{sJ}, 3")
    A(f"s_and_b32 s{sT}, s{sW}, 3"); A(f"s_lshl_b32 s{sBASE}, s{sT}, {12 if JJ else WSH}")
    A(f"s_add_u32 s{sT}, s{sW}, 7"); A(f"s_bfe_u32 s{sLATE}, s{sT}, 0x10002"); A(f"s_lshl_b32 s{sT}, s{sLATE}, 17"); A(f"s_or_b32 s{sBASE}, s{sBASE}, s{sT}")
    A(f"s_lshl_b32 s{sT}, s{sSP}, 18"); A(f"s_or_b32 s{sBASE}, s{sBASE}, s{sT}")
    if ROT == 2: A(f"s_bfe_u32 s{sT}, s2, 0x30003"); A(f"s_lshl_b32 s{sT}, s{sT}, 12"); A(f"s_or_b32 s{sBASE}, s{sBASE}, s{sT}")
    elif ROT == 3: A(f"s_lshr_b32 s{sT}, s2, 3"); A(f"s_lshl_b32 s{sT}, s{sT}, 12"); A(f"s_or_b32 s{sBASE}, s{sBASE}, s{sT}")
    elif ROT == 4: A(f"s_and_b32 s{sT}, s2, 7"); A(f"s_lshl_b32 s{sT}, s{sT}, 12"); A(f"s_or_b32 s{sBASE}, s{sBASE}, s{sT}")
    elif ROT == 5: A(f"s_and_b32 s{sT}, s2, 31"); A(f"s_lshl_b32 s{sT}, s{sT}, 12"); A(f"s_or_b32 s{sBASE}, s{sBASE}, s{sT}")
    elif ROT:
        A(f"s_or_b32 s{sT}, s2, 1"); A(f"s_mul_i32 s{sT}, s{sT}, 0x9E3779B1"); A(f"s_lshr_b32 s{sT}, s{sT}, {29 if JJ else 27}"); A(f"s_lshl_b32 s{sT}, s{sT}, {14 if JJ else 12}"); A(f"s_or_b32 s{sBASE}, s{sBASE}, s{sT}")
    A(f"s_lshl_b32 s{sT}, s{sB}, 4"); A(f"s_or_b32 s{sT}, s{sT}, s{sG}"); A(f"s_lshl_b32 s{sT}, s{sT}, 21")
    A(f"s_and_b32 s{sT2}, s{sJ}, 1"); A(f"s_lshr_b32 s{sRG}, s{sJ}, 1")
    A(f"s_lshl_b32 s{sQP}, s{sG}, 1"); A(f"s_or_b32 s{sQP}, s{sQP}, s{sT2}")
    A(f"s_mov_b32 s{KS+2}, {OOB}"); A(f"s_mov_b32 s{KS+3}, 0x20000"); A(f"s_mov_b32 s{VS+2}, {OOB}"); A(f"s_mov_b32 s{VS+3}, 0x20000")
    vSO = vOFF
    if XL_:
        vSO = vXo
        sh = {1: 12, 2: 12, 3: 9}[XL_]
        A(f"v_lshrrev_b32 v{vSO}, 4, v{vL}"); A(f"v_and_b32 v3, 15, v{vL}")
        if XL_ == 3:
            A(f"v_and_b32 v{T}, 1, v{vSO}"); A(f"v_lshrrev_b32 v{vSO}, 1, v{vSO}"); A(f"v_lshlrev_b32 v{vSO}, 12, v{vSO}"); A(f"v_lshl_add_u32 v{vSO}, v{T}, 8, v{vSO}")
        else: A(f"v_lshlrev_b32 v{vSO}, 12, v{vSO}")
        A(f"v_lshl_add_u32 v{vSO}, v3, 4, v{vSO}")
    if STAMP:
        for k in range(1, NST): A(f"s_mov_b64 s[{SB+2*k}:{SB+1+2*k}], 0")
    A("s_waitcnt lgkmcnt(0)")
    stamp(1)
    A(f"s_add_u32 s{KS}, s{sK}, s{sT}"); A(f"s_addc_u32 s{KS+1}, s{sK+1}, 0")
    A(f"s_add_u32 s{VS}, s{sV}, s{sT}"); A(f"s_addc_u32 s{VS+1}, s{sV+1}, 0")
    X = 40; E = 50; vXO = 3; WQ = 96
    def xloads():
        A(f"v_lshrrev_b32 v{T}, 5, v{vL}"); A(f"v_mul_u32_u24 v{T}, 1152, v{T}")
        A(f"v_and_b32 v{vXO}, 31, v{vL}"); A(f"v_lshl_add_u32 v{vXO}, v{vXO}, 2, v{T}")
        for k in range(9): A(f"global_load_dword v{X+k}, v{vXO}, s[{sX}:{sX+1}] offset:{128*k}")
    def wqloads():
        A(f"s_mov_b32 s{sR}, s{sWQ}"); A(f"s_mov_b32 s{sR+1}, s{sWQ+1}"); A(f"s_mov_b32 s{sR+2}, {576*8192}"); A(f"s_mov_b32 s{sR+3}, 0x20000")
        if QCOL:
            lc = {4: 3, 2: 2}[NRG]; lq = {4: 2, 2: 3}[NRG]
            A(f"v_lshrrev_b32 v{T+4}, {lc}, v{vL}"); A(f"v_lshlrev_b32 v{T+4}, 13, v{T+4}"); A(f"v_and_b32 v{T+1}, {(1<<lc)-1}, v{vL}"); A(f"v_lshl_add_u32 v{T+4}, v{T+1}, 4, v{T+4}")
            A(f"s_lshr_b32 s{sT}, s{sJ}, {lq}"); A(f"s_mul_i32 s{sT}, s{sT}, {576//NRG*8192}"); A(f"s_lshl_b32 s{sT2}, s{sG}, 9"); A(f"s_add_u32 s{sT}, s{sT}, s{sT2}")
            A(f"s_and_b32 s{sT2}, s{sJ}, {(1<<lq)-1}"); A(f"s_lshl_b32 s{sT2}, s{sT2}, {4+lc}"); A(f"s_add_u32 s{sT}, s{sT}, s{sT2}")
            for i in range(18):
                A(f"buffer_load_dwordx4 {rng(WQ+4*i)}, v{T+4}, s[{sR}:{sR+3}], s{sT} offen {WQF}")
                if i < 17: A(f"s_add_u32 s{sT}, s{sT}, {(64>>lc)*8192}")
            return
        A(f"v_lshrrev_b32 v{T+4}, 4, v{vL}"); A(f"v_lshlrev_b32 v{T+4}, 13, v{T+4}"); A(f"v_and_b32 v{T+1}, 15, v{vL}"); A(f"v_lshl_add_u32 v{T+4}, v{T+1}, 4, v{T+4}")
        A(f"s_mul_i32 s{sT}, s{sRG}, {72*8192}"); A(f"s_lshl_b32 s{sT2}, s{sQP}, 8"); A(f"s_add_u32 s{sT}, s{sT}, s{sT2}")
        for i in range(18):
            if 'W' in SKIP: A(f"buffer_load_dwordx4 {rng(WQ+4*i)}, v{vOFF}, s[{sR}:{sR+3}], 0 offen")
            else: A(f"buffer_load_dwordx4 {rng(WQ+4*i)}, v{T+4}, s[{sR}:{sR+3}], s{sT} offen{nt}")
            if i < 17: A(f"s_add_u32 s{sT}, s{sT}, 32768")
    if W0INL and 'h' not in SKIP:
        A(f"s_cmp_lg_u32 s{sW}, 0"); A("s_cbranch_scc1 L_NOTW0")
        A("s_setprio 3")
        xloads(); wqloads()
        A("s_branch L_W0B")
        A.label("L_NOTW0")
    A(f"s_cmp_eq_u32 s{sLATE}, 1"); A("s_cbranch_scc1 L_SERVICE")
    free = [0, 1, 2, 4, 5, 6, 8, 9, 10, 12]
    def vreg(i): return f"a[{4*i}:{4*i+3}]" if i < 22 else rng(ks(free[i-22]))
    cur = [None]
    def issue(n):
        i = n % 32
        if THR and WOAT <= n < NEARLY: A(f"s_waitcnt vmcnt({THR-1})")
        dst = rng(ks(i)) if n < 32 else vreg(i)
        srd = f"s[{KS}:{KS+3}]" if n < 32 else f"s[{VS}:{VS+3}]"
        if JJ:
            if i < 4: A(f"buffer_load_dwordx4 {dst}, v{vOFF}, {srd}, s{sBASE} offen offset:{(i&3)<<10}{nt}"); return
            if cur[0] != i >> 2: A(f"s_xor_b32 s{sT}, s{sBASE}, {(i >> 2) << 14}"); cur[0] = i >> 2
            A(f"buffer_load_dwordx4 {dst}, v{vOFF}, {srd}, s{sT} offen offset:{(i&3)<<10}{nt}")
        else:
            A(f"s_xor_b32 s{sT}, s{sBASE2 if (SKW and i >= 28) else sBASE}, {JOFF(i)}"); A(f"buffer_load_dwordx4 {dst}, v{vSO}, {srd}, s{sT} offen{nt}")
    def common():
        if CMAP:
            A(f"s_and_b32 s{sP}, s2, 7"); A(f"s_lshr_b32 s{sT2}, s2, 6"); A(f"s_lshl_b32 s{sT2}, s{sT2}, 3"); A(f"s_or_b32 s{sP}, s{sP}, s{sT2}")
            A(f"s_bfe_u32 s{sCG}, s2, 0x30003")
        else:
            A(f"s_mov_b32 s{sP}, s{sQP}"); A(f"s_mov_b32 s{sCG}, s{sRG}")
        A(f"s_lshl_b32 s{sREC}, s{sG}, 4"); A(f"s_add_u32 s{sREC}, s{sREC}, s{sJ}"); A(f"s_mul_i32 s{sREC}, s{sREC}, 640"); A(f"s_add_u32 s{sREC}, s{sREC}, {W_REC}")
        A(f"s_lshl_b32 s{sSPB}, s{sCG}, 5"); A(f"s_add_u32 s{sSPB}, s{sSPB}, s{sP}"); A(f"s_mul_i32 s{sSPB}, s{sSPB}, {SL}")
        if YLOC: A(f"s_lshr_b32 s{sYP}, s2, 3"); A(f"s_and_b32 s{sYC}, s2, 7")
        else: A(f"s_mov_b32 s{sYP}, s{sP}"); A(f"s_mov_b32 s{sYC}, s{sCG}")
        A(f"s_lshl_b32 s{sYB}, s{sYC}, 5"); A(f"s_add_u32 s{sYB}, s{sYB}, s{sYP}"); A(f"s_mul_i32 s{sYB}, s{sYB}, {SL}")
        A(f"v_and_b32 v{MK+3}, 1, v{vL}"); A(f"v_lshlrev_b32 v{MK+3}, 4, v{MK+3}"); A(f"v_mov_b32 v{MK+2}, 0xffff"); A(f"v_lshlrev_b32 v{MK+3}, v{MK+3}, v{MK+2}")
        A(f"v_bfe_u32 v{QA}, v{vL}, 1, 2")
        for k in range(4):
            A(f"v_cmp_eq_u32 vcc, {k}, v{QA}"); A(f"v_cndmask_b32 v{MK+k}, 0, v{MK+3}, vcc")
        A(f"s_mov_b32 s{sC1}, {hx(f2u(LOG2E if ROUND else LOG2E * SCALE))}")
        if SKW:
            A(f"s_and_b32 s{sT2}, s{sW}, 3"); A(f"s_lshr_b32 s{sT2}, {SKW}, s{sT2}"); A(f"s_and_b32 s{sT2}, s{sT2}, 1")
            A(f"s_and_b32 s{sT3}, s{sT2}, s{sSP}"); A(f"s_and_b32 s{sT3}, s{sT3}, s{sLATE}"); A(f"s_cmp_eq_u32 s{sT3}, 1")
            A(f"s_cselect_b32 s{sBASE2}, {OOB}, s{sBASE}"); A(f"s_cselect_b32 s{sBIAS}, 0xff800000, 0")
            A(f"s_or_b32 s{sT3}, s{sSP}, s{sLATE}"); A(f"s_andn2_b32 s{sX8}, s{sT2}, s{sT3}"); A(f"s_and_b32 s{sX8}, s{sX8}, 1")
            A(f"s_or_b32 s{sB8}, s{sBASE}, 0x60000")
    if DELAY1: common()
    for n in range(NFIRST):
        issue(n)
        if n == 0: stamp(4)
    stamp(5)
    if PF:
        A(f"s_cmp_lg_u32 s{sW}, 4"); A("s_cbranch_scc1 L_NOPF")
        A(f"s_getpc_b64 s[{sA}:{sA+1}]")
        A.raw("L_PC0:")
        A(f"s_lshr_b32 s{sT2}, s2, 3"); A(f"s_mul_i32 s{sT2}, s{sT2}, {PF}"); A(f"s_and_b32 s{sT2}, s{sT2}, 31")
        for k in range(PF):
            A(f"s_add_u32 s{sT3}, s{sT2}, {k}"); A(f"s_min_u32 s{sT3}, s{sT3}, CODE_KB"); A(f"s_lshl_b32 s{sT3}, s{sT3}, 10"); A(f"v_add_u32 v{T}, s{sT3}, v{vOFF}")
            A(f"global_load_dwordx4 a[84:87], v{T}, s[{sA}:{sA+1}]")
        A.label("L_NOPF")
    if not DELAY1: common()
    A(f"v_mov_b32 v{vG}, 0")
    A(f"s_cmp_lg_u32 s{sW}, 1"); A("s_cbranch_scc1 L_NOINIT")
    A(f"v_lshlrev_b32 v3, 2, v{vL}")
    A("s_mov_b64 exec, 0xffff"); A(f"ds_write_b32 v3, v{vG} offset:{L_MISC}"); A("s_mov_b64 exec, -1")
    A("s_waitcnt lgkmcnt(0)")
    A.label("L_NOINIT")
    A("s_barrier")
    cur[0] = None
    for n in range(NFIRST, WOAT): issue(n)
    A(f"s_cmp_eq_u32 s{sW}, 4"); A("s_cbranch_scc1 L_NOWO")
    if 'o' in SKIP: A("s_branch L_NOWO")
    A(f"s_mov_b32 s{sWO+2}, {4096*1152}"); A(f"s_mov_b32 s{sWO+3}, 0x20000")
    A(f"s_sub_u32 s{sT3}, s{sW}, 1"); A(f"s_mul_i32 s{sT3}, s{sT3}, 384"); A(f"v_add_u32 v{vG}, s{sT3}, v{vL}")
    A(f"s_mul_i32 s{sT3}, s{sP}, {128*1152}"); A(f"s_mul_i32 s{sT2}, s{sCG}, 144"); A(f"s_add_u32 s{sT3}, s{sT3}, s{sT2}")
    A(f"s_mov_b32 s{sT2}, 7282")
    for k in range(6):
        A(f"v_add_u32 v{T}, {64*k}, v{vG}"); A(f"v_mul_u32_u24 v{T+1}, s{sT2}, v{T}"); A(f"v_lshrrev_b32 v{T+1}, 16, v{T+1}")
        A(f"v_mul_u32_u24 v{T+1}, {1152-144}, v{T+1}"); A(f"v_lshl_add_u32 v{T+2}, v{T}, 4, v{T+1}")
        A(f"buffer_load_dwordx4 a[{60+4*k}:{63+4*k}], v{T+2}, s[{sWO}:{sWO+3}], s{sT3} offen{nt if WONT else ''}")
    A(f"v_lshlrev_b32 v{vG}, 4, v{vG}")
    A.label("L_NOWO")
    A("s_branch L_STREAM2")
    MARK_SERVICE = len(A.lines)

    def xrow(v, t, op):
        A(f"v_mov_b32 v{t}, v{v}"); A(f"v_permlane16_swap_b32 v{t}, v{v}"); A(f"{op} v{v}, v{t}, v{v}")
        A(f"v_mov_b32 v{t}, v{v}"); A(f"v_permlane32_swap_b32 v{t}, v{v}"); A(f"{op} v{v}, v{t}, v{v}")
    def rnd1(v):
        A(f"v_cvt_pk_bf16_f32 v{v}, v{v}, v{v}"); A(f"v_lshlrev_b32 v{v}, 16, v{v}")
    def ldswait(tag, addr, val, sleep=2, cmp="eq"):
        A(f"v_mov_b32 v{T+3}, {addr}"); A(f"s_mov_b32 s{sCNT}, {LIMIT*4}")
        A.label(f"L_{tag}")
        A(f"ds_read_b32 v{T}, v{T+3}"); A("s_waitcnt lgkmcnt(0)"); A(f"v_readfirstlane_b32 s{sT2}, v{T}")
        A(f"s_cmp_{cmp}_u32 s{sT2}, {val}"); A(f"s_cbranch_scc1 L_{tag}_OK", quick=True)
        A(f"s_sleep {sleep}"); A(f"s_sub_u32 s{sCNT}, s{sCNT}, 1"); A(f"s_cmp_lg_u32 s{sCNT}, 0"); A(f"s_cbranch_scc1 L_{tag}")
        A.label(f"L_{tag}_OK")
    def ldsinc(addr):
        A(f"v_mov_b32 v{T+6}, 1"); A(f"v_mov_b32 v{T+7}, {addr}")
        A("s_mov_b64 exec, 1"); A(f"ds_add_u32 v{T+7}, v{T+6}"); A("s_mov_b64 exec, -1")

    def addr_o(v, t):
        A(f"v_bfe_u32 v{t}, v{vL}, 3, 1"); A(f"v_lshlrev_b32 v{v}, 8, v{t}"); A(f"v_lshrrev_b32 v{t}, 4, v{vL}"); A(f"v_lshl_add_u32 v{v}, v{t}, 6, v{v}")
        A(f"v_and_b32 v{t}, 7, v{vL}"); A(f"v_lshl_add_u32 v{v}, v{t}, 3, v{v}"); A(f"v_add_u32 v{v}, s{sREC}, v{v}")
    def addr_ml(v):
        A(f"v_bfe_u32 v{v}, v{vL}, 3, 1"); A(f"v_lshlrev_b32 v{v}, 3, v{v}"); A(f"v_add_u32 v{v}, s{sREC}, v{v}")
    def addr_sp(v, t):
        A(f"v_lshrrev_b32 v{v}, 5, v{vL}"); A(f"v_mul_u32_u24 v{v}, {BO}, v{v}"); A(f"v_and_b32 v{t}, 31, v{vL}"); A(f"v_lshl_add_u32 v{v}, v{t}, 2, v{v}")
        A(f"s_add_u32 s{sT}, s{sSPB}, {W_SP}"); A(f"v_add_u32 v{v}, s{sT}, v{v}")
    def addr_in1(va, vm, t):
        A(f"s_lshr_b32 s{sT}, s{sP}, 1"); A(f"s_mul_i32 s{sT}, s{sT}, {16*640}"); A(f"s_add_u32 s{sT}, s{sT}, {W_REC}"); A(f"s_and_b32 s{sT2}, s{sP}, 1")
        A(f"s_lshl_b32 s{sT3}, s{sT2}, 8"); A(f"s_add_u32 s{sT3}, s{sT3}, s{sT}")
        A(f"v_and_b32 v{t}, 15, v{vL}"); A(f"v_mul_u32_u24 v{va}, 640, v{t}"); A(f"v_lshrrev_b32 v{t}, 4, v{vL}"); A(f"v_lshl_add_u32 v{va}, v{t}, 4, v{va}"); A(f"v_add_u32 v{va}, s{sT3}, v{va}")
        A(f"s_lshl_b32 s{sT3}, s{sT2}, 3"); A(f"s_add_u32 s{sT3}, s{sT3}, s{sT}"); A(f"s_add_u32 s{sT3}, s{sT3}, 512")
        A(f"v_mul_u32_u24 v{vm}, 2560, v{t}"); A(f"v_add_u32 v{vm}, s{sT3}, v{vm}")
    def addr_in2(v, t, sch):
        A(f"s_lshr_b32 s{sT}, s2, 3"); A(f"s_min_u32 s{sT}, s{sT}, 17"); A(f"s_and_b32 s{sT2}, s2, 7"); A(f"s_cmp_ge_u32 s{sT}, 9")
        A(f"s_cselect_b32 s{sT3}, {BO - 288}, 0"); A(f"s_cselect_b32 s{sch}, 63, 0")
        A(f"s_add_u32 s{sch}, s{sch}, s{sT}"); A(f"s_mul_i32 s{sCNT}, s{sT2}, 9"); A(f"s_add_u32 s{sch}, s{sch}, s{sCNT}")
        A(f"s_lshl_b32 s{sT}, s{sT}, 5"); A(f"s_add_u32 s{sT3}, s{sT3}, s{sT}"); A(f"s_mul_i32 s{sT2}, s{sT2}, {32*SL}"); A(f"s_add_u32 s{sT3}, s{sT3}, s{sT2}")
        A(f"s_add_u32 s{sT3}, s{sT3}, {W_SP}")
        A(f"v_lshrrev_b32 v{v}, 3, v{vL}"); A(f"v_mul_u32_u24 v{v}, {4*SL}, v{v}"); A(f"v_and_b32 v{t}, 7, v{vL}"); A(f"v_lshl_add_u32 v{v}, v{t}, 2, v{v}")
        A(f"v_add_u32 v{v}, s{sT3}, v{v}")
    def addr_y(v, t, t2, ci0):
        A(f"v_and_b32 v{t}, 7, v{vL}"); A(f"v_min_u32 v{t}, 5, v{t}"); A(f"v_add_u32 v{t}, {ci0}, v{t}")
        A(f"v_cmp_le_u32 vcc, 9, v{t}"); A(f"v_cndmask_b32 v{t2}, 0, 3, vcc"); A(f"v_add_u32 v{t}, v{t}, v{t2}")
        A(f"v_lshlrev_b32 v{v}, 5, v{t}"); A(f"v_lshrrev_b32 v{t}, 3, v{vL}"); A(f"v_lshl_add_u32 v{v}, v{t}, 2, v{v}")
        A(f"s_add_u32 s{sT2}, s{sYB}, {W_YP}"); A(f"v_add_u32 v{v}, s{sT2}, v{v}")
    vTAG = 0; vY = 3
    A.label("L_SERVICE"); A.comment("waves 0,5,6,7: side jobs before streaming")
    A(f"s_cmp_lg_u32 s{sW}, 0"); A("s_cbranch_scc1 L_Y_PRE")
    if 'h' in SKIP:
        common(); A("s_barrier")
        if 'H' in SKIP:
            h = HS
            while h > 0: A(f"s_sleep {min(h,127)}"); h -= 127
        A(f"v_mov_b32 v{T+2}, 1"); A(f"v_mov_b32 v{T+3}, {L_QFLAG}"); A(f"ds_write_b32 v{T+3}, v{T+2}"); A("s_branch L_STREAM")
    A(f"s_setprio {P0}")
    xloads(); wqloads()
    A.label("L_W0B")
    common()
    A("s_barrier")
    SN = 100 if SNW5 else (120 if SNLATE else 68)
    MX = list(range(128, 140)) if SNW5 else [QB, QB+1, QA, QA+1, QA+2, QA+3, QB+2, QB+3, vM, vM+1, vM+2, vM+3]
    NSNAP = 24 if YTAG else 17
    NEXTRA = (0 if (SNLATE or SNW5) else NSNAP) if TAGS else 2
    def snapshot():
        if 'N' in SKIP: return
        addr_in1(T, T+1, T+2)
        for t in range(4): A(f"global_load_dwordx4 {rng(SN+4*t)}, v{T}, {ws} offset:{64*t} sc1")
        for i in range(4): A(f"global_load_dwordx2 v[{SN+16+2*i}:{SN+17+2*i}], v{T+1}, {ws} offset:{640*i} sc1")
        if SK2: A("s_cmp_ge_u32 s2, 144"); A("s_cbranch_scc1 L_NOIN2")
        addr_in2(T, T+2, sPASS)
        for k in range(4): A(f"global_load_dword v{SN+24+k}, v{T}, {ws} offset:{SL*k} sc1")
        if YTAG:
            A(f"v_add_u32 v{T}, {W_YP - W_SP}, v{T}")
            for k in range(4): A(f"global_load_dword v{MX[8+k]}, v{T}, {ws} offset:{SL*k} sc1")
            if SK2: A.label("L_NOIN2")
            for k in range(3):
                addr_y(T, T+2, T+3, 6*k); A(f"global_load_dword v{MX[5+k]}, v{T}, {ws} sc1")
        addr_o(T, T+2); A(f"global_load_dword v{MX[0]}, v{T}, {ws} sc1")
        addr_ml(T); A(f"global_load_dword v{MX[1]}, v{T}, {ws} offset:516 sc1")
        addr_sp(T, T+2)
        for k in range(3): A(f"global_load_dword v{MX[2+k]}, v{T}, {ws} offset:{128*k} sc1")
    if TAGS:
        if GFLAG: A(f"s_lshl_b32 s{sPC}, s{sG}, 7"); A(f"s_add_u32 s{sPC}, s{sPC}, {W_PC}")
        else: A(f"s_add_u32 s{sPC}, s{sREC}, 528")
        A(f"s_load_dword s{sF0}, {ws}, s{sPC} glc")
        if not SNLATE and not SNW5: snapshot()
    else:
        for k in range(4): A(f"v_mov_b32 v{B0+k}, -1")
        A(f"v_add_u32 v{T}, s{sREC}, v{vOFF}"); A(f"s_add_u32 s{sT}, s{sSPB}, {W_SP}"); A(f"v_add_u32 v{T+1}, s{sT}, v{vOFF}")
        if 'R' in SKIP: A(f"global_load_dword v{T+5}, v{T}, {ws}"); A(f"global_load_dword v{T+5}, v{T}, {ws}")
        else: A(f"s_mov_b32 exec_hi, {0xff if FULL else 3}"); A(f"global_store_dwordx4 v{T}, {rng(B0)}, {ws} sc1")
        if 'R' not in SKIP: A(f"s_mov_b32 exec_hi, {0xffff if FULL else 15}"); A(f"global_store_dwordx4 v{T+1}, {rng(B0)}, {ws} sc1")
        A("s_mov_b64 exec, -1")
    A(f"s_mov_b32 s{sPASS}, 1"); A(f"s_mov_b32 s{sT3}, {L_XL}")
    A(f"s_waitcnt vmcnt({18 + NEXTRA})")
    A("s_branch L_LN")

    WR = 70
    A.label("L_Y_PRE"); A.comment("waves 5-7: x and the w1/b1/w2 slice")
    if 'b' in SKIP:
        common(); A("s_barrier")
        if 'B' in SKIP: A("s_sleep 127"); A("s_sleep 60")
        A("s_branch L_STREAM")
    A("s_setprio 2")
    xloads()
    common()
    A("s_barrier")
    A(f"v_and_b32 v{T}, 7, v{vL}"); A(f"v_mul_u32_u24 v{T}, 36, v{T}"); A(f"s_mul_i32 s{sT}, s{sYP}, 288"); A(f"v_add_u32 v{T}, s{sT}, v{T}")
    for a, sp_ in enumerate((sW1, sB1, sW2)):
        R = WR + 10 * a
        A(f"global_load_dwordx4 {rng(R)}, v{T}, s[{sp_}:{sp_+1}]"); A(f"global_load_dwordx4 {rng(R+4)}, v{T}, s[{sp_}:{sp_+1}] offset:16")
        A(f"global_load_dword v{R+8}, v{T}, s[{sp_}:{sp_+1}] offset:32")
    if TAGS and SNW5:
        A(f"s_cmp_lg_u32 s{sW}, 5"); A("s_cbranch_scc1 L_NOSN")
        A("s_waitcnt vmcnt(9)")
        snapshot()
        A("s_branch L_SNJ")
        A.label("L_NOSN")
        A("s_waitcnt vmcnt(9)")
        A.label("L_SNJ")
    A(f"s_mov_b32 s{sPASS}, 2"); A(f"s_sub_u32 s{sT3}, s{sW}, 4"); A(f"s_mul_i32 s{sT3}, s{sT3}, 2304"); A(f"s_add_u32 s{sT3}, s{sT3}, {L_XL}")
    if not (TAGS and SNW5): A("s_waitcnt vmcnt(9)")

    def allred32(v, t, op):
        for pat in ("quad_perm:[1,0,3,2]", "quad_perm:[2,3,0,1]", "row_half_mirror", "row_mirror"):
            A(f"{op}_dpp v{v}, v{v}, v{v} {pat}{dm}")
        A(f"v_mov_b32 v{t}, v{v}"); A(f"v_permlane16_swap_b32 v{t}, v{v}"); A(f"{op} v{v}, v{t}, v{v}")
    A.label("L_LN"); A.comment("layer norm of both rows (lanes 0-31 batch 0, 32-63 batch 1), bf16 roundings as in the reference; 1 or 2 passes")
    for k in range(9):
        A(f"v_lshlrev_b32 v{E+2*k}, 16, v{X+k}"); A(f"v_and_b32 v{E+2*k+1}, 0xffff0000, v{X+k}")
    A(f"v_add_f32 v{T}, v{E}, v{E+1}"); A(f"v_add_f32 v{T+1}, v{E+2}, v{E+3}")
    for k in range(4, 18, 2):
        A(f"v_add_f32 v{T}, v{T}, v{E+k}"); A(f"v_add_f32 v{T+1}, v{T+1}, v{E+k+1}")
    A(f"v_add_f32 v{T}, v{T}, v{T+1}")
    allred32(T, T+1, "v_add_f32")
    A(f"v_mul_f32 v{T}, {hx(f2u(1/576))}, v{T}")
    A(f"v_mov_b32 v{T+2}, 0"); A(f"v_mov_b32 v{T+3}, 0")
    for k in range(0, 18, 2):
        A(f"v_sub_f32 v{T+4}, v{E+k}, v{T}"); A(f"v_sub_f32 v{T+5}, v{E+k+1}, v{T}")
        A(f"v_fmac_f32 v{T+2}, v{T+4}, v{T+4}"); A(f"v_fmac_f32 v{T+3}, v{T+5}, v{T+5}")
    A(f"v_add_f32 v{T+2}, v{T+2}, v{T+3}")
    allred32(T+2, T+3, "v_add_f32")
    A(f"v_mul_f32 v{T+2}, {hx(f2u(1/576))}, v{T+2}")
    rnd1(T); rnd1(T+2)
    A(f"v_add_f32 v{T+2}, {hx(f2u(1e-5))}, v{T+2}"); rnd1(T+2)
    A(f"v_sqrt_f32 v{T+2}, v{T+2}"); rnd1(T+2)
    A(f"v_rcp_f32 v{T+2}, v{T+2}")
    for k in range(9):
        a, b = E+2*k, E+2*k+1
        A(f"v_sub_f32 v{a}, v{a}, v{T}"); A(f"v_sub_f32 v{b}, v{b}, v{T}")
        A(f"v_cvt_pk_bf16_f32 v{X+k}, v{a}, v{b}")
        A(f"v_lshlrev_b32 v{a}, 16, v{X+k}"); A(f"v_and_b32 v{b}, 0xffff0000, v{X+k}")
        A(f"v_mul_f32 v{a}, v{a}, v{T+2}"); A(f"v_mul_f32 v{b}, v{b}, v{T+2}")
        A(f"v_cvt_pk_bf16_f32 v{X+k}, v{a}, v{b}")
    A(f"s_sub_u32 s{sPASS}, s{sPASS}, 1"); A(f"s_cmp_lg_u32 s{sPASS}, 0"); A("s_cbranch_scc1 L_LN")
    A(f"v_add_u32 v{vXO}, s{sT3}, v{vXO}")
    for k in range(9): A(f"ds_write_b32 v{vXO}, v{X+k} offset:{128*k}")
    A(f"s_cmp_lg_u32 s{sW}, 0"); A("s_cbranch_scc1 L_BBR")

    qs = 0
    if QCOL:
        for i in range(18):
            A(f"s_waitcnt vmcnt({17 + NEXTRA - i})"); A(f"ds_write_b128 v{vOFF}, {rng(WQ+4*i)} offset:{L_WQ + 1024*i}")
        lc = {4: 3, 2: 2}[NRG]; lq = {4: 2, 2: 3}[NRG]; NS_ = 36 // NRG; NI = NRG + 1
        A(f"v_lshrrev_b32 v{T}, 4, v{vL}"); A(f"v_lshrrev_b32 v{T+1}, 2, v{vL}"); A(f"v_lshlrev_b32 v{T+1}, {4+lc}, v{T+1}")
        A(f"v_and_b32 v{T+2}, 3, v{vL}"); A(f"v_lshl_add_u32 v{T+1}, v{T+2}, 3, v{T+1}")
        A(f"v_and_b32 v{T+2}, 1, v{vL}"); A(f"v_mul_u32_u24 v{T+2}, 1152, v{T+2}"); A(f"v_lshl_add_u32 v{T+2}, v{T}, 3, v{T+2}")
        A(f"s_lshr_b32 s{sT}, s{sJ}, {lq}"); A(f"s_mul_i32 s{sT}, s{sT}, {1152//NRG}"); A(f"v_add_u32 v{T+2}, s{sT}, v{T+2}")
        A("s_waitcnt lgkmcnt(0)")
        DQ = 52
        def qread(i):
            r = WQ + 10 * (i % 4)
            for n in range(NRG): A(f"ds_read_b64_tr_b16 v[{r+2*n}:{r+2*n+1}], v{T+1} offset:{L_WQ + (256<<lc)*i + 32*n}")
            A(f"ds_read_b64 v[{r+8}:{r+9}], v{T+2} offset:{L_XL + 32*i}")
        qread(0); qread(1)
        for i in range(NS_):
            if i + 2 < NS_: qread(i + 2)
            A(f"s_waitcnt lgkmcnt({NI * min(2, NS_ - 1 - i)})")
            r = WQ + 10 * (i % 4)
            for n in range(NRG): A(f"v_mfma_f32_16x16x16_bf16 {rng(DQ+4*n)}, v[{r+8}:{r+9}], v[{r+2*n}:{r+2*n+1}], {'0' if i == 0 else rng(DQ+4*n)}")
        SB_ = 64 * NRG
        A(f"s_mul_i32 s{sT}, s{sG}, {32*SB_}"); A(f"s_mul_i32 s{sT2}, s{sJ}, {SB_}"); A(f"s_add_u32 s{sT}, s{sT}, s{sT2}")
        A(f"v_lshlrev_b32 v{T}, {lc+1}, v{vL}"); A(f"v_add_u32 v{T+4}, s{sT}, v{T}"); A(f"v_add_u32 v{T+5}, {16*SB_}, v{T+4}")
        for b_ in range(2):
            for n in range(NRG): A(f"v_mov_b32 v{D+4*b_+n}, v{DQ+4*n+b_}")
        def qstore(fl):
            A("s_mov_b64 exec, 0xffff"); A(f"global_store_dwordx{NRG} v{T+4}, {rng(D, NRG)}, {ws}{fl}"); A(f"global_store_dwordx{NRG} v{T+5}, {rng(D+4, NRG)}, {ws}{fl}"); A("s_mov_b64 exec, -1")
        if 'S' not in SKIP: qstore("" if QPL else " sc1")
    else:
        XV = 50
        A(f"v_bfe_u32 v{T}, v{vL}, 3, 1"); A(f"v_mul_u32_u24 v{T}, 1152, v{T}")
        A(f"v_lshrrev_b32 v{T+1}, 4, v{vL}"); A(f"v_lshl_add_u32 v{T}, v{T+1}, 1, v{T}")
        A(f"s_mul_i32 s{sT}, s{sRG}, 144"); A(f"s_add_u32 s{sT}, s{sT}, {L_XL}"); A(f"v_add_u32 v{T}, s{sT}, v{T}")
        A("s_waitcnt lgkmcnt(0)")
        for i in range(18):
            A(f"ds_read_u16 v{XV+i}, v{T} offset:{8*i}")
            if i == 8: A("s_waitcnt lgkmcnt(0)")
        A("s_waitcnt lgkmcnt(0)")
        for i in range(18): A(f"v_lshl_or_b32 v{XV+i}, v{XV+i}, 16, v{XV+i}")
        for i in range(18):
            Bx = B0 if i % 2 == 0 else B1
            for k in range(4): A(f"v_and_b32 v{Bx+k}, v{XV+i}, v{MK+k}")
            if i > 0:
                Bp = B1 if i % 2 == 0 else B0
                A(f"s_waitcnt vmcnt({17+NEXTRA-(i-1)})")
                A(f"v_mfma_f32_16x16x32_bf16 {rng(D)}, {rng(WQ+4*(i-1))}, {rng(Bp)}, {'0' if i == 1 else rng(D)}")
        A(f"s_waitcnt vmcnt({NEXTRA})")
        A(f"v_mfma_f32_16x16x32_bf16 {rng(D)}, {rng(WQ+4*17)}, {rng(B1)}, {rng(D)}")
        qs = 1 if QBF else 0
        A(f"v_bfe_u32 v{T}, v{vL}, 3, 1"); A(f"v_lshlrev_b32 v{T}, {13-qs}, v{T}")
        A(f"v_lshrrev_b32 v{T+1}, 4, v{vL}"); A(f"v_lshl_add_u32 v{T}, v{T+1}, {7-qs}, v{T}")
        A(f"v_and_b32 v{T+1}, 7, v{vL}"); A(f"v_lshl_add_u32 v{T}, v{T+1}, {4-qs}, v{T}")
        A(f"s_lshl_b32 s{sT}, s{sG}, {14-qs}"); A(f"s_lshl_b32 s{sT2}, s{sJ}, {9-qs}"); A(f"s_add_u32 s{sT}, s{sT}, s{sT2}")
        A(f"v_add_u32 v{T}, s{sT}, v{T}")
        if QBF:
            A(f"v_cvt_pk_bf16_f32 v{D}, v{D}, v{D+1}"); A(f"v_cvt_pk_bf16_f32 v{D+1}, v{D+2}, v{D+3}")
            A(f"global_store_dwordx2 v{T}, v[{D}:{D+1}], {ws} sc1")
        elif 'S' not in SKIP: A(f"global_store_dwordx4 v{T}, {rng(D)}, {ws} sc1")
    stamp(2)
    def packtags():
        bits = [SN + 2*k for k in range(8)] + [SN + 17 + 2*i for i in range(4)] + [SN + 24 + k for k in range(4)] + MX[:5]
        if YTAG: bits += MX[5:12]
        A(f"v_mov_b32 v{vTAG}, 0")
        for r in bits: A(f"v_alignbit_b32 v{vTAG}, v{r}, v{vTAG}, 1")
        A(f"v_lshrrev_b32 v{vTAG}, {32 - len(bits)}, v{vTAG}"); A(f"v_not_b32 v{vTAG}, v{vTAG}")
        A(f"v_lshlrev_b32 v{T+1}, 2, v{vL}"); A(f"ds_write_b32 v{T+1}, v{vTAG} offset:{L_TAG}")
    if TAGS:
        if SNW5: pass
        elif SNLATE: snapshot()
        else: A("s_waitcnt vmcnt(1)"); packtags()
    if NS0:
        cur[0] = None
        A("s_nop 1")
        if NS0P is not None: A(f"s_setprio {NS0P}")
        for n in range(WOAT): issue(n)
        if NS0P is not None: A(f"s_setprio {P0}")
    A(f"s_lshl_b32 s{sT}, s{sG}, 4"); A(f"s_mov_b32 s{sT2}, 1"); A(f"s_mov_b32 s{sT3}, s{sPC}" if TAGS else f"s_add_u32 s{sT3}, s{sREC}, 528")
    A(f"s_waitcnt vmcnt({WOAT if NS0 else 0}) lgkmcnt(0)")
    POSTPACK = TAGS and SNLATE and not SNW5
    if TAGS and SNW5:
        if 'b' not in SKIP: ldswait("SNW", L_SNOK, 1, 1)
        A(f"s_mov_b32 s{sT2}, 1")
    if FAST:
        A(f"s_getreg_b32 s{sXC}, hwreg(HW_REG_XCC_ID)"); A(f"s_and_b32 s{sXC}, s{sXC}, 15"); A(f"s_mul_i32 s{sT2}, s{sXC}, s{sXC}")
        A(f"s_lshl_b32 s{sT2}, s{sT2}, 8"); A(f"s_add_u32 s{sT2}, s{sT2}, s{sXC}"); A(f"s_lshl_b32 s{sT2}, s{sT2}, 8"); A(f"s_add_u32 s{sT2}, s{sT2}, 1")
        A(f"s_mul_i32 s{sXC}, s{sT2}, 15")
    if 'A' in SKIP: A("s_sleep 60"); A("s_branch L_POLLA_OK")
    A(f"s_atomic_add s{sT2}, s[{sDBG}:{sDBG+1}], s{sT} glc")
    if POSTPACK: packtags()
    A("s_waitcnt lgkmcnt(0)")
    if FAST:
        A(f"s_cmp_eq_u32 s{sT2}, s{sXC}"); A(f"s_cselect_b32 s{sFAST}, {2 if FORCE2 else 1}, 2")
        A(f"s_and_b32 s{sT2}, s{sT2}, 0xff")
    A(f"s_cmp_lg_u32 s{sT2}, 15"); A("s_cbranch_scc1 L_NOTMASTER")
    A(f"s_mul_i32 s{sT}, s{sG}, {16*640}"); A(f"s_add_u32 s{sT}, s{sT}, {W_REC+528}"); A(f"s_add_u32 s{sA}, s{sWS}, s{sT}"); A(f"s_addc_u32 s{sA+1}, s{sWS+1}, 0")
    if TAGS:
        A(f"s_mov_b32 s{sT2}, s{sFAST}" if FAST else f"s_mov_b32 s{sT2}, 1")
        if GFLAG: A(f"s_atomic_add s{sT2}, {ws}, s{sPC}")
        else:
            for j in range(16): A(f"s_atomic_add s{sT2}, s[{sA}:{sA+1}], {640*j}")
    else:
        A(f"s_mov_b32 s{sT2}, 0")
        for j in range(16): A(f"s_atomic_and s{sT2}, s[{sA}:{sA+1}], {640*j}")
    A("s_branch L_POLLA_OK")
    A.label("L_NOTMASTER")
    A(f"s_mov_b32 s{sCNT}, {LIMIT}")
    A.label("L_POLLA")
    A(f"s_load_dword s{sT2}, {ws}, s{sT3} glc"); A("s_waitcnt lgkmcnt(0)")
    if FAST: A(f"s_sub_u32 s{sFAST}, s{sT2}, s{sF0}"); A(f"s_cmp_lg_u32 s{sFAST}, 0")
    elif TAGS: A(f"s_cmp_lg_u32 s{sT2}, s{sF0}")
    else: A(f"s_cmp_eq_u32 s{sT2}, 0")
    A("s_cbranch_scc1 L_POLLA_OK")
    A(f"s_sleep {PSL}"); A(f"s_sub_u32 s{sCNT}, s{sCNT}, 1"); A(f"s_cmp_lg_u32 s{sCNT}, 0"); A("s_cbranch_scc1 L_POLLA")
    A.label("L_POLLA_OK")
    if QPL:
        A(f"s_cmp_eq_u32 s{sFAST}, 1"); A("s_cbranch_scc1 L_QOK")
        qstore(" sc1")
        A(f"s_lshl_b32 s{sT}, s{sG}, 4"); A(f"s_add_u32 s{sT}, s{sT}, 4"); A(f"s_mov_b32 s{sT2}, 1")
        A("s_waitcnt vmcnt(0)")
        A(f"s_atomic_add s{sT2}, s[{sDBG}:{sDBG+1}], s{sT} glc"); A("s_waitcnt lgkmcnt(0)")
        A(f"s_cmp_lg_u32 s{sT2}, 15"); A("s_cbranch_scc1 L_NOTM2")
        A(f"s_mul_i32 s{sT}, s{sG}, {16*640}"); A(f"s_add_u32 s{sT}, s{sT}, {W_REC+528}"); A(f"s_add_u32 s{sA}, s{sWS}, s{sT}"); A(f"s_addc_u32 s{sA+1}, s{sWS+1}, 0")
        A(f"s_mov_b32 s{sT2}, 1")
        for j in range(16): A(f"s_atomic_add s{sT2}, s[{sA}:{sA+1}], {640*j}")
        A("s_branch L_QOK")
        A.label("L_NOTM2")
        A(f"s_mov_b32 s{sCNT}, {LIMIT}"); A(f"s_add_u32 s{sF0}, s{sF0}, 3")
        A.label("L_POLL2")
        A(f"s_load_dword s{sT2}, {ws}, s{sT3} glc"); A("s_waitcnt lgkmcnt(0)")
        A(f"s_cmp_eq_u32 s{sT2}, s{sF0}"); A("s_cbranch_scc1 L_QOK")
        A(f"s_sleep {PSL}"); A(f"s_sub_u32 s{sCNT}, s{sCNT}, 1"); A(f"s_cmp_lg_u32 s{sCNT}, 0"); A("s_cbranch_scc1 L_POLL2")
        A.label("L_QOK")
    stamp(3)
    GQ = 128
    if QCOL:
        A(f"s_mul_i32 s{sT}, s{sG}, {32*SB_}"); A(f"s_mul_i32 s{sT2}, s{sB}, {16*SB_}"); A(f"s_add_u32 s{sT}, s{sT}, s{sT2}"); A(f"v_add_u32 v{T}, s{sT}, v{vOFF}")
        for r in range(NRG): A(f"global_load_dwordx4 {rng(GQ+4*r)}, v{T}, {ws} offset:{1024*r} sc1")
        if NRG == 4:
            A(f"v_lshrrev_b32 v{T+2}, 4, v{vL}"); A(f"v_lshlrev_b32 v{T+2}, 7, v{T+2}"); A(f"v_and_b32 v{T+3}, 15, v{vL}"); A(f"v_lshl_add_u32 v{T+2}, v{T+3}, 1, v{T+2}")
            offs = [0, 32, 64, 96]
        else:
            A(f"v_lshrrev_b32 v{T+2}, 3, v{vL}"); A(f"v_lshlrev_b32 v{T+2}, 6, v{T+2}"); A(f"v_and_b32 v{T+3}, 7, v{vL}"); A(f"v_lshl_add_u32 v{T+2}, v{T+3}, 2, v{T+2}")
            offs = [0, 32, 2, 34]
        for r in range(1, NRG):
            A(f"s_waitcnt vmcnt({NRG-1-r})")
            for k in range(4): A(f"v_add_f32 v{GQ+k}, v{GQ+k}, v{GQ+4*r+k}")
        A(f"v_cvt_pk_bf16_f32 v{GQ}, v{GQ}, v{GQ+1}"); A(f"v_cvt_pk_bf16_f32 v{GQ+1}, v{GQ+2}, v{GQ+3}")
        A(f"ds_write_b16 v{T+2}, v{GQ} offset:{L_Q+offs[0]}"); A(f"ds_write_b16_d16_hi v{T+2}, v{GQ} offset:{L_Q+offs[1]}")
        A(f"ds_write_b16 v{T+2}, v{GQ+1} offset:{L_Q+offs[2]}"); A(f"ds_write_b16_d16_hi v{T+2}, v{GQ+1} offset:{L_Q+offs[3]}")
    else:
        A(f"s_lshl_b32 s{sT}, s{sG}, {14-qs}"); A(f"s_lshl_b32 s{sT2}, s{sB}, {13-qs}"); A(f"s_add_u32 s{sT}, s{sT}, s{sT2}")
        if QBF:
            A(f"v_lshlrev_b32 v{T}, 3, v{vL}"); A(f"v_add_u32 v{T}, s{sT}, v{T}")
            for r in range(8): A(f"global_load_dwordx2 v[{GQ+8+2*r}:{GQ+9+2*r}], v{T}, {ws} offset:{512*r} sc1")
        else:
            A(f"v_add_u32 v{T}, s{sT}, v{vOFF}"); A(f"v_add_u32 v{T+1}, 4096, v{T}")
            for r in range(8 if 'G' not in SKIP else 0): A(f"global_load_dwordx4 {rng(GQ+4*r)}, v{T + r//4}, {ws} offset:{1024*(r%4)} sc1")
        A(f"v_lshrrev_b32 v{T+2}, 3, v{vL}"); A(f"v_lshlrev_b32 v{T+2}, 6, v{T+2}"); A(f"v_and_b32 v{T+3}, 7, v{vL}"); A(f"v_lshl_add_u32 v{T+2}, v{T+3}, 1, v{T+2}")
        if QBF:
            for r in range(8):
                A(f"s_waitcnt vmcnt({7-r})")
                o = GQ if r == 0 else GQ + 4
                for h in range(2):
                    A(f"v_lshlrev_b32 v{o+2*h}, 16, v{GQ+8+2*r+h}"); A(f"v_and_b32 v{o+2*h+1}, 0xffff0000, v{GQ+8+2*r+h}")
                if r:
                    for k in range(4): A(f"v_add_f32 v{GQ+k}, v{GQ+k}, v{GQ+4+k}")
        else:
            for r in range(1, 8):
                A(f"s_waitcnt vmcnt({7-r})")
                for k in range(4): A(f"v_add_f32 v{GQ+k}, v{GQ+k}, v{GQ+4*r+k}")
        A(f"v_cvt_pk_bf16_f32 v{GQ}, v{GQ}, v{GQ+1}"); A(f"v_cvt_pk_bf16_f32 v{GQ+1}, v{GQ+2}, v{GQ+3}")
        A(f"ds_write_b16 v{T+2}, v{GQ} offset:{L_Q}"); A(f"ds_write_b16_d16_hi v{T+2}, v{GQ} offset:{L_Q+16}")
        A(f"ds_write_b16 v{T+2}, v{GQ+1} offset:{L_Q+32}"); A(f"ds_write_b16_d16_hi v{T+2}, v{GQ+1} offset:{L_Q+48}")
    if FAST: A(f"s_cmp_eq_u32 s{sFAST}, 1"); A(f"s_cselect_b32 s{sFAST}, 1, 2"); A(f"v_mov_b32 v{T+2}, s{sFAST}")
    else: A(f"v_mov_b32 v{T+2}, 1")
    A(f"v_mov_b32 v{T+3}, {L_QFLAG}")
    A("s_waitcnt lgkmcnt(0)")
    A(f"ds_write_b32 v{T+3}, v{T+2}")
    A("s_setprio 0")
    if NS0:
        stamp(6); A(f"v_mov_b32 v{vG}, 0"); A("s_branch L_STREAM2")
    else: A("s_branch L_STREAM")

    A.label("L_BBR"); A.comment("token-mixing MLP slice: 48 outputs x 144 hidden units per wave")
    W1 = 100; BB = 118; W2 = WR + 20; U = 136; PK = 40; ZZ = 50; RES = 154; vC1 = 156; vC0 = 158; vONE = 160; vH = 162; vHA = 164; ACC = 165; vFL = 166
    def pr(r): return f"v[{r}:{r+1}]"
    A("s_waitcnt vmcnt(0)")
    if TAGS and SNW5:
        A(f"s_cmp_lg_u32 s{sW}, 5"); A("s_cbranch_scc1 L_NOPK")
        packtags()
        A(f"v_mov_b32 v{T}, {L_SNOK}"); A(f"v_mov_b32 v{T+1}, 1"); A(f"ds_write_b32 v{T}, v{T+1}")
        A.label("L_NOPK")
    for k in range(9):
        A(f"v_lshlrev_b32 v{W1+2*k}, 16, v{WR+k}"); A(f"v_and_b32 v{W1+2*k+1}, 0xffff0000, v{WR+k}")
        A(f"v_lshlrev_b32 v{BB+2*k}, 16, v{WR+10+k}"); A(f"v_and_b32 v{BB+2*k+1}, 0xffff0000, v{WR+10+k}")
    c0 = -2 * math.sqrt(2 / math.pi) * LOG2E; c1 = c0 * 0.044715
    for k in range(2):
        A(f"v_mov_b32 v{vC1+k}, {hx(f2u(c1))}"); A(f"v_mov_b32 v{vC0+k}, {hx(f2u(c0))}"); A(f"v_mov_b32 v{vONE+k}, 1.0")
    A(f"v_and_b32 v{vFL}, 7, v{vL}")
    A(f"s_sub_u32 s{sT}, s{sW}, 5"); A(f"s_mul_i32 s{sT}, s{sT}, 6")
    A(f"s_mul_i32 s{sT2}, s{sYC}, 144"); A(f"s_add_u32 s{sT3}, s{sT3}, s{sT2}")
    A(f"v_lshrrev_b32 v{vHA}, 3, v{vL}"); A(f"v_lshlrev_b32 v{vHA}, 1, v{vHA}"); A(f"v_add_u32 v{vHA}, s{sT3}, v{vHA}")
    A(f"s_mov_b32 s{sPASS}, 0"); A(f"v_mov_b32 v{RES}, 0")
    A("s_setprio 0")
    A.label("L_BLOOP")
    A(f"s_add_u32 s{sT2}, s{sT}, s{sPASS}"); A(f"s_cmp_ge_u32 s{sT2}, 9"); A(f"s_cselect_b32 s{sT3}, 63, 0"); A(f"s_add_u32 s{sT2}, s{sT2}, s{sT3}"); A(f"s_lshl_b32 s{sT2}, s{sT2}, 4")
    A(f"v_add_u32 v{vH+1}, s{sT2}, v{vHA}")
    A(f"ds_read_u16 v{vH}, v{vH+1}")
    A("s_waitcnt lgkmcnt(0)")
    A(f"v_lshlrev_b32 v{vH}, 16, v{vH}"); A(f"v_mov_b32 v{vH+1}, v{vH}")
    def round9():
        for k in range(9): A(f"v_cvt_pk_bf16_f32 v{PK+k}, v{U+2*k}, v{U+2*k+1}")
        for k in range(9):
            A(f"v_lshlrev_b32 v{U+2*k}, 16, v{PK+k}"); A(f"v_and_b32 v{U+2*k+1}, 0xffff0000, v{PK+k}")
    for k in range(9): A(f"v_pk_mul_f32 {pr(U+2*k)}, {pr(vH)}, {pr(W1+2*k)}")
    round9()
    for k in range(9): A(f"v_pk_add_f32 {pr(U+2*k)}, {pr(U+2*k)}, {pr(BB+2*k)}")
    round9()
    for k in range(9): A(f"v_pk_mul_f32 {pr(ZZ+2*k)}, {pr(U+2*k)}, {pr(U+2*k)}")
    for k in range(9): A(f"v_pk_fma_f32 {pr(ZZ+2*k)}, {pr(ZZ+2*k)}, {pr(vC1)}, {pr(vC0)}")
    for k in range(9): A(f"v_pk_mul_f32 {pr(ZZ+2*k)}, {pr(ZZ+2*k)}, {pr(U+2*k)}")
    for k in range(18): A(f"v_exp_f32 v{ZZ+k}, v{ZZ+k}")
    for k in range(9): A(f"v_pk_add_f32 {pr(ZZ+2*k)}, {pr(ZZ+2*k)}, {pr(vONE)}")
    for k in range(18): A(f"v_rcp_f32 v{ZZ+k}, v{ZZ+k}")
    for k in range(9): A(f"v_pk_mul_f32 {pr(U+2*k)}, {pr(U+2*k)}, {pr(ZZ+2*k)}")
    for k in range(9): A(f"v_cvt_pk_bf16_f32 v{PK+k}, v{U+2*k}, v{U+2*k+1}")
    A(f"v_mov_b32 v{ACC}, 0")
    for k in range(9): A(f"v_dot2c_f32_bf16 v{ACC}, v{PK+k}, v{W2+k}")
    for pat in ("quad_perm:[1,0,3,2]", "quad_perm:[2,3,0,1]", "row_half_mirror"):
        A(f"v_add_f32_dpp v{ACC}, v{ACC}, v{ACC} {pat}{dm}")
    A(f"v_cmp_eq_u32 vcc, s{sPASS}, v{vFL}"); A(f"v_cndmask_b32 v{RES}, v{RES}, v{ACC}, vcc")
    A(f"s_add_u32 s{sPASS}, s{sPASS}, 1"); A(f"s_cmp_lt_u32 s{sPASS}, 6"); A("s_cbranch_scc1 L_BLOOP")
    if YTAG: A(f"v_mov_b32 v{vY}, v{RES}")
    else:
        A("s_setprio 2")
        A(f"v_lshlrev_b32 v{T}, 5, v{vFL}"); A(f"v_lshrrev_b32 v{T+1}, 3, v{vL}"); A(f"v_lshl_add_u32 v{T}, v{T+1}, 2, v{T}")
        if FULL:
            A(f"v_add_u32 v{T+1}, s{sT}, v{vFL}"); A(f"v_cmp_le_u32 vcc, 9, v{T+1}"); A(f"v_cndmask_b32 v{T+1}, 0, 3, vcc"); A(f"v_lshl_add_u32 v{T}, v{T+1}, 5, v{T}")
        A(f"s_lshl_b32 s{sT}, s{sT}, 5"); A(f"s_add_u32 s{sT}, s{sT}, s{sSPB}"); A(f"s_add_u32 s{sT}, s{sT}, {W_YP}"); A(f"v_add_u32 v{T}, s{sT}, v{T}")
        A(f"s_mov_b32 exec_lo, 0x3f3f3f3f"); A(f"s_mov_b32 exec_hi, 0x3f3f3f3f")
        A(f"global_store_dword v{T}, v{RES}, {ws} sc1")
        A("s_mov_b64 exec, -1")
    if EXTRA:
        A(f"s_lshl_b32 s{sT}, s2, 3"); A(f"s_add_u32 s{sT}, s{sT}, s{sW}"); A(f"s_lshl_b32 s{sT}, s{sT}, 13"); A(f"s_add_u32 s{sT}, s{sT}, 0x1000000"); A(f"v_add_u32 v{T}, s{sT}, v{vOFF}")
        for k in range(EXTRA): A(f"global_store_dwordx4 v{T}, v[40:43], {ws} offset:{1024*k} sc1")
    stamp(2)

    A.label("L_STREAM")
    stamp(6)
    A(f"v_mov_b32 v{vG}, 0")
    cur[0] = None
    issued = 0
    while issued < NSIG: issue(issued); issued += 1
    if not YTAG:
        A(f"s_cmp_lt_u32 s{sW}, 5"); A("s_cbranch_scc1 L_BDONE")
        A("s_mov_b64 exec, 1")
        A(f"v_mov_b32 v{T+2}, 1"); A(f"v_mov_b32 v{T+3}, {L_CNTB}")
        A(f"s_waitcnt vmcnt({NSIG})")
        A(f"ds_add_rtn_u32 v{T+4}, v{T+3}, v{T+2}")
        A(f"s_lshl_b32 s{sT2}, s{sG}, 4"); A(f"s_add_u32 s{sT2}, s{sT2}, 4"); A(f"s_mov_b32 s{sT3}, 1")
        A("s_waitcnt lgkmcnt(0)")
        A(f"v_readfirstlane_b32 s{sCNT}, v{T+4}")
        A("s_mov_b64 exec, -1")
        A("s_setprio 0")
        A(f"s_cmp_lg_u32 s{sCNT}, 2"); A("s_cbranch_scc1 L_BDONE")
        A(f"s_atomic_add s{sT3}, s[{sDBG}:{sDBG+1}], s{sT2}")
    A.label("L_BDONE")
    cur[0] = None
    while issued < WOAT: issue(issued); issued += 1
    MARK_STREAM2 = len(A.lines)
    A.label("L_STREAM2"); A.comment("K/V stream")
    cur[0] = None
    while issued < NPRE: issue(issued); issued += 1
    A(f"s_cmp_eq_u32 s{sLATE}, 1"); A("s_cbranch_scc1 L_LATE0")
    e = NPRE
    while e < min(NEARLY, 46): issue(e); e += 1
    A(f"s_cmp_eq_u32 s{sW}, 4"); A("s_cbranch_scc1 L_NOWO2")
    A(f"s_waitcnt vmcnt({e - WOAT})")
    for k in range(6): A(f"ds_write_b128 v{vG}, a[{60+4*k}:{63+4*k}] offset:{L_WO+1024*k}")
    ldsinc(L_CNTW)
    A("s_waitcnt lgkmcnt(0)")
    A.label("L_NOWO2")
    cur[0] = None
    while e < NEARLY: issue(e); e += 1
    A.label("L_LATE0"); A.comment("wait for q, then QK in groups of 16 keys")
    stamp(7)
    ldswait("QW", L_QFLAG, 0, 2, "lg")
    if FAST: A(f"s_mov_b32 s{sFAST}, s{sT2}")
    A(f"v_bfe_u32 v{T}, v{vL}, 3, 1"); A(f"v_lshlrev_b32 v{T}, 8, v{T}"); A(f"v_and_b32 v{T+1}, 15, v{vL}"); A(f"v_lshl_add_u32 v{T}, v{T+1}, 4, v{T}")
    A(f"v_xor_b32 v{T+1}, 128, v{T}")
    A(f"ds_read_b128 {rng(QA)}, v{T} offset:{L_Q}"); A(f"ds_read_b128 {rng(QB)}, v{T+1} offset:{L_Q}")
    if TAGS: A(f"v_lshlrev_b32 v{T+2}, 2, v{vL}"); A(f"ds_read_b32 v{vTAG}, v{T+2} offset:{L_TAG}")
    A("s_waitcnt lgkmcnt(0)")
    stamp(8)
    YQ = len(A.lines)
    if EPRIO:
        A(f"s_cmp_eq_u32 s{sLATE}, 1"); A("s_cbranch_scc1 L_NOEP"); A(f"s_setprio {EPRIO}"); A.label("L_NOEP")
    def sreg(i): return ks(4 * (i >> 2) + 3) + (i & 3)
    nlab = [0]
    K8 = [13, 14, 16, 17]; V8 = [24, 25, 26, 28]
    def x8(kind):
        srd = f"s[{KS}:{KS+3}]" if kind == "K" else f"s[{VS}:{VS+3}]"
        for a in range(4):
            A(f"s_xor_b32 s{sT}, s{sB8}, {(28+a) << 12}"); A(f"buffer_load_dwordx4 {rng(ks((K8 if kind == 'K' else V8)[a]))}, v{vOFF}, {srd}, s{sT} offen{nt}")
    EQ = {0: [54, 55, 56], 1: [57, 58, 59], 2: [60, 61, 62], 3: [63]}
    def more(n, kdone=32, gq=None):
        nonlocal issued
        todo = list(range(issued, min(issued + n, 64)))
        lim = 64 if EFAST else NEARLY
        lateonly = [k for k in todo if k < lim]; both = [k for k in todo if k >= lim]
        early = EQ.get(gq, []) if EFAST else []
        nlab[0] += 1
        if lateonly or early:
            A(f"s_cmp_eq_u32 s{sLATE}, 0"); A(f"s_cbranch_scc1 L_SK{nlab[0]}")
            cur[0] = None
            for k in lateonly:
                i = k - 32
                assert not (i >= 22 and free[i-22] >= kdone), (i, kdone)
                issue(k)
                if k == 63 and MLAT == 'last': ldsinc(L_CNTL)
            if early: A(f"s_branch L_SJ{nlab[0]}")
            A.label(f"L_SK{nlab[0]}")
            if early:
                for k in early: issue(k)
                A.label(f"L_SJ{nlab[0]}")
        if SKW and gq in (4, 7):
            A(f"s_cmp_eq_u32 s{sX8}, 0"); A(f"s_cbranch_scc1 L_SX{nlab[0]}")
            x8("K" if gq == 4 else "V")
            A.label(f"L_SX{nlab[0]}")
        cur[0] = None
        for k in both:
            i = k - 32
            assert not (i >= 22 and free[i-22] >= kdone), (i, kdone)
            issue(k)
            if k == 63 and MLAT == 'last': ldsinc(L_CNTL)
        issued += len(todo)
    def qk(Kr, S, mid=None, bias=False):
        for a in range(4): A(f"v_dot2_f32_bf16 v{T+a}, v{Kr[a]}, v{QA}, 0")
        for c in range(1, 4):
            for a in range(4): A(f"v_dot2c_f32_bf16 v{T+a}, v{Kr[a]+c}, v{QA+c}")
        for c in range(4):
            for a in range(4): A(f"v_dot2c_f32_bf16_dpp v{T+a}, v{Kr[a]+c}, v{QB+c} row_ror:8{dm}")
        if mid: mid()
        for a in range(4): A(f"v_add_f32_dpp v{T+a}, v{T+a}, v{T+a} quad_perm:[1,0,3,2]{dm}")
        for a in range(4): A(f"v_add_f32_dpp v{T+a}, v{T+a}, v{T+a} quad_perm:[2,3,0,1]{dm}")
        for a in range(4): A(f"v_add_f32_dpp v{S+a}, v{T+a}, v{T+a} row_half_mirror{dm}")
        if ROUND:
            for rep in range(2):
                A(f"v_cvt_pk_bf16_f32 v{T+4}, v{S}, v{S+1}"); A(f"v_cvt_pk_bf16_f32 v{T+5}, v{S+2}, v{S+3}")
                A(f"v_lshlrev_b32 v{S}, 16, v{T+4}"); A(f"v_and_b32 v{S+1}, 0xffff0000, v{T+4}")
                A(f"v_lshlrev_b32 v{S+2}, 16, v{T+5}"); A(f"v_and_b32 v{S+3}, 0xffff0000, v{T+5}")
                if rep == 0:
                    for a in range(4): A(f"v_mul_f32 v{S+a}, {hx(f2u(SCALE))}, v{S+a}")
        if bias:
            for a in range(4): A(f"v_add_f32 v{S+a}, s{sBIAS}, v{S+a}")
    for gq in range(8):
        A(f"s_waitcnt vmcnt({issued - (4*gq+4)})")
        S = ks(4*gq+3)
        qk([ks(4*gq+a) for a in range(4)], S, lambda: more(SCH_QK[gq], 4*gq+4, gq), bool(SKW) and gq == 7)
        if gq == 0: A(f"v_max3_f32 v{vM}, v{S}, v{S+1}, v{S+2}"); A(f"v_max_f32 v{vM}, v{vM}, v{S+3}")
        else: A(f"v_max3_f32 v{vM}, v{vM}, v{S}, v{S+1}"); A(f"v_max3_f32 v{vM}, v{vM}, v{S+2}, v{S+3}")
    S8 = ks(K8[3])
    if SKW:
        assert EFAST and NEARLY == 54
        A(f"s_cmp_eq_u32 s{sX8}, 0"); A("s_cbranch_scc1 L_NQ8")
        A("s_waitcnt vmcnt(4)")
        qk([ks(q) for q in K8], S8)
        A(f"v_max3_f32 v{vM}, v{vM}, v{S8}, v{S8+1}"); A(f"v_max3_f32 v{vM}, v{vM}, v{S8+2}, v{S8+3}")
        A.label("L_NQ8")
    xrow(vM, T, "v_max_f32")
    A(f"v_mul_f32 v{vM}, s{sC1}, v{vM}")
    stamp(9)
    def ystore():
        A(f"s_cmp_lt_u32 s{sW}, 5"); A("s_cbranch_scc1 L_NOY")
        if 't' not in SKIP: ldswait("AOK", L_AOK, 0, 2, "lg")
        A(f"s_mov_b32 s{sXC}, s{sT2}")
        A(f"s_sub_u32 s{sT3}, s{sW}, 5"); A(f"s_mul_i32 s{sCNT}, s{sT3}, 6"); addr_y(T, T+1, T+2, f"s{sCNT}")
        A(f"s_add_u32 s{sT3}, s{sT3}, 21"); A(f"v_lshrrev_b32 v{T+1}, s{sT3}, v{vTAG}"); A(f"v_bfi_b32 v{vY}, 1, v{T+1}, v{vY}")
        A(f"s_mov_b32 exec_lo, 0x3f3f3f3f"); A(f"s_mov_b32 exec_hi, 0x3f3f3f3f")
        if YLOC:
            A(f"s_cmp_eq_u32 s{sXC}, 1"); A("s_cbranch_scc1 L_YF")
            A(f"global_store_dword v{T}, v{vY}, {ws} sc1"); A("s_branch L_YJ")
            A.label("L_YF"); A(f"global_store_dword v{T}, v{vY}, {ws}"); A.label("L_YJ")
        elif 'Y' not in SKIP: A(f"global_store_dword v{T}, v{vY}, {ws} sc1")
        A("s_mov_b64 exec, -1")
        A.label("L_NOY")
    if YTAG and YAT == 'qk': ystore()
    A(f"v_mov_b32 v{vLs}, 0")
    for q in range(8):
        S = ks(4*q+3)
        for a in range(4): A(f"v_fma_f32 v{S+a}, v{S+a}, s{sC1}, -v{vM}")
        for a in range(4): A(f"v_exp_f32 v{S+a}, v{S+a}")
        for a in range(4): A(f"v_add_f32 v{vLs}, v{vLs}, v{S+a}")
        for a in range(4): A(f"v_cvt_pk_bf16_f32 v{S+a}, v{S+a}, v{S+a}")
        more(SCH_SM[q])
    if SKW:
        A(f"s_cmp_eq_u32 s{sX8}, 0"); A("s_cbranch_scc1 L_NS8")
        for a in range(4): A(f"v_fma_f32 v{S8+a}, v{S8+a}, s{sC1}, -v{vM}")
        for a in range(4): A(f"v_exp_f32 v{S8+a}, v{S8+a}")
        for a in range(4): A(f"v_add_f32 v{vLs}, v{vLs}, v{S8+a}")
        for a in range(4): A(f"v_cvt_pk_bf16_f32 v{S8+a}, v{S8+a}, v{S8+a}")
        A.label("L_NS8")
    xrow(vLs, T, "v_add_f32")
    vH6 = T + 6
    A(f"v_bfe_u32 v{T+7}, v{vL}, 3, 1"); A(f"v_lshlrev_b32 v{vH6}, 6, v{T+7}")
    A(f"s_lshl_b32 s{sT2}, s{sW}, 3"); A(f"v_add_u32 v{T}, s{sT2}, v{vH6}")
    A(f"v_mov_b32 v{T+2}, 1"); A(f"v_mov_b32 v{T+3}, {L_CNTI}")
    A("s_mov_b64 exec, 0x101"); A(f"ds_write_b64 v{T}, v[{vM}:{vM+1}] offset:{L_MLW}")
    A("s_mov_b64 exec, 1"); A(f"ds_add_rtn_u32 v{T+4}, v{T+3}, v{T+2}"); A("s_mov_b64 exec, -1")
    A(f"v_lshlrev_b32 v{vM}, 8, v{T+7}"); A(f"v_lshrrev_b32 v{T+1}, 4, v{vL}"); A(f"v_lshl_add_u32 v{vM}, v{T+1}, 6, v{vM}")
    A(f"v_and_b32 v{T+1}, 7, v{vL}"); A(f"v_lshl_add_u32 v{vM}, v{T+1}, 3, v{vM}"); A(f"v_add_u32 v{vM}, s{sREC}, v{vM}")
    A(f"s_lshl_b32 s{sT2}, s{sW}, 10"); A(f"v_add_u32 v{vLs}, s{sT2}, v{vOFF}")
    A("s_waitcnt lgkmcnt(0)")
    A(f"v_readfirstlane_b32 s{sT2}, v{T+4}")
    A(f"s_cmp_lg_u32 s{sT2}, 7"); A("s_cbranch_scc1 L_NOF")
    MQ = [ks(18), ks(20), ks(21), ks(22)]; FF = ks(29)
    for k in range(4): A(f"ds_read_b128 {rng(MQ[k])}, v{vH6} offset:{L_MLW+16*k}")
    mm = [MQ[k // 2] + 2 * (k % 2) for k in range(8)]
    A(f"v_lshlrev_b32 v{T+2}, 3, v{T+7}"); A(f"v_add_u32 v{T+2}, s{sREC}, v{T+2}")
    A("s_waitcnt lgkmcnt(0)")
    A(f"v_max3_f32 v{T}, v{mm[0]}, v{mm[1]}, v{mm[2]}"); A(f"v_max3_f32 v{T}, v{T}, v{mm[3]}, v{mm[4]}"); A(f"v_max3_f32 v{T}, v{T}, v{mm[5]}, v{mm[6]}"); A(f"v_max_f32 v{T}, v{T}, v{mm[7]}")
    for k in range(8): A(f"v_sub_f32 v{FF+k}, v{mm[k]}, v{T}")
    for k in range(8): A(f"v_exp_f32 v{FF+k}, v{FF+k}")
    A(f"v_mul_f32 v{T+1}, v{FF}, v{mm[0]+1}")
    for k in range(1, 8): A(f"v_fmac_f32 v{T+1}, v{FF+k}, v{mm[k]+1}")
    A(f"v_lshrrev_b32 v{T+3}, 1, v{vH6}")
    if TAGS: A(f"v_lshrrev_b32 v{T+4}, 17, v{vTAG}"); A(f"v_bfi_b32 v{T+1}, 1, v{T+4}, v{T+1}")
    else: A(f"v_min_u32 v{T}, -2, v{T}"); A(f"v_min_u32 v{T+1}, -2, v{T+1}")
    A("s_mov_b64 exec, 0x101")
    A(f"ds_write_b128 v{T+3}, {rng(FF)} offset:{L_FW}"); A(f"ds_write_b128 v{T+3}, {rng(FF+4)} offset:{L_FW+16}")
    def pub(tag, text):
        if FAST:
            A(f"s_cmp_eq_u32 s{sFAST}, 1"); A(f"s_cbranch_scc1 L_PF{tag}", quick=True)
            A(text + " sc1"); A(f"s_branch L_PJ{tag}", quick=True)
            A.label(f"L_PF{tag}", quick=True); A(text); A.label(f"L_PJ{tag}", quick=True)
        else: A(text + " sc1")
    if 't' not in SKIP: pub("M", f"global_store_dwordx2 v{T+2}, v[{T}:{T+1}], {ws} offset:512")
    A("s_mov_b64 exec, -1")
    A.label("L_NOF"); A.comment("PV")
    A(f"v_mov_b32 v{T+2}, 1"); A(f"v_mov_b32 v{T+3}, {L_CNTO}"); A(f"v_lshrrev_b32 v{T+4}, 1, v{vH6}")
    if TAGS: A(f"v_lshrrev_b32 v{T+1}, 16, v{vTAG}"); A(f"s_mov_b32 s{sB8}, 0xffff")
    for i in range(33):
        if i < 32:
            Bx = B0 if i % 2 == 0 else B1
            for k in range(4): A(f"v_and_b32 v{Bx+k}, v{sreg(i)}, v{MK+k}")
        if i > 0:
            Bp = B0 if (i-1) % 2 == 0 else B1
            assert issued > 32 + i - 1
            A(f"s_waitcnt vmcnt({issued - (32 + i)})")
            A(f"v_mfma_f32_16x16x32_bf16 {rng(D)}, {vreg(i-1)}, {rng(Bp)}, {'0' if i == 1 else rng(D)}")
            more(SCH_PV.get(i-1, 0))
    assert issued == 64
    if SKW:
        A(f"s_cmp_eq_u32 s{sX8}, 0"); A("s_cbranch_scc1 L_NP8")
        for a in range(4):
            Bc = B0 if a % 2 == 0 else B1
            for k in range(4): A(f"v_and_b32 v{Bc+k}, v{S8+a}, v{MK+k}")
            A(f"v_mfma_f32_16x16x32_bf16 {rng(D)}, {rng(ks(V8[a]))}, {rng(Bc)}, {rng(D)}")
        A.label("L_NP8")
    stamp(10)
    if STAMP and SPEC: A("s_waitcnt lgkmcnt(0)")
    if 't' in SKIP: A("s_branch L_EXIT")
    A(f"ds_write_b128 v{vLs}, {rng(D)} offset:{L_OW}")
    A("s_mov_b64 exec, 1"); A(f"ds_add_rtn_u32 v{T+5}, v{T+3}, v{T+2}"); A("s_mov_b64 exec, -1")
    OO = 40; FR = 72
    def finreads():
        A(f"ds_read_b128 {rng(FR)}, v{T+4} offset:{L_FW}"); A(f"ds_read_b128 {rng(FR+4)}, v{T+4} offset:{L_FW+16}")
        for k in range(8): A(f"ds_read_b128 {rng(OO+4*k)}, v{vOFF} offset:{L_OW+1024*k}")
    if SPEC and not STAMP: finreads(); A("s_waitcnt lgkmcnt(10)")
    elif SPEC: A("s_nop 0"); finreads(); A("s_waitcnt lgkmcnt(10)")
    else: A("s_waitcnt lgkmcnt(0)")
    A(f"v_readfirstlane_b32 s{sT2}, v{T+5}")
    A(f"s_cmp_lg_u32 s{sT2}, 7"); A("s_cbranch_scc1 L_NOPUB", quick=True)
    if not SPEC: finreads()
    for k in range(8):
        A(f"s_waitcnt lgkmcnt({7-k})")
        if PKF:
            fp = FR + (k & ~1); sel = k & 1
            for c in (0, 2):
                if k == 0: A(f"v_pk_mul_f32 v[{D+c}:{D+c+1}], v[{OO+c}:{OO+c+1}], v[{fp}:{fp+1}] op_sel_hi:[1,0]")
                else: A(f"v_pk_fma_f32 v[{D+c}:{D+c+1}], v[{OO+4*k+c}:{OO+4*k+c+1}], v[{fp}:{fp+1}], v[{D+c}:{D+c+1}] op_sel:[0,{sel},0] op_sel_hi:[1,{sel},1]")
        else:
            for c in range(4):
                if k == 0: A(f"v_mul_f32 v{D+c}, v{FR}, v{OO+c}")
                else: A(f"v_fmac_f32 v{D+c}, v{FR+k}, v{OO+4*k+c}")
    if TAGS and RNDT:
        A(f"v_bfe_u32 v{T+5}, v{D}, 17, 1"); A(f"v_add3_u32 v{D}, v{D}, v{T+5}, s{sB8}"); A(f"v_and_b32 v{D}, 0xfffe0000, v{D}")
    A(f"v_cvt_pk_bf16_f32 v{D}, v{D}, v{D+1}"); A(f"v_cvt_pk_bf16_f32 v{D+1}, v{D+2}, v{D+3}")
    if TAGS: A(f"v_bfi_b32 v{D}, 1, v{T+1}, v{D}")
    else: A(f"v_min_u32 v{D}, -2, v{D}"); A(f"v_min_u32 v{D+1}, -2, v{D+1}")
    pub("O", f"global_store_dwordx2 v{vM}, v[{D}:{D+1}], {ws}")
    if MLFIRST or MLAT: A(f"ds_write_b32 v{T+3}, v{T+2} offset:{L_PUBD - L_CNTO}")
    stamp(3)
    A.label("L_NOPUB")
    if SPEC: A("s_waitcnt lgkmcnt(0)"); A.comment("wave 1: o @ wo slice (hop 1); wave 2: final sum and output (hop 2)")
    A(f"s_cmp_eq_u32 s{sW}, 2"); A("s_cbranch_scc1 L_HOP2")
    if H1W == 2: A(f"s_and_b32 s{sT2}, s{sW}, 5"); A(f"s_cmp_lg_u32 s{sT2}, 1"); A("s_cbranch_scc1 L_EXIT")
    else: A(f"s_cmp_lg_u32 s{sW}, 1"); A("s_cbranch_scc1 L_EXIT")

    def checkAB(tag, va, vd):
        A(f"s_mov_b32 s{sCNT}, {LIMIT}")
        A(f"v_and_b32 v{va}, 15, v{vL}"); A(f"v_lshlrev_b32 v{va}, 4, v{va}"); (A(f"v_bfe_u32 v{vd}, v{vL}, 4, 1"), A(f"v_lshl_add_u32 v{va}, v{vd}, 2, v{va}")) if not YTAG else None
        A.label(f"L_CB{tag}")
        A(f"global_load_dword v{vd}, v{va}, s[{sDBG}:{sDBG+1}] sc1"); A("s_waitcnt vmcnt(0)")
        if FAST: A(f"v_and_b32 v{vd+1}, 0xff, v{vd}")
        A(f"v_cmp_ne_u32 vcc, 16, v{vd+1 if FAST else vd}"); A(f"s_cbranch_vccz L_CB{tag}_OK")
        A("s_sleep 16"); A(f"s_sub_u32 s{sCNT}, s{sCNT}, 1"); A(f"s_cmp_lg_u32 s{sCNT}, 0"); A(f"s_cbranch_scc1 L_CB{tag}")
        A.label(f"L_CB{tag}_OK")
    def red32(v, t):
        A(f"v_add_f32 v{v}, v{v}, v{v+1}"); A(f"v_add_f32 v{v+2}, v{v+2}, v{v+3}"); A(f"v_add_f32 v{v}, v{v}, v{v+2}")
        A(f"v_add_f32_dpp v{v}, v{v}, v{v} row_ror:8{dm}")
        xrow(v, t, "v_add_f32")
    RAW = 120; vA = 160; vMLa = 161; vSP = 162; vH2 = 160; vOA = 161
    checkAB("T", T, T+1)
    if YLOC:
        assert MAP == "kvh" and FAST
        A(f"s_getreg_b32 s{sXC}, hwreg(HW_REG_XCC_ID)"); A(f"s_and_b32 s{sXC}, s{sXC}, 15"); A(f"s_mul_i32 s{sT2}, s{sXC}, s{sXC}")
        A(f"s_lshl_b32 s{sT2}, s{sT2}, 8"); A(f"s_add_u32 s{sT2}, s{sT2}, s{sXC}"); A(f"s_lshl_b32 s{sT2}, s{sT2}, 8"); A(f"s_add_u32 s{sT2}, s{sT2}, 1"); A(f"s_lshl_b32 s{sXC}, s{sT2}, 4")
        A(f"s_add_u32 s{sT3}, s{sYC}, 8"); A(f"v_readlane_b32 s{sT}, v{T+1}, s{sYC}"); A(f"v_readlane_b32 s{sT2}, v{T+1}, s{sT3}")
        A(f"s_cmp_eq_u32 s{sT}, s{sXC}"); A(f"s_cselect_b32 s{sT}, 1, 2"); A(f"s_cmp_eq_u32 s{sT2}, s{sXC}"); A(f"s_cselect_b32 s{sT}, s{sT}, 2")
        A(f"v_mov_b32 v{T}, {L_AOK}"); A(f"v_mov_b32 v{T+1}, s{sT}"); A(f"ds_write_b32 v{T}, v{T+1}")
    elif YTAG: A(f"v_mov_b32 v{T}, {L_AOK}"); A(f"v_mov_b32 v{T+1}, 1"); A(f"ds_write_b32 v{T}, v{T+1}")
    ldswait("WW", L_CNTW, 3, 2)
    A(f"v_lshrrev_b32 v{T}, 4, v{vL}"); A(f"v_mul_u32_u24 v{T}, 288, v{T}"); A(f"v_and_b32 v{T+1}, 15, v{vL}"); A(f"v_lshl_add_u32 v{T}, v{T+1}, 1, v{T}")
    if H1W == 2:
        A(f"s_sub_u32 s{sT}, s{sW}, 1"); A(f"s_lshl_b32 s{sT}, s{sT}, 5"); A(f"v_add_u32 v{T}, s{sT}, v{T}")
    for n in (range(5) if H1W == 1 else (0, 1, 4)):
        for t in range(4):
            for e_ in range(8): A(f"ds_read_u16 v{RAW+e_}, v{T} offset:{L_WO + 32*n + (32*t + 8*(e_&3) + (e_>>2))*144}")
            A("s_waitcnt lgkmcnt(0)")
            for k in range(4): A(f"v_lshl_or_b32 v{40+16*n+4*t+k}, v{RAW+2*k+1}, 16, v{RAW+2*k}")
    addr_in1(vA, vMLa, T); addr_sp(vSP, T)
    if H1W == 2: A(f"s_sub_u32 s{sT2}, s{sW}, 1"); A(f"s_lshl_b32 s{sT2}, s{sT2}, 6"); A(f"v_add_u32 v{vSP}, s{sT2}, v{vSP}")
    vTB = vSP + 3
    if TAGS:
        for k in range(3): A(f"v_lshrrev_b32 v{vTB+k}, {18+k}, v{vTAG}")
        if H1W == 2: A(f"s_lshr_b32 s{sT2}, s{sW}, 1"); A(f"v_lshrrev_b32 v{vTB}, s{sT2}, v{vTB}")

    def maxchain(dst, regs):
        A(f"v_max3_u32 v{dst}, v{regs[0]}, v{regs[1]}, v{regs[2]}")
        k = 3
        while k < len(regs):
            if k + 1 < len(regs): A(f"v_max3_u32 v{dst}, v{dst}, v{regs[k]}, v{regs[k+1]}"); k += 2
            else: A(f"v_max_u32 v{dst}, v{dst}, v{regs[k]}"); k += 1
    def pollmask(tag, loads, regs):
        sl = {"HM": MSL, "H1": H1SL, "H2": H2SL, "HY": YSL}[tag]
        if TAGS:
            n_, sh_ = {"HM": (4, 8), "H1": (8, 0), "H2": (4, 12), "HY": (4, 24)}[tag]
            A(f"v_lshlrev_b32 v{T+1}, {32 - n_ - sh_}, v{vTAG}")
        A(f"s_mov_b32 s{sCNT}, {LIMIT}")
        A.label(f"L_{tag}")
        loads()
        A("s_waitcnt vmcnt(0)")
        if TAGS:
            tg, sh = {"HM": (regs[1::2], 8), "H1": (regs[0::2], 0), "H2": (regs, 12), "HY": (regs, 24)}[tag]
            A(f"v_alignbit_b32 v{T}, v{tg[0]}, v{tg[0]}, 1")
            for r in tg[1:]: A(f"v_alignbit_b32 v{T}, v{r}, v{T}, 1")
            A(f"v_xor_b32 v{T}, v{T}, v{T+1}"); A(f"v_cmp_le_u32 vcc, {hx(1 << (32 - len(tg)))}, v{T}"); A(f"s_cbranch_vccz L_{tag}_OK")
        else:
            if len(regs) > 8:
                h = len(regs) // 2
                maxchain(T, regs[:h]); maxchain(T+1, regs[h:]); A(f"v_max_u32 v{T}, v{T}, v{T+1}")
            else: maxchain(T, regs)
            A(f"v_cmp_eq_u32 vcc, -1, v{T}"); A(f"s_cbranch_vccz L_{tag}_OK")
        A("s_mov_b64 exec, vcc")
        if sl: A(f"s_sleep {sl}")
        A(f"s_sub_u32 s{sCNT}, s{sCNT}, 1"); A(f"s_cmp_lg_u32 s{sCNT}, 0"); A(f"s_cbranch_scc1 L_{tag}")
        A.label(f"L_{tag}_OK")
        A("s_mov_b64 exec, -1")
        if TAGS:
            for r in {"HM": regs[1::2], "H1": regs[0::2], "H2": regs, "HY": regs}[tag]: A(f"v_and_b32 v{r}, -2, v{r}")

    AA = 136; ML = 152; WN = 24
    A(f"v_mov_b32 v{vSP+1}, 1"); A(f"v_mov_b32 v{vSP+2}, {L_SPD}")
    if MLAT == 'last': ldswait("OW", L_CNTL, 4 if EFAST else 8, 1)
    elif MLAT == 'o5': ldswait("OW", L_CNTO, 5, 1, "ge")
    elif MLFIRST: ldswait("OW", L_CNTI, 8, 4)
    else: ldswait("OW", L_CNTO, 8, 1); stamp(6)
    pollmask("HM", lambda: [A(f"global_load_dwordx2 v[{ML+2*i}:{ML+2*i+1}], v{vMLa}, {ws} offset:{640*i} sc1") for i in range(4)], list(range(ML, ML+8)))
    m = [ML, ML+2, ML+4, ML+6]; l = [ML+1, ML+3, ML+5, ML+7]
    def aloads():
        for t in range(4): A(f"global_load_dwordx4 {rng(AA+4*t)}, v{vA}, {ws} offset:{64*t} {F1}")
    A(f"v_max3_f32 v{T}, v{m[0]}, v{m[1]}, v{m[2]}"); A(f"v_max_f32 v{T}, v{T}, v{m[3]}")
    A(f"v_mov_b32 v{T+1}, v{T}"); A(f"v_permlane16_swap_b32 v{T+1}, v{T}"); A(f"v_max_f32 v{T}, v{T+1}, v{T}")
    for i in range(4): A(f"v_sub_f32 v{m[i]}, v{m[i]}, v{T}")
    for i in range(4): A(f"v_exp_f32 v{m[i]}, v{m[i]}")
    A(f"v_mul_f32 v{T+2}, v{m[0]}, v{l[0]}")
    for i in range(1, 4): A(f"v_fmac_f32 v{T+2}, v{m[i]}, v{l[i]}")
    A(f"v_mov_b32 v{T+1}, v{T+2}"); A(f"v_permlane16_swap_b32 v{T+1}, v{T+2}"); A(f"v_add_f32 v{T+2}, v{T+1}, v{T+2}")
    A(f"v_rcp_f32 v{T+2}, v{T+2}")
    for i in range(4): A(f"v_mul_f32 v{WN+i}, v{m[i]}, v{T+2}")
    if MLFIRST or MLAT:
        ldswait("PW", L_PUBD, 1, 1); stamp(6)
        if H1DELAY: A(f"s_sleep {H1DELAY}")
    pollmask("H1", aloads, list(range(AA, AA+16)))
    stamp(7)
    def mf(t, n): return f"v_mfma_f32_16x16x32_bf16 {rng(4+4*n)}, {rng(AA+4*t)}, {rng(40+16*n+4*t)}, {'0' if t == 0 else rng(4+4*n)}"
    def epi(n): return [f"v_mul_f32 v{T+n}, v{WN}, v{4+4*n}"] + [f"v_fmac_f32 v{T+n}, v{WN+i}, v{4+4*n+i}" for i in range(1, 4)]
    def fin2(n): return [f"v_permlane16_swap_b32 v{T+n-1}, v{T+n}", f"v_add_f32 v{T+n}, v{T+n-1}, v{T+n}", (f"v_bfi_b32 v{T+n}, 1, v{vTB+n//2}, v{T+n}" if TAGS else f"v_min_u32 v{T+n}, -2, v{T+n}"),
                         f"global_store_dword v{vSP}, v{T+n}, {ws} offset:{128*(n//2)} {FS}"]
    def fin4(): return [f"v_mov_b32 v{T+5}, v{T+4}", None, None, f"v_permlane16_swap_b32 v{T+5}, v{T+4}", f"v_add_f32 v{T+4}, v{T+5}, v{T+4}", (f"v_bfi_b32 v{T+4}, 1, v{vTB+2}, v{T+4}" if TAGS else f"v_min_u32 v{T+4}, -2, v{T+4}")] + \
                       ([] if FULL else ["s_mov_b32 exec_lo, 0xff", "s_mov_b32 exec_hi, 0xff"]) + [f"global_store_dword v{vSP}, v{T+4}, {ws} offset:256 {FS}"] + ([] if FULL else ["s_mov_b64 exec, -1"])
    if H1W == 2:
        for t in range(4): A(mf(t, 0)); A(mf(t, 1))
        A(f"s_cmp_eq_u32 s{sW}, 3"); A("s_cbranch_scc1 L_H1B", quick=True)
        side = [None, None] + epi(0) + epi(1) + [None] + fin2(1)
        for t in range(4):
            A(mf(t, 4))
            for _ in range(4):
                if side:
                    x = side.pop(0)
                    if x: A(x)
        for x in side + epi(4) + fin4():
            if x: A(x)
        A("s_branch L_H1C")
        A.label("L_H1B", quick=True)
        A("s_nop 5")
        for x in epi(0) + epi(1) + fin2(1): A(x)
        A.label("L_H1C")
    elif REORD:
        for t in range(4): A(mf(t, 4)); A(mf(t, 0))
        side = [None, None] + epi(4) + fin4()
        for t in range(4):
            A(mf(t, 1))
            for _ in range(4):
                if side:
                    x = side.pop(0)
                    if x: A(x)
        for x in side:
            if x: A(x)
        side = epi(0) + [None] + epi(1) + [None] + fin2(1)
        for t in range(4):
            for n in (2, 3):
                A(mf(t, n))
                for _ in range(2):
                    if side:
                        x = side.pop(0)
                        if x: A(x)
        for x in side:
            if x: A(x)
        for x in epi(2) + epi(3) + fin2(3): A(x)
    else:
        for t in range(4):
            for n in range(5): A(mf(t, n))
        for x in epi(0) + epi(1) + fin2(1) + epi(2) + epi(3) + fin2(3) + epi(4) + fin4():
            if x: A(x)
    A(f"ds_write_b32 v{vSP+2}, v{vSP+1}")
    A("s_mov_b64 exec, -1")
    stamp(9)
    A("s_branch L_EXIT")

    A.label("L_HOP2"); A.comment("hop 2")
    A(f"s_cmp_ge_u32 s2, 144"); A("s_cbranch_scc1 L_EXIT")
    YY = 120
    if not YTAG: checkAB("G", T, T+1)
    sCH = sPASS
    addr_in2(vH2, vOA, sCH)
    A(f"v_add_u32 v{T}, {W_YP - W_SP}, v{vH2}")
    if YTAG: A(f"v_mov_b32 v{YY+6}, v{T}")
    else:
        for k in range(4): A(f"global_load_dword v{YY+k}, v{T}, {ws} offset:{SL*k} sc1")
    A(f"v_lshlrev_b32 v{vOA}, 1, v{vOA}"); A(f"s_lshl_b32 s{sT}, s{sCH}, 4"); A(f"v_add_u32 v{vOA}, s{sT}, v{vOA}")
    A(f"global_load_ushort v{vXo}, v{vOA}, s[{sX}:{sX+1}]")
    A(f"v_mov_b32 v{T+1}, 0")
    A(f"global_load_ushort v{YY+4}, v{T+1}, s[{sB2}:{sB2+1}]")
    if YTAG:
        ldswait("YW", L_CNTI, 8, 4)
        pollmask("HY", lambda: [A(f"global_load_dword v{YY+k}, v{YY+6}, {ws} offset:{SL*k} sc1") for k in range(4)], list(range(YY, YY+4)))
    A("s_waitcnt vmcnt(0)")
    red32(YY, YY+5)
    rnd1(YY); A(f"v_lshlrev_b32 v{YY+4}, 16, v{YY+4}"); A(f"v_add_f32 v{YY}, v{YY}, v{YY+4}"); rnd1(YY)
    A(f"v_mul_f32 v{YY+1}, {hx(f2u(-LOG2E))}, v{YY}"); A(f"v_exp_f32 v{YY+1}, v{YY+1}"); A(f"v_add_f32 v{YY+1}, 1.0, v{YY+1}"); A(f"v_rcp_f32 v{YY+1}, v{YY+1}")
    A(f"v_mul_f32 v{vG}, v{YY}, v{YY+1}"); rnd1(vG)
    A(f"v_lshlrev_b32 v{vXo}, 16, v{vXo}")
    SS = 112
    if H2WAIT == "sp": ldswait("OW2", L_SPD, 1, 1)
    else: ldswait("OW2", L_CNTO, 8, 1)
    if H2DELAY: A(f"s_sleep {H2DELAY}")
    pollmask("H2", lambda: [A(f"global_load_dword v{SS+k}, v{vH2}, {ws} offset:{SL*k} {F2}") for k in range(4)], list(range(SS, SS+4)))
    stamp(7)
    red32(SS, T)
    rnd1(SS); A(f"v_mul_f32 v{SS}, v{SS}, v{vG}"); rnd1(SS); A(f"v_add_f32 v{SS}, v{SS}, v{vXo}")
    A(f"v_cvt_pk_bf16_f32 v{SS}, v{SS}, v{SS}")
    A("s_mov_b64 exec, 0xff")
    A(f"global_store_short v{vOA}, v{SS}, s[{sOUT}:{sOUT+1}]")
    A("s_mov_b64 exec, -1")
    A.label("L_EXIT")
    if ECHO:
        stamp(11); A("s_waitcnt lgkmcnt(0)")
        A(f"s_cmp_lg_u32 s2, 0"); A("s_cbranch_scc1 L_END")
        A(f"s_cmp_lg_u32 s{sW}, {ECHO[0]}"); A("s_cbranch_scc1 L_END")
        A(f"s_sub_u32 s{sT}, s{SB+2*ECHO[1]}, s{SB}"); A(f"s_lshl_b32 s{sT}, s{sT}, 2"); A(f"s_add_u32 s{sT}, s{sT}, 4000"); A(f"s_add_u32 s{sT}, s{sT}, s{SB}")
        A.label("L_ECHO")
        A(f"s_memrealtime s[{sR}:{sR+1}]"); A("s_waitcnt lgkmcnt(0)"); A(f"s_sub_u32 s{sT2}, s{sR}, s{sT}"); A(f"s_cmp_lt_i32 s{sT2}, 0"); A("s_cbranch_scc1 L_ECHO")
    elif STAMP:
        stamp(11)
        A("s_waitcnt lgkmcnt(0) vmcnt(0)")
        A(f"s_lshl_b32 s{sT}, s2, 3"); A(f"s_add_u32 s{sT}, s{sT}, s{sW}"); A(f"s_mul_i32 s{sT}, s{sT}, {NST*8}"); A(f"s_add_u32 s{sT}, s{sT}, {W_ST}")
        A(f"v_mov_b32 v3, s{sT}")
        for k in range(2*NST): A(f"v_mov_b32 v{40+k}, s{SB+k}")
        A("s_mov_b64 exec, 1")
        for q in range(NST // 2): A(f"global_store_dwordx4 v3, {rng(40+4*q)}, {ws} offset:{16*q}")
    A.label("L_END")
    A("s_endpgm")
    svc = A.lines[MARK_SERVICE:MARK_STREAM2]
    assert A.lines[MARK_SERVICE-1].strip() == "s_branch L_STREAM2"
    A.lines = A.lines[:MARK_SERVICE-1] + A.lines[MARK_STREAM2:] + svc + ["    s_branch L_STREAM2", "L_CODE_END:"]
    A.raw(".set CODE_KB, (L_CODE_END - L_PC0) >> 10" if PF else "")
    A.raw("    s_endpgm"); A.raw(".fill 260, 4, 0xbf800000")
    A.raw('.section .rodata,"a"'); A.raw(".p2align 6"); A.raw(f".amdhsa_kernel {KN}_kernel")
    A.raw("  .amdhsa_next_free_vgpr 256"); A.raw("  .amdhsa_next_free_sgpr 102"); A.raw("  .amdhsa_accum_offset 168")
    A.raw("  .amdhsa_group_segment_fixed_size 0"); A.raw("  .amdhsa_kernarg_size 104"); A.raw("  .amdhsa_user_sgpr_count 2")
    A.raw("  .amdhsa_user_sgpr_kernarg_segment_ptr 1"); A.raw("  .amdhsa_system_sgpr_workgroup_id_x 1")
    A.raw("  .amdhsa_float_denorm_mode_32 3")
    A.raw(".end_amdhsa_kernel")
    return A.text()

if __name__ == "__main__":
    out = sys.argv[1]
    kw = eval("dict(" + (sys.argv[2] if len(sys.argv) > 2 else "") + ")")
    open(out, "w").write(gen(**kw))
```
